```python
import torch

def _softmax(x, axis=-1):
    return torch.softmax(x, dim=axis)
def _gelu(x):
    return torch.nn.functional.gelu(x, approximate="tanh")
def _silu(x):
    return torch.nn.functional.silu(x)
def _sigmoid(x):
    return torch.sigmoid(x)
def _layernorm(x, axis=-1, eps=1e-5):
    m = x.mean(dim=axis, keepdim=True)
    v = x.var(dim=axis, keepdim=True, unbiased=False)
    return (x - m) / torch.sqrt(v + eps)
def _scatter_add(tgt, idx, src, axis=0):
    return tgt.clone().index_add_(axis, idx, src)
def _segment_sum(src, seg, n):
    out = torch.zeros((n,) + src.shape[1:], dtype=src.dtype)
    return out.index_add_(0, seg, src)
def _pad(x, pw):
    flat = tuple(v for pair in reversed(pw) for v in pair)
    return torch.nn.functional.pad(x, flat)

kernel_name = 'sequential_preLN__sliding_block__glu_gated_glu__prompt'

def setup_inputs():

    _w = (lambda a: (lambda t: t.to(torch.bfloat16) if t.is_floating_point() else t)(torch.as_tensor(a)))
    def _A_setup():
        B, S, D = 1, 2048, 640
        return {
            "x": _w((lambda *s: torch.randn(*s, dtype=torch.bfloat16) * 0.05)(B, S, D)),
            "wqkv": _w((lambda *s: torch.randn(*s, dtype=torch.bfloat16) * 0.05)(D, 3 * D)),
            "wo": _w((lambda *s: torch.randn(*s, dtype=torch.bfloat16) * 0.05)(D, D)),
        }
    _A_in = _A_setup()

    def _B_setup():
        B, S, D, F = 1, 2048, 640, 1728
        return {
            "x": _w((lambda *s: torch.randn(*s, dtype=torch.bfloat16) * 0.05)(B, S, D)),
            "w_gate": _w((lambda *s: torch.randn(*s, dtype=torch.bfloat16) * 0.05)(D, F)),
            "w_up": _w((lambda *s: torch.randn(*s, dtype=torch.bfloat16) * 0.05)(D, F)),
            "w_down": _w((lambda *s: torch.randn(*s, dtype=torch.bfloat16) * 0.05)(F, D)),
        }
    _B_in = _B_setup()

    return {
        "A_x": _A_in["x"],
        "A_wqkv": _A_in["wqkv"],
        "A_wo": _A_in["wo"],
        "B_x": _B_in["x"],
        "B_w_gate": _B_in["w_gate"],
        "B_w_up": _B_in["w_up"],
        "B_w_down": _B_in["w_down"],
    }

def reference(A_x, A_wqkv, A_wo, B_x, B_w_gate, B_w_up, B_w_down):
    def _A_ref(x, wqkv, wo):
        B, S, D = x.shape
        H = 32; Dh = D // H; W = 256
        qkv = (lambda x, *d: x.permute(*d))((x @ wqkv).reshape(B, S, 3, H, Dh), 2, 0, 3, 1, 4)
        q, k, v = qkv[0], qkv[1], qkv[2]
        scores = torch.einsum("bhqd,bhkd->bhqk", q, k) * (Dh ** -0.5)
        idx = torch.arange(S)
        mask = (idx[:, None] - idx[None, :] >= 0) & (idx[:, None] - idx[None, :] < W)
        scores = torch.where(mask[None, None], scores, -1e9)
        p = _softmax(scores, axis=-1)
        o = torch.einsum("bhqk,bhkd->bhqd", p, v)
        return (lambda x, *d: x.permute(*d))(o, 0, 2, 1, 3).reshape(B, S, D) @ wo

    def _B_ref(x, w_gate, w_up, w_down):
        g = torch.einsum("bsd,df->bsf", x, w_gate)
        u = torch.einsum("bsd,df->bsf", x, w_up)
        h = _sigmoid(g) * u
        return torch.einsum("bsf,fd->bsd", h, w_down)

    x = A_x
    h = x + _A_ref(_layernorm(x, axis=-1), A_wqkv, A_wo)
    h2 = h + _B_ref(_layernorm(h, axis=-1), B_w_gate, B_w_up, B_w_down)
    return h2
```

```python
import re

TRANS = ('v_exp_f32', 'v_log_f32', 'v_rcp_f32', 'v_rsq_f32', 'v_sqrt_f32', 'v_sin_f32', 'v_cos_f32', 'v_rcp_iflag_f32')

def regs_of(op):
    op = op.strip()
    op = re.sub(r'^-', '', op)
    op = re.sub(r'^abs\((.*)\)$', r'\1', op)
    op = re.sub(r'^\|(.*)\|$', r'\1', op)
    m = re.fullmatch(r'([vsa])(\d+)', op)
    if m:
        return {(m.group(1), int(m.group(2)))}
    m = re.fullmatch(r'([vsa])\[(\d+):(\d+)\]', op)
    if m:
        return {(m.group(1), i) for i in range(int(m.group(2)), int(m.group(3)) + 1)}
    if op in ('vcc', 'vcc_lo', 'vcc_hi'):
        return {('vcc', 0)}
    if op in ('exec', 'exec_lo', 'exec_hi'):
        return {('exec', 0)}
    if op == 'm0':
        return {('m0', 0)}
    return set()

class Ins:
    __slots__ = ('text', 'mn', 'kind', 'w', 'r', 'passes', 'srcc', 'srcab', 'ws', 'dpp', 'wide_data', 'lanesel', 'dst')

def parse(text):
    t = text.split(';')[0].strip()
    ins = Ins()
    ins.text = text
    sp = t.split(None, 1)
    mn = sp[0]
    rest = sp[1] if len(sp) > 1 else ''
    ops = []
    cur = ''
    depth = 0
    for ch in rest:
        if ch in '[(':
            depth += 1
        if ch in '])':
            depth -= 1
        if ch == ',' and depth == 0:
            ops.append(cur.strip()); cur = ''
        else:
            cur += ch
    if cur.strip():
        ops.append(cur.strip())
    mods = ''
    if ops:
        last = ops[-1].split(None, 1)
        ops[-1] = last[0]
        mods = last[1] if len(last) > 1 else ''
    base = re.sub(r'_(e32|e64|dpp|sdwa)$', '', mn)
    ins.mn = base
    ins.w = set(); ins.r = set(); ins.passes = 0; ins.srcc = set(); ins.srcab = set(); ins.ws = 1
    ins.dpp = ('_dpp' in mn) or ('row_' in mods) or ('quad_perm' in mods)
    ins.wide_data = set(); ins.lanesel = set(); ins.dst = set()
    R = [regs_of(o) for o in ops]
    if base.startswith('v_mfma'):
        ins.kind = 'mfma'
        ins.passes = 8 if '32x32' in base else 4
        ins.w = R[0]; ins.srcab = R[1] | R[2]; ins.srcc = R[3]; ins.r = R[1] | R[2] | R[3]
    elif base.startswith('v_'):
        ins.kind = 'trans' if base in TRANS else 'valu'
        if base.startswith('v_permlane') and 'swap' in base:
            ins.w = R[0] | R[1]; ins.r = R[0] | R[1]
        elif base in ('v_add_co_u32', 'v_sub_co_u32', 'v_addc_co_u32', 'v_subb_co_u32', 'v_subrev_co_u32', 'v_mad_u64_u32'):
            ins.w = R[0] | R[1]; ins.r = set().union(*R[2:])
        elif base == 'v_nop':
            pass
        else:
            ins.w = R[0]; ins.r = set().union(*R[1:]) if len(R) > 1 else set()
            if base in ('v_fmac_f32', 'v_dot2c_f32_bf16', 'v_pk_fmac_f16', 'v_writelane_b32') or ins.dpp:
                ins.r |= R[0]
            if base in ('v_readlane_b32', 'v_writelane_b32'):
                ins.lanesel = R[2]
    elif base.startswith('ds_'):
        ins.kind = 'ds'
        if base.startswith('ds_read') or base.startswith('ds_bpermute') or base.startswith('ds_permute') or base.startswith('ds_swizzle') or '_rtn' in base:
            ins.w = R[0]; ins.r = set().union(*R[1:])
        else:
            ins.r = set().union(*R)
    elif base.startswith('buffer_') or base.startswith('global_'):
        ins.kind = 'vmem'
        lds = re.search(r'\blds\b', mods) is not None or '_lds_' in base
        if base in ('buffer_wbl2', 'buffer_inv'):
            pass
        elif lds:
            ins.kind = 'dma'
            ins.r = set().union(*R) | {('m0', 0)}
        elif 'load' in base:
            ins.w = R[0]; ins.r = set().union(*R[1:])
        elif 'atomic' in base:
            ins.r = set().union(*R)
            if 'sc0' in mods:
                ins.w = R[0]
        else:
            ins.r = set().union(*R)
            data = R[0] if base.startswith('buffer_') else R[1]
            if 'x3' in base or 'x4' in base:
                ins.wide_data = data
    elif base.startswith('s_'):
        ins.kind = 'salu'
        if base == 's_nop':
            ins.ws = int(ops[0], 0) + 1
        elif base.startswith(('s_cmp', 's_cbranch', 's_branch', 's_waitcnt', 's_barrier', 's_sleep', 's_setprio', 's_endpgm', 's_bitcmp', 's_setpc')):
            ins.r = set().union(*R) if R else set()
        elif base.startswith(('s_load', 's_memtime', 's_memrealtime', 's_buffer_load')):
            ins.kind = 'smem'
            ins.w = R[0]; ins.r = set().union(*R[1:]) if len(R) > 1 else set()
        else:
            ins.w = R[0]; ins.r = set().union(*R[1:]) if len(R) > 1 else set()
            if 'saveexec' in base:
                ins.w = ins.w | {('exec', 0)}
    else:
        raise ValueError('unknown instr: ' + text)
    return ins

def isv(s):
    return {x for x in s if x[0] in ('v', 'a')}
def iss(s):
    return {x for x in s if x[0] in ('s', 'vcc')}

def need(p, c):
    n = 0
    pv = p.kind in ('valu', 'trans')
    cv = c.kind in ('valu', 'trans')
    if pv:
        wv = isv(p.w); wsg = iss(p.w)
        if c.kind == 'mfma' and wv & c.r:
            n = max(n, 2)
        if p.kind == 'trans' and (wv & c.r):
            n = max(n, 1)
        if wsg:
            if cv and (wsg & c.r):
                n = max(n, 2)
            if cv and (wsg & c.lanesel):
                n = max(n, 4)
            if c.kind in ('vmem', 'dma') and (wsg & c.r):
                n = max(n, 5)
            if c.kind in ('salu', 'smem') and (wsg & c.r):
                n = max(n, 1)
        if cv and (wv & c.r):
            if c.mn in ('v_readfirstlane_b32', 'v_readlane_b32'):
                n = max(n, 1)
            if c.mn.startswith('v_permlane'):
                n = max(n, 2)
            if c.dpp:
                n = max(n, 2)
    if p.kind == 'mfma':
        big = 12 if p.passes == 8 else 8
        if c.kind == 'mfma':
            if p.w & c.srcab:
                n = max(n, big)
            if p.w & c.srcc:
                if not (p.w == c.srcc and p.passes == c.passes):
                    n = max(n, p.passes + 2)
            elif p.w & c.w:
                n = max(n, p.passes + 2)
        elif cv or c.kind in ('vmem', 'ds', 'dma'):
            if p.w & (c.r | c.w):
                n = max(n, big)
            if cv and (p.srcc & c.w):
                n = max(n, 7 if p.passes == 8 else 3)
    if p.kind == 'salu' and ('m0', 0) in p.w and c.kind == 'dma':
        n = max(n, 1)
    if p.wide_data and (p.wide_data & c.w):
        n = max(n, 2 if cv else 1)
    return n

class Asm:
    def __init__(self):
        self.lines = []
        self.hist = []
        self.nlabel = 0
        self.pad_count = 0
    def raw(self, s):
        self.lines.append(s)
    def label(self, name, clean=True):
        self.lines.append(name + ':')
    def newlabel(self, p='L'):
        self.nlabel += 1
        return f'{p}_{self.nlabel}'
    def comment(self, s):
        self.lines.append('    ; ' + s)
    def __call__(self, text):
        for t in text.split('\n'):
            t = t.strip()
            if not t:
                continue
            if t.endswith(':'):
                self.lines.append(t); continue
            if t.startswith(';') or t.startswith('.'):
                self.lines.append('    ' + t); continue
            ins = parse(t)
            dist = 0
            req = 0
            for p in reversed(self.hist):
                n = need(p, ins)
                if n - dist > req:
                    req = n - dist
                dist += p.ws
                if dist > 20:
                    break
            while req > 0:
                k = min(req, 16)
                nop = parse(f's_nop {k-1}')
                self.lines.append(f'    s_nop {k-1}')
                self.hist.append(nop)
                self.pad_count += 1
                req -= k
            self.lines.append('    ' + t)
            self.hist.append(ins)
            if len(self.hist) > 40:
                self.hist = self.hist[-30:]
    def settle(self, n=13):
        self(f's_nop {n-1}')
    def text(self):
        return '\n'.join(self.lines) + '\n'
```

```python
def install(Gen, G):
    globals().update({k: v for k, v in G.items() if not k.startswith('__')})
    for f in (p2, p3_prefetch, p3, p4, p5):
        setattr(Gen, f.__name__, f)

KV0 = 102400
OCTP = 8256

def p2(self):
    a = self.a
    self.vm = VM(); self.nbar = 0
    a(f"""s_and_b32 s40, s2, 7
    s_lshl_b32 s40, s40, 2
    s_bfe_u32 s41, s2, 0x20003
    s_add_u32 s40, s40, s41
    s_lshr_b32 s41, s2, 5
    s_mul_i32 s42, s40, 5
    s_lshr_b32 s42, s42, 1
    s_and_b32 s43, s40, 1
    s_add_u32 s44, s42, s43
    s_xor_b32 s45, s43, 1
    s_lshl_b32 s45, s45, 1
    s_add_u32 s45, s45, s42""")
    a(f"""s_add_u32 s46, s42, 2
    s_lshr_b32 s46, s46, 4
    s_lshr_b32 s47, s42, 4
    s_sub_u32 s46, s46, s47
    s_add_u32 s46, s46, 1
    s_cmp_eq_u32 s41, 0
    s_cselect_b32 s47, 6, 10
    s_mul_i32 s46, s46, s47
    s_sub_u32 s48, 8, s{sWAVE}
    s_cmp_eq_u32 s41, 0
    s_cselect_b32 s48, s48, 0
    s_lshl_b32 s47, s41, 5
    s_add_u32 s47, s47, s40
    s_lshl_b32 s47, s47, 7
    s_add_u32 s47, s47, {4*M_S1}""")
    a(f"""v_and_b32 v2, 31, v1
    v_lshrrev_b32 v3, 5, v1
    v_lshlrev_b32 v4, 4, v1""")
    a(f"""v_mov_b32 v8, 0x3f803f80
    v_mov_b32 v9, 0x3f803f80
    v_mov_b32 v10, 0x3f803f80
    v_mov_b32 v11, 0x3f803f80
    s_lshl_b32 s49, s{sWAVE}, 10
    s_add_u32 s50, s49, {KV0+6*OCTP}
    v_add_u32 v5, s50, v4
    ds_write_b128 v5, v[8:11]""")
    a("v_lshlrev_b32 v5, 2, v3\nv_sub_u32 v5, v2, v5")
    for r in range(16):
        a(f"v_cmp_le_i32 s[{64+2*r}:{65+2*r}], {8*(r>>2)+(r&3)}, v5")
    PM = 52
    a("v_mov_b32 v6, 0xffff\nv_mov_b32 v7, 0xffff0000")
    for i in range(8):
        a(f"v_cndmask_b32 v{PM+i}, 0, v6, s[{64+4*i}:{65+4*i}]\nv_cndmask_b32 v8, 0, v7, s[{66+4*i}:{67+4*i}]\nv_or_b32 v{PM+i}, v{PM+i}, v8")
    a(f"""s_lshl_b32 s50, s{sWAVE}, 9
    s_add_u32 s50, s50, {KV0}
    v_lshl_add_u32 v13, v2, 4, s50
    v_mul_u32_u24 v12, {OCTP}, v3
    v_add_u32 v12, v12, v13
    v_add_u32 v13, {2*OCTP}, v13""")
    a(f"""v_bfe_u32 v5, v1, 2, 2
    v_lshl_add_u32 v5, v3, 2, v5
    v_lshl_add_u32 v14, v5, 4, s50
    v_and_b32 v5, 1, v1
    v_bfe_u32 v6, v1, 1, 1
    v_mov_b32 v7, s43
    v_cmp_eq_u32 vcc, 1, v6
    v_cndmask_b32 v7, v7, v5, vcc
    v_add_u32 v8, 2, v6
    v_and_b32 v9, 16, v1
    v_cmp_eq_u32 vcc, 0, v9
    v_cndmask_b32 v8, v8, v5, vcc
    v_cndmask_b32 v7, v7, v6, vcc
    v_mul_u32_u24 v8, {OCTP}, v8
    v_lshl_add_u32 v8, v7, 3, v8
    v_add_u32 v14, v14, v8
    v_add_u32 v14, {3*OCTP}, v14""")
    a(f"""s_lshl_b32 s50, s41, 2
    s_add_u32 s50, s50, s{sWAVE}
    s_cmp_lt_u32 s50, 4
    s_cselect_b32 s51, 0, 4
    s_sub_u32 s50, s50, s51
    s_lshl_b32 s50, s50, 10
    s_add_u32 s50, s50, {QKV + 80*32768}
    s_lshl_b32 s51, s44, 15
    s_add_u32 s51, s51, s50
    s_lshl_b32 s52, s45, 15
    s_add_u32 s52, s52, s50
    s_add_u32 s49, s49, {KV0}""")
    a(f"""s_lshl_b32 s53, s41, 3
    s_add_u32 s53, s53, s{sWAVE}
    s_lshl_b32 s54, s53, 9
    s_add_u32 s54, s54, {QKV}
    s_lshl_b32 s55, s44, 15
    s_add_u32 s55, s55, s54
    s_lshl_b32 s56, s45, 15
    s_add_u32 s56, s56, s54
    v_lshlrev_b32 v5, 15, v3
    v_lshl_add_u32 v5, v2, 4, v5
    v_lshlrev_b32 v6, 4, v2
    v_mov_b32 v8, {OOB}
    v_add_u32 v9, s43, v3
    v_cmp_eq_u32 vcc, 0, v9
    v_cndmask_b32 v7, v8, v6, vcc
    v_cmp_gt_u32 vcc, s43, v3
    v_cndmask_b32 v6, v8, v6, vcc""")
    self.stamp('p2pre')
    self.poll("s47", "s46", 8, 9)
    self.stamp('p2poll')
    Q0, Q1 = 16, 20
    def dma(o, goff, add, tag):
        a(f"s_add_u32 m0, s49, {o*OCTP}")
        if add: a(f"s_add_u32 s57, s{goff}, {add}")
        self.vmem(f"buffer_load_dwordx4 v4, {WS}, s{57 if add else goff} offen sc1 lds", tag)
    dma(0, 51, 0, 'K'); dma(1, 51, 32768, 'K'); dma(2, 52, 0, 'K')
    self.vmem(f"buffer_load_dwordx4 {vr(Q0)}, v5, {WS}, s55 offen sc1", 'K')
    self.vmem(f"buffer_load_dwordx2 {vr(Q1,2)}, v7, {WS}, s56 offen sc1", 'K')
    self.vmem(f"buffer_load_dwordx2 {vr(Q1+2,2)}, v6, {WS}, s56 offen offset:8 sc1", 'K')
    dma(3, 51, 80*32768, 'V'); dma(4, 51, 81*32768, 'V'); dma(5, 52, 80*32768, 'V')
    self.wait_vm('K')
    a("s_waitcnt lgkmcnt(0)")
    self.bar()
    self.stamp('p2k')
    SB = 64; OA = 208; KF = 224; VF = 24
    Sr = lambda t: SB + 16 * t
    lg = LG(a)
    order = [8, 0, 1, 2, 3, 4, 5, 6, 7]
    def kread(n):
        t = order[n]; kb = KF + 8 * (n % 3)
        lg.op(f"ds_read_b128 {vr(kb)}, v12 offset:{512*t}")
        lg.op(f"ds_read_b128 {vr(kb+4)}, v13 offset:{512*t}", ('K', n))
    def qk(n):
        t = order[n]; kb = KF + 8 * (n % 3)
        lg.need(('K', n))
        a(f"v_mfma_f32_32x32x16_bf16 {vr(Sr(t),16)}, {vr(kb)}, {vr(Q0)}, 0")
        a(f"v_mfma_f32_32x32x16_bf16 {vr(Sr(t),16)}, {vr(kb+4)}, {vr(Q1)}, {vr(Sr(t),16)}")
    def fix(t):
        Lf = f"L_fix{t}"; Lb = f"L_fixb{t}"
        a(f"s_cmp_gt_u32 s48, {t}\ns_cbranch_scc1 {Lf}\n{Lb}:")
        def blk():
            a(f"{Lf}:")
            a("s_nop 15")
            for i in range(16): a(f"v_mov_b32 v{Sr(t)+i}, 0xff800000")
            a(f"s_branch {Lb}")
        self.tail.append(blk)
    M0, M1 = 60, 61
    first = [True]
    def vmax(t):
        b = Sr(t)
        for i in range(0, 16, 4):
            if first[0] and i == 0:
                a(f"v_max_f32 v{M0}, v{b}, v{b+1}\nv_max_f32 v{M1}, v{b+2}, v{b+3}")
                first[0] = False
            else:
                a(f"v_max3_f32 v{M0}, v{M0}, v{b+i}, v{b+i+1}\nv_max3_f32 v{M1}, v{M1}, v{b+i+2}, v{b+i+3}")
    def post(n):
        t = order[n]
        if t == 8: return
        fix(t)
        if t == 0:
            for r in range(16):
                a(f"v_cndmask_b32 v{Sr(8)+r}, v{Sr(0)+r}, v{Sr(8)+r}, s[{64+2*r}:{65+2*r}]")
            vmax(8)
        else: vmax(t)
    kread(0); kread(1); kread(2)
    for n in range(9):
        qk(n)
        if n + 3 < 9: kread(n + 3)
        if n >= 1: post(n - 1)
    post(8)
    a(f"""v_max_f32 v{M0}, v{M0}, v{M1}
    v_mov_b32 v{M1}, v{M0}
    v_permlane32_swap_b32 v{M0}, v{M1}
    v_max_f32 v{M0}, v{M0}, v{M1}""")
    self.wait_vm('V')
    self.bar()
    self.stamp('p2v')
    pv = [8, 0, 1, 2, 3, 4, 5, 6, 7]
    def vread(n):
        t = pv[n]; vb = VF + 8 * (n % 3)
        for sp in range(2):
            for tt in range(2):
                lg.op(f"ds_read_b64_tr_b16 {vr(vb+4*sp+2*tt,2)}, v14 offset:{(32*t+16*sp+8*tt)*16}", ('V', n))
    def soft(t):
        b = Sr(t)
        for i in range(16): a(f"v_sub_f32 v{b+i}, v{b+i}, v{M0}")
        for i in range(16): a(f"v_exp_f32 v{b+i}, v{b+i}")
        for i in range(8): a(f"v_cvt_pk_bf16_f32 v{b+i}, v{b+2*i}, v{b+2*i+1}")
    def pvm(n):
        t = pv[n]; vb = VF + 8 * (n % 3)
        pb = Sr(8) + 8 if t == 8 else Sr(t)
        lg.need(('V', n))
        for sp in range(2):
            c = "0" if (n == 0 and sp == 0) else vr(OA, 16)
            a(f"v_mfma_f32_32x32x16_bf16 {vr(OA,16)}, {vr(vb+4*sp)}, {vr(pb+4*sp)}, {c}")
    vread(0); vread(1); vread(2)
    soft(8)
    for i in range(8):
        a(f"v_and_b32 v{Sr(8)+8+i}, v{Sr(8)+i}, v{PM+i}\nv_bfi_b32 v{Sr(0)+i}, v{PM+i}, 0, v{Sr(8)+i}")
    pvm(0); vread(3); pvm(1); vread(4)
    for n in range(2, 9):
        soft(pv[n])
        pvm(n)
        if n + 3 < 9: vread(n + 3)
    a(f"""v_bfe_u32 v5, v1, 4, 1
    v_mul_u32_u24 v5, 20480, v5
    v_and_b32 v6, 15, v1
    v_lshl_add_u32 v5, v6, 4, v5
    v_mov_b32 v8, {OOB}
    v_cmp_eq_u32 vcc, 0, v3
    v_cndmask_b32 v6, v8, v5, vcc
    v_lshl_add_u32 v5, v3, 8, v5
    s_mul_i32 s54, s53, 40960
    s_add_u32 s54, s54, {OO}
    s_lshl_b32 s55, s44, 8
    s_add_u32 s55, s55, s54
    s_lshl_b32 s56, s45, 8
    s_add_u32 s56, s56, s54
    s_lshl_b32 s57, s43, 3
    s_add_u32 s56, s56, s57
    v_rcp_f32 v8, v{OA+12}""")
    for i in range(12): a(f"v_mul_f32 v{OA+i}, v{OA+i}, v8")
    for i in range(6): a(f"v_cvt_pk_bf16_f32 v{16+i}, v{OA+2*i}, v{OA+2*i+1}")
    a(f"buffer_store_dwordx4 v[16:19], v5, {WS}, s55 offen sc1")
    a(f"buffer_store_dwordx2 v[20:21], v6, {WS}, s56 offen sc1")
    self.stamp('p2cmp')
    a("s_waitcnt vmcnt(0)")
    self.bar()
    self.stamp('p2st')
    L = a.newlabel('Lp2s')
    a(f"""s_cmp_lg_u32 s{sWAVE}, 4
    s_cbranch_scc1 {L}
    s_lshl_b32 s50, s41, 5
    v_add_u32 v4, s50, v1
    v_cmp_gt_u32 vcc, 32, v1""")
    self.signal(4, M_S2, 5)
    a(f"{L}:")
    a.settle()

def p3_coords(a):
    a("""s_and_b32 s40, s2, 6
    s_lshl_b32 s40, s40, 2
    s_lshr_b32 s41, s2, 5
    s_add_u32 s40, s40, s41
    s_and_b32 s41, s2, 1
    s_lshl_b32 s41, s41, 2
    s_bfe_u32 s42, s2, 0x20003
    s_add_u32 s41, s41, s42""")

def p3_prefetch(self):
    a = self.a
    p3_coords(a)
    for j in range(5):
        a(f"""v_add_u32 v10, {64*j}, v1
        v_mul_u32_u24 v11, 6554, v10
        v_lshrrev_b32 v11, 16, v11
        v_mul_u32_u24 v12, 10, v11
        v_sub_u32 v12, v10, v12
        v_and_b32 v13, 0x13, v11
        v_bfe_u32 v14, v11, 2, 1
        v_lshl_add_u32 v13, v14, 3, v13
        v_bfe_u32 v14, v11, 3, 1
        v_lshl_add_u32 v13, v14, 2, v13
        v_mul_u32_u24 v13, 1280, v13
        v_lshl_add_u32 v{2+j}, v12, 4, v13""")
    a(f"""s_mul_i32 s42, s41, 160
    s_mul_i32 s43, s{sHW}, {160*1280}
    s_add_u32 s42, s42, s43
    s_mul_i32 s43, s{sHW}, {160*160}""")
    for g in range(5):
        for j in range(5):
            a(f"s_add_u32 m0, s43, {g*5120 + j*1024}")
            self.vmem(f"buffer_load_dwordx4 v{2+j}, {srd(SRD_WO)}, s42 offen lds", 'wo')
        if g < 4: a(f"s_add_u32 s42, s42, {32*1280}")

def p3(self):
    a = self.a
    self.vm = VM(); self.nbar = 0
    a(f"s_cmp_ge_u32 s{sWAVE}, 4\ns_cbranch_scc1 L_p3_h")
    p3_coords(a)
    OF = 16; ACC = 96; WF = 116; NW = 6; XR = 236
    a(f"""v_and_b32 v2, 15, v1
    v_lshrrev_b32 v3, 4, v1
    v_bfe_u32 v4, v1, 2, 3
    v_lshrrev_b32 v5, 5, v1
    v_lshl_add_u32 v4, v5, 4, v4
    v_mul_u32_u24 v4, 160, v4
    v_and_b32 v5, 3, v1
    v_lshl_add_u32 v4, v5, 3, v4
    v_add_u32 v5, 61440, v4
    s_lshl_b32 s42, s40, 2
    s_add_u32 s42, s42, s{sWAVE}""")
    a(f"""v_mul_u32_u24 v6, 1280, v2
    v_lshl_add_u32 v6, v3, 3, v6
    s_mul_i32 s43, s42, {16*1280}
    s_mul_i32 s44, s41, 160
    s_add_u32 s43, s43, s44""")
    for nu in range(5):
        a(f"buffer_load_dwordx2 {vr(XR+2*nu,2)}, v6, {srd(SRD_X)}, s43 offen offset:{32*nu}")
    lg = LG(a)
    def wread(s):
        wb = WF + 20 * (s % NW)
        base, off = (4, 32 * s * 160) if s < 12 else (5, 32 * s * 160 - 61440)
        return [(f"ds_read_b64_tr_b16 {vr(wb+4*nu+2*t,2)}, v{base} offset:{off+8*t*160+32*nu}", ('W', s, nu)) for nu in range(5) for t in range(2)]
    for s in range(NW):
        for r in wread(s): lg.op(*r)
        lg.drain()
    a(f"""s_lshl_b32 s44, s40, 3
    s_add_u32 s44, s44, s41
    s_lshl_b32 s44, s44, 7
    s_add_u32 s44, s44, {4*M_S2}
    s_mul_i32 s45, s42, 20480
    s_add_u32 s46, s45, {OO}
    v_lshlrev_b32 v7, 4, v1""")
    self.stamp('p3pre')
    self.poll("s44", 32, 8, 9)
    self.stamp('p3poll')
    for s in range(20):
        self.vmem(f"buffer_load_dwordx4 {vr(OF+4*s)}, v7, {WS}, s46 offen offset:{1024*(s&3)} sc1", ('O', s))
        if s & 3 == 3 and s < 19: a("s_add_u32 s46, s46, 4096")
    for s in range(20):
        self.wait_vm(('O', s))
        wb = WF + 20 * (s % NW)
        nxt = wread(s - 1 + NW) if 1 <= s and s - 1 + NW < 20 else []
        for nu in range(5):
            lg.need(('W', s, nu))
            c = "0" if s == 0 else vr(ACC + 4 * nu)
            a(f"v_mfma_f32_16x16x32_bf16 {vr(ACC+4*nu)}, {vr(wb+4*nu)}, {vr(OF+4*s)}, {c}")
            for r in nxt[2*nu:2*nu+2]: lg.op(*r)
    self.stamp('p3loop')
    for i in range(10):
        a(f"v_lshlrev_b32 v{16+2*i}, 16, v{XR+i}\nv_and_b32 v{17+2*i}, 0xffff0000, v{XR+i}")
    a(f"""v_and_b32 v8, 1, v3
    v_lshlrev_b32 v9, 9, v8
    v_lshrrev_b32 v10, 1, v3
    v_lshlrev_b32 v10, 8, v10
    v_lshl_add_u32 v10, v2, 4, v10
    v_add_u32 v9, v9, v10
    v_mov_b32 v11, {OOB}
    v_cmp_eq_u32 vcc, 0, v8
    v_cndmask_b32 v10, v11, v10, vcc
    s_mul_i32 s46, s41, 2560
    s_add_u32 s46, s46, s45
    s_add_u32 s46, s46, {HH}""")
    for i in range(20): a(f"v_add_f32 v{16+i}, v{16+i}, v{ACC+i}")
    for i in range(10): a(f"v_cvt_pk_bf16_f32 v{40+i}, v{16+2*i}, v{17+2*i}")
    for p in range(3):
        a(f"v_permlane16_swap_b32 v{40+4*p}, v{42+4*p}\nv_permlane16_swap_b32 v{41+4*p}, v{43+4*p}")
        a(f"buffer_store_dwordx4 {vr(40+4*p)}, v{9 if p < 2 else 10}, {WS}, s46 offen offset:{1024*p} sc1")
    a("v_add_f32 v12, v16, v17\nv_mul_f32 v13, v16, v16\nv_fmac_f32 v13, v17, v17")
    for i in range(2, 20): a(f"v_add_f32 v12, v12, v{16+i}\nv_fmac_f32 v13, v{16+i}, v{16+i}")
    a(f"""v_permlane16_swap_b32 v12, v13
    v_add_f32 v12, v12, v13
    v_mov_b32 v13, v12
    v_permlane32_swap_b32 v12, v13
    v_add_f32 v12, v12, v13
    v_lshlrev_b32 v14, 13, v8
    v_lshl_add_u32 v14, v2, 2, v14
    s_lshl_b32 s46, s41, 14
    s_lshl_b32 s47, s42, 6
    s_add_u32 s46, s46, s47
    s_add_u32 s46, s46, {ST2}
    s_mov_b32 exec_hi, 0
    buffer_store_dword v12, v14, {WS}, s46 offen sc1
    s_mov_b64 exec, -1""")
    self.stamp('p3epi')
    a("s_waitcnt vmcnt(0)")
    self.bar()
    self.stamp('p3st')
    a(f"""s_cmp_lg_u32 s{sWAVE}, 0
    s_cbranch_scc1 L_p3_done
    s_lshr_b32 s46, s40, 2
    s_mul_i32 s46, s46, 27
    v_add_u32 v4, s46, v1
    v_cmp_gt_u32 vcc, 27, v1""")
    self.signal(4, M_S3, 5)
    a("s_branch L_p3_done")
    a("L_p3_h:")
    self.bar()
    a("L_p3_done:")
    a.settle()


P4_R, P4_SLOT = 4, 24576
P4_TAB = 4 * 24576

def p4(self):
    a = self.a
    R, SLOT, T = P4_R, P4_SLOT, P4_TAB
    LA = 2
    a(f"""s_cmp_ge_u32 s2, 216
    s_cbranch_scc1 L_p4_done
    s_and_b32 s40, s2, 3
    s_mul_i32 s40, s40, 27
    s_lshr_b32 s41, s2, 3
    s_add_u32 s40, s40, s41
    s_lshr_b32 s41, s40, 2
    s_and_b32 s40, s40, 3
    s_and_b32 s42, s2, 4
    s_add_u32 s40, s40, s42
    s_cmp_lt_u32 s{sWAVE}, 4
    s_cbranch_scc1 L_p4_c""")
    self.vm = VM(); self.nbar = 0
    self.w128_dma_voff(3456, 3, 10, 11)
    a(f"""s_and_b32 s42, s{sHW}, 1
    s_lshl_b32 s42, s42, 6
    v_xor_b32 v3, s42, v3
    v_lshlrev_b32 v2, 4, v1
    v_add_u32 v4, {20480-1024}, v2
    v_add_u32 v5, {2*(20480-1024)}, v2
    v_add_u32 v6, {3*(20480-1024)}, v2
    s_lshl_b32 s44, s40, 2
    s_add_u32 s44, s44, s{sHW}
    s_mul_i32 s44, s44, {4*20480}
    s_add_u32 s44, s44, {HH}
    s_mul_i32 s45, s{sHW}, {8*3456}
    s_lshl_b32 s46, s41, 7
    s_add_u32 s45, s45, s46
    s_lshl_b32 s47, s{sHW}, 12
    s_lshl_b32 s43, s{sHW}, 10
    s_mul_i32 s50, s40, 27
    s_add_u32 s50, s50, s41
    s_lshl_b32 s50, s50, 7
    s_add_u32 s51, s50, {4*M_S3}
    s_add_u32 s50, s50, {4*M_CS4}""")
    XV = [2, 4, 5, 6]
    def dma(st):
        slot = st % R
        a(f"s_add_u32 m0, s47, {slot*SLOT}")
        for i in range(4):
            self.vmem(f"buffer_load_dwordx4 v{XV[i]}, {WS}, s44 offen offset:{1024*i} sc1 lds", ('p4', st))
        a(f"s_add_u32 m0, s43, {slot*SLOT+16384}")
        self.vmem(f"buffer_load_dwordx4 v3, {srd(SRD_WG)}, s45 offen lds", ('p4', st))
        a(f"s_add_u32 m0, s43, {slot*SLOT+20480}")
        self.vmem(f"buffer_load_dwordx4 v3, {srd(SRD_WU)}, s45 offen lds", ('p4', st))
        if st < 19: a(f"s_add_u32 s44, s44, 1024\ns_add_u32 s45, s45, {32*3456}")
    self.poll("s51", 32, 8, 9)
    self.stamp('p4poll', 4)
    for st in range(LA): dma(st)
    for st in range(20):
        self.wait_vm(('p4', st))
        self.bar()
        if st + LA < 20: dma(st + LA)
    self.poll("s50", 8, 8, 9)
    a(f"""v_lshlrev_b32 v8, 2, v1
    s_lshl_b32 s48, s40, 2
    s_add_u32 s48, s48, s{sHW}
    s_lshl_b32 s48, s48, 8
    s_add_u32 s48, s48, {ST2}""")
    for i in range(16):
        a(f"buffer_load_dword v{16+i}, v8, {WS}, s48 offen sc1")
        if i < 15: a("s_add_u32 s48, s48, 8192")
    a(f"""s_and_b32 s48, s{sHW}, 1
    s_mul_i32 s49, s48, {1728*4}
    s_lshl_b32 s52, s41, 8
    s_add_u32 s49, s49, s52
    s_add_u32 s49, s49, {CS4}""")
    for q in range(4):
        a(f"buffer_load_dword v{32+q}, v8, {WS}, s49 offen sc1")
        if q < 3: a(f"s_add_u32 s49, s49, {3456*4}")
    a(f"""s_lshl_b32 s48, s48, 8
    s_add_u32 s48, s48, {T+4096}
    v_add_u32 v9, s48, v8
    s_add_u32 s48, s43, {T}
    v_add_u32 v10, s48, v2
    s_waitcnt vmcnt(0)""")
    for st in (8, 4, 2):
        for i in range(st): a(f"v_add_f32 v{16+i}, v{16+i}, v{16+st+i}")
    a(f"""v_add_f32 v32, v32, v33
    v_add_f32 v34, v34, v35
    v_add_f32 v32, v32, v34
    v_mov_b32 v20, {f32hex(1.0/D)}
    v_mul_f32 v12, v16, v20
    v_mul_f32 v17, v17, v20
    v_fma_f32 v17, -v12, v12, v17
    v_max_f32 v17, 0, v17
    v_add_f32 v17, {f32hex(1e-5)}, v17
    v_rsq_f32 v13, v17
    v_sqrt_f32 v14, v17
    v_mov_b32 v15, 0
    v_mul_f32 v13, {f32hex(-LOG2E)}, v13
    ds_write_b32 v9, v32
    ds_write_b128 v10, v[12:15]
    s_waitcnt lgkmcnt(0)""")
    self.bar()
    self.bar()
    a("s_branch L_p4_done")
    nb_h = self.nbar
    self.vm = VM(); self.nbar = 0
    a("L_p4_c:")
    XA, WA = 8, 10
    FR = 16; ACC = 112
    a(f"""s_and_b32 s48, s{sWAVE}, 1
    s_lshr_b32 s49, s{sWAVE}, 1
    v_and_b32 v2, 15, v1
    v_lshrrev_b32 v3, 4, v1
    s_lshl_b32 s50, s48, 13
    v_lshl_add_u32 v{XA}, v1, 4, s50
    v_add_u32 v{XA+1}, {2*SLOT}, v{XA}""")
    self.w128_read_addr(WA, 4)
    a(f"""s_lshl_b32 s50, s49, 6
    v_xor_b32 v{WA}, s50, v{WA}
    v_add_u32 v{WA}, 16384, v{WA}
    v_xor_b32 v{WA+1}, 32, v{WA}
    v_add_u32 v{WA+2}, {2*SLOT}, v{WA}
    v_add_u32 v{WA+3}, {2*SLOT}, v{WA+1}""")
    lg = LG(a)
    def reads(g):
        slot = g % R
        win, off = slot >> 1, (slot & 1) * SLOT
        fb = FR + 48 * (g & 1)
        W = lambda nu: [(f"ds_read_b64_tr_b16 {vr(fb+32+4*nu+2*t,2)}, v{WA+2*win+(nu&1)} offset:{off+4096*(nu>>1)+512*t}", ('W', g, nu)) for t in range(2)]
        X = lambda i: [(f"ds_read_b128 {vr(fb+4*i)}, v{XA+win} offset:{off+1024*i}", ('X', g, i))]
        out = W(0) + X(0) + W(1) + W(2) + W(3)
        for i in range(1, 8): out += X(i)
        return out
    self.bar()
    self.stamp('p4b0')
    for r in reads(0): lg.op(*r)
    for g in range(20):
        nxt = []
        if g + 1 < 20:
            self.bar()
            nxt = reads(g + 1)
        fb = FR + 48 * (g & 1)
        k = 0
        for mu in range(8):
            for nu in range(4):
                ac = ACC + 16 * mu + 4 * nu
                c = "0" if g == 0 else vr(ac)
                lg.need(('W', g, nu), ('X', g, mu))
                a(f"v_mfma_f32_16x16x32_bf16 {vr(ac)}, {vr(fb+32+4*nu)}, {vr(fb+4*mu)}, {c}")
                if k < len(nxt): lg.op(*nxt[k]); k += 1
    self.stamp('p4loop')
    self.bar()
    self.stamp('p4tab')
    ST, CSR, PK = 16, 48, 64
    a(f"""s_lshl_b32 s50, s48, 11
    s_add_u32 s50, s50, {T}
    v_lshl_add_u32 v4, v2, 4, s50
    s_lshl_b32 s50, s49, 7
    s_add_u32 s50, s50, {T+4096}
    v_lshl_add_u32 v5, v3, 4, s50""")
    for nu in range(4): a(f"ds_read_b128 {vr(CSR+4*nu)}, v5 offset:{256*(nu>>1)+64*(nu&1)}")
    for mu in range(8): a(f"ds_read_b128 {vr(ST+4*mu)}, v4 offset:{256*mu}")
    a(f"""v_and_b32 v6, 1, v3
    v_lshlrev_b32 v6, 9, v6
    v_lshrrev_b32 v7, 1, v3
    v_lshl_add_u32 v6, v7, 8, v6
    v_lshl_add_u32 v6, v2, 4, v6
    s_lshl_b32 s50, s40, 1
    s_add_u32 s50, s50, s48
    s_mul_i32 s50, s50, {8*216*256}
    s_lshl_b32 s51, s41, 1
    s_add_u32 s51, s51, s49
    s_lshl_b32 s51, s51, 10
    s_add_u32 s50, s50, s51
    s_add_u32 s50, s50, {HP}
    s_waitcnt lgkmcnt(0)""")
    for mu in range(8):
        st = ST + 4 * mu; b = ACC + 16 * mu; pk = PK + 4 * (mu % 4)
        for h in range(8):
            a(f"v_pk_fma_f32 {vr(b+2*h,2)}, {vr(CSR+2*h,2)}, {vr(st,2)}, {vr(b+2*h,2)} op_sel_hi:[1,0,1] neg_lo:[0,1,0] neg_hi:[0,1,0]")
        for h in range(4):
            a(f"v_pk_mul_f32 {vr(b+2*h,2)}, {vr(b+2*h,2)}, {vr(st,2)} op_sel:[0,1] op_sel_hi:[1,1]")
        for i in range(8): a(f"v_exp_f32 v{b+i}, v{b+i}")
        for h in range(4):
            a(f"v_pk_fma_f32 {vr(b+2*h,2)}, {vr(b+2*h,2)}, {vr(st+2,2)}, {vr(st+2,2)} op_sel_hi:[1,0,0]")
        for i in range(8): a(f"v_rcp_f32 v{b+i}, v{b+i}")
        for h in range(4):
            a(f"v_pk_mul_f32 {vr(b+2*h,2)}, {vr(b+2*h,2)}, {vr(b+8+2*h,2)}")
        for h in range(4): a(f"v_cvt_pk_bf16_f32 v{pk+h}, v{b+2*h}, v{b+2*h+1}")
        a(f"v_permlane16_swap_b32 v{pk}, v{pk+2}\nv_permlane16_swap_b32 v{pk+1}, v{pk+3}")
        a(f"buffer_store_dwordx4 {vr(pk)}, v6, {WS}, s50 offen sc1")
        if mu < 7: a(f"s_add_u32 s50, s50, {216*256}")
    self.stamp('p4epi')
    a("s_waitcnt vmcnt(0)")
    self.bar()
    self.stamp('p4st')
    assert self.nbar == nb_h, (self.nbar, nb_h)
    a(f"""s_cmp_lg_u32 s{sWAVE}, 0
    s_cbranch_scc1 L_p4_done
    s_lshl_b32 s50, s40, 3
    s_mul_i32 s51, s50, 21846
    s_lshr_b32 s51, s51, 16
    s_add_u32 s50, s50, 7
    s_mul_i32 s50, s50, 21846
    s_lshr_b32 s50, s50, 16
    s_sub_u32 s50, s50, s51
    s_add_u32 s50, s50, 1
    s_mul_i32 s50, s50, 10
    s_mul_i32 s51, s51, 10
    v_add_u32 v4, s51, v1
    v_cmp_gt_u32 vcc, s50, v1""")
    self.signal(4, M_S4, 5)
    a("L_p4_done:")
    a.settle()

P5_R, P5_SLOT = 5, 20480

def p5(self):
    a = self.a
    R, SLOT = P5_R, P5_SLOT
    LA = 3
    a(f"""s_cmp_ge_u32 s2, 224
    s_cbranch_scc1 L_end
    s_bfe_u32 s40, s2, 0x20001
    s_mul_i32 s40, s40, 28
    s_lshr_b32 s41, s2, 3
    s_add_u32 s42, s40, s41
    s_cmp_ge_u32 s42, 110
    s_cbranch_scc1 L_end
    s_mul_i32 s40, s42, 13108
    s_lshr_b32 s40, s40, 16
    s_mul_i32 s41, s40, 5
    s_sub_u32 s41, s42, s41
    s_and_b32 s42, s2, 1
    s_mul_i32 s42, s42, 5
    s_add_u32 s41, s41, s42
    s_cmp_lt_u32 s{sWAVE}, 4
    s_cbranch_scc1 L_p5_c""")
    self.vm = VM(); self.nbar = 0
    self.w128_dma_voff(1280, 5, 10, 11)
    a(f"""v_xor_b32 v6, 64, v5
    v_add_u32 v6, {8*1280-1024}, v6
    v_lshlrev_b32 v7, 4, v1
    s_mul_i32 s42, s{sHW}, 3""")
    for i in range(3):
        a(f"""s_add_u32 s43, s42, {i}
        s_lshr_b32 s44, s43, 1
        s_mul_i32 s44, s44, 55296
        s_and_b32 s43, s43, 1
        s_lshl_b32 s43, s43, 10
        s_add_u32 s44, s44, s43
        s_add_u32 s44, s44, {4096 - 1024*i}
        v_add_u32 v{2+i}, s44, v7""")
    a(f"""s_mul_i32 s44, s40, {6*55296}
    s_add_u32 s44, s44, {HP - 4096}
    s_mul_i32 s45, s{sHW}, {16*1280}
    s_lshl_b32 s46, s41, 7
    s_add_u32 s45, s45, s46
    s_mul_i32 s47, s{sHW}, 3072
    s_lshl_b32 s43, s{sHW}, 11
    s_mul_i32 s50, s40, 10
    s_add_u32 s50, s50, s41
    s_lshl_b32 s50, s50, 7
    s_add_u32 s50, s50, {4*M_S4}
    s_mul_i32 s51, s40, 3
    s_add_u32 s52, s51, 2
    s_min_u32 s52, s52, 63
    s_lshr_b32 s51, s51, 3
    s_lshr_b32 s52, s52, 3
    s_cmp_eq_u32 s51, s52
    s_cselect_b32 s51, 27, 54""")
    def dma(st):
        slot = st % R
        a(f"s_add_u32 m0, s47, {slot*SLOT}")
        for i in range(3):
            self.vmem(f"buffer_load_dwordx4 v{2+i}, {WS}, s44 offen offset:{1024*i} sc1 lds", ('p5', st))
        a(f"s_add_u32 m0, s43, {slot*SLOT+12288}")
        for i in range(2):
            self.vmem(f"buffer_load_dwordx4 v{5+i}, {srd(SRD_WD)}, s45 offen offset:{1024*i} lds", ('p5', st))
        if st < 26: a(f"s_add_u32 s44, s44, 2048\ns_add_u32 s45, s45, {64*1280}")
    self.poll("s50", "s51", 8, 9)
    self.stamp('p5poll', 4)
    for st in range(LA): dma(st)
    for st in range(27):
        self.wait_vm(('p5', st))
        self.bar()
        if st + LA < 27: dma(st + LA)
    a("s_branch L_end")
    nb_h = self.nbar
    self.vm = VM(); self.nbar = 0
    a("L_p5_c:")
    XA, WA = 8, 10
    FR = 16; ACC = 96; HR = 120
    a(f"""s_and_b32 s48, s{sWAVE}, 1
    s_lshr_b32 s49, s{sWAVE}, 1
    v_and_b32 v2, 15, v1
    v_lshrrev_b32 v3, 4, v1
    s_mul_i32 s50, s48, 6144
    v_lshl_add_u32 v{XA}, v1, 4, s50
    v_add_u32 v{XA+1}, {3*SLOT}, v{XA}""")
    self.w128_read_addr(WA, 4)
    a(f"""s_lshl_b32 s50, s49, 6
    v_xor_b32 v{WA}, s50, v{WA}
    v_add_u32 v{WA}, 12288, v{WA}
    v_xor_b32 v{WA+1}, 32, v{WA}
    v_add_u32 v{WA+2}, {3*SLOT}, v{WA}
    v_add_u32 v{WA+3}, {3*SLOT}, v{WA+1}""")
    a(f"""v_lshrrev_b32 v4, 1, v3
    v_lshlrev_b32 v4, 8, v4
    v_lshl_add_u32 v4, v2, 4, v4
    v_and_b32 v5, 1, v3
    v_lshl_add_u32 v4, v5, 3, v4
    s_lshl_b32 s50, s40, 1
    s_add_u32 s50, s50, s48
    s_mul_i32 s50, s50, 3
    s_mul_i32 s51, s50, 20480
    s_lshl_b32 s52, s41, 1
    s_add_u32 s52, s52, s49
    s_lshl_b32 s53, s52, 10
    s_add_u32 s51, s51, s53
    s_add_u32 s51, s51, {HH}""")
    a(f"""v_mul_u32_u24 v6, 1280, v2
    v_lshl_add_u32 v6, v5, 5, v6
    v_lshrrev_b32 v7, 1, v3
    v_lshl_add_u32 v6, v7, 4, v6
    s_mul_i32 s53, s50, 20480
    s_lshl_b32 s54, s52, 6
    s_add_u32 s53, s53, s54
    v_add_u32 v6, s53, v6""")
    lg = LG(a)
    def reads(st):
        slot = st % R
        win, off = slot // 3, (slot % 3) * SLOT
        fb = FR + 40 * (st & 1)
        out = []
        for j in range(2):
            W = lambda nu: [(f"ds_read_b64_tr_b16 {vr(fb+20*j+12+4*nu+2*t,2)}, v{WA+2*win+nu} offset:{off+4096*j+512*t}", ('W', st, j, nu)) for t in range(2)]
            X = lambda i: [(f"ds_read_b128 {vr(fb+20*j+4*i)}, v{XA+win} offset:{off+2048*i+1024*j}", ('X', st, j, i))]
            out += W(0) + X(0) + W(1) + X(1) + X(2)
        return out
    self.bar()
    self.stamp('p5b0')
    for mu in range(3):
        for nu in range(2):
            a(f"buffer_load_dwordx2 {vr(HR+4*mu+2*nu,2)}, v4, {WS}, s51 offen offset:{512*nu} sc1")
        if mu < 2: a("s_add_u32 s51, s51, 20480")
    for r in reads(0): lg.op(*r)
    for st in range(27):
        nxt = []
        if st + 1 < 27:
            self.bar()
            nxt = reads(st + 1)
        fb = FR + 40 * (st & 1)
        k = 0
        for j in range(2):
            for mu in range(3):
                for nu in range(2):
                    ac = ACC + 8 * mu + 4 * nu
                    c = "0" if (st == 0 and j == 0) else vr(ac)
                    lg.need(('W', st, j, nu), ('X', st, j, mu))
                    a(f"v_mfma_f32_16x16x32_bf16 {vr(ac)}, {vr(fb+20*j+12+4*nu)}, {vr(fb+20*j+4*mu)}, {c}")
                    for _ in range(2 if k < 4 else 1):
                        if k < len(nxt): lg.op(*nxt[k]); k += 1
        assert k == len(nxt)
    self.stamp('p5loop')
    assert self.nbar == nb_h, (self.nbar, nb_h)
    a("s_waitcnt vmcnt(0)")
    for i in range(12):
        a(f"v_lshlrev_b32 v{16+2*i}, 16, v{HR+i}\nv_and_b32 v{17+2*i}, 0xffff0000, v{HR+i}")
    for i in range(24): a(f"v_add_f32 v{16+i}, v{16+i}, v{ACC+i}")
    for i in range(12): a(f"v_cvt_pk_bf16_f32 v{48+i}, v{16+2*i}, v{17+2*i}")
    a("s_mov_b32 s53, 0")
    for mu in range(3):
        pk = 48 + 4 * mu
        a(f"v_permlane16_swap_b32 v{pk}, v{pk+2}\nv_permlane16_swap_b32 v{pk+1}, v{pk+3}")
        a(f"buffer_store_dwordx4 {vr(pk)}, v6, {srd(SRD_OUT)}, 0 offen")
        if mu < 2: a("v_add_u32 v6, 20480, v6")
    self.stamp('end')
```

```python
import sys, math, struct
from asmlib import Asm

NAME = "sequential_preLN__sliding_block__glu_gated_glu__prompt"
S, D, F = 2048, 640, 1728
MB = 0
M_S0, M_S1, M_S2, M_S3, M_S4, M_CS4 = range(6)
MEAN1 = 0x10000
RSTD1 = 0x12000
CS1 = 0x14000
CS4 = 0x1C000
ST2 = 0x30000
TS = 0x60000
QKV = 0x100000
OO = 0x900000
HH = 0xC00000
HP = 0x1000000
WS_END = 0x1700000
LDS_BYTES = 163840
OOB = 0x7ffffff0
LOG2E = math.log2(math.e)

sWAVE = 3
SRD_WS, SRD_X, SRD_WQKV, SRD_WO, SRD_WG, SRD_WU, SRD_WD, SRD_OUT, SRD_DBG = [4 + 4 * i for i in range(9)]
def srd(b): return f"s[{b}:{b+3}]"
WS = srd(SRD_WS)
sBOUND = 96
sHW = 97
def vr(b, n=4): return f"v[{b}:{b+n-1}]"
def f32hex(x): return "0x%08x" % struct.unpack('<I', struct.pack('<f', x))[0]

class VM:
    def __init__(self): self.ops = []
    def add(self, tag): self.ops.append(tag)
    def count_after(self, tag):
        idx = max(i for i, t in enumerate(self.ops) if t == tag)
        return len(self.ops) - 1 - idx
    def clear(self): self.ops = []

class LG:
    def __init__(self, a): self.a = a; self.n = 0; self.pos = {}; self.done = 0
    def op(self, text, tag=None):
        self.a(text); self.n += 1
        if tag is not None: self.pos[tag] = self.n
    def need(self, *tags):
        p = max(self.pos[t] for t in tags)
        if p > self.done:
            c = min(self.n - p, 15)
            self.a(f"s_waitcnt lgkmcnt({c})")
            self.done = self.n - c
    def drain(self):
        if self.done < self.n:
            self.a("s_waitcnt lgkmcnt(0)"); self.done = self.n

class Gen:
    def __init__(self, upto=5, stamps=False):
        self.a = Asm()
        self.vm = VM()
        self.upto = upto
        self.stamps = stamps
        self.tail = []
        self.stamp_names = []
        self.nbar = 0
        self.spend = []

    def vmem(self, text, tag):
        self.a(text); self.vm.add(tag)
    def wait_vm(self, tag):
        n = self.vm.count_after(tag)
        assert n <= 63, n
        self.a(f"s_waitcnt vmcnt({n})")
    def bar(self):
        self.a("s_barrier"); self.nbar += 1
    def build_srd(self, b, ptr, nbytes):
        self.a(f"s_mov_b32 s{b}, s{ptr}\ns_mov_b32 s{b+1}, s{ptr+1}\ns_mov_b32 s{b+2}, {nbytes}\ns_mov_b32 s{b+3}, 0x20000")
    def stamp(self, name, wave=0):
        if not self.stamps: return
        a = self.a
        if name in self.stamp_names: i = self.stamp_names.index(name)
        else:
            i = len(self.stamp_names); self.stamp_names.append(name)
        assert i < 64
        L = a.newlabel('Lst')
        a(f"""s_cmp_lg_u32 s{sWAVE}, {wave}
        s_cbranch_scc1 {L}
        s_memrealtime s[100:101]
        v_mov_b32 v255, s2
        v_lshlrev_b32 v255, 9, v255
        v_add_u32 v255, {TS + 8*i}, v255
        s_waitcnt lgkmcnt(0)
        v_mov_b32 v252, s100
        s_memtime s[100:101]
        s_waitcnt lgkmcnt(0)
        v_mov_b32 v253, s100
        s_mov_b64 exec, 1
        buffer_store_dwordx2 v[252:253], v255, {WS}, 0 offen
        s_mov_b64 exec, -1
        {L}:""")

    def sstamp(self, name):
        if not self.stamps: return
        k = len(self.spend); assert k < 32
        self.spend.append(name)
        self.a(f"s_memtime s[100:101]\ns_waitcnt lgkmcnt(0)\ns_mov_b32 s{64+k}, s100")
    def sdump(self, wave):
        if not self.stamps: return
        a = self.a
        L = a.newlabel('Lsd')
        a(f"""s_cmp_lg_u32 s{sWAVE}, {wave}
        s_cbranch_scc1 {L}
        v_mov_b32 v255, s2
        v_lshlrev_b32 v255, 9, v255
        v_add_u32 v255, {TS}, v255
        v_mov_b32 v252, 0
        s_mov_b64 exec, 1""")
        for k, name in enumerate(self.spend):
            i = len(self.stamp_names); self.stamp_names.append(name); assert i < 64
            a(f"v_mov_b32 v253, s{64+k}\nbuffer_store_dwordx2 v[252:253], v255, {WS}, 0 offen offset:{8*i}")
        a(f"s_mov_b64 exec, -1\n{L}:")
        self.spend = []

    def wave_sum(self, vs, sdsts):
        for mod in ("quad_perm:[1,0,3,2] row_mask:0xf", "quad_perm:[2,3,0,1] row_mask:0xf", "row_half_mirror row_mask:0xf",
                    "row_mirror row_mask:0xf", "row_bcast:15 row_mask:0xa", "row_bcast:31 row_mask:0xc"):
            for v in vs:
                self.a(f"v_add_f32_dpp v{v}, v{v}, v{v} {mod} bank_mask:0xf")
        for v, s in zip(vs, sdsts):
            self.a(f"v_readlane_b32 s{s}, v{v}, 63")

    def poll(self, soff, expect, va, vt, srdb=SRD_WS):
        a = self.a
        L = a.newlabel('Lpoll'); Ld = L + 'd'
        a(f"""v_mov_b32 v{va}, 0
        {L}:
        buffer_load_dword v{vt}, v{va}, {srd(srdb)}, {soff} offen sc1
        s_waitcnt vmcnt(0)
        v_cmp_ne_u32 vcc, {expect}, v{vt}
        s_cbranch_vccz {Ld}
        s_sub_u32 s{sBOUND}, s{sBOUND}, 1
        s_cbranch_scc1 {Ld}
        s_sleep 1
        s_branch {L}
        {Ld}:""")
        self.vm.clear()

    def signal(self, vline, dword, vt, mask='vcc'):
        self.a(f"""v_lshlrev_b32 v{vline}, 7, v{vline}
        v_mov_b32 v{vt}, 1
        s_mov_b64 exec, {mask}
        buffer_atomic_add v{vt}, v{vline}, {WS}, 0 offen offset:{4*dword} sc1
        s_mov_b64 exec, -1""")

    def w128_dma_voff(self, pitch, vE, vt, vt2):
        self.a(f"""v_lshrrev_b32 v{vt}, 3, v1
        v_mul_u32_u24 v{vE}, {pitch}, v{vt}
        v_and_b32 v{vt}, 2, v{vt}
        v_and_b32 v{vt2}, 7, v1
        v_xor_b32 v{vt}, v{vt}, v{vt2}
        v_lshl_add_u32 v{vE}, v{vt}, 4, v{vE}""")

    def colsum_issue(self, srdb, pitch, s_goff, s_lds, vE, vO, vt):
        a = self.a
        self.w128_dma_voff(pitch, vE, vt, vO)
        a(f"v_xor_b32 v{vO}, 64, v{vE}")
        for i in range(20):
            a(f"s_add_u32 m0, s{s_lds}, {1024*i}")
            self.vmem(f"buffer_load_dwordx4 v{vO if i & 1 else vE}, {srdb}, s{s_goff} offen lds", 'cs')
            if i < 19: a(f"s_add_u32 s{s_goff}, s{s_goff}, {8*pitch}")

    def w128_read_addr(self, vb, vt):
        self.a(f"""v_lshrrev_b32 v{vt}, 4, v1
        v_lshlrev_b32 v{vb}, 10, v{vt}
        v_bfe_u32 v{vt}, v1, 2, 2
        v_lshl_add_u32 v{vb}, v{vt}, 7, v{vb}
        v_and_b32 v{vt}, 3, v1
        v_lshl_add_u32 v{vb}, v{vt}, 3, v{vb}
        v_bfe_u32 v{vt}, v1, 3, 2
        v_lshl_add_u32 v{vb}, v{vt}, 5, v{vb}""")

    def colsum_finish(self, s_lds, s_out, vbase):
        a = self.a
        vb = vbase; vones = vbase + 4; vacc = vbase + 8; vf = vbase + 24
        self.w128_read_addr(vb, vones)
        a(f"v_add_u32 v{vb}, s{s_lds}, v{vb}")
        for nu in range(1, 4): a(f"v_xor_b32 v{vb+nu}, {32*nu}, v{vb}")
        for i in range(4): a(f"v_mov_b32 v{vones+i}, 0x3f803f80")
        for s in range(5):
            fb = vf + 16 * (s & 1)
            for nu in range(4):
                for t in range(2):
                    a(f"ds_read_b64_tr_b16 {vr(fb+4*nu+2*t, 2)}, v{vb+nu} offset:{(32*s+4*t)*128}")
            a("s_waitcnt lgkmcnt(0)")
            for nu in range(4):
                c = "0" if s == 0 else vr(vacc + 4 * nu)
                a(f"v_mfma_f32_16x16x32_bf16 {vr(vacc+4*nu)}, {vr(vones)}, {vr(fb+4*nu)}, {c}")
        a(f"""v_cmp_lt_u32 vcc, 15, v1
        v_cndmask_b32 v{vacc}, v{vacc}, v{vacc+4}, vcc
        v_cmp_lt_u32 vcc, 31, v1
        v_cndmask_b32 v{vacc}, v{vacc}, v{vacc+8}, vcc
        v_cmp_lt_u32 vcc, 47, v1
        v_cndmask_b32 v{vacc}, v{vacc}, v{vacc+12}, vcc
        v_lshlrev_b32 v{vb}, 2, v1""")
        self.vmem(f"buffer_store_dword v{vacc}, v{vb}, {WS}, s{s_out} offen sc1", 'csst')

    def row_stats(self, nrows):
        a = self.a
        a(f"""v_lshlrev_b32 v8, 4, v1
        v_lshlrev_b32 v9, 2, v1
        s_mul_i32 s45, s44, 1280""")
        for r in range(nrows):
            self.vmem(f"buffer_load_dwordx4 {vr(12+8*r)}, v8, {srd(SRD_X)}, s45 offen offset:{1280*r}", 'stat')
            self.vmem(f"buffer_load_dword v{16+8*r}, v9, {srd(SRD_X)}, s45 offen offset:{1280*r+1024}", 'stat')

    def row_stats_finish(self, nrows):
        a = self.a
        self.wait_vm('stat')
        E = lambda r, i: 32 + 12 * r + i
        for r in range(nrows):
            for i in range(5):
                a(f"v_lshlrev_b32 v{E(r,2*i)}, 16, v{12+8*r+i}\nv_and_b32 v{E(r,2*i+1)}, 0xffff0000, v{12+8*r+i}")
        acc = [12 + 8 * r for r in range(nrows)]
        for r in range(nrows): a(f"v_add_f32 v{acc[r]}, v{E(r,0)}, v{E(r,1)}")
        for i in range(2, 10):
            for r in range(nrows): a(f"v_add_f32 v{acc[r]}, v{acc[r]}, v{E(r,i)}")
        ss = [46 + r for r in range(nrows)]
        self.wave_sum(acc, ss)
        a(f"v_mov_b32 v10, {f32hex(1.0/D)}")
        for r in range(nrows): a(f"v_mul_f32 v{acc[r]+1}, s{ss[r]}, v10")
        for i in range(10):
            for r in range(nrows): a(f"v_sub_f32 v{E(r,i)}, v{E(r,i)}, v{acc[r]+1}")
        for r in range(nrows): a(f"v_mul_f32 v{acc[r]}, v{E(r,0)}, v{E(r,0)}")
        for i in range(1, 10):
            for r in range(nrows): a(f"v_fmac_f32 v{acc[r]}, v{E(r,i)}, v{E(r,i)}")
        self.wave_sum(acc, ss)
        for r in range(nrows):
            a(f"v_mov_b32 v{acc[r]+2}, {f32hex(1e-5)}\nv_fmac_f32 v{acc[r]+2}, s{ss[r]}, v10\nv_rsq_f32 v{acc[r]+2}, v{acc[r]+2}")
        a(f"""s_lshl_b32 s45, s44, 2
        s_add_u32 s45, s45, {MEAN1}
        s_add_u32 s46, s45, {RSTD1-MEAN1}
        v_mov_b32 v10, 0
        s_mov_b64 exec, 1""")
        for r in range(nrows):
            self.vmem(f"buffer_store_dword v{acc[r]+1}, v10, {WS}, s45 offen offset:{4*r} sc1", 'statst')
            self.vmem(f"buffer_store_dword v{acc[r]+2}, v10, {WS}, s46 offen offset:{4*r} sc1", 'statst')
        a("s_mov_b64 exec, -1")

    def sig_rowstats(self, ready=True):
        a = self.a
        if ready: self.poll(0, 1, 10, 11, SRD_DBG)
        a("""s_lshr_b32 s46, s2, 4
        s_mul_i32 s46, s46, 15
        v_add_u32 v10, s46, v1
        v_cmp_gt_u32 vcc, 15, v1""")
        self.signal(10, M_S0, 11)

    def p0(self):
        a = self.a
        a(f"""s_cmp_ge_u32 s2, 256
        s_cbranch_scc1 L_end
        s_load_dwordx16 s[64:79], s[0:1], 0
        s_load_dwordx4 s[80:83], s[0:1], 64
        v_and_b32 v1, 63, v0
        v_lshrrev_b32 v2, 6, v0
        v_readfirstlane_b32 s{sWAVE}, v2
        s_mov_b32 s{sBOUND}, 0x100000""")
        a(f"""s_lshr_b32 s40, s2, 3
        s_sub_u32 s40, s40, 2
        s_and_b32 s41, s2, 1
        s_mul_i32 s41, s41, 30
        s_add_u32 s40, s40, s41
        s_lshr_b32 s41, s40, 2
        s_and_b32 s40, s40, 3
        s_mul_i32 s43, s40, 3
        s_and_b32 s42, s2, 6
        s_lshl_b32 s42, s42, 1
        s_add_u32 s40, s40, s42
        s_and_b32 s{sHW}, s{sWAVE}, 3
        s_waitcnt lgkmcnt(0)""")
        self.build_srd(SRD_X, 64, S * D * 2)
        self.build_srd(SRD_WQKV, 66, D * 3 * D * 2)
        self.build_srd(SRD_WS, 82, WS_END)
        self.build_srd(SRD_DBG, 80, 256)
        self.build_srd(SRD_WO, 68, D * D * 2)
        self.build_srd(SRD_WG, 72, D * F * 2)
        self.build_srd(SRD_WU, 74, D * F * 2)
        self.build_srd(SRD_WD, 76, F * D * 2)
        self.build_srd(SRD_OUT, 78, S * D * 2)
        self.stamp('start')
        a(f"""s_cmp_lt_u32 s2, 16
        s_cbranch_scc1 L_spare
        s_cmp_lt_u32 s{sWAVE}, 4
        s_cbranch_scc1 L_p1_c""")

    def spare_code(self):
        a = self.a
        self.vm = VM()
        a("L_spare:")
        a(f"s_lshl_b32 s44, s2, 3\ns_add_u32 s44, s44, s{sWAVE}")
        self.row_stats(1)
        a("s_cmp_eq_u32 s2, 0\ns_cbranch_scc1 L_init")
        a(f"""s_sub_u32 s40, s2, 1
        s_lshl_b32 s40, s40, 1
        s_and_b32 s41, s{sWAVE}, 1
        s_add_u32 s40, s40, s41
        s_lshr_b32 s41, s{sWAVE}, 1
        s_lshl_b32 s42, s40, 7
        s_mul_i32 s43, s41, {160*3840}
        s_add_u32 s42, s42, s43
        s_mul_i32 s50, s{sWAVE}, 20480""")
        self.colsum_issue(srd(SRD_WQKV), 3840, 42, 50, 2, 3, 4)
        a("s_branch L_spare2")
        a("L_init:")
        a(f"""v_mov_b32 v4, 0
        v_mov_b32 v5, 0
        v_mov_b32 v6, 0
        v_mov_b32 v7, 0
        s_lshl_b32 s40, s{sWAVE}, 12""")
        for i in range(4):
            a(f"buffer_store_dwordx4 v[4:7], v8, {WS}, s40 offen offset:{1024*i} sc1")
        a(f"""s_waitcnt vmcnt(0)
        s_barrier
        s_cmp_lg_u32 s{sWAVE}, 0
        s_cbranch_scc1 L_spare2
        v_mov_b32 v5, 1
        s_mov_b64 exec, 1
        buffer_store_dword v5, v4, {srd(SRD_DBG)}, 0 offen sc1
        s_mov_b64 exec, -1""")
        a("L_spare2:")
        a.settle()
        self.row_stats_finish(1)
        a("s_cmp_eq_u32 s2, 0\ns_cbranch_scc1 L_spare3")
        a(f"""s_waitcnt vmcnt(0)
        s_mul_i32 s42, s41, {1920*4}
        s_lshl_b32 s43, s40, 8
        s_add_u32 s42, s42, s43
        s_add_u32 s42, s42, {CS1}""")
        self.colsum_finish(50, 42, 16)
        a("L_spare3:")
        a.settle()
        self.poll(0, 1, 10, 11, SRD_DBG)
        a(f"""s_barrier
        s_cmp_lg_u32 s{sWAVE}, 0
        s_cbranch_scc1 L_spare4""")
        self.sig_rowstats(ready=False)
        a("""s_cmp_eq_u32 s2, 0
        s_cbranch_scc1 L_spare4
        v_mul_u32_u24 v10, 15, v1
        s_sub_u32 s46, s2, 1
        v_add_u32 v10, s46, v10
        v_cmp_gt_u32 vcc, 16, v1""")
        self.signal(10, M_S0, 11)
        a("L_spare4:")
        a(f"""s_cmp_ge_u32 s{sWAVE}, 4
        s_cbranch_scc1 L_p1_hpre
        s_branch L_p1_join""")

    P1_R, P1_LA = 4, 2
    rot1 = 's_mov_b32 s46, 0' if 'norot' in sys.argv else ''
    P1_TAB = 131072
    CS4_LDS = 131072 + 2048

    def p1(self):
        a = self.a
        R, LA = self.P1_R, self.P1_LA
        T = self.P1_TAB
        self.vm = VM(); self.nbar = 0
        a("""v_lshrrev_b32 v10, 3, v1
        v_mul_u32_u24 v2, 1280, v10
        v_lshrrev_b32 v10, 4, v1
        v_and_b32 v11, 7, v1
        v_xor_b32 v11, v11, v10
        v_lshl_add_u32 v2, v11, 4, v2
        v_xor_b32 v3, 64, v2
        v_add_u32 v3, 9216, v3
        v_add_u32 v4, 18432, v2
        v_add_u32 v5, 18432, v3
        v_mul_u32_u24 v6, 3840, v10
        v_lshlrev_b32 v10, 1, v10
        v_and_b32 v11, 15, v1
        v_xor_b32 v11, v11, v10
        v_lshl_add_u32 v6, v11, 4, v6
        v_add_u32 v7, 14336, v6
        v_xor_b32 v8, 128, v6
        v_add_u32 v8, 28672, v8
        v_add_u32 v9, 14336, v8""")
        a(f"""s_lshl_b32 s44, s40, 2
        s_add_u32 s44, s44, s{sHW}
        s_mul_i32 s44, s44, {32*1280}
        s_mul_i32 s45, s{sHW}, {16*3840}
        s_lshl_b32 s46, s41, 8
        s_add_u32 s45, s45, s46
        s_add_u32 s46, s41, s43
        {self.rot1}
        s_cmp_ge_u32 s46, 20
        s_cselect_b32 s47, 20, 0
        s_sub_u32 s46, s46, s47
        s_cmp_ge_u32 s46, 10
        s_cselect_b32 s47, 10, 0
        s_sub_u32 s46, s46, s47
        s_lshl_b32 s47, s{sHW}, 12""")
        def dma(st):
            slot = st % R
            a(f"""s_lshl_b32 s48, s46, 7
            s_add_u32 s48, s48, s44
            s_mul_i32 s49, s46, {64*3840}
            s_add_u32 s49, s49, s45
            s_add_u32 m0, s47, {slot*32768}""")
            for i in range(4):
                self.vmem(f"buffer_load_dwordx4 v{2+i}, {srd(SRD_X)}, s48 offen offset:{1024*i} lds", ('p1', st))
            a(f"s_add_u32 m0, s47, {slot*32768+16384}")
            for i in range(4):
                self.vmem(f"buffer_load_dwordx4 v{6+i}, {srd(SRD_WQKV)}, s49 offen offset:{1024*i} lds", ('p1', st))
            if st < 9: a("s_add_u32 s46, s46, 1\ns_cmp_eq_u32 s46, 10\ns_cselect_b32 s46, 0, s46")
        for st in range(LA): dma(st)
        for st in range(10):
            self.sstamp(f'hi{st}')
            self.wait_vm(('p1', st))
            self.sstamp(f'hw{st}')
            self.bar()
            self.sstamp(f'hb{st}')
            if st == 0:
                a("v_mov_b32 v12, 0")
                self.vmem(f"buffer_load_dword v13, v12, {srd(SRD_DBG)}, 0 offen sc1", 'rdy')
            if st == 2:
                L = a.newlabel('Ls0')
                a(f"s_cmp_lg_u32 s{sWAVE}, 4\ns_cbranch_scc1 {L}\nv_cmp_ne_u32 vcc, 1, v13\ns_cbranch_vccz {L}r")
                keep = list(self.vm.ops)
                self.poll(0, 1, 10, 11, SRD_DBG)
                self.vm.ops = keep
                a(f"{L}r:\ns_mov_b32 s51, s46")
                self.sig_rowstats(ready=False)
                a(f"s_mov_b32 s46, s51\n{L}:")
            if st + LA < 10: dma(st + LA)
        a(f"""s_mul_i32 s48, s40, 15
        s_add_u32 s48, s48, s41
        s_lshl_b32 s48, s48, 7""")
        self.poll("s48", 17, 10, 11)
        self.stamp('s0poll', 4)
        self.sdump(5)
        c = (20 ** -0.5) * LOG2E
        a(f"""v_lshlrev_b32 v10, 2, v1
        s_cmp_ge_u32 s{sHW}, 2
        s_cbranch_scc1 L_p1_hcs
        s_lshl_b32 s48, s40, 1
        s_add_u32 s48, s48, s{sHW}
        s_lshl_b32 s48, s48, 8
        s_add_u32 s48, s48, {MEAN1}
        s_add_u32 s49, s48, {RSTD1-MEAN1}
        buffer_load_dword v12, v10, {WS}, s48 offen sc1
        buffer_load_dword v13, v10, {WS}, s49 offen sc1
        s_cmp_lt_u32 s41, 5
        s_cselect_b32 s49, {f32hex(c)}, 1.0
        s_lshl_b32 s48, s{sHW}, 9
        s_add_u32 s48, s48, {T}
        v_lshl_add_u32 v11, v1, 3, s48
        s_waitcnt vmcnt(0)
        v_mul_f32 v13, s49, v13
        ds_write_b64 v11, v[12:13]
        s_branch L_p1_htab
        L_p1_hcs:
        s_lshl_b32 s48, s41, 1
        s_add_u32 s48, s48, s{sHW}
        s_lshl_b32 s48, s48, 8
        s_add_u32 s48, s48, {CS1-512}""")
        for q in range(4):
            a(f"buffer_load_dword v{12+q}, v10, {WS}, s48 offen sc1")
            if q < 3: a(f"s_add_u32 s48, s48, {1920*4}")
        a(f"""s_lshl_b32 s48, s{sHW}, 8
        s_add_u32 s48, s48, {T+1024-512}
        v_add_u32 v11, s48, v10
        s_waitcnt vmcnt(0)
        v_add_f32 v12, v12, v13
        v_add_f32 v14, v14, v15
        v_add_f32 v12, v12, v14
        ds_write_b32 v11, v12
        L_p1_htab:
        s_waitcnt lgkmcnt(0)""")
        self.bar()
        a("L_p1_hpre:")
        a.settle()
        self.vm.clear()
        self.helper_after_p1()
        a("L_p1_join:")
        self.bar()
        a("s_branch L_p1_done")
        nb_h = self.nbar
        self.vm = VM(); self.nbar = 0
        a('L_p1_c:')
        a(f"s_lshl_b32 s44, s2, 2\ns_add_u32 s44, s44, s{sWAVE}\ns_lshl_b32 s44, s44, 1")
        self.row_stats(2)
        XA, WA = 64, 68
        FR = 80
        ACC = 144
        a(f"""s_and_b32 s48, s{sWAVE}, 1
        s_lshr_b32 s49, s{sWAVE}, 1
        v_and_b32 v2, 15, v1
        v_lshrrev_b32 v3, 4, v1
        v_lshlrev_b32 v4, 7, v2
        v_bfe_u32 v5, v1, 1, 3
        v_xor_b32 v5, v5, v3
        v_lshl_add_u32 v4, v5, 4, v4
        s_lshl_b32 s50, s48, 13
        v_add_u32 v{XA}, s50, v4
        v_xor_b32 v{XA+1}, 64, v{XA}
        v_add_u32 v{XA+2}, 65536, v{XA}
        v_add_u32 v{XA+3}, 65536, v{XA+1}""")
        a(f"""v_lshlrev_b32 v4, 11, v3
        v_bfe_u32 v5, v1, 2, 2
        v_lshl_add_u32 v4, v5, 8, v4
        v_and_b32 v5, 3, v1
        v_lshl_add_u32 v4, v5, 3, v4
        v_bfe_u32 v5, v1, 2, 3
        s_lshl_b32 s50, s49, 2
        v_xor_b32 v5, s50, v5
        v_lshl_add_u32 v4, v5, 5, v4
        v_add_u32 v{WA}, 16384, v4""")
        for nu in range(1, 4): a(f"v_xor_b32 v{WA+nu}, {32*nu}, v{WA}")
        for nu in range(4): a(f"v_add_u32 v{WA+4+nu}, 65536, v{WA+nu}")
        self.row_stats_finish(2)
        lg = LG(a)
        def reads(g):
            st, j = g >> 1, g & 1
            slot = st % R
            win, off = slot >> 1, (slot & 1) * 32768
            fb = FR + 32 * (g & 1)
            W = lambda i: [(f"ds_read_b64_tr_b16 {vr(fb+16+4*i, 2)}, v{WA+4*win+i} offset:{off+32*j*256}", None),
                           (f"ds_read_b64_tr_b16 {vr(fb+18+4*i, 2)}, v{WA+4*win+i} offset:{off+(32*j+4)*256}", ('W', g, i))]
            X = lambda i: [(f"ds_read_b128 {vr(fb+4*i)}, v{XA+2*win+j} offset:{off+2048*i}", ('X', g, i))]
            return W(0) + X(0) + W(1) + W(2) + W(3) + X(1) + X(2) + X(3)
        self.stamp('preb0')
        self.bar()
        self.stamp('b0')
        for r in reads(0): lg.op(*r)
        for g in range(20):
            nxt = []
            if g + 1 < 20:
                if (g + 1) % 2 == 0:
                    st = (g + 1) >> 1
                    if st == 2: a("s_waitcnt vmcnt(0)")
                    self.bar()
                nxt = reads(g + 1)
            fb = FR + 32 * (g & 1)
            k = 0
            for mu in range(4):
                for nu in range(4):
                    ac = ACC + 16 * mu + 4 * nu
                    c = "0" if g == 0 else vr(ac)
                    lg.need(('W', g, nu), ('X', g, mu))
                    a(f"v_mfma_f32_16x16x32_bf16 {vr(ac)}, {vr(fb+16+4*nu)}, {vr(fb+4*mu)}, {c}")
                    if k < len(nxt): lg.op(*nxt[k]); k += 1
        self.stamp('p1loop')
        self.bar()
        self.stamp('p1tab')
        a(f"""v_lshlrev_b32 v4, 3, v2
        s_lshl_b32 s50, s48, 9
        s_add_u32 s50, s50, {T}
        v_add_u32 v4, s50, v4
        v_lshlrev_b32 v5, 4, v3
        s_lshl_b32 s50, s49, 8
        s_add_u32 s50, s50, {T+1024}
        v_add_u32 v5, s50, v5""")
        MR, CSR = 8, 16
        for mu in range(4): a(f"ds_read_b64 {vr(MR+2*mu, 2)}, v4 offset:{128*mu}")
        for nu in range(4): a(f"ds_read_b128 {vr(CSR+4*nu)}, v5 offset:{64*nu}")
        a(f"""v_lshrrev_b32 v6, 5, v1
        v_lshlrev_b32 v6, 15, v6
        v_and_b32 v7, 31, v1
        v_lshl_add_u32 v6, v7, 4, v6
        s_lshl_b32 s50, s41, 1
        s_add_u32 s50, s50, s49
        s_lshl_b32 s50, s50, 18
        s_lshl_b32 s51, s40, 1
        s_add_u32 s51, s51, s48
        s_lshl_b32 s51, s51, 10
        s_add_u32 s50, s50, s51
        s_add_u32 s50, s50, {QKV}
        s_waitcnt lgkmcnt(0)""")
        PK = 32
        n = 0
        for nu in range(4):
            for p in range(2):
                pk = PK + 4 * (n % 8); n += 1
                for e in range(2):
                    mu = 2 * p + e
                    ac = ACC + 16 * mu + 4 * nu
                    for h in range(2):
                        a(f"v_pk_fma_f32 {vr(ac+2*h,2)}, {vr(CSR+4*nu+2*h,2)}, {vr(MR+2*mu,2)}, {vr(ac+2*h,2)} op_sel_hi:[1,0,1] neg_lo:[0,1,0] neg_hi:[0,1,0]")
                    for h in range(2):
                        a(f"v_pk_mul_f32 {vr(ac+2*h,2)}, {vr(ac+2*h,2)}, {vr(MR+2*mu,2)} op_sel:[0,1] op_sel_hi:[1,1]")
                    for h in range(2):
                        a(f"v_cvt_pk_bf16_f32 v{pk+2*e+h}, v{ac+2*h}, v{ac+2*h+1}")
                a(f"v_permlane16_swap_b32 v{pk}, v{pk+2}\nv_permlane16_swap_b32 v{pk+1}, v{pk+3}")
                a(f"buffer_store_dwordx4 {vr(pk)}, v6, {WS}, s50 offen offset:{512*p} sc1")
            if nu < 3: a("s_add_u32 s50, s50, 65536")
        self.stamp('p1epi')
        a("s_waitcnt vmcnt(0)")
        self.bar()
        self.stamp('p1st')
        a(f"s_cmp_lg_u32 s{sWAVE}, 0\ns_cbranch_scc1 L_p1_done")
        a(f"""s_cmp_ge_u32 s41, 10
        s_cselect_b32 s50, 10, 5
        s_cmp_ge_u32 s41, 5
        s_cselect_b32 s50, s50, 0
        s_sub_u32 s51, s41, s50
        s_lshl_b32 s51, s51, 4
        v_mul_u32_u24 v4, 5, v7
        v_lshrrev_b32 v4, 1, v4
        v_add_u32 v4, 2, v4
        v_subrev_u32 v4, s51, v4
        v_cmp_gt_u32 vcc, 18, v4
        s_lshr_b32 s52, s40, 1
        s_cmp_eq_u32 s52, 7
        s_cselect_b32 s50, 0, s50
        s_cmp_eq_u32 s50, 0
        s_cselect_b32 vcc_hi, 0, vcc_hi
        s_lshl_b32 s52, s52, 5
        v_add_u32 v4, s52, v1""")
        self.signal(4, M_S1, 5)
        assert self.nbar == nb_h, (self.nbar, nb_h)
        a("L_p1_done:")
        a.settle()
        self.stamp('p1done')

    def helper_after_p1(self):
        a = self.a
        if self.upto >= 3: self.p3_prefetch()
        if self.upto >= 4:
            a(f"""s_cmp_lg_u32 s{sWAVE}, 7
            s_cbranch_scc1 L_cs4_done
            s_cmp_ge_u32 s2, 216
            s_cbranch_scc1 L_cs4_done
            s_cmp_ge_u32 s2, 108
            s_cselect_b32 s44, 108, 0
            s_cselect_b32 s56, s{SRD_WU}, s{SRD_WG}
            s_cselect_b32 s57, s{SRD_WU+1}, s{SRD_WG+1}
            s_mov_b32 s58, {D*F*2}
            s_mov_b32 s59, 0x20000
            s_sub_u32 s45, s2, s44
            s_lshr_b32 s45, s45, 2
            s_and_b32 s46, s2, 3
            s_lshl_b32 s47, s45, 7
            s_mul_i32 s48, s46, {160*3456}
            s_add_u32 s47, s47, s48
            s_mov_b32 s50, {self.CS4_LDS}""")
            self.colsum_issue("s[56:59]", 3456, 47, 50, 10, 11, 12)
            a(f"""s_mul_i32 s47, s46, {3456*4}
            s_lshr_b32 s48, s2, 2
            s_lshl_b32 s48, s48, 8
            s_add_u32 s47, s47, s48
            s_add_u32 s47, s47, {CS4}
            s_waitcnt vmcnt(0)""")
            self.colsum_finish(50, 47, 16)
            a(f"""v_mul_u32_u24 v10, 27, v1
            v_add_u32 v10, s45, v10
            v_cmp_gt_u32 vcc, 8, v1
            s_waitcnt vmcnt(0)""")
            self.signal(10, M_CS4, 11)
            a("L_cs4_done:")
            a.settle()

    def build(self):
        a = self.a
        a.raw(f"; @launch grid=(256,1,1) block=(512,1,1) lds={LDS_BYTES}")
        a.raw(f'.amdgcn_target "amdgcn-amd-amdhsa--gfx950"\n.text\n.globl {NAME}_kernel\n.p2align 8\n.type {NAME}_kernel,@function\n{NAME}_kernel:')
        self.p0()
        self.p1()
        if self.upto >= 2: self.p2()
        if self.upto >= 3: self.p3()
        if self.upto >= 4: self.p4()
        if self.upto >= 5: self.p5()
        a("L_end:\ns_endpgm")
        self.spare_code()
        for blk in self.tail: blk()
        a.raw(f""".section .rodata,"a"
.p2align 6
.amdhsa_kernel {NAME}_kernel
  .amdhsa_next_free_vgpr 256
  .amdhsa_next_free_sgpr 102
  .amdhsa_accum_offset 256
  .amdhsa_group_segment_fixed_size 0
  .amdhsa_kernarg_size 80
  .amdhsa_user_sgpr_count 2
  .amdhsa_user_sgpr_kernarg_segment_ptr 1
  .amdhsa_system_sgpr_workgroup_id_x 1
.end_amdhsa_kernel""")
        return a.text()

from phases import install
install(Gen, globals())

if __name__ == '__main__':
    upto = int(sys.argv[1]) if len(sys.argv) > 1 else 5
    out = sys.argv[2] if len(sys.argv) > 2 else 'k.s'
    g = Gen(upto=upto, stamps=('stamps' in sys.argv))
    open(out, 'w').write(g.build())
    open(out + '.stamps', 'w').write('\n'.join(g.stamp_names))
    print("wrote", out, "pads", g.a.pad_count)
```

```python
def install(Gen, G):
    globals().update({k: v for k, v in G.items() if not k.startswith('__')})
    for f in (p2, p3_prefetch, tail345):
        setattr(Gen, f.__name__, f)

KV0 = 102400
OCTP = 8256

def p2(self):
    a = self.a
    self.vm = VM(); self.nbar = 0
    a(f"""s_and_b32 s40, s2, 7
    s_lshl_b32 s40, s40, 2
    s_bfe_u32 s41, s2, 0x20003
    s_add_u32 s40, s40, s41
    s_lshr_b32 s41, s2, 5
    s_mul_i32 s42, s40, 5
    s_lshr_b32 s42, s42, 1
    s_and_b32 s43, s40, 1
    s_add_u32 s44, s42, s43
    s_xor_b32 s45, s43, 1
    s_lshl_b32 s45, s45, 1
    s_add_u32 s45, s45, s42""")
    a(f"""s_add_u32 s46, s42, 2
    s_lshr_b32 s46, s46, 4
    s_lshr_b32 s47, s42, 4
    s_sub_u32 s46, s46, s47
    s_add_u32 s46, s46, 1
    s_cmp_eq_u32 s41, 0
    s_cselect_b32 s47, 6, 10
    s_mul_i32 s46, s46, s47
    s_sub_u32 s48, 8, s{sWAVE}
    s_cmp_eq_u32 s41, 0
    s_cselect_b32 s48, s48, 0
    s_lshl_b32 s47, s41, 5
    s_add_u32 s47, s47, s40
    s_lshl_b32 s47, s47, 7
    s_add_u32 s47, s47, {4*M_S1}""")
    pf = self.p3_prefetch() if self.upto >= 3 else []
    a(f"""v_and_b32 v2, 31, v1
    v_lshrrev_b32 v3, 5, v1
    v_lshlrev_b32 v4, 4, v1""")
    a(f"""v_mov_b32 v8, 0x3f803f80
    v_mov_b32 v9, 0x3f803f80
    v_mov_b32 v10, 0x3f803f80
    v_mov_b32 v11, 0x3f803f80
    s_lshl_b32 s49, s{sWAVE}, 10
    s_add_u32 s50, s49, {KV0+6*OCTP}
    v_add_u32 v5, s50, v4
    ds_write_b128 v5, v[8:11]""")
    a("v_lshlrev_b32 v5, 2, v3\nv_sub_u32 v5, v2, v5")
    for r in range(16):
        a(f"v_cmp_le_i32 s[{64+2*r}:{65+2*r}], {8*(r>>2)+(r&3)}, v5")
    PM = 52
    a("v_mov_b32 v6, 0xffff\nv_mov_b32 v7, 0xffff0000")
    for i in range(8):
        a(f"v_cndmask_b32 v{PM+i}, 0, v6, s[{64+4*i}:{65+4*i}]\nv_cndmask_b32 v8, 0, v7, s[{66+4*i}:{67+4*i}]\nv_or_b32 v{PM+i}, v{PM+i}, v8")
    a(f"""s_lshl_b32 s50, s{sWAVE}, 9
    s_add_u32 s50, s50, {KV0}
    v_lshl_add_u32 v13, v2, 4, s50
    v_mul_u32_u24 v12, {OCTP}, v3
    v_add_u32 v12, v12, v13
    v_add_u32 v13, {2*OCTP}, v13""")
    a(f"""v_bfe_u32 v5, v1, 2, 2
    v_lshl_add_u32 v5, v3, 2, v5
    v_lshl_add_u32 v14, v5, 4, s50
    v_and_b32 v5, 1, v1
    v_bfe_u32 v6, v1, 1, 1
    v_mov_b32 v7, s43
    v_cmp_eq_u32 vcc, 1, v6
    v_cndmask_b32 v7, v7, v5, vcc
    v_add_u32 v8, 2, v6
    v_and_b32 v9, 16, v1
    v_cmp_eq_u32 vcc, 0, v9
    v_cndmask_b32 v8, v8, v5, vcc
    v_cndmask_b32 v7, v7, v6, vcc
    v_mul_u32_u24 v8, {OCTP}, v8
    v_lshl_add_u32 v8, v7, 3, v8
    v_add_u32 v14, v14, v8
    v_add_u32 v14, {3*OCTP}, v14""")
    a(f"""s_lshl_b32 s50, s41, 2
    s_add_u32 s50, s50, s{sWAVE}
    s_cmp_lt_u32 s50, 4
    s_cselect_b32 s51, 0, 4
    s_sub_u32 s50, s50, s51
    s_lshl_b32 s50, s50, 10
    s_add_u32 s50, s50, {QKV + 80*32768}
    s_lshl_b32 s51, s44, 15
    s_add_u32 s51, s51, s50
    s_lshl_b32 s52, s45, 15
    s_add_u32 s52, s52, s50
    s_add_u32 s49, s49, {KV0}""")
    a(f"""s_lshl_b32 s53, s41, 3
    s_add_u32 s53, s53, s{sWAVE}
    s_lshl_b32 s54, s53, 9
    s_add_u32 s54, s54, {QKV}
    s_lshl_b32 s55, s44, 15
    s_add_u32 s55, s55, s54
    s_lshl_b32 s56, s45, 15
    s_add_u32 s56, s56, s54
    v_lshlrev_b32 v5, 15, v3
    v_lshl_add_u32 v5, v2, 4, v5
    v_lshlrev_b32 v6, 4, v2
    v_mov_b32 v8, {OOB}
    v_add_u32 v9, s43, v3
    v_cmp_eq_u32 vcc, 0, v9
    v_cndmask_b32 v7, v8, v6, vcc
    v_cmp_gt_u32 vcc, s43, v3
    v_cndmask_b32 v6, v8, v6, vcc""")
    self.stamp('p2pre')
    self.finish(M_S1, 'p1st')
    self.poll1(1, "s47", "s46", 8, 9)
    self.stamp('p2poll')
    Q0, Q1 = 16, 20
    def dma(o, goff, add, tag):
        a(f"s_add_u32 m0, s49, {o*OCTP}")
        if add: a(f"s_add_u32 s57, s{goff}, {add}")
        self.vmem(f"buffer_load_dwordx4 v4, {WS}, s{57 if add else goff} offen sc1 lds", tag)
    dma(0, 51, 0, 'K'); dma(1, 51, 32768, 'K'); dma(2, 52, 0, 'K')
    self.vmem(f"buffer_load_dwordx4 {vr(Q0)}, v5, {WS}, s55 offen sc1", 'K')
    self.vmem(f"buffer_load_dwordx2 {vr(Q1,2)}, v7, {WS}, s56 offen sc1", 'K')
    self.vmem(f"buffer_load_dwordx2 {vr(Q1+2,2)}, v6, {WS}, s56 offen offset:8 sc1", 'K')
    self.wait_vm('K')
    dma(3, 51, 80*32768, 'V'); dma(4, 51, 81*32768, 'V'); dma(5, 52, 80*32768, 'V')
    a("s_waitcnt lgkmcnt(0)")
    self.bar()
    self.stamp('p2k')
    SB = 64; OA = 208; KF = 24; VF = 24
    Sr = lambda t: SB + 16 * t
    lg = LG(a)
    order = [8, 0, 1, 2, 3, 4, 5, 6, 7]
    def kread(n):
        t = order[n]; kb = KF + 8 * (n % 3)
        lg.op(f"ds_read_b128 {vr(kb)}, v12 offset:{512*t}")
        lg.op(f"ds_read_b128 {vr(kb+4)}, v13 offset:{512*t}", ('K', n))
    def qk(n):
        t = order[n]; kb = KF + 8 * (n % 3)
        lg.need(('K', n))
        a(f"v_mfma_f32_32x32x16_bf16 {vr(Sr(t),16)}, {vr(kb)}, {vr(Q0)}, 0")
        a(f"v_mfma_f32_32x32x16_bf16 {vr(Sr(t),16)}, {vr(kb+4)}, {vr(Q1)}, {vr(Sr(t),16)}")
    def fix(t):
        Lf = f"L_fix{t}"; Lb = f"L_fixb{t}"
        a(f"s_cmp_gt_u32 s48, {t}\ns_cbranch_scc1 {Lf}\n{Lb}:")
        def blk():
            a(f"{Lf}:")
            a("s_nop 15")
            for i in range(16): a(f"v_mov_b32 v{Sr(t)+i}, 0xff800000")
            a(f"s_branch {Lb}")
        self.tail.append(blk)
    M0, M1 = 60, 61
    first = [True]
    def vmax(t):
        b = Sr(t)
        for i in range(0, 16, 4):
            if first[0] and i == 0:
                a(f"v_max_f32 v{M0}, v{b}, v{b+1}\nv_max_f32 v{M1}, v{b+2}, v{b+3}")
                first[0] = False
            else:
                a(f"v_max3_f32 v{M0}, v{M0}, v{b+i}, v{b+i+1}\nv_max3_f32 v{M1}, v{M1}, v{b+i+2}, v{b+i+3}")
    def post(n):
        t = order[n]
        if t == 8: return
        fix(t)
        if t == 0:
            for r in range(16):
                a(f"v_cndmask_b32 v{Sr(8)+r}, v{Sr(0)+r}, v{Sr(8)+r}, s[{64+2*r}:{65+2*r}]")
            vmax(8)
        else: vmax(t)
    kread(0); kread(1); kread(2)
    for n in range(9):
        qk(n)
        if n + 3 < 9: kread(n + 3)
        if n >= 1: post(n - 1)
        if n == 6:
            self.wait_vm('V')
            self.bar()
        if n >= 7 and pf: pf.pop(0)()
    post(8)
    a(f"""v_max_f32 v{M0}, v{M0}, v{M1}
    v_mov_b32 v{M1}, v{M0}
    v_permlane32_swap_b32 v{M0}, v{M1}
    v_max_f32 v{M0}, v{M0}, v{M1}""")
    self.stamp('p2v')
    pv = [8, 0, 1, 2, 3, 4, 5, 6, 7]
    def vread(n):
        t = pv[n]; vb = VF + 8 * (n % 3)
        for sp in range(2):
            for tt in range(2):
                lg.op(f"ds_read_b64_tr_b16 {vr(vb+4*sp+2*tt,2)}, v14 offset:{(32*t+16*sp+8*tt)*16}", ('V', n))
    def soft(t):
        b = Sr(t)
        a(".p2align 3")
        for i in range(8): a(f"v_pk_add_f32 {vr(b+2*i,2)}, {vr(b+2*i,2)}, {vr(M0,2)} op_sel_hi:[1,0] neg_lo:[0,1] neg_hi:[0,1]")
        for i in range(16):
            a(f"v_exp_f32 v{b+i}, v{b+i}")
            if i in (3, 11) and pf: pf.pop(0)()
        a(".p2align 3")
        for i in range(8): a(f"v_cvt_pk_bf16_f32 v{b+i}, v{b+2*i}, v{b+2*i+1}")
    def pvm(n):
        t = pv[n]; vb = VF + 8 * (n % 3)
        pb = Sr(8) + 8 if t == 8 else Sr(t)
        lg.need(('V', n))
        for sp in range(2):
            c = "0" if (n == 0 and sp == 0) else vr(OA, 16)
            a(f"v_mfma_f32_32x32x16_bf16 {vr(OA,16)}, {vr(vb+4*sp)}, {vr(pb+4*sp)}, {c}")
    vread(0); vread(1); vread(2)
    soft(8)
    for i in range(8):
        a(f"v_and_b32 v{Sr(8)+8+i}, v{Sr(8)+i}, v{PM+i}\nv_bfi_b32 v{Sr(0)+i}, v{PM+i}, 0, v{Sr(8)+i}")
    pvm(0); vread(3); pvm(1); vread(4)
    for n in range(2, 9):
        soft(pv[n])
        pvm(n)
        if n + 3 < 9: vread(n + 3)
    while pf: pf.pop(0)()
    a(f"""v_bfe_u32 v5, v1, 4, 1
    v_mul_u32_u24 v5, 20480, v5
    v_and_b32 v6, 15, v1
    v_lshl_add_u32 v5, v6, 4, v5
    v_mov_b32 v8, {OOB}
    v_cmp_eq_u32 vcc, 0, v3
    v_cndmask_b32 v6, v8, v5, vcc
    v_lshl_add_u32 v5, v3, 8, v5
    s_mul_i32 s54, s53, 40960
    s_add_u32 s54, s54, {OO}
    s_lshl_b32 s55, s44, 8
    s_add_u32 s55, s55, s54
    s_lshl_b32 s56, s45, 8
    s_add_u32 s56, s56, s54
    s_lshl_b32 s57, s43, 3
    s_add_u32 s56, s56, s57
    v_rcp_f32 v8, v{OA+12}""")
    for i in range(12): a(f"v_mul_f32 v{OA+i}, v{OA+i}, v8")
    for i in range(6): a(f"v_cvt_pk_bf16_f32 v{16+i}, v{OA+2*i}, v{OA+2*i+1}")
    a(f"buffer_store_dwordx4 v[16:19], v5, {WS}, s55 offen sc1")
    a(f"buffer_store_dwordx2 v[20:21], v6, {WS}, s56 offen sc1")
    self.stamp('p2cmp')
    a(f"""s_lshl_b32 s50, s41, 5
    v_add_u32 v247, s50, v1
    v_cmp_gt_u32 vcc, 32, v1""")
    self.sigprep(4)
    if self.upto == 2: self.finish(M_S2, 'p2st')

def p3_coords(a):
    a("""s_and_b32 s40, s2, 6
    s_lshl_b32 s40, s40, 2
    s_lshr_b32 s41, s2, 5
    s_add_u32 s40, s40, s41
    s_and_b32 s41, s2, 1
    s_lshl_b32 s41, s41, 2
    s_bfe_u32 s42, s2, 0x20003
    s_add_u32 s41, s41, s42""")

WOV = [48, 49, 50, 51, 62]
def p3_prefetch(self):
    a = self.a
    for j in range(5):
        a(f"""v_add_u32 v5, {64*j}, v1
        v_mul_u32_u24 v6, 6554, v5
        v_lshrrev_b32 v6, 16, v6
        v_mul_u32_u24 v7, 10, v6
        v_sub_u32 v7, v5, v7
        v_and_b32 v8, 0x13, v6
        v_bfe_u32 v9, v6, 2, 1
        v_lshl_add_u32 v8, v9, 3, v8
        v_bfe_u32 v9, v6, 3, 1
        v_lshl_add_u32 v8, v9, 2, v8
        v_mul_u32_u24 v8, 1280, v8
        v_lshl_add_u32 v{WOV[j]}, v7, 4, v8""")
    a(f"""s_and_b32 s58, s2, 1
    s_lshl_b32 s58, s58, 2
    s_bfe_u32 s59, s2, 0x20003
    s_add_u32 s58, s58, s59
    s_mul_i32 s58, s58, 160
    s_lshr_b32 s59, s2, 5
    s_mul_i32 s59, s59, 5
    s_lshr_b32 s59, s59, 1
    s_add_u32 s59, s59, s{sWAVE}""")
    a(f"""v_lshlrev_b32 v63, 7, v1
    s_lshl_b32 s60, s{sWAVE}, 8
    s_add_u32 s60, s60, s2
    s_lshl_b32 s60, s60, 13""")
    out = []
    def piece(g, j):
        def f():
            if g == 2:
                L = a.newlabel('Lwo')
                a(f"s_cmp_ge_u32 s{sWAVE}, 4\ns_cbranch_scc1 {L}")
            if j == 0:
                a(f"""s_cmp_ge_u32 s59, 20
                s_cselect_b32 s98, 20, 0
                s_sub_u32 s59, s59, s98
                s_mul_i32 s98, s59, {32*1280}
                s_add_u32 s98, s98, s58
                s_mul_i32 s99, s59, 5120
                s_add_u32 s59, s59, 8""")
            a(f"s_add_u32 m0, s99, {j*1024}")
            t = f"buffer_load_dwordx4 v{WOV[j]}, {srd(SRD_WO)}, s98 offen lds"
            if g == 2: a(t + f"\n{L}:")
            else: self.vmem(t, 'wo')
        return f
    for g in range(3):
        for j in range(5): out.append(piece(g, j))
    def touch():
        L = a.newlabel('Ltch')
        a(f"s_cmp_ge_u32 s{sWAVE}, 2\ns_cbranch_scc1 {L}")
        self.touch(srd(SRD_WU), 63, "s60", 0)
        a(f"{L}:")
    out.insert(0, touch)
    return out


P4_R, P4_SLOT = 4, 24576
P4_TAB = 4 * 24576
P5_RA, P5_RW, P5_PRE = 4, 13, 7
def p5_wslot(i): return 106496 + 8192 * i if i < 7 else 49152 + 8192 * (i - 7)

def p4_coords(a):
    a("""s_and_b32 s40, s2, 3
    s_mul_i32 s40, s40, 27
    s_lshr_b32 s41, s2, 3
    s_add_u32 s40, s40, s41
    s_lshr_b32 s41, s40, 2
    s_and_b32 s40, s40, 3
    s_and_b32 s42, s2, 4
    s_add_u32 s40, s40, s42""")

def p5_coords(a, r, c, t):
    a(f"""s_bfe_u32 s{r}, s2, 0x20001
    s_mul_i32 s{r}, s{r}, 28
    s_lshr_b32 s{c}, s2, 3
    s_add_u32 s{t}, s{r}, s{c}
    s_cmp_ge_u32 s2, 224
    s_cselect_b32 s{t}, 110, s{t}
    s_mul_i32 s{r}, s{t}, 13108
    s_lshr_b32 s{r}, s{r}, 16
    s_mul_i32 s{c}, s{r}, 5
    s_sub_u32 s{t+1}, s{t}, s{c}
    s_and_b32 s{c}, s2, 1
    s_mul_i32 s{c}, s{c}, 5
    s_add_u32 s{c}, s{c}, s{t+1}""")

def tail345(self):
    a = self.a
    a(f"s_cmp_ge_u32 s{sWAVE}, 4\ns_cbranch_scc1 L_h345")
    self.nbar = 0
    marks_c = []
    p3_c(self); marks_c.append(self.nbar)
    if self.upto >= 4: p4_c(self); marks_c.append(self.nbar)
    if self.upto >= 5: p5_c(self); marks_c.append(self.nbar)
    a("s_endpgm")
    a("L_h345:")
    self.nbar = 0
    marks_h = []
    p3_coords(a)
    a(f"""s_lshl_b32 s44, s40, 3
    s_add_u32 s44, s44, s41
    s_lshl_b32 s44, s44, 7
    s_add_u32 s44, s44, {4*M_S2}""")
    self.finish(M_S2, 'p2st_h')
    self.poll1(5, "s44", 32, 8, 9)
    if self.upto >= 4: p4_h_pre(self)
    self.bar(); marks_h.append(self.nbar)
    if self.upto >= 4: p4_h(self); marks_h.append(self.nbar)
    if self.upto >= 5: p5_h(self); marks_h.append(self.nbar)
    assert marks_c == marks_h, (marks_c, marks_h)

def p3_c(self):
    a = self.a
    self.vm = VM()
    p3_coords(a)
    OF = 16; ACC = 96; WF = 116; NW = 6; XR = 236
    a(f"""v_and_b32 v2, 15, v1
    v_lshrrev_b32 v3, 4, v1
    v_bfe_u32 v4, v1, 2, 3
    v_lshrrev_b32 v5, 5, v1
    v_lshl_add_u32 v4, v5, 4, v4
    v_mul_u32_u24 v4, 160, v4
    v_and_b32 v5, 3, v1
    v_lshl_add_u32 v4, v5, 3, v4
    v_add_u32 v5, 61440, v4
    s_lshl_b32 s42, s40, 2
    s_add_u32 s42, s42, s{sWAVE}""")
    a(f"""v_mul_u32_u24 v6, 1280, v2
    v_lshl_add_u32 v6, v3, 3, v6
    s_mul_i32 s43, s42, {16*1280}
    s_mul_i32 s44, s41, 160
    s_add_u32 s43, s43, s44""")
    a(f"""v_and_b32 v8, 1, v3
    v_lshlrev_b32 v11, 9, v8
    v_lshrrev_b32 v10, 1, v3
    v_lshlrev_b32 v10, 8, v10
    v_lshl_add_u32 v10, v2, 4, v10
    v_add_u32 v11, v11, v10
    v_mov_b32 v12, {OOB}
    v_cmp_eq_u32 vcc, 0, v8
    v_cndmask_b32 v10, v12, v10, vcc
    v_lshlrev_b32 v14, 13, v8
    v_lshl_add_u32 v14, v2, 2, v14
    s_lshl_b32 s44, s40, 3
    s_add_u32 s44, s44, s41
    s_lshl_b32 s44, s44, 7
    s_add_u32 s44, s44, {4*M_S2}
    s_mul_i32 s45, s42, 20480
    s_add_u32 s46, s45, {OO}
    s_mul_i32 s47, s41, 2560
    s_add_u32 s47, s47, s45
    s_add_u32 s47, s47, {HH}
    s_lshl_b32 s48, s41, 14
    s_lshl_b32 s49, s42, 6
    s_add_u32 s48, s48, s49
    s_add_u32 s48, s48, {ST2}
    v_lshlrev_b32 v7, 4, v1""")
    self.finish(M_S2, 'p2st')
    a(f"""s_lshr_b32 s49, s40, 2
    s_mul_i32 s49, s49, 27
    v_add_u32 v247, s49, v1
    v_cmp_gt_u32 vcc, 27, v1""")
    self.sigprep(0)
    lg = LG(a)
    def wread(s):
        wb = WF + 20 * (s % NW)
        base, off = (4, 32 * s * 160) if s < 12 else (5, 32 * s * 160 - 61440)
        return [(f"ds_read_b64_tr_b16 {vr(wb+4*nu+2*t,2)}, v{base} offset:{off+8*t*160+32*nu}", ('W', s, nu)) for nu in range(5) for t in range(2)]
    self.bar()
    self.stamp('p3poll')
    for s in range(20):
        self.vmem(f"buffer_load_dwordx4 {vr(OF+4*s)}, v7, {WS}, s46 offen offset:{1024*(s&3)} sc1", ('O', s))
        if s & 3 == 3 and s < 19: a("s_add_u32 s46, s46, 4096")
        if s == 19:
            for nu in range(5):
                self.vmem(f"buffer_load_dwordx2 {vr(XR+2*nu,2)}, v6, {srd(SRD_X)}, s43 offen offset:{32*nu}", 'xr')
        if s == 11:
            for s2 in range(NW):
                for r in wread(s2): lg.op(*r)
                if s2: lg.need(('W', s2 - 1, 4))
    for s in range(20):
        self.wait_vm(('O', s))
        wb = WF + 20 * (s % NW)
        nxt = wread(s - 1 + NW) if 1 <= s and s - 1 + NW < 20 else []
        lg.need(('W', s, 4))
        for nu in range(5):
            c = "0" if s == 0 else vr(ACC + 4 * nu)
            a(f"v_mfma_f32_16x16x32_bf16 {vr(ACC+4*nu)}, {vr(wb+4*nu)}, {vr(OF+4*s)}, {c}")
            for r in nxt[2*nu:2*nu+2]: lg.op(*r)
        if s == 19:
            self.wait_vm('xr')
            for i in range(10):
                a(f"v_lshlrev_b32 v{16+2*i}, 16, v{XR+i}\nv_and_b32 v{17+2*i}, 0xffff0000, v{XR+i}")
    self.stamp('p3loop')
    for i in range(20): a(f"v_add_f32 v{16+i}, v{16+i}, v{ACC+i}")
    for i in range(10): a(f"v_cvt_pk_bf16_f32 v{40+i}, v{16+2*i}, v{17+2*i}")
    for p in range(3):
        a(f"v_permlane16_swap_b32 v{40+4*p}, v{42+4*p}\nv_permlane16_swap_b32 v{41+4*p}, v{43+4*p}")
        a(f"buffer_store_dwordx4 {vr(40+4*p)}, v{11 if p < 2 else 10}, {WS}, s47 offen offset:{1024*p} sc1")
    a("v_pk_add_f32 v[56:57], v[16:17], v[18:19]\nv_pk_mul_f32 v[58:59], v[16:17], v[16:17]\nv_pk_fma_f32 v[58:59], v[18:19], v[18:19], v[58:59]")
    for i in range(2, 10):
        a(f"v_pk_add_f32 v[56:57], v[56:57], {vr(16+2*i,2)}\nv_pk_fma_f32 v[58:59], {vr(16+2*i,2)}, {vr(16+2*i,2)}, v[58:59]")
    a(f"""v_add_f32 v12, v56, v57
    v_add_f32 v13, v58, v59
    v_permlane16_swap_b32 v12, v13
    v_add_f32 v12, v12, v13
    v_mov_b32 v13, v12
    v_permlane32_swap_b32 v12, v13
    v_add_f32 v12, v12, v13
    s_mov_b32 exec_hi, 0
    buffer_store_dword v12, v14, {WS}, s48 offen sc1
    s_mov_b64 exec, -1""")
    self.stamp('p3epi')
    if self.upto >= 4: p4_c_pre(self)
    self.finish(M_S3, 'p3st')

def p4_c_pre(self):
    a = self.a
    SLOT, T = P4_SLOT, P4_TAB
    p4_coords(a)
    XA, WA = 8, 10
    a(f"""s_and_b32 s48, s{sWAVE}, 1
    s_lshr_b32 s49, s{sWAVE}, 1
    s_lshl_b32 s50, s48, 13
    v_lshl_add_u32 v{XA}, v1, 4, s50
    v_add_u32 v{XA+1}, {2*SLOT}, v{XA}""")
    self.w128_read_addr(WA, 4)
    a(f"""s_lshl_b32 s50, s49, 6
    v_xor_b32 v{WA}, s50, v{WA}
    v_mov_b32 v14, v{WA}
    v_add_u32 v{WA}, 16384, v{WA}
    v_xor_b32 v{WA+1}, 32, v{WA}
    v_add_u32 v{WA+2}, {2*SLOT}, v{WA}
    v_add_u32 v{WA+3}, {2*SLOT}, v{WA+1}
    s_lshl_b32 s50, s48, 11
    s_add_u32 s50, s50, {T}
    v_lshl_add_u32 v4, v2, 4, s50
    s_lshl_b32 s50, s49, 7
    s_add_u32 s50, s50, {T+4096}
    v_lshl_add_u32 v5, v3, 4, s50""")
    a(f"""v_and_b32 v6, 1, v3
    v_lshlrev_b32 v6, 9, v6
    v_lshrrev_b32 v7, 1, v3
    v_lshl_add_u32 v6, v7, 8, v6
    v_lshl_add_u32 v6, v2, 4, v6
    s_lshl_b32 s50, s40, 1
    s_add_u32 s50, s50, s48
    s_mul_i32 s50, s50, {8*216*256}
    s_lshl_b32 s51, s41, 1
    s_add_u32 s51, s51, s49
    s_lshl_b32 s51, s51, 10
    s_add_u32 s50, s50, s51
    s_add_u32 s50, s50, {HP}""")

def p4_c(self):
    a = self.a
    R, SLOT = P4_R, P4_SLOT
    self.tail.append(lambda: p4_idle(self))
    a("s_cmp_ge_u32 s2, 216\ns_cbranch_scc1 L_p4_idle")
    XA, WA = 8, 10
    FR = 16; ACC = 112
    a(f"""s_lshl_b32 s52, s40, 3
    s_mul_i32 s51, s52, 21846
    s_lshr_b32 s51, s51, 16
    s_add_u32 s52, s52, 7
    s_mul_i32 s52, s52, 21846
    s_lshr_b32 s52, s52, 16
    s_sub_u32 s52, s52, s51
    s_add_u32 s52, s52, 1
    s_mul_i32 s52, s52, 10
    s_mul_i32 s51, s51, 10
    v_add_u32 v247, s51, v1
    v_cmp_gt_u32 vcc, s52, v1""")
    self.sigprep(0)
    lg = LG(a)
    def reads(g):
        slot = g % R
        win, off = slot >> 1, (slot & 1) * SLOT
        fb = FR + 48 * (g & 1)
        W = lambda nu: [(f"ds_read_b64_tr_b16 {vr(fb+32+4*nu+2*t,2)}, v{WA+2*win+(nu&1)} offset:{off+4096*(nu>>1)+512*t}", ('W', g, nu)) for t in range(2)]
        X = lambda i: [(f"ds_read_b128 {vr(fb+4*i)}, v{XA+win} offset:{off+1024*i}", ('X', g, i))]
        out = W(0) + X(0) + W(1) + W(2) + W(3)
        for i in range(1, 8): out += X(i)
        return out
    self.bar()
    self.bar()
    self.stamp('p4b0')
    for r in reads(0): lg.op(*r)
    ST, CSR, PK = 16, 48, 64
    for g in range(20):
        fb = FR + 48 * (g & 1)
        nxt = []
        k = 0; n = 0
        for mu in range(8):
            for nu in range(4):
                if n == 8:
                    self.bar()
                    if g + 1 < 20: nxt = reads(g + 1)
                    else:
                        nxt = [(f"ds_read_b128 {vr(CSR+4*q)}, v5 offset:{256*(q>>1)+64*(q&1)}", None) for q in range(4)]
                        nxt += [(f"ds_read_b128 {vr(ST+4*q)}, v4 offset:{256*q}", None) for q in range(8)]
                ac = ACC + 16 * mu + 4 * nu
                c = "0" if g == 0 else vr(ac)
                if g > 0 and n == 0: lg.need(('X', g, 1))
                if g > 0 and n == 4: lg.need(('X', g, 7))
                lg.need(('W', g, nu), ('X', g, mu))
                a(f"v_mfma_f32_16x16x32_bf16 {vr(ac)}, {vr(fb+32+4*nu)}, {vr(fb+4*mu)}, {c}")
                if k < len(nxt) and n % 4 != 3: lg.op(*nxt[k]); k += 1
                n += 1
        assert k == len(nxt)
    lg.drain()
    self.stamp('p4loop')
    a(".p2align 3")
    def A(mu):
        st = ST + 4 * mu; b = ACC + 16 * mu
        o = [f"v_pk_fma_f32 {vr(b+2*h,2)}, {vr(CSR+2*h,2)}, {vr(st,2)}, {vr(b+2*h,2)} op_sel_hi:[1,0,1] neg_lo:[0,1,0] neg_hi:[0,1,0]" for h in range(4)]
        o += [f"v_pk_mul_f32 {vr(b+2*h,2)}, {vr(b+2*h,2)}, {vr(st,2)} op_sel:[0,1] op_sel_hi:[1,1]" for h in range(4)]
        o += [f"v_exp_f32 v{b+i}, v{b+i}" for i in range(8)]
        o += [f"v_pk_fma_f32 {vr(b+2*h,2)}, {vr(CSR+2*h,2)}, {vr(st,2)}, {vr(b+2*h,2)} op_sel_hi:[1,0,1] neg_lo:[0,1,0] neg_hi:[0,1,0]" for h in range(4, 8)]
        o += [f"v_pk_fma_f32 {vr(b+2*h,2)}, {vr(b+2*h,2)}, {vr(st+2,2)}, {vr(st+2,2)} op_sel_hi:[1,0,0]" for h in range(4)]
        o += [f"v_rcp_f32 v{b+i}, v{b+i}" for i in range(8)]
        return o
    def B(mu):
        b = ACC + 16 * mu; pk = PK + 4 * (mu % 4)
        o = [f"v_pk_mul_f32 {vr(b+2*h,2)}, {vr(b+2*h,2)}, {vr(b+8+2*h,2)}" for h in range(4)]
        o += [f"v_cvt_pk_bf16_f32 v{pk+h}, v{b+2*h}, v{b+2*h+1}" for h in (0, 2, 1, 3)]
        return o
    def C(mu):
        pk = PK + 4 * (mu % 4)
        o = [f"v_permlane16_swap_b32 v{pk}, v{pk+2}", f"v_permlane16_swap_b32 v{pk+1}, v{pk+3}",
             f"buffer_store_dwordx4 {vr(pk)}, v6, {WS}, s50 offen sc1"]
        if mu < 7: o.append(f"s_add_u32 s50, s50, {216*256}")
        return o
    for mu in range(9):
        cur = A(mu) if mu < 8 else []
        seq = cur[:4] + (B(mu - 1) if mu else []) + cur[4:8] + (C(mu - 1) if mu else []) + cur[8:]
        for t in seq: a(t)
    self.stamp('p4epi')
    a("L_p5_c_pre:")
    if self.upto >= 5: p5_c_pre(self)
    self.finish(M_S4, 'p4st')

def p4_h_pre(self):
    a = self.a
    p4_coords(a)
    self.w128_dma_voff(3456, 3, 10, 11)
    a(f"""s_and_b32 s42, s{sHW}, 1
    s_lshl_b32 s42, s42, 6
    v_xor_b32 v3, s42, v3
    v_lshlrev_b32 v2, 4, v1
    v_add_u32 v4, {20480-1024}, v2
    v_add_u32 v5, {2*(20480-1024)}, v2
    v_add_u32 v6, {3*(20480-1024)}, v2
    s_lshl_b32 s44, s40, 2
    s_add_u32 s44, s44, s{sHW}
    s_mul_i32 s44, s44, {4*20480}
    s_add_u32 s44, s44, {HH}
    s_mul_i32 s45, s{sHW}, {8*3456}
    s_lshl_b32 s46, s41, 7
    s_add_u32 s45, s45, s46
    s_lshl_b32 s47, s{sHW}, 12
    s_lshl_b32 s43, s{sHW}, 10
    s_mul_i32 s50, s40, 27
    s_add_u32 s50, s50, s41
    s_lshl_b32 s50, s50, 7
    s_add_u32 s51, s50, {4*M_S3}
    s_add_u32 s50, s50, {4*M_CS4}""")
    if self.upto >= 5: p5_h_pre(self)

def p4_h(self):
    a = self.a
    R, SLOT, T = P4_R, P4_SLOT, P4_TAB
    LA = 2
    self.vm = VM()
    a("s_cmp_ge_u32 s2, 216\ns_cbranch_scc1 L_p4_idle")
    XV = [2, 4, 5, 6]
    def dma(st):
        slot = st % R
        a(f"s_add_u32 m0, s47, {slot*SLOT}")
        for i in range(4):
            self.vmem(f"buffer_load_dwordx4 v{XV[i]}, {WS}, s44 offen offset:{1024*i} sc1 lds", ('p4', st))
        a(f"s_add_u32 m0, s43, {slot*SLOT+16384}")
        self.vmem(f"buffer_load_dwordx4 v3, {srd(SRD_WG)}, s45 offen lds", ('p4', st))
        a(f"s_add_u32 m0, s43, {slot*SLOT+20480}")
        self.vmem(f"buffer_load_dwordx4 v3, {srd(SRD_WU)}, s45 offen lds", ('p4', st))
        if st < 19: a(f"s_add_u32 s44, s44, 1024\ns_add_u32 s45, s45, {32*3456}")
    self.poll1(5, "s51", 32, 8, 9)
    a("v_mov_b32 v8, 0")
    self.stamp('p4poll', 4)
    for st in range(LA): dma(st)
    a(f"""v_lshlrev_b32 v9, 2, v1
    s_lshl_b32 s48, s40, 2
    s_add_u32 s48, s48, s{sHW}
    s_lshl_b32 s48, s48, 8
    s_add_u32 s48, s48, {ST2}
    s_and_b32 s52, s{sHW}, 1
    s_mul_i32 s49, s52, {1728*4}
    s_lshl_b32 s53, s41, 8
    s_add_u32 s49, s49, s53
    s_add_u32 s49, s49, {CS4}""")
    for st in range(20):
        self.wait_vm(('p4', st))
        self.bar()
        if st % 2 == 1: self.sstamp(f'h4b{st}')
        if 2 <= st < 10:
            for i in range(2):
                self.vmem(f"buffer_load_dword v{16+2*(st-2)+i}, v9, {WS}, s48 offen sc1", 'st2')
                a("s_add_u32 s48, s48, 8192")
        if st == 13:
            self.vmem(f"buffer_load_dword v36, v8, {WS}, s50 offen sc1", 'mb')
        if st == 15:
            a("v_cmp_ne_u32 vcc, 8, v36\ns_cbranch_vccz L_p4_csok")
            keep = list(self.vm.ops)
            self.poll("s50", 8, 8, 36)
            self.vm.ops = keep
            a("L_p4_csok:")
            for q in range(4):
                self.vmem(f"buffer_load_dword v{32+q}, v9, {WS}, s49 offen sc1", 'cs')
                if q < 3: a(f"s_add_u32 s49, s49, {3456*4}")
        if st + LA < 20: dma(st + LA)
        if self.upto >= 5 and 11 <= st < 11 + P5_PRE: p5_wdma(self, st - 11)
        if st == 17:
            self.wait_vm('cs')
            for w in (8, 4, 2):
                for i in range(w): a(f"v_add_f32 v{16+i}, v{16+i}, v{16+w+i}")
            a(f"""v_add_f32 v32, v32, v33
            v_add_f32 v34, v34, v35
            v_add_f32 v32, v32, v34
            v_mov_b32 v20, {f32hex(1.0/D)}
            v_mul_f32 v12, v16, v20
            v_mul_f32 v17, v17, v20
            v_fma_f32 v17, -v12, v12, v17
            v_max_f32 v17, 0, v17
            v_add_f32 v17, {f32hex(1e-5)}, v17
            v_rsq_f32 v13, v17
            v_sqrt_f32 v14, v17
            v_mov_b32 v15, 0
            v_mul_f32 v13, {f32hex(-LOG2E)}, v13
            s_lshl_b32 s52, s52, 8
            s_add_u32 s52, s52, {T+4096}
            v_add_u32 v10, s52, v9
            s_add_u32 s52, s43, {T}
            v_add_u32 v11, s52, v2
            ds_write_b32 v10, v32
            ds_write_b128 v11, v[12:15]
            s_waitcnt lgkmcnt(0)""")
    self.sdump(6)
    self.bar()
    a("L_p5_h_pre:")
    self.bar()

def p4_idle(self):
    a = self.a
    self.vm = VM()
    a(f"""L_p4_idle:
    s_mul_i32 s40, s{sWAVE}, 40
    s_add_u32 s40, s40, s2
    s_sub_u32 s40, s40, 216
    s_cmp_ge_u32 s40, 216
    s_cbranch_scc1 L_cs4_done
    s_cmp_ge_u32 s40, 108
    s_cselect_b32 s44, 108, 0
    s_cselect_b32 s56, s{SRD_WU}, s{SRD_WG}
    s_cselect_b32 s57, s{SRD_WU+1}, s{SRD_WG+1}
    s_mov_b32 s58, {D*F*2}
    s_mov_b32 s59, 0x20000
    s_sub_u32 s45, s40, s44
    s_lshr_b32 s45, s45, 2
    s_and_b32 s46, s40, 3
    s_lshl_b32 s47, s45, 7
    s_mul_i32 s41, s46, {160*3456}
    s_add_u32 s47, s47, s41
    s_mul_i32 s50, s{sWAVE}, 20480""")
    self.colsum_issue("s[56:59]", 3456, 47, 50, 16, 17, 18)
    a(f"""s_mul_i32 s47, s46, {3456*4}
    s_lshr_b32 s41, s40, 2
    s_lshl_b32 s41, s41, 8
    s_add_u32 s47, s47, s41
    s_add_u32 s47, s47, {CS4}
    s_waitcnt vmcnt(0)""")
    self.colsum_finish(50, 47, 16)
    a(f"""v_mul_u32_u24 v16, 27, v1
    v_add_u32 v16, s45, v16
    v_cmp_gt_u32 vcc, 8, v1
    s_waitcnt vmcnt(0)""")
    self.signal(16, M_CS4, 17)
    a("L_cs4_done:")
    a.settle()
    a(f"""v_mul_u32_u24 v16, 13108, v1
    v_lshrrev_b32 v16, 16, v16
    v_mul_u32_u24 v17, 5, v16
    v_sub_u32 v17, v1, v17
    v_mul_u32_u24 v16, 1280, v16
    v_lshl_add_u32 v16, v17, 7, v16
    s_lshr_b32 s40, s2, 3
    s_sub_u32 s40, s40, 27
    s_lshl_b32 s40, s40, 3
    s_add_u32 s40, s40, s{sWAVE}
    s_mul_i32 s40, s40, {12*1280}
    s_and_b32 s41, s2, 1
    s_mul_i32 s41, s41, 640
    s_add_u32 s40, s40, s41""")
    for n in range(4):
        self.touch(srd(SRD_WD), 16, "s40", n)
        if n < 3: a(f"s_add_u32 s40, s40, {40*12*1280}")
    a(f"""s_barrier
    s_mov_b64 s[62:63], 0
    s_cmp_lt_u32 s{sWAVE}, 4
    s_cbranch_scc1 L_p5_c_pre""")
    if self.upto >= 5:
        for i in range(P5_PRE): p5_wdma(self, i)
    a("s_branch L_p5_h_pre")

def p5_h_pre(self):
    a = self.a
    p5_coords(a, 64, 65, 66)
    self.w128_dma_voff(1280, 103, 10, 11)
    a(f"""v_xor_b32 v104, 64, v103
    v_add_u32 v104, {8*1280-1024}, v104
    s_mul_i32 s68, s{sHW}, 3""")
    for i in range(3):
        a(f"""s_add_u32 s69, s68, {i}
        s_lshr_b32 s70, s69, 1
        s_mul_i32 s70, s70, 55296
        s_and_b32 s69, s69, 1
        s_lshl_b32 s69, s69, 10
        s_add_u32 s70, s70, s69
        s_add_u32 s70, s70, {4096 - 1024*i}
        v_lshl_add_u32 v{100+i}, v1, 4, s70""")
    a(f"""s_mul_i32 s68, s64, {6*55296}
    s_add_u32 s68, s68, {HP - 4096}
    s_mul_i32 s69, s{sHW}, {16*1280}
    s_lshl_b32 s70, s65, 7
    s_add_u32 s69, s69, s70
    s_mul_i32 s70, s{sHW}, 3072
    s_lshl_b32 s71, s{sHW}, 11
    s_mul_i32 s72, s64, 10
    s_add_u32 s72, s72, s65
    s_lshl_b32 s72, s72, 7
    s_add_u32 s72, s72, {4*M_S4}
    s_mul_i32 s73, s64, 3
    s_add_u32 s74, s73, 2
    s_min_u32 s74, s74, 63
    s_lshr_b32 s73, s73, 3
    s_lshr_b32 s74, s74, 3
    s_cmp_eq_u32 s73, s74
    s_cselect_b32 s73, 27, 54
    s_lshl_b32 s67, s67, 1""" + ("\ns_mov_b32 s67, 0" if 'norot5' in sys.argv else ""))

def p5_ks(a, st, sk):
    b0 = 9 * (st // 9)
    if st % 9 == 0: a(f"s_add_u32 s{sk}, s67, {b0}")
    else: a(f"s_add_u32 s{sk}, s{sk}, 1\ns_cmp_eq_u32 s{sk}, {b0+9}\ns_cselect_b32 s{sk}, {b0}, s{sk}")

def p5_wdma(self, st):
    a = self.a
    p5_ks(a, st, 75)
    a(f"s_mul_i32 s76, s75, {64*1280}\ns_add_u32 s76, s76, s69\ns_add_u32 m0, s71, {p5_wslot(st % P5_RW)}")
    for i in range(2):
        self.vmem(f"buffer_load_dwordx4 v{103+i}, {srd(SRD_WD)}, s76 offen offset:{1024*i} lds", ('p5w', st))

def p5_h(self):
    a = self.a
    RA, RW = P5_RA, P5_RW
    LA = RA - 1
    self.vm = VM()
    a("s_cmp_ge_u32 s66, 110\ns_cbranch_scc1 L_end")
    def adma(st):
        p5_ks(a, st, 74)
        a(f"s_lshl_b32 s76, s74, 11\ns_add_u32 s76, s76, s68\ns_add_u32 m0, s70, {(st % RA)*12288}")
        for i in range(3):
            self.vmem(f"buffer_load_dwordx4 v{100+i}, {WS}, s76 offen offset:{1024*i} sc1 lds", ('p5', st))
    for st in range(P5_PRE, RW): p5_wdma(self, st)
    self.poll1(5, "s72", "s73", 8, 9)
    self.stamp('p5poll', 4)
    for st in range(LA): adma(st)
    for st in range(27):
        self.wait_vm(('p5', st))
        self.bar()
        if st + LA < 27: adma(st + LA)
        if st >= 1 and st - 1 + RW < 27: p5_wdma(self, st - 1 + RW)

def p5_c_pre(self):
    a = self.a
    p5_coords(a, 40, 41, 42)
    a(f"""s_mul_i32 s50, s48, 6144
    v_lshl_add_u32 v8, v1, 4, s50
    v_add_u32 v10, 49152, v14
    v_xor_b32 v11, 32, v10
    v_add_u32 v12, 106496, v14
    v_xor_b32 v13, 32, v12""")
    a(f"""v_lshrrev_b32 v7, 1, v3
    v_lshlrev_b32 v4, 8, v7
    v_lshl_add_u32 v4, v2, 4, v4
    v_and_b32 v5, 1, v3
    v_lshl_add_u32 v4, v5, 3, v4
    s_lshl_b32 s50, s40, 1
    s_add_u32 s50, s50, s48
    s_mul_i32 s50, s50, {3*20480}
    s_lshl_b32 s52, s41, 1
    s_add_u32 s52, s52, s49
    s_lshl_b32 s53, s52, 10
    s_add_u32 s51, s50, s53
    s_add_u32 s51, s51, {HH}""")
    a(f"""v_mul_u32_u24 v9, 1280, v2
    v_lshl_add_u32 v9, v5, 5, v9
    v_lshl_add_u32 v9, v7, 4, v9
    s_lshl_b32 s54, s52, 6
    s_add_u32 s53, s50, s54
    v_add_u32 v9, s53, v9""")

def p5_c(self):
    a = self.a
    RA, RW = P5_RA, P5_RW
    self.vm = VM()
    a("s_cmp_ge_u32 s42, 110\ns_cbranch_scc1 L_end")
    FR = 16; ACC = 96; HR = 120
    lg = LG(a)
    def reads(st):
        offa = (st % RA) * 12288
        ws = st % RW
        wb, offw = (12, 8192 * ws) if ws < 7 else (10, 8192 * (ws - 7))
        fb = FR + 40 * (st & 1)
        out = []
        for j in range(2):
            W = lambda nu: [(f"ds_read_b64_tr_b16 {vr(fb+20*j+12+4*nu+2*t,2)}, v{wb+nu} offset:{offw+4096*j+512*t}", ('W', st, j, nu)) for t in range(2)]
            X = lambda i: [(f"ds_read_b128 {vr(fb+20*j+4*i)}, v8 offset:{offa+2048*i+1024*j}", ('X', st, j, i))]
            out += W(0) + X(0) + W(1) + X(1) + X(2)
        return out
    self.bar()
    self.bar()
    self.stamp('p5b0')
    for mu in range(3):
        for nu in range(2):
            a(f"buffer_load_dwordx2 {vr(HR+4*mu+2*nu,2)}, v4, {WS}, s51 offen offset:{512*nu} sc1")
        if mu < 2: a("s_add_u32 s51, s51, 20480")
    for r in reads(0): lg.op(*r)
    for st in range(27):
        nxt = []
        fb = FR + 40 * (st & 1)
        k = 0; n = 0
        for j in range(2):
            for mu in range(3):
                for nu in range(2):
                    if n == 3 and st + 1 < 27:
                        lg.drain()
                        self.bar()
                        nxt = reads(st + 1)
                    ac = ACC + 8 * mu + 4 * nu
                    c = "0" if (st == 0 and j == 0) else vr(ac)
                    if n == 0: lg.need(('X', st, 0, 1))
                    lg.need(('W', st, j, nu), ('X', st, j, mu))
                    a(f"v_mfma_f32_16x16x32_bf16 {vr(ac)}, {vr(fb+20*j+12+4*nu)}, {vr(fb+20*j+4*mu)}, {c}")
                    for _ in range(2):
                        if k < len(nxt): lg.op(*nxt[k]); k += 1
                    n += 1
        assert k == len(nxt)
        if st == 20:
            a("s_waitcnt vmcnt(0)")
            for i in range(12):
                a(f"v_lshlrev_b32 v{136+2*i}, 16, v{HR+i}\nv_and_b32 v{137+2*i}, 0xffff0000, v{HR+i}")
    self.stamp('p5loop')
    for i in range(12): a(f"v_pk_add_f32 {vr(136+2*i,2)}, {vr(136+2*i,2)}, {vr(ACC+2*i,2)}")
    for i in range(12): a(f"v_cvt_pk_bf16_f32 v{160+i}, v{136+2*i}, v{137+2*i}")
    for mu in range(3):
        pk = 160 + 4 * mu
        a(f"v_permlane16_swap_b32 v{pk}, v{pk+2}\nv_permlane16_swap_b32 v{pk+1}, v{pk+3}")
        a(f"buffer_store_dwordx4 {vr(pk)}, v9, {srd(SRD_OUT)}, 0 offen")
        if mu < 2: a("v_add_u32 v9, 20480, v9")
    self.stamp('end')
```

```python
import sys, math, struct
from asmlib import Asm

NAME = "sequential_preLN__sliding_block__glu_gated_glu__prompt"
S, D, F = 2048, 640, 1728
MB = 0
M_S0, M_S1, M_S2, M_S3, M_S4, M_CS4 = range(6)
MEAN1 = 0x10000
RSTD1 = 0x12000
CS1 = 0x14000
CS4 = 0x1C000
ST2 = 0x30000
TS = 0x60000
QKV = 0x100000
OO = 0x900000
HH = 0xC00000
HP = 0x1000000
WS_END = 0x1700000
LDS_BYTES = 163840
OOB = 0x7ffffff0
LOG2E = math.log2(math.e)

sWAVE = 3
SRD_WS, SRD_X, SRD_WQKV, SRD_WO, SRD_WG, SRD_WU, SRD_WD, SRD_OUT, SRD_DBG = [4 + 4 * i for i in range(9)]
def srd(b): return f"s[{b}:{b+3}]"
WS = srd(SRD_WS)
sBOUND = 96
sHW = 97
def vr(b, n=4): return f"v[{b}:{b+n-1}]"
def f32hex(x): return "0x%08x" % struct.unpack('<I', struct.pack('<f', x))[0]

class VM:
    def __init__(self): self.ops = []
    def add(self, tag): self.ops.append(tag)
    def count_after(self, tag):
        idx = max(i for i, t in enumerate(self.ops) if t == tag)
        return len(self.ops) - 1 - idx
    def clear(self): self.ops = []

class LG:
    def __init__(self, a): self.a = a; self.n = 0; self.pos = {}; self.done = 0
    def op(self, text, tag=None):
        self.a(text); self.n += 1
        if tag is not None: self.pos[tag] = self.n
    def need(self, *tags):
        p = max(self.pos[t] for t in tags)
        if p > self.done:
            c = min(self.n - p, 15)
            self.a(f"s_waitcnt lgkmcnt({c})")
            self.done = self.n - c
    def drain(self):
        if self.done < self.n:
            self.a("s_waitcnt lgkmcnt(0)"); self.done = self.n

class Gen:
    def __init__(self, upto=5, stamps=False):
        self.a = Asm()
        self.vm = VM()
        self.upto = upto
        self.stamps = stamps
        self.tail = []
        self.stamp_names = []
        self.nbar = 0
        self.spend = []
        self.sbase = 80

    def vmem(self, text, tag):
        self.a(text); self.vm.add(tag)
    def wait_vm(self, tag):
        n = self.vm.count_after(tag)
        assert n <= 63, n
        self.a(f"s_waitcnt vmcnt({n})")
    def bar(self):
        self.a("s_barrier"); self.nbar += 1
    def build_srd(self, b, ptr, nbytes):
        self.a(f"s_mov_b32 s{b}, s{ptr}\ns_mov_b32 s{b+1}, s{ptr+1}\ns_mov_b32 s{b+2}, {nbytes}\ns_mov_b32 s{b+3}, 0x20000")
    def stamp(self, name, wave=0):
        if not self.stamps: return
        a = self.a
        if name in self.stamp_names: i = self.stamp_names.index(name)
        else:
            i = len(self.stamp_names); self.stamp_names.append(name)
        assert i < 64
        L = a.newlabel('Lst')
        a(f"""s_cmp_lg_u32 s{sWAVE}, {wave}
        s_cbranch_scc1 {L}
        s_memrealtime s[100:101]
        v_mov_b32 v255, s2
        v_lshlrev_b32 v255, 9, v255
        v_add_u32 v255, {TS + 8*i}, v255
        s_waitcnt lgkmcnt(0)
        v_mov_b32 v252, s100
        s_memtime s[100:101]
        s_waitcnt lgkmcnt(0)
        v_mov_b32 v253, s100
        s_mov_b64 exec, 1
        buffer_store_dwordx2 v[252:253], v255, {WS}, 0 offen
        s_mov_b64 exec, -1
        {L}:""")

    def sstamp(self, name):
        if not self.stamps: return
        k = len(self.spend); assert k < 16
        self.spend.append(name)
        self.a(f"s_memtime s[100:101]\ns_waitcnt lgkmcnt(0)\ns_mov_b32 s{self.sbase+k}, s100")
    def sdump(self, wave):
        if not self.stamps: return
        a = self.a
        L = a.newlabel('Lsd')
        a(f"""s_cmp_lg_u32 s{sWAVE}, {wave}
        s_cbranch_scc1 {L}
        v_mov_b32 v255, s2
        v_lshlrev_b32 v255, 9, v255
        v_add_u32 v255, {TS}, v255
        v_mov_b32 v252, 0
        s_mov_b64 exec, 1""")
        for k, name in enumerate(self.spend):
            i = len(self.stamp_names); self.stamp_names.append(name); assert i < 64
            a(f"v_mov_b32 v253, s{self.sbase+k}\nbuffer_store_dwordx2 v[252:253], v255, {WS}, 0 offen offset:{8*i}")
        a(f"s_mov_b64 exec, -1\n{L}:")
        self.spend = []

    def wave_sum(self, vs, sdsts):
        for mod in ("quad_perm:[1,0,3,2] row_mask:0xf", "quad_perm:[2,3,0,1] row_mask:0xf", "row_half_mirror row_mask:0xf",
                    "row_mirror row_mask:0xf", "row_bcast:15 row_mask:0xa", "row_bcast:31 row_mask:0xc"):
            for v in vs:
                self.a(f"v_add_f32_dpp v{v}, v{v}, v{v} {mod} bank_mask:0xf")
        for v, s in zip(vs, sdsts):
            self.a(f"v_readlane_b32 s{s}, v{v}, 63")

    def poll(self, soff, expect, va, vt, srdb=SRD_WS):
        a = self.a
        L = a.newlabel('Lpoll'); Ld = L + 'd'
        a(f"""v_mov_b32 v{va}, 0
        {L}:
        buffer_load_dword v{vt}, v{va}, {srd(srdb)}, {soff} offen sc1
        s_waitcnt vmcnt(0)
        v_cmp_ne_u32 vcc, {expect}, v{vt}
        s_cbranch_vccz {Ld}
        s_sub_u32 s{sBOUND}, s{sBOUND}, 1
        s_cbranch_scc1 {Ld}
        s_sleep 1
        s_branch {L}
        {Ld}:""")
        self.vm.clear()

    def poll1(self, wave, soff, expect, va, vt):
        a = self.a
        L = a.newlabel('Lpoll'); Ld = L + 'd'
        a(f"""s_cmp_lg_u32 s{sWAVE}, {wave}
        s_cbranch_scc1 {Ld}
        v_mov_b32 v{va}, 0
        s_mov_b64 exec, 1
        {L}:
        v_mov_b32 v{vt}, 0
        buffer_atomic_add v{vt}, v{va}, {WS}, {soff} offen sc0 sc1
        s_waitcnt vmcnt(0)
        v_cmp_ne_u32 vcc, {expect}, v{vt}
        s_cbranch_vccz {Ld}
        s_sub_u32 s{sBOUND}, s{sBOUND}, 1
        s_cbranch_scc1 {Ld}
        s_branch {L}
        {Ld}:
        s_mov_b64 exec, -1""")
        self.bar()

    def signal(self, vline, dword, vt, mask='vcc'):
        self.a(f"""v_lshlrev_b32 v{vline}, 7, v{vline}
        v_mov_b32 v{vt}, 1
        s_mov_b64 exec, {mask}
        buffer_atomic_add v{vt}, v{vline}, {WS}, 0 offen offset:{4*dword} sc1
        s_mov_b64 exec, -1""")

    def w128_dma_voff(self, pitch, vE, vt, vt2):
        self.a(f"""v_lshrrev_b32 v{vt}, 3, v1
        v_mul_u32_u24 v{vE}, {pitch}, v{vt}
        v_and_b32 v{vt}, 2, v{vt}
        v_and_b32 v{vt2}, 7, v1
        v_xor_b32 v{vt}, v{vt}, v{vt2}
        v_lshl_add_u32 v{vE}, v{vt}, 4, v{vE}""")

    def colsum_issue(self, srdb, pitch, s_goff, s_lds, vE, vO, vt):
        a = self.a
        self.w128_dma_voff(pitch, vE, vt, vO)
        a(f"v_xor_b32 v{vO}, 64, v{vE}")
        for i in range(20):
            a(f"s_add_u32 m0, s{s_lds}, {1024*i}")
            self.vmem(f"buffer_load_dwordx4 v{vO if i & 1 else vE}, {srdb}, s{s_goff} offen lds", 'cs')
            if i < 19: a(f"s_add_u32 s{s_goff}, s{s_goff}, {8*pitch}")

    def w128_read_addr(self, vb, vt):
        self.a(f"""v_lshrrev_b32 v{vt}, 4, v1
        v_lshlrev_b32 v{vb}, 10, v{vt}
        v_bfe_u32 v{vt}, v1, 2, 2
        v_lshl_add_u32 v{vb}, v{vt}, 7, v{vb}
        v_and_b32 v{vt}, 3, v1
        v_lshl_add_u32 v{vb}, v{vt}, 3, v{vb}
        v_bfe_u32 v{vt}, v1, 3, 2
        v_lshl_add_u32 v{vb}, v{vt}, 5, v{vb}""")

    def colsum_finish(self, s_lds, s_out, vbase):
        a = self.a
        vb = vbase; vones = vbase + 4; vacc = vbase + 8; vf = vbase + 24
        self.w128_read_addr(vb, vones)
        a(f"v_add_u32 v{vb}, s{s_lds}, v{vb}")
        for nu in range(1, 4): a(f"v_xor_b32 v{vb+nu}, {32*nu}, v{vb}")
        for i in range(4): a(f"v_mov_b32 v{vones+i}, 0x3f803f80")
        for s in range(5):
            fb = vf + 16 * (s & 1)
            for nu in range(4):
                for t in range(2):
                    a(f"ds_read_b64_tr_b16 {vr(fb+4*nu+2*t, 2)}, v{vb+nu} offset:{(32*s+4*t)*128}")
            a("s_waitcnt lgkmcnt(0)")
            for nu in range(4):
                c = "0" if s == 0 else vr(vacc + 4 * nu)
                a(f"v_mfma_f32_16x16x32_bf16 {vr(vacc+4*nu)}, {vr(vones)}, {vr(fb+4*nu)}, {c}")
        a(f"""v_cmp_lt_u32 vcc, 15, v1
        v_cndmask_b32 v{vacc}, v{vacc}, v{vacc+4}, vcc
        v_cmp_lt_u32 vcc, 31, v1
        v_cndmask_b32 v{vacc}, v{vacc}, v{vacc+8}, vcc
        v_cmp_lt_u32 vcc, 47, v1
        v_cndmask_b32 v{vacc}, v{vacc}, v{vacc+12}, vcc
        v_lshlrev_b32 v{vb}, 2, v1""")
        self.vmem(f"buffer_store_dword v{vacc}, v{vb}, {WS}, s{s_out} offen sc1", 'csst')

    def row_stats(self, nrows):
        a = self.a
        a(f"""v_lshlrev_b32 v8, 4, v1
        v_lshlrev_b32 v9, 2, v1
        s_mul_i32 s45, s44, 1280""")
        for r in range(nrows):
            self.vmem(f"buffer_load_dwordx4 {vr(12+8*r)}, v8, {srd(SRD_X)}, s45 offen offset:{1280*r}", 'stat')
            self.vmem(f"buffer_load_dword v{16+8*r}, v9, {srd(SRD_X)}, s45 offen offset:{1280*r+1024}", 'stat')

    def row_stats_finish(self, nrows):
        a = self.a
        self.wait_vm('stat')
        E = lambda r, i: 32 + 12 * r + i
        for r in range(nrows):
            for i in range(5):
                a(f"v_lshlrev_b32 v{E(r,2*i)}, 16, v{12+8*r+i}\nv_and_b32 v{E(r,2*i+1)}, 0xffff0000, v{12+8*r+i}")
        acc = [12 + 8 * r for r in range(nrows)]
        for r in range(nrows): a(f"v_add_f32 v{acc[r]}, v{E(r,0)}, v{E(r,1)}")
        for i in range(2, 10):
            for r in range(nrows): a(f"v_add_f32 v{acc[r]}, v{acc[r]}, v{E(r,i)}")
        ss = [46 + r for r in range(nrows)]
        self.wave_sum(acc, ss)
        a(f"v_mov_b32 v10, {f32hex(1.0/D)}")
        for r in range(nrows): a(f"v_mul_f32 v{acc[r]+1}, s{ss[r]}, v10")
        for i in range(10):
            for r in range(nrows): a(f"v_sub_f32 v{E(r,i)}, v{E(r,i)}, v{acc[r]+1}")
        for r in range(nrows): a(f"v_mul_f32 v{acc[r]}, v{E(r,0)}, v{E(r,0)}")
        for i in range(1, 10):
            for r in range(nrows): a(f"v_fmac_f32 v{acc[r]}, v{E(r,i)}, v{E(r,i)}")
        self.wave_sum(acc, ss)
        for r in range(nrows):
            a(f"v_mov_b32 v{acc[r]+2}, {f32hex(1e-5)}\nv_fmac_f32 v{acc[r]+2}, s{ss[r]}, v10\nv_rsq_f32 v{acc[r]+2}, v{acc[r]+2}")
        a(f"""s_lshl_b32 s45, s44, 2
        s_add_u32 s45, s45, {MEAN1}
        s_add_u32 s46, s45, {RSTD1-MEAN1}
        v_mov_b32 v10, 0
        s_mov_b64 exec, 1""")
        for r in range(nrows):
            self.vmem(f"buffer_store_dword v{acc[r]+1}, v10, {WS}, s45 offen offset:{4*r} sc1", 'statst')
            self.vmem(f"buffer_store_dword v{acc[r]+2}, v10, {WS}, s46 offen offset:{4*r} sc1", 'statst')
        a("s_mov_b64 exec, -1")

    def sig_rowstats(self):
        a = self.a
        a("""s_lshr_b32 s53, s2, 4
        s_mul_i32 s53, s53, 15
        v_add_u32 v10, s53, v1
        v_cmp_gt_u32 vcc, 15, v1""")
        self.signal(10, M_S0, 11)

    def p0(self):
        a = self.a
        a(f"""s_cmp_ge_u32 s2, 256
        s_cbranch_scc1 L_end
        s_load_dwordx16 s[64:79], s[0:1], 0
        s_load_dwordx4 s[80:83], s[0:1], 64
        v_and_b32 v1, 63, v0
        v_lshrrev_b32 v2, 6, v0
        v_readfirstlane_b32 s{sWAVE}, v2
        v_mov_b32 v247, 0
        s_mov_b32 s{sBOUND}, 0x100000""")
        a(f"""s_lshr_b32 s40, s2, 3
        s_sub_u32 s40, s40, 2
        s_and_b32 s41, s2, 1
        s_mul_i32 s41, s41, 30
        s_add_u32 s40, s40, s41
        s_lshr_b32 s41, s40, 2
        s_and_b32 s40, s40, 3
        s_mul_i32 s43, s40, 3
        s_and_b32 s42, s2, 6
        s_lshl_b32 s42, s42, 1
        s_add_u32 s40, s40, s42
        s_and_b32 s{sHW}, s{sWAVE}, 3
        s_waitcnt lgkmcnt(0)""")
        self.build_srd(SRD_X, 64, S * D * 2)
        self.build_srd(SRD_WQKV, 66, D * 3 * D * 2)
        self.build_srd(SRD_WS, 82, WS_END)
        self.build_srd(SRD_DBG, 80, 256)
        self.build_srd(SRD_WO, 68, D * D * 2)
        self.build_srd(SRD_WG, 72, D * F * 2)
        self.build_srd(SRD_WU, 74, D * F * 2)
        self.build_srd(SRD_WD, 76, F * D * 2)
        self.build_srd(SRD_OUT, 78, S * D * 2)
        self.stamp('start')
        a(f"""s_cmp_lt_u32 s2, 16
        s_cbranch_scc1 L_spare
        s_cmp_lt_u32 s{sWAVE}, 4
        s_cbranch_scc1 L_p1_c""")

    def touch(self, srdb, voff, soff, n):
        self.a(f"buffer_load_dword v{248 + n % 4}, v{voff}, {srdb}, {soff} offen")

    def spare_code(self):
        a = self.a
        self.vm = VM()
        a("L_spare:")
        a("s_cmp_eq_u32 s2, 0\ns_cbranch_scc1 L_init")
        a("L_init_back:")
        a(f"""s_getpc_b64 s[40:41]
        L_pc:
        s_sub_u32 s40, s40, L_pc-{NAME}_kernel
        s_subb_u32 s41, s41, 0
        v_lshlrev_b32 v2, 7, v0
        v_min_u32 v2, L_code_end-{NAME}_kernel-4, v2
        global_load_dword v250, v2, s[40:41]""")
        a(f"s_lshl_b32 s44, s2, 3\ns_add_u32 s44, s44, s{sWAVE}")
        self.row_stats(1)
        self.row_stats_finish(1)
        self.poll(0, 1, 10, 11, SRD_DBG)
        a(f"""s_barrier
        s_cmp_lg_u32 s{sWAVE}, 0
        s_cbranch_scc1 L_spare4""")
        self.sig_rowstats()
        a("L_spare4:")
        a(f"""v_lshlrev_b32 v2, 7, v1
        s_lshl_b32 s45, s44, 13""")
        self.touch(srd(SRD_WO), 2, "s45", 0)
        for n in range(3):
            self.touch(srd(SRD_WG), 2, "s45", n + 1)
            if n < 2: a(f"s_add_u32 s45, s45, {128*8192}")
        a("s_mov_b64 s[62:63], 0")
        self.stamp('spdone')
        a("s_branch L_p1_join")
        a("L_init:")
        a(f"""v_mov_b32 v4, 0
        v_mov_b32 v5, 0
        v_mov_b32 v6, 0
        v_mov_b32 v7, 0
        v_lshlrev_b32 v8, 4, v1
        s_lshl_b32 s40, s{sWAVE}, 12""")
        for i in range(4):
            a(f"buffer_store_dwordx4 v[4:7], v8, {WS}, s40 offen offset:{1024*i} sc1")
        a(f"""s_waitcnt vmcnt(0)
        s_barrier
        s_cmp_lg_u32 s{sWAVE}, 0
        s_cbranch_scc1 L_init_back
        v_mov_b32 v5, 1
        s_mov_b64 exec, 1
        buffer_store_dword v5, v4, {srd(SRD_DBG)}, 0 offen sc1
        s_mov_b64 exec, -1
        s_branch L_init_back""")

    def finish(self, dword, name):
        a = self.a
        a("s_waitcnt vmcnt(0)")
        self.bar()
        self.stamp(name)
        L = a.newlabel('Lfin')
        a(f"""s_cmp_eq_u64 s[62:63], 0
        s_cbranch_scc1 {L}
        v_mov_b32 v246, 1
        s_mov_b64 exec, s[62:63]
        buffer_atomic_add v246, v247, {WS}, 0 offen offset:{4*dword} sc1
        s_mov_b64 exec, -1
        {L}:""")
        self.vm.clear()

    def sigprep(self, wave):
        self.a(f"""v_lshlrev_b32 v247, 7, v247
        s_cmp_eq_u32 s{sWAVE}, {wave}
        s_cselect_b64 s[62:63], vcc, 0""")

    P1_R, P1_LA = 4, 2
    rot1 = 's_mov_b32 s46, 0' if 'norot' in sys.argv else ''
    P1_TAB = 131072
    CS4_LDS = 131072 + 2048

    def p1(self):
        a = self.a
        R, LA = self.P1_R, self.P1_LA
        T = self.P1_TAB
        def waddr(dst, sblk, vt):
            a(f"""v_lshrrev_b32 v{vt}, 4, v1
            v_lshlrev_b32 v{dst}, 11, v{vt}
            v_bfe_u32 v{vt}, v1, 2, 2
            v_lshl_add_u32 v{dst}, v{vt}, 8, v{dst}
            v_and_b32 v{vt}, 3, v1
            v_lshl_add_u32 v{dst}, v{vt}, 3, v{dst}
            v_bfe_u32 v{vt}, v1, 2, 3
            v_xor_b32 v{vt}, s{sblk}, v{vt}
            v_lshl_add_u32 v{dst}, v{vt}, 5, v{dst}
            v_add_u32 v{dst}, 16384, v{dst}""")
        self.vm = VM(); self.nbar = 0
        a("""v_lshrrev_b32 v10, 3, v1
        v_mul_u32_u24 v2, 1280, v10
        v_lshrrev_b32 v10, 4, v1
        v_and_b32 v11, 7, v1
        v_xor_b32 v11, v11, v10
        v_lshl_add_u32 v2, v11, 4, v2
        v_xor_b32 v3, 64, v2
        v_add_u32 v3, 9216, v3
        v_add_u32 v4, 18432, v2
        v_add_u32 v5, 18432, v3
        v_mul_u32_u24 v6, 3840, v10
        v_lshlrev_b32 v10, 1, v10
        v_and_b32 v11, 15, v1
        v_xor_b32 v11, v11, v10
        v_lshl_add_u32 v6, v11, 4, v6
        v_add_u32 v7, 14336, v6
        v_xor_b32 v8, 128, v6
        v_add_u32 v8, 28672, v8
        v_add_u32 v9, 14336, v8""")
        a(f"""s_lshl_b32 s44, s40, 2
        s_add_u32 s44, s44, s{sHW}
        s_mul_i32 s44, s44, {32*1280}
        s_mul_i32 s45, s{sHW}, {16*3840}
        s_lshl_b32 s46, s41, 8
        s_add_u32 s45, s45, s46
        s_add_u32 s46, s41, s43
        {self.rot1}
        s_cmp_ge_u32 s46, 20
        s_cselect_b32 s47, 20, 0
        s_sub_u32 s46, s46, s47
        s_cmp_ge_u32 s46, 10
        s_cselect_b32 s47, 10, 0
        s_sub_u32 s46, s46, s47
        s_lshl_b32 s47, s{sHW}, 12""")
        def dma(st):
            slot = st % R
            a(f"""s_lshl_b32 s48, s46, 7
            s_add_u32 s48, s48, s44
            s_mul_i32 s49, s46, {64*3840}
            s_add_u32 s49, s49, s45
            s_add_u32 m0, s47, {slot*32768}""")
            for i in range(4):
                self.vmem(f"buffer_load_dwordx4 v{2+i}, {srd(SRD_X)}, s48 offen offset:{1024*i} lds", ('p1', st))
            a(f"s_add_u32 m0, s47, {slot*32768+16384}")
            for i in range(4):
                self.vmem(f"buffer_load_dwordx4 v{6+i}, {srd(SRD_WQKV)}, s49 offen offset:{1024*i} lds", ('p1', st))
            if st < 9: a("s_add_u32 s46, s46, 1\ns_cmp_eq_u32 s46, 10\ns_cselect_b32 s46, 0, s46")
        a('s_setprio 3')
        for st in range(LA): dma(st)
        CA = 16
        a(f"s_lshl_b32 s50, s{sHW}, 1")
        waddr(CA, 50, 10)
        a(f"v_xor_b32 v{CA+1}, 32, v{CA}\nv_add_u32 v{CA+2}, 65536, v{CA}\nv_add_u32 v{CA+3}, 65536, v{CA+1}")
        for i in range(4): a(f"v_mov_b32 v{20+i}, 0x3f803f80")
        a(f"""s_mul_i32 s52, s40, 15
        s_add_u32 s52, s52, s41
        s_lshl_b32 s52, s52, 7
        v_mov_b32 v12, 0""")
        def cs_reads(st):
            slot = st % R
            win, off = slot >> 1, (slot & 1) * 32768
            for j in range(2):
                for e in range(2):
                    for t in range(2):
                        a(f"ds_read_b64_tr_b16 {vr(32+8*j+4*e+2*t, 2)}, v{CA+2*win+e} offset:{off+(32*j+4*t)*256}")
        def cs_mfma(st):
            a("s_waitcnt lgkmcnt(0)")
            for j in range(2):
                for e in range(2):
                    c = "0" if (st == 0 and j == 0) else vr(24 + 4 * e)
                    a(f"v_mfma_f32_16x16x32_bf16 {vr(24+4*e)}, {vr(20)}, {vr(32+8*j+4*e)}, {c}")
        for st in range(10):
            self.wait_vm(('p1', st))
            if st == 9:
                a("v_cmp_ne_u32 vcc, 16, v14\ns_cbranch_vccz L_p1_s0ok")
                self.poll("s52", 16, 10, 11)
                a("L_p1_s0ok:")
                a(f"""v_lshlrev_b32 v10, 2, v1
                s_and_b32 s48, s{sHW}, 1
                s_lshl_b32 s49, s40, 1
                s_add_u32 s49, s49, s48
                s_lshl_b32 s49, s49, 8
                s_add_u32 s49, s49, {MEAN1}
                buffer_load_dword v12, v10, {WS}, s49 offen sc1
                s_add_u32 s49, s49, {RSTD1-MEAN1}
                buffer_load_dword v13, v10, {WS}, s49 offen sc1""")
            self.bar()
            self.sstamp(f'hb{st}')
            cs_reads(st)
            if st == 1:
                self.vmem(f"buffer_load_dword v13, v12, {srd(SRD_DBG)}, 0 offen sc1", 'rdy')
            if st == 3:
                L = a.newlabel('Ls0')
                a(f"v_cmp_ne_u32 vcc, 1, v13\ns_cbranch_vccz {L}r")
                keep = list(self.vm.ops)
                self.poll(0, 1, 10, 11, SRD_DBG)
                self.vm.ops = keep
                a(f"{L}r:")
                a(f"""s_lshr_b32 s53, s2, 4
                s_mul_i32 s53, s53, 15
                s_lshl_b32 s54, s{sHW}, 2
                s_add_u32 s53, s53, s54
                v_add_u32 v10, s53, v1
                s_cmp_eq_u32 s{sHW}, 3
                s_cselect_b64 vcc, 7, 15""")
                self.signal(10, M_S0, 11)
                self.vm.add('sig')
            if st == 7:
                self.vmem(f"buffer_load_dword v14, v12, {WS}, s52 offen sc1", 'mb')
            if st + LA < 10: dma(st + LA)
            cs_mfma(st)
        c = (20 ** -0.5) * LOG2E
        a(f"""s_cmp_lt_u32 s41, 5
        s_cselect_b32 s49, {f32hex(c)}, 1.0
        s_lshl_b32 s48, s48, 9
        s_add_u32 s48, s48, {T}
        v_lshl_add_u32 v11, v1, 3, s48
        s_lshl_b32 s48, s{sHW}, 7
        s_add_u32 s48, s48, {T+1024}
        v_and_b32 v15, 31, v1
        v_lshl_add_u32 v15, v15, 2, s48
        v_and_b32 v10, 16, v1
        v_cmp_eq_u32 vcc, 0, v10
        v_cndmask_b32 v24, v28, v24, vcc
        ds_write_b32 v15, v24
        s_waitcnt vmcnt(0)
        v_mul_f32 v13, s49, v13
        ds_write_b64 v11, v[12:13]
        s_waitcnt lgkmcnt(0)""")
        self.bar()
        self.sdump(5)
        a("s_setprio 0\ns_mov_b64 s[62:63], 0\ns_branch L_p1_join")
        nb_h = self.nbar
        self.vm = VM(); self.nbar = 0
        a('L_p1_c:')
        a(f"s_lshl_b32 s44, s2, 2\ns_add_u32 s44, s44, s{sWAVE}\ns_lshl_b32 s44, s44, 1")
        self.row_stats(2)
        XA, WA = 64, 68
        FR = 80
        ACC = 144
        a(f"""s_and_b32 s48, s{sWAVE}, 1
        s_lshr_b32 s49, s{sWAVE}, 1
        v_and_b32 v2, 15, v1
        v_lshrrev_b32 v3, 4, v1
        v_lshlrev_b32 v4, 7, v2
        v_bfe_u32 v5, v1, 1, 3
        v_xor_b32 v5, v5, v3
        v_lshl_add_u32 v4, v5, 4, v4
        s_lshl_b32 s50, s48, 13
        v_add_u32 v{XA}, s50, v4
        v_xor_b32 v{XA+1}, 64, v{XA}
        v_add_u32 v{XA+2}, 65536, v{XA}
        v_add_u32 v{XA+3}, 65536, v{XA+1}
        s_lshl_b32 s50, s49, 2""")
        waddr(WA, 50, 5)
        for nu in range(1, 4): a(f"v_xor_b32 v{WA+nu}, {32*nu}, v{WA}")
        for nu in range(4): a(f"v_add_u32 v{WA+4+nu}, 65536, v{WA+nu}")
        a(f"""s_lshl_b32 s50, s48, 9
        s_add_u32 s50, s50, {T}
        v_lshl_add_u32 v76, v2, 3, s50
        s_lshl_b32 s50, s49, 8
        s_add_u32 s50, s50, {T+1024}
        v_lshl_add_u32 v77, v3, 4, s50
        v_lshrrev_b32 v78, 5, v1
        v_lshlrev_b32 v78, 15, v78
        v_and_b32 v7, 31, v1
        v_lshl_add_u32 v78, v7, 4, v78""")
        a(f"""s_cmp_ge_u32 s41, 10
        s_cselect_b32 s50, 10, 5
        s_cmp_ge_u32 s41, 5
        s_cselect_b32 s50, s50, 0
        s_sub_u32 s51, s41, s50
        s_lshl_b32 s51, s51, 4
        v_mul_u32_u24 v4, 5, v7
        v_lshrrev_b32 v4, 1, v4
        v_add_u32 v4, 2, v4
        v_subrev_u32 v4, s51, v4
        v_cmp_gt_u32 vcc, 18, v4
        s_lshr_b32 s52, s40, 1
        s_cmp_eq_u32 s52, 7
        s_cselect_b32 s50, 0, s50
        s_cmp_eq_u32 s50, 0
        s_cselect_b32 vcc_hi, 0, vcc_hi
        s_lshl_b32 s52, s52, 5
        v_add_u32 v247, s52, v1""")
        self.sigprep(0)
        a(f"""s_lshl_b32 s50, s41, 1
        s_add_u32 s50, s50, s49
        s_lshl_b32 s50, s50, 18
        s_lshl_b32 s51, s40, 1
        s_add_u32 s51, s51, s48
        s_lshl_b32 s51, s51, 10
        s_add_u32 s50, s50, s51
        s_add_u32 s50, s50, {QKV}""")
        self.row_stats_finish(2)
        lg = LG(a)
        def reads(g):
            st, j = g >> 1, g & 1
            slot = st % R
            win, off = slot >> 1, (slot & 1) * 32768
            fb = FR + 32 * (g & 1)
            W = lambda i: [(f"ds_read_b64_tr_b16 {vr(fb+16+4*i, 2)}, v{WA+4*win+i} offset:{off+32*j*256}", None),
                           (f"ds_read_b64_tr_b16 {vr(fb+18+4*i, 2)}, v{WA+4*win+i} offset:{off+(32*j+4)*256}", ('W', g, i))]
            X = lambda i: [(f"ds_read_b128 {vr(fb+4*i)}, v{XA+2*win+j} offset:{off+2048*i}", ('X', g, i))]
            return W(0) + X(0) + W(1) + W(2) + W(3) + X(1) + X(2) + X(3)
        self.stamp('preb0')
        self.bar()
        self.stamp('b0')
        for r in reads(0): lg.op(*r)
        for g in range(20):
            nxt = []
            if g + 1 < 20:
                if (g + 1) % 2 == 0:
                    if g + 1 == 6: a("s_waitcnt vmcnt(0)")
                    self.bar()
                nxt = reads(g + 1)
            fb = FR + 32 * (g & 1)
            k = 0
            for mu in range(4):
                for nu in range(4):
                    ac = ACC + 16 * mu + 4 * nu
                    c = "0" if g == 0 else vr(ac)
                    if g > 0 and mu == 0 and nu == 0: lg.need(('W', g, 3))
                    if g > 0 and mu == 1 and nu == 0: lg.need(('X', g, 3))
                    lg.need(('W', g, nu), ('X', g, mu))
                    a(f"v_mfma_f32_16x16x32_bf16 {vr(ac)}, {vr(fb+16+4*nu)}, {vr(fb+4*mu)}, {c}")
                    if k < len(nxt): lg.op(*nxt[k]); k += 1
        self.stamp('p1loop')
        self.bar()
        self.stamp('p1tab')
        MR, CSR = 80, 88
        for mu in range(4): a(f"ds_read_b64 {vr(MR+2*mu, 2)}, v76 offset:{128*mu}")
        for nu in range(4): a(f"ds_read_b128 {vr(CSR+4*nu)}, v77 offset:{64*nu}")
        a("s_waitcnt lgkmcnt(0)\n.p2align 3")
        PK = 104
        n = 0
        for nu in range(4):
            for p in range(2):
                pk = PK + 4 * (n % 8); n += 1
                tiles = [(ACC + 16 * (2 * p + e) + 4 * nu, 2 * p + e) for e in range(2)]
                for ac, mu in tiles:
                    for h in range(2):
                        a(f"v_pk_fma_f32 {vr(ac+2*h,2)}, {vr(CSR+4*nu+2*h,2)}, {vr(MR+2*mu,2)}, {vr(ac+2*h,2)} op_sel_hi:[1,0,1] neg_lo:[0,1,0] neg_hi:[0,1,0]")
                for ac, mu in tiles:
                    for h in range(2):
                        a(f"v_pk_mul_f32 {vr(ac+2*h,2)}, {vr(ac+2*h,2)}, {vr(MR+2*mu,2)} op_sel:[0,1] op_sel_hi:[1,1]")
                for h in range(2):
                    for e, (ac, mu) in enumerate(tiles):
                        a(f"v_cvt_pk_bf16_f32 v{pk+2*e+h}, v{ac+2*h}, v{ac+2*h+1}")
                a(f"v_permlane16_swap_b32 v{pk}, v{pk+2}\ns_nop 0\nv_permlane16_swap_b32 v{pk+1}, v{pk+3}\ns_nop 0")
                a(f"buffer_store_dwordx4 {vr(pk)}, v78, {WS}, s50 offen offset:{512*p} sc1")
            if nu < 3: a("s_add_u32 s50, s50, 65536")
        self.stamp('p1epi')
        assert self.nbar == nb_h, (self.nbar, nb_h)
        a("L_p1_join:")
        a.settle(3)

    def build(self):
        a = self.a
        a.raw(f"; @launch grid=(256,1,1) block=(512,1,1) lds={LDS_BYTES}")
        a.raw(f'.amdgcn_target "amdgcn-amd-amdhsa--gfx950"\n.text\n.globl {NAME}_kernel\n.p2align 8\n.type {NAME}_kernel,@function\n{NAME}_kernel:')
        self.p0()
        self.p1()
        if self.upto >= 2: self.p2()
        else: self.finish(M_S1, 'p1st')
        if self.upto >= 3: self.tail345()
        a("L_end:\ns_endpgm")
        self.spare_code()
        for blk in self.tail: blk()
        a("L_code_end:")
        a.raw(f""".section .rodata,"a"
.p2align 6
.amdhsa_kernel {NAME}_kernel
  .amdhsa_next_free_vgpr 256
  .amdhsa_next_free_sgpr 102
  .amdhsa_accum_offset 256
  .amdhsa_group_segment_fixed_size 0
  .amdhsa_kernarg_size 80
  .amdhsa_user_sgpr_count 2
  .amdhsa_user_sgpr_kernarg_segment_ptr 1
  .amdhsa_system_sgpr_workgroup_id_x 1
.end_amdhsa_kernel""")
        return a.text()

from phases import install
install(Gen, globals())

if __name__ == '__main__':
    upto = int(sys.argv[1]) if len(sys.argv) > 1 else 5
    out = sys.argv[2] if len(sys.argv) > 2 else 'k.s'
    g = Gen(upto=upto, stamps=('stamps' in sys.argv))
    open(out, 'w').write(g.build())
    open(out + '.stamps', 'w').write('\n'.join(g.stamp_names))
    print("wrote", out, "pads", g.a.pad_count)
```

```python
def install(Gen, G):
    globals().update({k: v for k, v in G.items() if not k.startswith('__')})
    for f in (p2, p3_prefetch, tail345):
        setattr(Gen, f.__name__, f)

KV0 = 102400
OCTP = 8256

def p2(self):
    a = self.a
    self.vm = VM(); self.nbar = 0
    a(f"""s_and_b32 s40, s2, 7
    s_lshl_b32 s40, s40, 2
    s_bfe_u32 s41, s2, 0x20003
    s_add_u32 s40, s40, s41
    s_lshr_b32 s41, s2, 5
    s_mul_i32 s42, s40, 5
    s_lshr_b32 s42, s42, 1
    s_and_b32 s43, s40, 1
    s_add_u32 s44, s42, s43
    s_xor_b32 s45, s43, 1
    s_lshl_b32 s45, s45, 1
    s_add_u32 s45, s45, s42""")
    a(f"""s_add_u32 s46, s42, 2
    s_lshr_b32 s46, s46, 4
    s_lshr_b32 s47, s42, 4
    s_sub_u32 s46, s46, s47
    s_add_u32 s46, s46, 1
    s_cmp_eq_u32 s41, 0
    s_cselect_b32 s47, 6, 10
    s_mul_i32 s46, s46, s47
    s_lshl_b32 s47, s41, 5
    s_add_u32 s47, s47, s40
    s_lshl_b32 s47, s47, 7
    s_add_u32 s47, s47, {4*M_S1}""")
    pf = self.p3_prefetch() if self.upto >= 3 else []
    a(f"""v_and_b32 v2, 31, v1
    v_lshrrev_b32 v3, 5, v1
    v_lshlrev_b32 v4, 4, v1""")
    a(f"""s_lshl_b32 s50, s41, 2
    s_add_u32 s50, s50, s{sWAVE}
    s_cmp_lt_u32 s50, 4
    s_mov_b32 s51, 0x3f803f80
    s_cselect_b32 s50, 0x3f80ff7f, s51
    v_mov_b32 v8, s50
    v_mov_b32 v9, 0x3f803f80
    v_mov_b32 v10, 0x3f803f80
    v_mov_b32 v11, 0x3f803f80
    s_lshl_b32 s49, s{sWAVE}, 10
    s_add_u32 s50, s49, {KV0+6*OCTP}
    v_add_u32 v5, s50, v4
    ds_write_b128 v5, v[8:11]
    s_cmp_eq_u32 s41, 0
    s_cselect_b32 s50, 0xbf803f80, 0
    v_mul_lo_u32 v15, s50, v3""")
    a("v_lshlrev_b32 v5, 2, v3\nv_sub_u32 v5, v2, v5")
    for r in range(16):
        a(f"v_cmp_le_i32 s[{64+2*r}:{65+2*r}], {8*(r>>2)+(r&3)}, v5")
    PM = 52
    a("v_mov_b32 v6, 0xffff\nv_mov_b32 v7, 0xffff0000")
    for i in range(8):
        a(f"v_cndmask_b32 v{PM+i}, 0, v6, s[{64+4*i}:{65+4*i}]\nv_cndmask_b32 v8, 0, v7, s[{66+4*i}:{67+4*i}]\nv_or_b32 v{PM+i}, v{PM+i}, v8")
    a(f"""s_lshl_b32 s50, s{sWAVE}, 9
    s_add_u32 s50, s50, {KV0}
    v_lshl_add_u32 v13, v2, 4, s50
    v_mul_u32_u24 v12, {OCTP}, v3
    v_lshl_add_u32 v5, v12, 2, v13
    v_add_u32 v12, v12, v13
    v_add_u32 v13, {2*OCTP}, v5""")
    a(f"""v_bfe_u32 v5, v1, 2, 2
    v_lshl_add_u32 v5, v3, 2, v5
    v_lshl_add_u32 v14, v5, 4, s50
    v_and_b32 v5, 1, v1
    v_bfe_u32 v6, v1, 1, 1
    v_mov_b32 v7, s43
    v_cmp_eq_u32 vcc, 1, v6
    v_cndmask_b32 v7, v7, v5, vcc
    v_add_u32 v8, 2, v6
    v_and_b32 v9, 16, v1
    v_cmp_eq_u32 vcc, 0, v9
    v_cndmask_b32 v8, v8, v5, vcc
    v_cndmask_b32 v7, v7, v6, vcc
    v_mul_u32_u24 v8, {OCTP}, v8
    v_lshl_add_u32 v8, v7, 3, v8
    v_add_u32 v14, v14, v8
    v_add_u32 v14, {3*OCTP}, v14""")
    a(f"""s_lshl_b32 s50, s41, 2
    s_add_u32 s50, s50, s{sWAVE}
    s_cmp_lt_u32 s50, 4
    s_cselect_b32 s51, 0, 4
    s_sub_u32 s50, s50, s51
    s_lshl_b32 s50, s50, 10
    s_add_u32 s50, s50, {QKV + 80*32768}
    s_lshl_b32 s51, s44, 15
    s_add_u32 s51, s51, s50
    s_lshl_b32 s52, s45, 15
    s_add_u32 s52, s52, s50
    s_add_u32 s49, s49, {KV0}""")
    a(f"""s_lshl_b32 s53, s41, 3
    s_add_u32 s53, s53, s{sWAVE}
    s_lshl_b32 s54, s53, 9
    s_add_u32 s54, s54, {QKV}
    s_lshl_b32 s55, s44, 15
    s_add_u32 s55, s55, s54
    s_lshl_b32 s56, s45, 15
    s_add_u32 s56, s56, s54
    v_lshlrev_b32 v5, 15, v3
    v_lshl_add_u32 v5, v2, 4, v5
    v_lshlrev_b32 v6, 4, v2
    v_mov_b32 v8, {OOB}
    v_add_u32 v9, s43, v3
    v_cmp_eq_u32 vcc, 0, v9
    v_cndmask_b32 v7, v8, v6, vcc
    v_cmp_gt_u32 vcc, s43, v3
    v_cndmask_b32 v6, v8, v6, vcc""")
    self.stamp('p2pre')
    self.finish(M_S1, 'p1st')
    self.poll1(1, "s47", "s46", 8, 9)
    self.stamp('p2poll')
    Q0, Q1 = 16, 20
    if 'p2twice' in sys.argv:
        a("s_mov_b32 s61, 2\nL_p2_again:\nv_mov_b32 v240, v5\nv_mov_b32 v241, v6\ns_mov_b32 s40, s55\ns_mov_b32 s42, s56")
        if 'nopf' in sys.argv: pf = []
    def dma(o, goff, add, tag):
        a(f"s_add_u32 m0, s49, {o*OCTP}")
        if add: a(f"s_add_u32 s57, s{goff}, {add}")
        self.vmem(f"buffer_load_dwordx4 v4, {WS}, s{57 if add else goff} offen sc1 lds", tag)
    dma(0, 51, 0, 'K'); dma(1, 51, 32768, 'K'); dma(2, 52, 0, 'K')
    self.vmem(f"buffer_load_dwordx4 {vr(Q0)}, v5, {WS}, s55 offen sc1", 'K')
    self.vmem(f"buffer_load_dwordx2 {vr(Q1,2)}, v7, {WS}, s56 offen sc1", 'K')
    self.vmem(f"buffer_load_dwordx2 {vr(Q1+2,2)}, v6, {WS}, s56 offen offset:8 sc1", 'K')
    self.wait_vm('K')
    dma(3, 51, 80*32768, 'V'); dma(4, 51, 81*32768, 'V'); dma(5, 52, 80*32768, 'V')
    a(f"v_or_b32 v{Q1}, v{Q1}, v15\ns_waitcnt lgkmcnt(0)")
    self.bar()
    self.stamp('p2k')
    SB = 64; OA = 208; KF = 24
    Sr = lambda t: SB + 16 * t
    order = [1, 8, 0, 2, 3, 4, 5, 6, 7]
    Pr = lambda t: Sr(8) + 8 if t == 8 else Sr(t)
    Vr = lambda t: Sr(8) if t == 8 else Sr(t) + 8
    M0, M1 = 60, 61
    def mk(lg, first_pv):
        def kread(n):
            t = order[n]; kb = KF + 8 * (n % 3)
            lg.op(f"ds_read_b128 {vr(kb)}, v12 offset:{512*t}", ('K', n, 0))
            lg.op(f"ds_read_b128 {vr(kb+4)}, v13 offset:{512*t}", ('K', n, 1))
        def qk(n, h):
            t = order[n]; kb = KF + 8 * (n % 3)
            lg.need(('K', n, h))
            if h == 0: a(f"v_mfma_f32_32x32x16_bf16 {vr(Sr(t),16)}, {vr(kb)}, {vr(Q0)}, 0")
            else: a(f"v_mfma_f32_32x32x16_bf16 {vr(Sr(t),16)}, {vr(kb+4)}, {vr(Q1)}, {vr(Sr(t),16)}")
        def vread(t):
            for sp in range(2):
                for tt in range(2):
                    lg.op(f"ds_read_b64_tr_b16 {vr(Vr(t)+4*sp+2*tt,2)}, v14 offset:{(32*t+16*sp+8*tt)*16}", ('V', t, sp))
        def pv(t, sp):
            lg.need(('V', t, sp))
            c = "0" if (t == first_pv and sp == 0) else vr(OA, 16)
            a(f"v_mfma_f32_32x32x16_bf16 {vr(OA,16)}, {vr(Vr(t)+4*sp)}, {vr(Pr(t)+4*sp)}, {c}")
        def merge():
            for r in range(16):
                a(f"v_cndmask_b32 v{Sr(8)+r}, v{Sr(0)+r}, v{Sr(8)+r}, s[{64+2*r}:{65+2*r}]")
        def cvt(t):
            a(".p2align 3")
            for i in range(8): a(f"v_cvt_pk_bf16_f32 v{Sr(t)+i}, v{Sr(t)+2*i}, v{Sr(t)+2*i+1}")
            if t == 8:
                for i in range(8):
                    a(f"v_and_b32_e64 v{Sr(8)+8+i}, v{Sr(8)+i}, v{PM+i}\nv_bfi_b32 v{Sr(0)+i}, v{PM+i}, 0, v{Sr(8)+i}")
        return kread, qk, vread, pv, merge, cvt
    lg = LG(a)
    kread, qk, vread, pv, merge, cvt = mk(lg, 1)
    kread(0); kread(1); kread(2)
    qk(0, 0); qk(0, 1); kread(3)
    mq = []
    for n in range(1, 9):
        mq += [(lambda n=n: qk(n, 0)), (lambda n=n: (qk(n, 1), kread(n + 3) if n + 3 < 9 else None))]
    mq.pop(0)()
    pvq = []
    vok = False
    done = []
    for t in (1, 8, 2, 3, 4, 5, 6, 7):
        if t == 8: merge()
        nq = 0
        for i in range(16):
            if i % 4 == 0:
                if mq and nq < (4 if not vok else 2): mq.pop(0)(); nq += 1
                elif pvq: pvq.pop(0)()
            a(f"v_exp_f32 v{Sr(t)+i}, v{Sr(t)+i}")
            if i in (6, 14) and pf: pf.pop(0)()
        if pvq: pvq.pop(0)()
        cvt(t)
        done += [8, 0] if t == 8 else [t]
        if t == 2:
            self.wait_vm('V')
            self.bar()
            vok = True
        if vok:
            for d in done:
                vread(d)
                pvq += [(lambda d=d: pv(d, 0)), (lambda d=d: pv(d, 1))]
            done = []
    while pf: pf.pop(0)()
    a(f"""v_bfe_u32 v5, v1, 4, 1
    v_mul_u32_u24 v5, 20480, v5
    v_and_b32 v7, 15, v1
    v_lshl_add_u32 v6, v7, 3, v5
    v_lshl_add_u32 v5, v7, 4, v5
    v_mov_b32 v8, {OOB}
    v_cmp_eq_u32 vcc, 0, v3
    v_cndmask_b32 v6, v8, v6, vcc
    v_lshl_add_u32 v5, v3, 8, v5
    s_mul_i32 s54, s53, 40960
    s_add_u32 s54, s54, {OO}
    s_lshl_b32 s55, s40, 9
    s_add_u32 s55, s55, s54
    s_lshl_b32 s56, s40, 7
    s_add_u32 s56, s56, s54
    s_add_u32 s56, s56, 16384
    s_mov_b32 s57, {(127+64-(127-64))<<23}""")
    while pvq: pvq.pop(0)()
    a(f"""v_subrev_u32 v8, {(127-64)<<23}, v{OA+12}
    v_cmp_lt_u32 vcc, s57, v8
    s_cbranch_vccnz L_p2_slow
    L_p2_norm:
    v_rcp_f32 v8, v{OA+12}""")
    def slow():
        a("L_p2_slow:")
        a.settle()
        lg = LG(a)
        kread, qk, vread, pv, merge, cvt = mk(lg, 8)
        first = [True]
        def vmax(t):
            b = Sr(t)
            for i in range(0, 16, 4):
                if first[0]:
                    a(f"v_max_f32 v{M0}, v{b}, v{b+1}\nv_max_f32 v{M1}, v{b+2}, v{b+3}")
                    first[0] = False
                else:
                    a(f"v_max3_f32 v{M0}, v{M0}, v{b+i}, v{b+i+1}\nv_max3_f32 v{M1}, v{M1}, v{b+i+2}, v{b+i+3}")
        for n in range(9):
            kread(n); qk(n, 0); qk(n, 1)
        merge()
        for t in range(1, 9): vmax(t)
        a(f"""v_max_f32 v{M0}, v{M0}, v{M1}
        v_mov_b32 v{M1}, v{M0}
        v_permlane32_swap_b32 v{M0}, v{M1}
        v_max_f32 v{M0}, v{M0}, v{M1}""")
        for t in (8, 1, 2, 3, 4, 5, 6, 7):
            for i in range(16): a(f"v_sub_f32 v{Sr(t)+i}, v{Sr(t)+i}, v{M0}")
            for i in range(16): a(f"v_exp_f32 v{Sr(t)+i}, v{Sr(t)+i}")
            cvt(t)
            for d in ([8, 0] if t == 8 else [t]):
                vread(d); pv(d, 0); pv(d, 1)
        a.settle()
        a("s_branch L_p2_norm")
    self.tail.append(slow)
    for i in range(12): a(f"v_mul_f32 v{OA+i}, v{OA+i}, v8")
    for i in range(6): a(f"v_cvt_pk_bf16_f32 v{16+i}, v{OA+2*i}, v{OA+2*i+1}")
    a(f"buffer_store_dwordx4 v[16:19], v5, {WS}, s55 offen sc1")
    a(f"buffer_store_dwordx2 v[20:21], v6, {WS}, s56 offen sc1")
    self.stamp('p2cmp')
    self.stamp('p2cmp4', 4)
    if 'p2twice' in sys.argv:
        a("s_waitcnt vmcnt(0)\ns_barrier\nv_mov_b32 v5, v240\nv_mov_b32 v6, v241\ns_mov_b32 s55, s40\ns_mov_b32 s56, s42\ns_sub_u32 s59, s59, 4\ns_sub_u32 s61, s61, 1\ns_cmp_lg_u32 s61, 0\ns_cbranch_scc1 L_p2_again")
    sig96(self, 41, 4)
    if self.upto == 2: self.finish(M_S2, 'p2st')

def sig96(self, srb, wave):
    self.a(f"""s_lshl_b32 s52, s{srb}, 3
    s_mul_i32 s51, s52, 21846
    s_lshr_b32 s51, s51, 16
    s_add_u32 s52, s52, 7
    s_mul_i32 s52, s52, 21846
    s_lshr_b32 s52, s52, 16
    s_sub_u32 s52, s52, s51
    s_add_u32 s52, s52, 1
    s_mul_i32 s52, s52, 10
    s_mul_i32 s51, s51, 10
    v_add_u32 v247, s51, v1
    v_cmp_gt_u32 vcc, s52, v1""")
    self.sigprep(wave)

def p3_prefetch(self):
    a = self.a
    p5_coords(a, 58, 59, 60)
    self.w128_dma_voff(1280, 224, 5, 6)
    a(f"""s_and_b32 s60, s{sWAVE}, 1
    s_lshl_b32 s60, s60, 6
    v_xor_b32 v224, s60, v224
    s_lshl_b32 s59, s59, 7
    s_lshr_b32 s60, s{sWAVE}, 2
    s_mul_i32 s60, s60, 5
    s_add_u32 s60, s60, s{sHW}
    s_lshr_b32 s61, s{sHW}, 1
    s_add_u32 s60, s60, s61
    s_mul_i32 s60, s60, {8*1280}
    s_add_u32 s60, s60, s59
    s_mul_i32 s61, s{sWAVE}, {40*1280}
    s_add_u32 s61, s61, s59
    s_lshl_b32 s59, s{sWAVE}, 10
    s_cmp_ge_u32 s2, 220
    s_cselect_b32 s60, {OOB//2}, s60
    s_cselect_b32 s61, {OOB//2}, s61""")
    out = []
    def piece(n):
        def f():
            if n < 8:
                a(f"""s_and_b32 s58, s58, 7
                s_mul_i32 s98, s58, {80*1280}
                s_add_u32 s98, s98, s60
                s_lshl_b32 s99, s58, 13
                s_add_u32 m0, s99, s59
                s_add_u32 s58, s58, 1""")
            else:
                a(f"s_add_u32 s98, s61, {(320*(n-8)+16)*1280}\ns_add_u32 m0, s59, {8192*n}")
            self.vmem(f"buffer_load_dwordx4 v224, {srd(SRD_WO)}, s98 offen lds", 'wo')
        return f
    return [piece(n) for n in range(10)]

P3_A, P3_X, P3_ST = 81920, 143360, 155648
P4_R, P4_SLOT = 4, 24576
P4_TAB = 4 * 24576
RA, LA96 = 5, 3
P5_RW, P5_PRE = 12, 7
def p5_wslot(st): return 65536 + 8192 * ((st + 5) % P5_RW)

def p4_coords(a):
    a("""s_and_b32 s40, s2, 3
    s_mul_i32 s40, s40, 27
    s_lshr_b32 s41, s2, 3
    s_add_u32 s40, s40, s41
    s_lshr_b32 s41, s40, 2
    s_and_b32 s40, s40, 3
    s_and_b32 s42, s2, 4
    s_add_u32 s40, s40, s42""")

def p5_coords(a, r, c, t):
    a(f"""s_bfe_u32 s{r}, s2, 0x20001
    s_add_u32 s{t+1}, s{r}, 108
    s_mul_i32 s{r}, s{r}, 27
    s_lshr_b32 s{c}, s2, 3
    s_add_u32 s{t}, s{r}, s{c}
    s_cmp_ge_u32 s2, 216
    s_cselect_b32 s{t}, s{t+1}, s{t}
    s_mul_i32 s{r}, s{t}, 13108
    s_lshr_b32 s{r}, s{r}, 16
    s_mul_i32 s{c}, s{r}, 5
    s_sub_u32 s{t+1}, s{t}, s{c}
    s_and_b32 s{c}, s2, 1
    s_mul_i32 s{c}, s{c}, 5
    s_add_u32 s{c}, s{c}, s{t+1}""")

def tail345(self):
    a = self.a
    self.tail.append(lambda: idle_code(self))
    a(f"s_cmp_ge_u32 s{sWAVE}, 4\ns_cbranch_scc1 L_h345")
    self.nbar = 0
    marks_c = []
    p3_c(self); marks_c.append(self.nbar)
    if self.upto >= 4: p4_c(self); marks_c.append(self.nbar)
    if self.upto >= 5: p5_c(self); marks_c.append(self.nbar)
    a("s_endpgm")
    a("L_h345:")
    self.nbar = 0
    marks_h = []
    p3_h(self); marks_h.append(self.nbar)
    if self.upto >= 4: p4_h(self); marks_h.append(self.nbar)
    if self.upto >= 5: p5_h(self); marks_h.append(self.nbar)
    assert marks_c == marks_h, (marks_c, marks_h)

G_FR, G_ACC = 16, 96
def g96_loop(self, nst, aread, wread, hook=None):
    a = self.a
    FR, ACC = G_FR, G_ACC
    lg = LG(a)
    def reads(st):
        fb = FR + 40 * (st & 1)
        out = []
        for j in range(2):
            W = lambda nu: [(wread(st, j, nu, t, fb + 20*j + 12 + 4*nu + 2*t), ('W', st, j, nu)) for t in range(2)]
            X = lambda i: [(r, ('X', st, j, i)) for r in aread(st, j, i, fb + 20*j + 4*i)]
            out += W(0) + X(0) + W(1) + X(1) + X(2)
        return out
    for r in reads(0): lg.op(*r)
    for st in range(nst):
        nxt = []
        fb = FR + 40 * (st & 1)
        k = 0; n = 0
        for j in range(2):
            for mu in range(3):
                for nu in range(2):
                    if n == 1 and st + 1 < nst:
                        self.bar()
                        nxt = reads(st + 1)
                    ac = ACC + 8 * mu + 4 * nu
                    c = "0" if (st == 0 and j == 0) else vr(ac)
                    if st > 0 and mu == 0 and nu == 0: lg.need(('X', st, j, 2))
                    lg.need(('W', st, j, nu), ('X', st, j, mu))
                    a(f"v_mfma_f32_16x16x32_bf16 {vr(ac)}, {vr(fb+20*j+12+4*nu)}, {vr(fb+20*j+4*mu)}, {c}")
                    left = len(nxt) - k
                    for _ in range(-(-left // (12 - n)) if nxt else 0):
                        lg.op(*nxt[k]); k += 1
                    n += 1
        assert k == len(nxt)
        if hook: hook(st, lg)
    return lg

def p3_c(self):
    a = self.a
    self.vm = VM()
    ACC = G_ACC
    p5_coords(a, 40, 41, 42)
    a(f"""s_and_b32 s48, s{sWAVE}, 1
    s_lshr_b32 s49, s{sWAVE}, 1
    v_and_b32 v2, 15, v1
    v_lshrrev_b32 v3, 4, v1""")
    self.w128_read_addr(14, 4)
    a(f"""s_lshl_b32 s50, s49, 6
    v_xor_b32 v14, s50, v14
    v_xor_b32 v11, 32, v14
    v_add_u32 v12, 40960, v14
    v_add_u32 v13, 40960, v11
    s_mul_i32 s50, s48, 6144
    s_add_u32 s50, s50, {P3_A}
    v_lshl_add_u32 v8, v1, 4, s50
    v_lshlrev_b32 v9, 8, v3
    v_lshl_add_u32 v9, v2, 3, v9
    v_add_u32 v9, s50, v9""")
    a(f"""v_lshrrev_b32 v7, 1, v3
    s_lshl_b32 s50, s49, 2
    v_add_u32 v4, s50, v7
    v_and_b32 v5, 7, v2
    v_xor_b32 v4, v4, v5
    v_lshlrev_b32 v4, 4, v4
    v_lshl_add_u32 v4, v2, 7, v4
    v_and_b32 v5, 1, v3
    v_lshl_add_u32 v4, v5, 3, v4
    s_mul_i32 s50, s48, 6144
    s_add_u32 s50, s50, {P3_X}
    v_add_u32 v4, s50, v4
    v_xor_b32 v10, 32, v4""")
    a(f"""v_lshlrev_b32 v6, 9, v5
    v_lshl_add_u32 v6, v7, 8, v6
    v_lshl_add_u32 v6, v2, 4, v6
    s_lshl_b32 s50, s40, 1
    s_add_u32 s50, s50, s48
    s_mul_i32 s50, s50, {3*20480}
    s_lshl_b32 s53, s41, 1
    s_add_u32 s53, s53, s49
    s_lshl_b32 s53, s53, 10
    s_add_u32 s53, s53, s50
    s_add_u32 s53, s53, {HH}""")
    a(f"""v_lshlrev_b32 v15, 3, v2
    v_lshl_add_u32 v15, v5, 2, v15
    s_mul_i32 s50, s{sWAVE}, 384
    s_add_u32 s50, s50, {P3_ST}
    v_add_u32 v15, s50, v15""")
    self.finish(M_S2, 'p2st')
    a("s_cmp_ge_u32 s2, 220\ns_cbranch_scc1 L_idle")
    a("s_mov_b64 s[62:63], 0")
    self.bar()
    self.stamp('p3poll')
    self.bar()
    self.stamp('p3b0')
    XR = 120
    def aread(st, j, i, dst):
        off = (st % RA) * 12288 + 2048 * i + 1024 * j
        if st < 8: return [f"ds_read_b128 {vr(dst)}, v8 offset:{off}"]
        return [f"ds_read_b64 {vr(dst+2*e,2)}, v9 offset:{off+128*e}" for e in range(2)]
    def wread(st, j, nu, t, dst):
        b = (14, 11, 12, 13)[2 * (st >= 5) + nu]
        return f"ds_read_b64_tr_b16 {vr(dst,2)}, v{b} offset:{8192*(st%5)+4096*j+512*t}"
    def hook(st, lg):
        if st == 4:
            for mu in range(3):
                for nu in range(2):
                    lg.op(f"ds_read_b64 {vr(XR+4*mu+2*nu,2)}, v{10 if nu else 4} offset:{2048*mu}", 'xr')
        if st == 6:
            lg.need('xr')
            for i in range(12):
                a(f"v_lshlrev_b32 v{136+2*i}, 16, v{XR+i}\nv_and_b32 v{137+2*i}, 0xffff0000, v{XR+i}")
    g96_loop(self, 10, aread, wread, hook)
    self.stamp('p3loop')
    a(".p2align 3")
    for i in range(12): a(f"v_pk_add_f32 {vr(136+2*i,2)}, {vr(136+2*i,2)}, {vr(ACC+2*i,2)}")
    for i in range(12): a(f"v_cvt_pk_bf16_f32 v{160+i}, v{136+2*i}, v{137+2*i}")
    for mu in range(3):
        pk = 160 + 4 * mu
        a(f"v_permlane16_swap_b32 v{pk}, v{pk+2}\nv_permlane16_swap_b32 v{pk+1}, v{pk+3}")
        a(f"buffer_store_dwordx4 {vr(pk)}, v6, {WS}, s53 offen sc1")
        if mu < 2: a("s_add_u32 s53, s53, 20480")
    for mu in range(3):
        b = 136 + 8 * mu
        a(f"v_pk_add_f32 {vr(176+4*mu,2)}, {vr(b,2)}, {vr(b+2,2)}\nv_pk_mul_f32 {vr(178+4*mu,2)}, {vr(b,2)}, {vr(b,2)}")
    for i in range(1, 4):
        for mu in range(3):
            b = 136 + 8 * mu + 2 * i
            if i > 1: a(f"v_pk_add_f32 {vr(176+4*mu,2)}, {vr(176+4*mu,2)}, {vr(b,2)}")
            a(f"v_pk_fma_f32 {vr(178+4*mu,2)}, {vr(b,2)}, {vr(b,2)}, {vr(178+4*mu,2)}")
    for mu in range(3): a(f"v_add_f32 v{176+4*mu}, v{176+4*mu}, v{177+4*mu}\nv_add_f32 v{177+4*mu}, v{178+4*mu}, v{179+4*mu}")
    for mu in range(3): a(f"v_permlane16_swap_b32 v{176+4*mu}, v{177+4*mu}")
    for mu in range(3): a(f"v_add_f32 v{176+4*mu}, v{176+4*mu}, v{177+4*mu}")
    for mu in range(3): a(f"v_mov_b32 v{177+4*mu}, v{176+4*mu}")
    for mu in range(3): a(f"v_permlane32_swap_b32 v{176+4*mu}, v{177+4*mu}")
    for mu in range(3): a(f"v_add_f32 v{176+4*mu}, v{176+4*mu}, v{177+4*mu}")
    for mu in range(3): a(f"ds_write_b32 v15, v{176+4*mu} offset:{128*mu}")
    a("s_waitcnt lgkmcnt(0)")
    self.bar()
    self.stamp('p3epi')
    if self.upto >= 4: p4_c_pre(self)
    self.finish(M_S3, 'p3st')

def g96_apieces(a, pitch, vb):
    a(f"s_mul_i32 s76, s{sHW}, 3")
    for i in range(3):
        a(f"""s_add_u32 s77, s76, {i}
        s_lshr_b32 s79, s77, 1
        s_mul_i32 s78, s79, {pitch}
        s_and_b32 s77, s77, 1
        s_lshl_b32 s77, s77, 10
        s_add_u32 s78, s78, s77
        s_add_u32 s78, s78, {4096 - 1024*i}
        s_mul_i32 s77, s64, 6
        s_add_u32 s77, s77, s79
        s_cmp_ge_u32 s77, 128
        s_cselect_b32 s78, {OOB//2}, s78
        v_lshl_add_u32 v{vb+i}, v1, 4, s78""")

def p3_h(self):
    a = self.a
    self.vm = VM()
    p5_h_pre(self)
    g96_apieces(a, 20480, 105)
    a(f"""v_lshrrev_b32 v10, 3, v1
    v_and_b32 v11, 7, v1
    v_xor_b32 v11, v11, v10
    v_mul_u32_u24 v108, 1280, v10
    v_lshl_add_u32 v108, v11, 4, v108
    s_lshl_b32 s44, s64, 2
    s_add_u32 s44, s44, s{sHW}
    s_mul_i32 s44, s44, {24*1280}
    s_lshl_b32 s45, s65, 7
    s_add_u32 s44, s44, s45
    s_mul_i32 s45, s64, {6*20480}
    s_add_u32 s45, s45, {OO - 4096}
    s_sub_u32 s46, s72, {4*(M_S4-M_S2)}
    s_cmp_eq_u32 s73, 27
    s_cselect_b32 s47, 32, 64""")
    self.finish(M_S2, 'p2st_h')
    a("s_cmp_ge_u32 s2, 220\ns_cbranch_scc1 L_idle")
    L = a.newlabel('Lx')
    for i in range(3):
        a(f"s_add_u32 m0, s70, {P3_X + 1024*i}")
        self.vmem(f"buffer_load_dwordx4 v108, {srd(SRD_X)}, s44 offen lds", 'x')
        if i < 2: a(f"s_add_u32 s44, s44, {8*1280}")
    a(f"""s_mul_i32 s50, s64, 3
    s_lshr_b32 s50, s50, 3
    s_mul_i32 s50, s50, 27
    v_add_u32 v247, s50, v1
    v_cmp_gt_u32 vcc, s73, v1""")
    self.sigprep(4)
    self.poll1(5, "s46", "s47", 8, 9)
    def adma(st):
        a(f"s_add_u32 m0, s70, {P3_A + (st % RA)*12288}")
        for i in range(3):
            self.vmem(f"buffer_load_dwordx4 v{105+i}, {WS}, s45 offen offset:{1024*i} sc1 lds", ('p3', st))
        if st < 9: a("s_add_u32 s45, s45, 2048")
    for st in range(4): adma(st)
    a(f"""s_lshl_b32 s50, s{sHW}, 8
    v_lshl_add_u32 v12, v1, 2, s50
    v_add_u32 v13, {P3_ST}, v12
    s_lshl_b32 s54, s65, 15
    s_mul_i32 s55, s64, 768
    s_add_u32 s54, s54, s55
    s_add_u32 s54, s54, {ST2}""")
    for st in range(10):
        self.wait_vm(('p3', st))
        self.bar()
        if st >= 1 and st + LA96 < 10: adma(st + LA96)
    if self.upto >= 4: p4_h_pre(self)
    self.bar()
    L = a.newlabel('Lst2')
    a(f"""s_cmp_eq_u32 s{sHW}, 3
    s_cbranch_scc1 {L}
    ds_read_b32 v14, v13
    ds_read_b32 v15, v13 offset:768
    s_waitcnt lgkmcnt(0)
    v_add_f32 v14, v14, v15
    buffer_store_dword v14, v12, {WS}, s54 offen sc1
    {L}:""")
    self.finish(M_S3, 'p3st_h')

def p4_c_pre(self):
    a = self.a
    SLOT, T = P4_SLOT, P4_TAB
    p4_coords(a)
    XA, WA = 8, 10
    a(f"""s_lshl_b32 s50, s48, 13
    v_lshl_add_u32 v{XA}, v1, 4, s50
    v_add_u32 v{XA+1}, {2*SLOT}, v{XA}
    v_add_u32 v{WA}, 16384, v14
    v_xor_b32 v{WA+1}, 32, v{WA}
    v_add_u32 v{WA+2}, {2*SLOT}, v{WA}
    v_add_u32 v{WA+3}, {2*SLOT}, v{WA+1}
    s_lshl_b32 s50, s48, 11
    s_add_u32 s50, s50, {T}
    v_lshl_add_u32 v4, v2, 4, s50
    s_lshl_b32 s50, s49, 7
    s_add_u32 s50, s50, {T+4096}
    v_lshl_add_u32 v5, v3, 4, s50""")
    a(f"""v_and_b32 v6, 1, v3
    v_lshlrev_b32 v6, 9, v6
    v_lshrrev_b32 v7, 1, v3
    v_lshl_add_u32 v6, v7, 8, v6
    v_lshl_add_u32 v6, v2, 4, v6
    s_lshl_b32 s50, s40, 1
    s_add_u32 s50, s50, s48
    s_mul_i32 s50, s50, {8*216*256}
    s_lshl_b32 s51, s41, 1
    s_add_u32 s51, s51, s49
    s_lshl_b32 s51, s51, 10
    s_add_u32 s50, s50, s51
    s_add_u32 s50, s50, {HP}""")

def p4_c(self):
    a = self.a
    R, SLOT = P4_R, P4_SLOT
    a("s_cmp_ge_u32 s2, 216\ns_cbranch_scc1 L_p5_c_pre")
    XA, WA = 8, 10
    FR = 16; ACC = 112
    sig96(self, 40, 0)
    lg = LG(a)
    def reads(g):
        slot = g % R
        win, off = slot >> 1, (slot & 1) * SLOT
        fb = FR + 48 * (g & 1)
        W = lambda nu: [(f"ds_read_b64_tr_b16 {vr(fb+32+4*nu+2*t,2)}, v{WA+2*win+(nu&1)} offset:{off+4096*(nu>>1)+512*t}", ('W', g, nu)) for t in range(2)]
        X = lambda i: [(f"ds_read_b128 {vr(fb+4*i)}, v{XA+win} offset:{off+1024*i}", ('X', g, i))]
        out = W(0) + X(0) + W(1) + W(2) + W(3)
        for i in range(1, 8): out += X(i)
        return out
    self.bar()
    self.bar()
    self.stamp('p4b0')
    for r in reads(0): lg.op(*r)
    ST, CSR, PK = 16, 48, 64
    for g in range(20):
        fb = FR + 48 * (g & 1)
        nxt = []
        k = 0; n = 0
        for mu in range(8):
            for nu in range(4):
                if n == 8:
                    self.bar()
                    if g + 1 < 20: nxt = reads(g + 1)
                    else:
                        nxt = [(f"ds_read_b128 {vr(CSR+4*q)}, v5 offset:{256*(q>>1)+64*(q&1)}", None) for q in range(4)]
                        nxt += [(f"ds_read_b128 {vr(ST+4*q)}, v4 offset:{256*q}", None) for q in range(8)]
                ac = ACC + 16 * mu + 4 * nu
                c = "0" if g == 0 else vr(ac)
                if g > 0 and n == 0: lg.need(('X', g, 1))
                if g > 0 and n == 4: lg.need(('X', g, 7))
                lg.need(('W', g, nu), ('X', g, mu))
                a(f"v_mfma_f32_16x16x32_bf16 {vr(ac)}, {vr(fb+32+4*nu)}, {vr(fb+4*mu)}, {c}")
                if k < len(nxt) and n % 4 != 3: lg.op(*nxt[k]); k += 1
                n += 1
        assert k == len(nxt)
    lg.drain()
    self.stamp('p4loop')
    a(".p2align 3")
    def A(mu):
        st = ST + 4 * mu; b = ACC + 16 * mu
        o = [f"v_pk_fma_f32 {vr(b+2*h,2)}, {vr(CSR+2*h,2)}, {vr(st,2)}, {vr(b+2*h,2)} op_sel_hi:[1,0,1] neg_lo:[0,1,0] neg_hi:[0,1,0]" for h in range(4)]
        o += [f"v_pk_mul_f32 {vr(b+2*h,2)}, {vr(b+2*h,2)}, {vr(st,2)} op_sel:[0,1] op_sel_hi:[1,1]" for h in range(4)]
        o += [f"v_exp_f32 v{b+i}, v{b+i}" for i in range(8)]
        o += [f"v_pk_fma_f32 {vr(b+2*h,2)}, {vr(CSR+2*h,2)}, {vr(st,2)}, {vr(b+2*h,2)} op_sel_hi:[1,0,1] neg_lo:[0,1,0] neg_hi:[0,1,0]" for h in range(4, 8)]
        o += [f"v_pk_fma_f32 {vr(b+2*h,2)}, {vr(b+2*h,2)}, {vr(st+2,2)}, {vr(st+2,2)} op_sel_hi:[1,0,0]" for h in range(4)]
        o += [f"v_rcp_f32 v{b+i}, v{b+i}" for i in range(8)]
        return o
    def B(mu):
        b = ACC + 16 * mu; pk = PK + 4 * (mu % 4)
        o = [f"v_pk_mul_f32 {vr(b+2*h,2)}, {vr(b+2*h,2)}, {vr(b+8+2*h,2)}" for h in range(4)]
        o += [f"v_cvt_pk_bf16_f32 v{pk+h}, v{b+2*h}, v{b+2*h+1}" for h in (0, 2, 1, 3)]
        return o
    def C(mu):
        pk = PK + 4 * (mu % 4)
        o = [f"v_permlane16_swap_b32 v{pk}, v{pk+2}", f"v_permlane16_swap_b32 v{pk+1}, v{pk+3}",
             f"buffer_store_dwordx4 {vr(pk)}, v6, {WS}, s50 offen sc1"]
        if mu < 7: o.append(f"s_add_u32 s50, s50, {216*256}")
        return o
    for mu in range(9):
        cur = A(mu) if mu < 8 else []
        seq = cur[:4] + (B(mu - 1) if mu else []) + cur[4:8] + (C(mu - 1) if mu else []) + cur[8:]
        for t in seq: a(t)
    self.stamp('p4epi')
    a("L_p5_c_pre:")
    if self.upto >= 5: p5_c_pre(self)
    self.finish(M_S4, 'p4st')

def p4_h_pre(self):
    a = self.a
    p4_coords(a)
    self.w128_dma_voff(3456, 3, 10, 11)
    a(f"""s_and_b32 s42, s{sHW}, 1
    s_lshl_b32 s42, s42, 6
    v_xor_b32 v3, s42, v3
    v_lshlrev_b32 v2, 4, v1
    v_add_u32 v4, {20480-1024}, v2
    v_add_u32 v5, {2*(20480-1024)}, v2
    v_add_u32 v6, {3*(20480-1024)}, v2
    s_lshl_b32 s44, s40, 2
    s_add_u32 s44, s44, s{sHW}
    s_mul_i32 s44, s44, {4*20480}
    s_add_u32 s44, s44, {HH}
    s_mul_i32 s45, s{sHW}, {8*3456}
    s_lshl_b32 s46, s41, 7
    s_add_u32 s45, s45, s46
    s_lshl_b32 s47, s{sHW}, 12
    s_lshl_b32 s43, s{sHW}, 10
    s_mul_i32 s50, s40, 27
    s_add_u32 s50, s50, s41
    s_lshl_b32 s50, s50, 7
    s_add_u32 s51, s50, {4*M_S3}
    s_add_u32 s50, s50, {4*M_CS4}
    s_lshl_b32 s56, s40, 3
    s_mul_i32 s57, s56, 21846
    s_lshr_b32 s57, s57, 16
    s_add_u32 s56, s56, 7
    s_mul_i32 s56, s56, 21846
    s_lshr_b32 s56, s56, 16
    s_sub_u32 s56, s56, s57
    s_add_u32 s56, s56, 1
    s_mul_i32 s56, s56, 10""")

def p4_h(self):
    a = self.a
    R, SLOT, T = P4_R, P4_SLOT, P4_TAB
    LA = 2
    self.vm = VM()
    a("s_cmp_ge_u32 s2, 216\ns_cbranch_scc1 L_p4_skip")
    XV = [2, 4, 5, 6]
    B4 = opt('rot4', 0)
    a("s_add_u32 s57, s40, s41")
    def dma(st):
        slot = st % R
        if B4:
            a(f"""s_and_b32 s57, s57, {B4-1}
            s_add_u32 s58, s57, {B4*(st//B4)}
            s_add_u32 s57, s57, 1""")
        else: a(f"s_mov_b32 s58, {st}")
        a(f"""s_lshl_b32 s59, s58, 10
        s_add_u32 s59, s59, s44
        s_mul_i32 s58, s58, {32*3456}
        s_add_u32 s58, s58, s45
        s_add_u32 m0, s47, {slot*SLOT}""")
        for i in range(4):
            self.vmem(f"buffer_load_dwordx4 v{XV[i]}, {WS}, s59 offen offset:{1024*i} sc1 lds", ('p4', st))
        a(f"s_add_u32 m0, s43, {slot*SLOT+16384}")
        self.vmem(f"buffer_load_dwordx4 v3, {srd(SRD_WG)}, s58 offen lds", ('p4', st))
        a(f"s_add_u32 m0, s43, {slot*SLOT+20480}")
        self.vmem(f"buffer_load_dwordx4 v3, {srd(SRD_WU)}, s58 offen lds", ('p4', st))
    self.poll1(5, "s51", "s56", 8, 9)
    a("v_mov_b32 v8, 0")
    self.stamp('p4poll', 4)
    for st in range(LA): dma(st)
    a(f"""v_lshlrev_b32 v9, 2, v1
    s_lshl_b32 s48, s40, 2
    s_add_u32 s48, s48, s{sHW}
    s_lshl_b32 s48, s48, 9
    s_add_u32 s48, s48, {ST2}
    v_lshlrev_b32 v7, 3, v1
    s_and_b32 s52, s{sHW}, 1
    s_mul_i32 s49, s52, {1728*4}
    s_lshl_b32 s53, s41, 8
    s_add_u32 s49, s49, s53
    s_add_u32 s49, s49, {CS4}""")
    for st in range(20):
        self.wait_vm(('p4', st))
        self.bar()
        if st % 2 == 1: self.sstamp(f'h4b{st}')
        if 2 <= st < 12:
            self.vmem(f"buffer_load_dwordx2 {vr(40+2*(st-2),2)}, v7, {WS}, s48 offen sc1", 'st2')
            a("s_add_u32 s48, s48, 32768")
        if st == 13:
            self.vmem(f"buffer_load_dword v36, v8, {WS}, s50 offen sc1", 'mb')
        if st == 15:
            a("v_cmp_ne_u32 vcc, 8, v36\ns_cbranch_vccz L_p4_csok")
            keep = list(self.vm.ops)
            self.poll("s50", 8, 8, 36)
            self.vm.ops = keep
            a("L_p4_csok:")
            for q in range(4):
                self.vmem(f"buffer_load_dword v{32+q}, v9, {WS}, s49 offen sc1", 'cs')
                if q < 3: a(f"s_add_u32 s49, s49, {3456*4}")
        if st + LA < 20: dma(st + LA)
        if self.upto >= 5 and 11 <= st < 11 + P5_PRE: p5_wdma(self, st - 11)
        if st == 17:
            self.wait_vm('cs')
            a("v_add_f32 v16, v40, v42\nv_add_f32 v17, v41, v43")
            for i in range(2, 10): a(f"v_add_f32 v16, v16, v{40+2*i}\nv_add_f32 v17, v17, v{41+2*i}")
            a(f"""v_add_f32 v32, v32, v33
            v_add_f32 v34, v34, v35
            v_add_f32 v32, v32, v34
            v_mov_b32 v20, {f32hex(1.0/D)}
            v_mul_f32 v12, v16, v20
            v_mul_f32 v17, v17, v20
            v_fma_f32 v17, -v12, v12, v17
            v_max_f32 v17, 0, v17
            v_add_f32 v17, {f32hex(1e-5)}, v17
            v_rsq_f32 v13, v17
            v_sqrt_f32 v14, v17
            v_mov_b32 v15, 0
            v_mul_f32 v13, {f32hex(-LOG2E)}, v13
            s_lshl_b32 s52, s52, 8
            s_add_u32 s52, s52, {T+4096}
            v_add_u32 v10, s52, v9
            s_add_u32 s52, s43, {T}
            v_add_u32 v11, s52, v2
            ds_write_b32 v10, v32
            ds_write_b128 v11, v[12:15]
            s_waitcnt lgkmcnt(0)""")
    self.sdump(6)
    self.bar()
    a("L_p5_h_pre:")
    self.bar()

def idle_code(self):
    a = self.a
    self.vm = VM()
    if self.upto >= 5:
        a("L_p4_skip:")
        for i in range(P5_PRE): p5_wdma(self, i)
        a("s_branch L_p5_h_pre")
    elif self.upto >= 4: a("L_p4_skip:\ns_branch L_p5_h_pre")
    a(f"""L_idle:
    s_mul_i32 s40, s{sWAVE}, 36
    s_add_u32 s40, s40, s2
    s_sub_u32 s40, s40, 220
    s_cmp_ge_u32 s40, 216
    s_cbranch_scc1 L_cs4_done
    s_mul_i32 s46, s40, 1214
    s_lshr_b32 s46, s46, 16
    s_mul_i32 s41, s46, 54
    s_sub_u32 s40, s40, s41
    s_cmp_ge_u32 s40, 27
    s_cselect_b32 s44, 27, 0
    s_cselect_b32 s56, s{SRD_WU}, s{SRD_WG}
    s_cselect_b32 s57, s{SRD_WU+1}, s{SRD_WG+1}
    s_mov_b32 s58, {D*F*2}
    s_mov_b32 s59, 0x20000
    s_sub_u32 s45, s40, s44
    s_lshl_b32 s47, s45, 7
    s_mul_i32 s41, s46, {160*3456}
    s_add_u32 s47, s47, s41
    s_mul_i32 s50, s{sWAVE}, 20480""")
    self.colsum_issue("s[56:59]", 3456, 47, 50, 16, 17, 18)
    a(f"""s_mul_i32 s47, s46, {3456*4}
    s_lshl_b32 s41, s40, 8
    s_add_u32 s47, s47, s41
    s_add_u32 s47, s47, {CS4}
    s_waitcnt vmcnt(0)""")
    self.colsum_finish(50, 47, 16)
    a(f"""v_mul_u32_u24 v16, 27, v1
    v_add_u32 v16, s45, v16
    v_cmp_gt_u32 vcc, 8, v1
    s_waitcnt vmcnt(0)""")
    self.signal(16, M_CS4, 17)
    a("L_cs4_done:")
    a.settle()
    self.stamp('csdone')
    a("s_barrier\ns_cmp_lt_u32 s2, 224\ns_cbranch_scc1 L_end")
    a(f"""v_mul_u32_u24 v16, 13108, v1
    v_lshrrev_b32 v16, 16, v16
    v_mul_u32_u24 v17, 5, v16
    v_sub_u32 v17, v1, v17
    v_mul_u32_u24 v16, 1280, v16
    v_lshl_add_u32 v16, v17, 7, v16
    s_lshr_b32 s40, s2, 3
    s_sub_u32 s40, s40, 28
    s_lshl_b32 s40, s40, 3
    s_add_u32 s40, s40, s{sWAVE}
    s_mul_i32 s40, s40, {12*1280}
    s_and_b32 s41, s2, 1
    s_mul_i32 s41, s41, 640
    s_add_u32 s40, s40, s41""")
    for n in range(5):
        self.touch(srd(SRD_WD), 16, "s40", n)
        a("s_waitcnt vmcnt(0)")
        if n < 4: a(f"s_add_u32 s40, s40, {32*12*1280}")
    self.stamp('wddone')
    a("s_endpgm")

def p5_h_pre(self):
    a = self.a
    p5_coords(a, 64, 65, 66)
    self.w128_dma_voff(1280, 103, 10, 11)
    a(f"""v_xor_b32 v104, 64, v103
    v_add_u32 v104, {8*1280-1024}, v104""")
    g96_apieces(a, 55296, 100)
    a(f"""s_mul_i32 s68, s64, {6*55296}
    s_add_u32 s68, s68, {HP - 4096}
    s_mul_i32 s69, s{sHW}, {16*1280}
    s_lshl_b32 s70, s65, 7
    s_add_u32 s69, s69, s70
    s_mul_i32 s70, s{sHW}, 3072
    s_lshl_b32 s71, s{sHW}, 11
    s_mul_i32 s72, s64, 10
    s_add_u32 s72, s72, s65
    s_lshl_b32 s72, s72, 7
    s_add_u32 s72, s72, {4*M_S4}
    s_mul_i32 s73, s64, 3
    s_add_u32 s74, s73, 2
    s_min_u32 s74, s74, 63
    s_lshr_b32 s73, s73, 3
    s_lshr_b32 s74, s74, 3
    s_cmp_eq_u32 s73, s74
    s_cselect_b32 s73, 27, 54
    s_lshl_b32 s67, s67, 1""" + ("\ns_mov_b32 s67, 0" if 'norot5' in sys.argv else ""))

def p5_ks(a, st, sk):
    b0 = 9 * (st // 9)
    if st % 9 == 0: a(f"s_add_u32 s{sk}, s67, {b0}")
    else: a(f"s_add_u32 s{sk}, s{sk}, 1\ns_cmp_eq_u32 s{sk}, {b0+9}\ns_cselect_b32 s{sk}, {b0}, s{sk}")

def p5_wdma(self, st):
    a = self.a
    p5_ks(a, st, 75)
    a(f"s_mul_i32 s76, s75, {64*1280}\ns_add_u32 s76, s76, s69\ns_add_u32 m0, s71, {p5_wslot(st)}")
    for i in range(2):
        self.vmem(f"buffer_load_dwordx4 v{103+i}, {srd(SRD_WD)}, s76 offen offset:{1024*i} lds", ('p5w', st))

def p5_h(self):
    a = self.a
    RW = P5_RW
    self.vm = VM()
    def adma(st):
        p5_ks(a, st, 74)
        a(f"s_lshl_b32 s76, s74, 11\ns_add_u32 s76, s76, s68\ns_add_u32 m0, s70, {(st % RA)*12288}")
        for i in range(3):
            self.vmem(f"buffer_load_dwordx4 v{100+i}, {WS}, s76 offen offset:{1024*i} sc1 lds", ('p5', st))
    for st in range(P5_PRE, RW): p5_wdma(self, st)
    self.poll1(5, "s72", "s73", 8, 9)
    self.stamp('p5poll', 4)
    for st in range(4): adma(st)
    for st in range(27):
        self.wait_vm(('p5', st))
        self.bar()
        if st % 2 == 0: self.sstamp(f'h5b{st}')
        if st >= 1 and st + LA96 < 27: adma(st + LA96)
        if st >= 2 and st - 2 + RW < 27: p5_wdma(self, st - 2 + RW)
    self.sdump(6)

def p5_c_pre(self):
    a = self.a
    p5_coords(a, 40, 41, 42)
    a(f"""s_mul_i32 s50, s48, 6144
    v_lshl_add_u32 v8, v1, 4, s50
    v_add_u32 v10, 65536, v14
    v_xor_b32 v11, 32, v10
    v_add_u32 v12, {65536+49152}, v14
    v_xor_b32 v13, 32, v12""")
    a(f"""v_lshrrev_b32 v7, 1, v3
    v_lshlrev_b32 v4, 8, v7
    v_lshl_add_u32 v4, v2, 4, v4
    v_and_b32 v5, 1, v3
    v_lshl_add_u32 v4, v5, 3, v4
    s_lshl_b32 s50, s40, 1
    s_add_u32 s50, s50, s48
    s_mul_i32 s50, s50, {3*20480}
    s_lshl_b32 s52, s41, 1
    s_add_u32 s52, s52, s49
    s_lshl_b32 s53, s52, 10
    s_add_u32 s51, s50, s53
    s_add_u32 s51, s51, {HH}""")
    a(f"""v_mul_u32_u24 v9, 1280, v2
    v_lshl_add_u32 v9, v5, 5, v9
    v_lshl_add_u32 v9, v7, 4, v9
    s_lshl_b32 s54, s52, 6
    s_add_u32 s53, s50, s54
    v_add_u32 v9, s53, v9""")

def p5_c(self):
    a = self.a
    self.vm = VM()
    ACC = G_ACC; HR = 120
    for mu in range(3):
        for nu in range(2):
            a(f"buffer_load_dwordx2 {vr(HR+4*mu+2*nu,2)}, v4, {WS}, s51 offen offset:{512*nu} sc1")
        if mu < 2: a("s_add_u32 s51, s51, 20480")
    a("s_waitcnt vmcnt(0)")
    for i in range(12):
        a(f"v_lshlrev_b32 v{136+2*i}, 16, v{HR+i}\nv_and_b32 v{137+2*i}, 0xffff0000, v{HR+i}")
    self.bar()
    self.bar()
    self.stamp('p5b0')
    def aread(st, j, i, dst):
        return [f"ds_read_b128 {vr(dst)}, v8 offset:{(st % RA)*12288 + 2048*i + 1024*j}"]
    def wread(st, j, nu, t, dst):
        ph = (st + 5) % P5_RW
        return f"ds_read_b64_tr_b16 {vr(dst,2)}, v{10 + 2*(ph >= 6) + nu} offset:{8192*(ph%6)+4096*j+512*t}"
    g96_loop(self, 27, aread, wread)
    self.stamp('p5loop')
    for i in range(12): a(f"v_pk_add_f32 {vr(136+2*i,2)}, {vr(136+2*i,2)}, {vr(ACC+2*i,2)}")
    for i in range(12): a(f"v_cvt_pk_bf16_f32 v{160+i}, v{136+2*i}, v{137+2*i}")
    for mu in range(3):
        pk = 160 + 4 * mu
        a(f"v_permlane16_swap_b32 v{pk}, v{pk+2}\nv_permlane16_swap_b32 v{pk+1}, v{pk+3}")
        a(f"buffer_store_dwordx4 {vr(pk)}, v9, {srd(SRD_OUT)}, 0 offen")
        if mu < 2: a("v_add_u32 v9, 20480, v9")
    self.stamp('end')
```

```python
import sys, math, struct
from asmlib import Asm

NAME = "sequential_preLN__sliding_block__glu_gated_glu__prompt"
S, D, F = 2048, 640, 1728
MB = 0
M_S0, M_S1, M_S2, M_S3, M_S4, M_CS4 = range(6)
MEAN1 = 0x10000
RSTD1 = 0x12000
CS1 = 0x14000
CS4 = 0x1C000
ST2 = 0x30000
TS = 0x90000
QKV = 0x100000
OO = 0x900000
HH = 0xC00000
HP = 0x1000000
WS_END = 0x1700000
LDS_BYTES = 163840
OOB = 0x7ffffff0
LOG2E = math.log2(math.e)

sWAVE = 3
SRD_WS, SRD_X, SRD_WQKV, SRD_WO, SRD_WG, SRD_WU, SRD_WD, SRD_OUT, SRD_DBG = [4 + 4 * i for i in range(9)]
def srd(b): return f"s[{b}:{b+3}]"
WS = srd(SRD_WS)
sBOUND = 96
sHW = 97
def vr(b, n=4): return f"v[{b}:{b+n-1}]"
def f32hex(x): return "0x%08x" % struct.unpack('<I', struct.pack('<f', x))[0]

OPT = dict(a.split('=') for a in sys.argv[1:] if '=' in a)
def opt(k, d): return type(d)(OPT.get(k, d))

class VM:
    def __init__(self): self.ops = []
    def add(self, tag): self.ops.append(tag)
    def count_after(self, tag):
        idx = max(i for i, t in enumerate(self.ops) if t == tag)
        return len(self.ops) - 1 - idx
    def clear(self): self.ops = []

class LG:
    def __init__(self, a): self.a = a; self.n = 0; self.pos = {}; self.done = 0
    def op(self, text, tag=None):
        self.a(text); self.n += 1
        if tag is not None: self.pos[tag] = self.n
    def need(self, *tags):
        p = max(self.pos[t] for t in tags)
        if p > self.done:
            c = min(self.n - p, 15)
            self.a(f"s_waitcnt lgkmcnt({c})")
            self.done = self.n - c
    def drain(self):
        if self.done < self.n:
            self.a("s_waitcnt lgkmcnt(0)"); self.done = self.n

class Gen:
    def __init__(self, upto=5, stamps=False):
        self.a = Asm()
        self.vm = VM()
        self.upto = upto
        self.stamps = stamps
        self.tail = []
        self.stamp_names = []
        self.nbar = 0
        self.spend = []
        self.sbase = 80

    def vmem(self, text, tag):
        self.a(text); self.vm.add(tag)
    def wait_vm(self, tag):
        n = self.vm.count_after(tag)
        assert n <= 63, n
        self.a(f"s_waitcnt vmcnt({n})")
    def bar(self):
        self.a("s_barrier"); self.nbar += 1
    def build_srd(self, b, ptr, nbytes):
        self.a(f"s_mov_b32 s{b}, s{ptr}\ns_mov_b32 s{b+1}, s{ptr+1}\ns_mov_b32 s{b+2}, {nbytes}\ns_mov_b32 s{b+3}, 0x20000")
    def stamp(self, name, wave=0):
        if not self.stamps: return
        a = self.a
        if name in self.stamp_names: i = self.stamp_names.index(name)
        else:
            i = len(self.stamp_names); self.stamp_names.append(name)
        assert i < 64
        L = a.newlabel('Lst')
        a(f"""s_cmp_lg_u32 s{sWAVE}, {wave}
        s_cbranch_scc1 {L}
        s_memrealtime s[100:101]
        v_mov_b32 v255, s2
        v_lshlrev_b32 v255, 9, v255
        v_add_u32 v255, {TS + 8*i}, v255
        s_waitcnt lgkmcnt(0)
        v_mov_b32 v252, s100
        s_memtime s[100:101]
        s_waitcnt lgkmcnt(0)
        v_mov_b32 v253, s100
        s_mov_b64 exec, 1
        buffer_store_dwordx2 v[252:253], v255, {WS}, 0 offen
        s_mov_b64 exec, -1
        {L}:""")

    def sstamp(self, name):
        if not self.stamps: return
        k = len(self.spend); assert k < 16
        self.spend.append(name)
        self.a(f"s_memtime s[100:101]\ns_waitcnt lgkmcnt(0)\ns_mov_b32 s{self.sbase+k}, s100")
    def sdump(self, wave):
        if not self.stamps: return
        a = self.a
        L = a.newlabel('Lsd')
        a(f"""s_cmp_lg_u32 s{sWAVE}, {wave}
        s_cbranch_scc1 {L}
        v_mov_b32 v255, s2
        v_lshlrev_b32 v255, 9, v255
        v_add_u32 v255, {TS}, v255
        v_mov_b32 v252, 0
        s_mov_b64 exec, 1""")
        for k, name in enumerate(self.spend):
            i = len(self.stamp_names); self.stamp_names.append(name); assert i < 64
            a(f"v_mov_b32 v253, s{self.sbase+k}\nbuffer_store_dwordx2 v[252:253], v255, {WS}, 0 offen offset:{8*i}")
        a(f"s_mov_b64 exec, -1\n{L}:")
        self.spend = []

    def wave_sum(self, vs, sdsts):
        for mod in ("quad_perm:[1,0,3,2] row_mask:0xf", "quad_perm:[2,3,0,1] row_mask:0xf", "row_half_mirror row_mask:0xf",
                    "row_mirror row_mask:0xf", "row_bcast:15 row_mask:0xa", "row_bcast:31 row_mask:0xc"):
            for v in vs:
                self.a(f"v_add_f32_dpp v{v}, v{v}, v{v} {mod} bank_mask:0xf")
        for v, s in zip(vs, sdsts):
            self.a(f"v_readlane_b32 s{s}, v{v}, 63")

    def poll(self, soff, expect, va, vt, srdb=SRD_WS):
        a = self.a
        L = a.newlabel('Lpoll'); Ld = L + 'd'
        a(f"""v_mov_b32 v{va}, 0
        {L}:
        buffer_load_dword v{vt}, v{va}, {srd(srdb)}, {soff} offen sc1
        s_waitcnt vmcnt(0)
        v_cmp_ne_u32 vcc, {expect}, v{vt}
        s_cbranch_vccz {Ld}
        s_sub_u32 s{sBOUND}, s{sBOUND}, 1
        s_cbranch_scc1 {Ld}
        s_sleep 1
        s_branch {L}
        {Ld}:""")
        self.vm.clear()

    def poll1(self, wave, soff, expect, va, vt):
        a = self.a
        L = a.newlabel('Lpoll'); Ld = L + 'd'
        a(f"""s_cmp_lg_u32 s{sWAVE}, {wave}
        s_cbranch_scc1 {Ld}
        v_mov_b32 v{va}, 0
        s_mov_b64 exec, 1
        {L}:
        v_mov_b32 v{vt}, 0
        buffer_atomic_add v{vt}, v{va}, {WS}, {soff} offen sc0 sc1
        s_waitcnt vmcnt(0)
        v_cmp_ne_u32 vcc, {expect}, v{vt}
        s_cbranch_vccz {Ld}
        s_sub_u32 s{sBOUND}, s{sBOUND}, 1
        s_cbranch_scc1 {Ld}
        s_branch {L}
        {Ld}:
        s_mov_b64 exec, -1""")
        self.bar()

    def signal(self, vline, dword, vt, mask='vcc'):
        self.a(f"""v_lshlrev_b32 v{vline}, 7, v{vline}
        v_mov_b32 v{vt}, 1
        s_mov_b64 exec, {mask}
        buffer_atomic_add v{vt}, v{vline}, {WS}, 0 offen offset:{4*dword} sc1
        s_mov_b64 exec, -1""")

    def w128_dma_voff(self, pitch, vE, vt, vt2):
        self.a(f"""v_lshrrev_b32 v{vt}, 3, v1
        v_mul_u32_u24 v{vE}, {pitch}, v{vt}
        v_and_b32 v{vt}, 2, v{vt}
        v_and_b32 v{vt2}, 7, v1
        v_xor_b32 v{vt}, v{vt}, v{vt2}
        v_lshl_add_u32 v{vE}, v{vt}, 4, v{vE}""")

    def colsum_issue(self, srdb, pitch, s_goff, s_lds, vE, vO, vt):
        a = self.a
        self.w128_dma_voff(pitch, vE, vt, vO)
        a(f"v_xor_b32 v{vO}, 64, v{vE}")
        for i in range(20):
            a(f"s_add_u32 m0, s{s_lds}, {1024*i}")
            self.vmem(f"buffer_load_dwordx4 v{vO if i & 1 else vE}, {srdb}, s{s_goff} offen lds", 'cs')
            if i < 19: a(f"s_add_u32 s{s_goff}, s{s_goff}, {8*pitch}")

    def w128_read_addr(self, vb, vt):
        self.a(f"""v_lshrrev_b32 v{vt}, 4, v1
        v_lshlrev_b32 v{vb}, 10, v{vt}
        v_bfe_u32 v{vt}, v1, 2, 2
        v_lshl_add_u32 v{vb}, v{vt}, 7, v{vb}
        v_and_b32 v{vt}, 3, v1
        v_lshl_add_u32 v{vb}, v{vt}, 3, v{vb}
        v_bfe_u32 v{vt}, v1, 3, 2
        v_lshl_add_u32 v{vb}, v{vt}, 5, v{vb}""")

    def colsum_finish(self, s_lds, s_out, vbase):
        a = self.a
        vb = vbase; vones = vbase + 4; vacc = vbase + 8; vf = vbase + 24
        self.w128_read_addr(vb, vones)
        a(f"v_add_u32 v{vb}, s{s_lds}, v{vb}")
        for nu in range(1, 4): a(f"v_xor_b32 v{vb+nu}, {32*nu}, v{vb}")
        for i in range(4): a(f"v_mov_b32 v{vones+i}, 0x3f803f80")
        for s in range(5):
            fb = vf + 16 * (s & 1)
            for nu in range(4):
                for t in range(2):
                    a(f"ds_read_b64_tr_b16 {vr(fb+4*nu+2*t, 2)}, v{vb+nu} offset:{(32*s+4*t)*128}")
            a("s_waitcnt lgkmcnt(0)")
            for nu in range(4):
                c = "0" if s == 0 else vr(vacc + 4 * nu)
                a(f"v_mfma_f32_16x16x32_bf16 {vr(vacc+4*nu)}, {vr(vones)}, {vr(fb+4*nu)}, {c}")
        a(f"""v_cmp_lt_u32 vcc, 15, v1
        v_cndmask_b32 v{vacc}, v{vacc}, v{vacc+4}, vcc
        v_cmp_lt_u32 vcc, 31, v1
        v_cndmask_b32 v{vacc}, v{vacc}, v{vacc+8}, vcc
        v_cmp_lt_u32 vcc, 47, v1
        v_cndmask_b32 v{vacc}, v{vacc}, v{vacc+12}, vcc
        v_lshlrev_b32 v{vb}, 2, v1""")
        self.vmem(f"buffer_store_dword v{vacc}, v{vb}, {WS}, s{s_out} offen sc1", 'csst')

    def row_stats(self, nrows):
        a = self.a
        a(f"""v_lshlrev_b32 v8, 4, v1
        v_lshlrev_b32 v9, 2, v1
        s_mul_i32 s45, s44, 1280""")
        for r in range(nrows):
            self.vmem(f"buffer_load_dwordx4 {vr(12+8*r)}, v8, {srd(SRD_X)}, s45 offen offset:{1280*r}", 'stat')
            self.vmem(f"buffer_load_dword v{16+8*r}, v9, {srd(SRD_X)}, s45 offen offset:{1280*r+1024}", 'stat')

    def row_stats_finish(self, nrows):
        a = self.a
        self.wait_vm('stat')
        E = lambda r, i: 32 + 12 * r + i
        for r in range(nrows):
            for i in range(5):
                a(f"v_lshlrev_b32 v{E(r,2*i)}, 16, v{12+8*r+i}\nv_and_b32 v{E(r,2*i+1)}, 0xffff0000, v{12+8*r+i}")
        acc = [12 + 8 * r for r in range(nrows)]
        for r in range(nrows): a(f"v_add_f32 v{acc[r]}, v{E(r,0)}, v{E(r,1)}")
        for i in range(2, 10):
            for r in range(nrows): a(f"v_add_f32 v{acc[r]}, v{acc[r]}, v{E(r,i)}")
        ss = [46 + r for r in range(nrows)]
        self.wave_sum(acc, ss)
        a(f"v_mov_b32 v10, {f32hex(1.0/D)}")
        for r in range(nrows): a(f"v_mul_f32 v{acc[r]+1}, s{ss[r]}, v10")
        for i in range(10):
            for r in range(nrows): a(f"v_sub_f32 v{E(r,i)}, v{E(r,i)}, v{acc[r]+1}")
        for r in range(nrows): a(f"v_mul_f32 v{acc[r]}, v{E(r,0)}, v{E(r,0)}")
        for i in range(1, 10):
            for r in range(nrows): a(f"v_fmac_f32 v{acc[r]}, v{E(r,i)}, v{E(r,i)}")
        self.wave_sum(acc, ss)
        for r in range(nrows):
            a(f"v_mov_b32 v{acc[r]+2}, {f32hex(1e-5)}\nv_fmac_f32 v{acc[r]+2}, s{ss[r]}, v10\nv_rsq_f32 v{acc[r]+2}, v{acc[r]+2}")
        a(f"""s_lshl_b32 s45, s44, 2
        s_add_u32 s45, s45, {MEAN1}
        s_add_u32 s46, s45, {RSTD1-MEAN1}
        v_mov_b32 v10, 0
        s_mov_b64 exec, 1""")
        for r in range(nrows):
            self.vmem(f"buffer_store_dword v{acc[r]+1}, v10, {WS}, s45 offen offset:{4*r} sc1", 'statst')
            self.vmem(f"buffer_store_dword v{acc[r]+2}, v10, {WS}, s46 offen offset:{4*r} sc1", 'statst')
        a("s_mov_b64 exec, -1")

    def sig_rowstats(self):
        a = self.a
        a("""s_lshr_b32 s53, s2, 4
        s_mul_i32 s53, s53, 15
        v_add_u32 v10, s53, v1
        v_cmp_gt_u32 vcc, 15, v1""")
        self.signal(10, M_S0, 11)

    def p0(self):
        a = self.a
        a(f"""s_cmp_ge_u32 s2, 256
        s_cbranch_scc1 L_end
        s_load_dwordx16 s[64:79], s[0:1], 0
        s_load_dwordx4 s[80:83], s[0:1], 64
        v_and_b32 v1, 63, v0
        v_lshrrev_b32 v2, 6, v0
        v_readfirstlane_b32 s{sWAVE}, v2
        v_mov_b32 v247, 0
        s_mov_b32 s{sBOUND}, 0x100000""")
        a(f"""s_lshr_b32 s40, s2, 3
        s_sub_u32 s40, s40, 2
        s_and_b32 s41, s2, 1
        s_mul_i32 s41, s41, 30
        s_add_u32 s40, s40, s41
        s_lshr_b32 s41, s40, 2
        s_and_b32 s40, s40, 3
        s_mul_i32 s43, s40, 3
        s_and_b32 s42, s2, 6
        s_lshl_b32 s42, s42, 1
        s_add_u32 s40, s40, s42
        s_and_b32 s{sHW}, s{sWAVE}, 3
        s_waitcnt lgkmcnt(0)""")
        self.build_srd(SRD_X, 64, S * D * 2)
        self.build_srd(SRD_WQKV, 66, D * 3 * D * 2)
        self.build_srd(SRD_WS, 82, WS_END)
        self.build_srd(SRD_DBG, 80, 256)
        self.build_srd(SRD_WO, 68, D * D * 2)
        self.build_srd(SRD_WG, 72, D * F * 2)
        self.build_srd(SRD_WU, 74, D * F * 2)
        self.build_srd(SRD_WD, 76, F * D * 2)
        self.build_srd(SRD_OUT, 78, S * D * 2)
        self.stamp('start')
        a(f"""s_cmp_lt_u32 s2, 16
        s_cbranch_scc1 L_spare
        s_cmp_lt_u32 s{sWAVE}, 4
        s_cbranch_scc1 L_p1_c""")

    def touch(self, srdb, voff, soff, n):
        self.a(f"buffer_load_dword v{248 + n % 4}, v{voff}, {srdb}, {soff} offen")

    def spare_code(self):
        a = self.a
        self.vm = VM()
        a("L_spare:")
        a("s_cmp_eq_u32 s2, 0\ns_cbranch_scc1 L_init")
        a("L_init_back:")
        a(f"""s_getpc_b64 s[40:41]
        L_pc:
        s_sub_u32 s40, s40, L_pc-{NAME}_kernel
        s_subb_u32 s41, s41, 0
        s_lshr_b32 s42, s2, 3
        s_lshl_b32 s42, s42, 15
        v_and_b32 v2, 255, v0
        v_lshl_add_u32 v2, v2, 7, s42
        v_min_u32 v2, L_code_end-{NAME}_kernel-4, v2
        s_cmp_ge_u32 s{sWAVE}, 4
        s_cbranch_scc1 L_nocode
        global_load_dword v250, v2, s[40:41]
        L_nocode:""")
        a(f"s_lshl_b32 s44, s2, 3\ns_add_u32 s44, s44, s{sWAVE}")
        self.row_stats(1)
        a(f"""v_lshlrev_b32 v2, 7, v1
        s_lshl_b32 s50, s{sWAVE}, 4
        s_add_u32 s50, s50, s2
        s_lshl_b32 s50, s50, 13
        s_add_u32 s51, s50, {256*3840}""")
        for n in range(2):
            self.touch(srd(SRD_WQKV), 2, "s51", n); self.vm.add('t')
            if n < 1: a(f"s_add_u32 s51, s51, {128*8192}")
        self.row_stats_finish(1)
        self.poll(0, 1, 10, 11, SRD_DBG)
        a(f"""s_barrier
        s_cmp_lg_u32 s{sWAVE}, 0
        s_cbranch_scc1 L_spare4""")
        self.sig_rowstats()
        a("L_spare4:")
        self.touch(srd(SRD_WO), 2, "s50", 0)
        a("s_mov_b64 s[62:63], 0")
        self.stamp('spdone')
        a("s_branch L_p1_join")
        a("L_init:")
        a(f"""v_mov_b32 v4, 0
        v_mov_b32 v5, 0
        v_mov_b32 v6, 0
        v_mov_b32 v7, 0
        v_lshlrev_b32 v8, 4, v1
        s_lshl_b32 s40, s{sWAVE}, 12""")
        for i in range(4):
            a(f"buffer_store_dwordx4 v[4:7], v8, {WS}, s40 offen offset:{1024*i} sc1")
        a(f"""s_waitcnt vmcnt(0)
        s_barrier
        s_cmp_lg_u32 s{sWAVE}, 0
        s_cbranch_scc1 L_init_back
        v_mov_b32 v5, 1
        s_mov_b64 exec, 1
        buffer_store_dword v5, v4, {srd(SRD_DBG)}, 0 offen sc1
        s_mov_b64 exec, -1
        s_branch L_init_back""")

    def finish(self, dword, name):
        a = self.a
        a("s_waitcnt vmcnt(0)")
        self.bar()
        self.stamp(name)
        L = a.newlabel('Lfin')
        a(f"""s_cmp_eq_u64 s[62:63], 0
        s_cbranch_scc1 {L}
        v_mov_b32 v246, 1
        s_mov_b64 exec, s[62:63]
        buffer_atomic_add v246, v247, {WS}, 0 offen offset:{4*dword} sc1
        s_mov_b64 exec, -1
        {L}:""")
        self.vm.clear()

    def sigprep(self, wave):
        self.a(f"""v_lshlrev_b32 v247, 7, v247
        s_cmp_eq_u32 s{sWAVE}, {wave}
        s_cselect_b64 s[62:63], vcc, 0""")

    P1_R, P1_LA, P1_BLK = 4, 2, 4
    rot1 = 's_mov_b32 s46, 0' if 'norot' in sys.argv else ''
    P1_TAB = 131072
    CS4_LDS = 131072 + 2048

    def p1(self):
        a = self.a
        R, LA = self.P1_R, self.P1_LA
        T = self.P1_TAB
        def waddr(dst, sblk, vt):
            a(f"""v_lshrrev_b32 v{vt}, 4, v1
            v_lshlrev_b32 v{dst}, 11, v{vt}
            v_bfe_u32 v{vt}, v1, 2, 2
            v_lshl_add_u32 v{dst}, v{vt}, 8, v{dst}
            v_and_b32 v{vt}, 3, v1
            v_lshl_add_u32 v{dst}, v{vt}, 3, v{dst}
            v_bfe_u32 v{vt}, v1, 2, 3
            v_xor_b32 v{vt}, s{sblk}, v{vt}
            v_lshl_add_u32 v{dst}, v{vt}, 5, v{dst}
            v_add_u32 v{dst}, 16384, v{dst}""")
        self.vm = VM(); self.nbar = 0
        a("""v_lshrrev_b32 v10, 3, v1
        v_mul_u32_u24 v2, 1280, v10
        v_lshrrev_b32 v10, 4, v1
        v_and_b32 v11, 7, v1
        v_xor_b32 v11, v11, v10
        v_lshl_add_u32 v2, v11, 4, v2
        v_xor_b32 v3, 64, v2
        v_add_u32 v3, 9216, v3
        v_add_u32 v4, 18432, v2
        v_add_u32 v5, 18432, v3
        v_mul_u32_u24 v6, 3840, v10
        v_lshlrev_b32 v10, 1, v10
        v_and_b32 v11, 15, v1
        v_xor_b32 v11, v11, v10
        v_lshl_add_u32 v6, v11, 4, v6
        v_add_u32 v7, 14336, v6
        v_xor_b32 v8, 128, v6
        v_add_u32 v8, 28672, v8
        v_add_u32 v9, 14336, v8""")
        a(f"""s_lshl_b32 s44, s40, 2
        s_add_u32 s44, s44, s{sHW}
        s_mul_i32 s44, s44, {32*1280}
        s_mul_i32 s45, s{sHW}, {16*3840}
        s_lshl_b32 s46, s41, 8
        s_add_u32 s45, s45, s46
        s_add_u32 s46, s41, s40
        s_and_b32 s46, s46, 3
        {self.rot1}
        s_lshl_b32 s47, s{sHW}, 12""")
        def dma(st):
            slot = st % R
            a(f"""s_lshl_b32 s48, s46, 7
            s_add_u32 s48, s48, s44
            s_mul_i32 s49, s46, {64*3840}
            s_add_u32 s49, s49, s45
            s_add_u32 m0, s47, {slot*32768}""")
            for i in range(4):
                self.vmem(f"buffer_load_dwordx4 v{2+i}, {srd(SRD_X)}, s48 offen offset:{1024*i} lds", ('p1', st))
            a(f"s_add_u32 m0, s47, {slot*32768+16384}")
            for i in range(4):
                self.vmem(f"buffer_load_dwordx4 v{6+i}, {srd(SRD_WQKV)}, s49 offen offset:{1024*i} lds", ('p1', st))
            B = self.P1_BLK
            if st + 1 < B: a(f"s_add_u32 s46, s46, 1\ns_and_b32 s46, s46, {B-1}")
            elif opt('rot1b', 0) and st + 1 < 8: a(f"s_add_u32 s46, s46, 1\ns_and_b32 s46, s46, 3\ns_or_b32 s46, s46, 4")
            elif opt('rot1b', 0) and st < 9: a(f"s_add_u32 s46, s46, 1\ns_and_b32 s46, s46, 1\ns_or_b32 s46, s46, 8")
            elif st < 9: a(f"s_mov_b32 s46, {st+1}")
        for st in range(LA): dma(st)
        a(f"""s_mul_i32 s52, s40, 15
        s_add_u32 s52, s52, s41
        s_lshl_b32 s52, s52, 7
        v_mov_b32 v12, 0""")
        for st in range(10):
            self.wait_vm(('p1', st))
            if st == 8:
                a("v_cmp_ne_u32 vcc, 16, v14\ns_cbranch_vccz L_p1_s0ok")
                keep = list(self.vm.ops)
                self.poll("s52", 16, 10, 11)
                self.vm.ops = keep + ['t', 't']
                a("L_p1_s0ok:")
                a(f"""v_lshlrev_b32 v10, 2, v1
                s_and_b32 s48, s{sHW}, 1
                s_lshl_b32 s49, s40, 1
                s_add_u32 s49, s49, s48
                s_lshl_b32 s49, s49, 8
                s_add_u32 s49, s49, {MEAN1}
                buffer_load_dword v12, v10, {WS}, s49 offen sc1
                s_add_u32 s49, s49, {RSTD1-MEAN1}
                buffer_load_dword v13, v10, {WS}, s49 offen sc1""")
            self.bar()
            if st % 3 == 0: self.sstamp(f'hb{st}')
            if st == 1:
                self.vmem(f"buffer_load_dword v13, v12, {srd(SRD_DBG)}, 0 offen sc1", 'rdy')
            if st == 3:
                L = a.newlabel('Ls0')
                a(f"v_cmp_ne_u32 vcc, 1, v13\ns_cbranch_vccz {L}r")
                keep = list(self.vm.ops)
                self.poll(0, 1, 10, 11, SRD_DBG)
                self.vm.ops = keep
                a(f"{L}r:")
                a(f"""s_lshr_b32 s53, s2, 4
                s_mul_i32 s53, s53, 15
                s_lshl_b32 s54, s{sHW}, 2
                s_add_u32 s53, s53, s54
                v_add_u32 v10, s53, v1
                s_cmp_eq_u32 s{sHW}, 3
                s_cselect_b64 vcc, 7, 15""")
                self.signal(10, M_S0, 11)
                self.vm.add('sig')
            if st == 6:
                self.vmem(f"buffer_load_dword v14, v12, {WS}, s52 offen sc1", 'mb')
            if st + LA < 10: dma(st + LA)
        c = (20 ** -0.5) * LOG2E
        a(f"""s_cmp_lt_u32 s41, 5
        s_cselect_b32 s49, {f32hex(c)}, 1.0
        s_lshl_b32 s48, s48, 9
        s_add_u32 s48, s48, {T}
        v_lshl_add_u32 v11, v1, 3, s48
        s_waitcnt vmcnt(0)
        v_mul_f32 v13, s49, v13
        ds_write_b64 v11, v[12:13]
        s_waitcnt lgkmcnt(0)""")
        self.bar()
        self.bar()
        self.sdump(5)
        a("s_mov_b64 s[62:63], 0\ns_branch L_p1_join")
        nb_h = self.nbar
        self.vm = VM(); self.nbar = 0
        a('L_p1_c:')
        a(f"s_lshl_b32 s44, s2, 2\ns_add_u32 s44, s44, s{sWAVE}\ns_lshl_b32 s44, s44, 1")
        self.row_stats(2)
        XA, WA = 64, 68
        FR = 80
        ACC = 144
        a(f"""s_and_b32 s48, s{sWAVE}, 1
        s_lshr_b32 s49, s{sWAVE}, 1
        v_and_b32 v2, 15, v1
        v_lshrrev_b32 v3, 4, v1
        v_lshlrev_b32 v4, 7, v2
        v_bfe_u32 v5, v1, 1, 3
        v_xor_b32 v5, v5, v3
        v_lshl_add_u32 v4, v5, 4, v4
        s_lshl_b32 s50, s48, 13
        v_add_u32 v{XA}, s50, v4
        v_xor_b32 v{XA+1}, 64, v{XA}
        s_lshl_b32 s50, s49, 1
        s_add_u32 s50, s50, s48
        s_lshl_b32 s50, s50, 1""")
        waddr(WA, 50, 5)
        for nu in range(1, 4): a(f"v_xor_b32 v{WA+nu}, {32*nu}, v{WA}")
        a(f"""s_lshl_b32 s50, s48, 9
        s_add_u32 s50, s50, {T}
        v_lshl_add_u32 v76, v2, 3, s50
        s_lshl_b32 s50, s{sWAVE}, 7
        s_add_u32 s50, s50, {T+1024}
        v_lshl_add_u32 v77, v3, 4, s50
        v_xor_b32 v79, 128, v77
        v_lshrrev_b32 v78, 5, v1
        v_lshlrev_b32 v78, 15, v78
        v_and_b32 v7, 31, v1
        v_lshl_add_u32 v78, v7, 4, v78""")
        a(f"""s_cmp_ge_u32 s41, 10
        s_cselect_b32 s50, 10, 5
        s_cmp_ge_u32 s41, 5
        s_cselect_b32 s50, s50, 0
        s_sub_u32 s51, s41, s50
        s_lshl_b32 s51, s51, 4
        v_mul_u32_u24 v4, 5, v7
        v_lshrrev_b32 v4, 1, v4
        v_add_u32 v4, 2, v4
        v_subrev_u32 v4, s51, v4
        v_cmp_gt_u32 vcc, 18, v4
        s_lshr_b32 s52, s40, 1
        s_cmp_eq_u32 s52, 7
        s_cselect_b32 s50, 0, s50
        s_cmp_eq_u32 s50, 0
        s_cselect_b32 vcc_hi, 0, vcc_hi
        s_lshl_b32 s52, s52, 5
        v_add_u32 v247, s52, v1""")
        self.sigprep(0)
        a(f"""s_lshl_b32 s50, s41, 1
        s_add_u32 s50, s50, s49
        s_lshl_b32 s50, s50, 18
        s_lshl_b32 s51, s40, 1
        s_add_u32 s51, s51, s48
        s_lshl_b32 s51, s51, 10
        s_add_u32 s50, s50, s51
        s_lshl_b32 s51, s48, 17
        s_add_u32 s50, s50, s51
        s_add_u32 s50, s50, {QKV}
        s_lshl_b32 s52, s48, 18
        s_sub_u32 s52, 65536, s52""")
        self.row_stats_finish(2)
        CSR = 208; ONES = 72
        for i in range(72): a(f"v_mov_b32 v{ACC+i}, 0")
        for i in range(4): a(f"v_mov_b32 v{ONES+i}, 0x3f803f80")
        lg = LG(a)
        def reads(g):
            j = g & 1
            off = ((g >> 1) & 1) * 32768
            fb = FR + 32 * (g & 1)
            W = lambda i: [(f"ds_read_b64_tr_b16 {vr(fb+16+4*i, 2)}, v{WA+i} offset:{off+32*j*256}", None),
                           (f"ds_read_b64_tr_b16 {vr(fb+18+4*i, 2)}, v{WA+i} offset:{off+(32*j+4)*256}", ('W', g & 3, i))]
            X = lambda i: [(f"ds_read_b128 {vr(fb+4*i)}, v{XA+j} offset:{off+2048*i}", ('X', g & 3, i))]
            return W(0) + X(0) + W(1) + W(2) + W(3) + X(1) + X(2) + X(3)
        self.stamp('preb0')
        self.bar()
        self.stamp('b0')
        for r in reads(0): lg.op(*r)
        a("s_mov_b32 s51, 5\n.p2align 3\nL_p1_loop:")
        for g in range(4):
            fb = FR + 32 * (g & 1)
            nxt = [] if g & 1 else reads(g + 1)
            k = 0; n = 0
            for mu in range(4):
                for nu in range(4):
                    if (g & 1) and n == 2:
                        if g == 3: a("s_waitcnt vmcnt(0)")
                        a("s_barrier")
                        nxt = reads(g + 1)
                    ac = ACC + 16 * mu + 4 * nu
                    if n == 0: lg.need(('W', g, 3))
                    if n == 4: lg.need(('X', g, 3))
                    a(f"v_mfma_f32_16x16x32_bf16 {vr(ac)}, {vr(fb+16+4*nu)}, {vr(fb+4*mu)}, {vr(ac)}")
                    if k < len(nxt): lg.op(*nxt[k]); k += 1
                    elif g == 2 and n >= 12:
                        for r in ([XA, XA+1], [WA, WA+1], [WA+2], [WA+3])[n - 12]: a(f"v_xor_b32 v{r}, 65536, v{r}")
                    if n in (13, 15):
                        e = (n - 13) >> 1
                        a(f"v_mfma_f32_16x16x32_bf16 {vr(CSR+4*e)}, {vr(fb+16+4*e)}, {vr(ONES)}, {vr(CSR+4*e)}")
                    if g == 3 and n == 14: a("s_sub_u32 s51, s51, 1\ns_cmp_lg_u32 s51, 0")
                    n += 1
            assert k == len(nxt)
        a("s_cbranch_scc1 L_p1_loop")
        self.nbar += 10
        a("s_waitcnt lgkmcnt(0)")
        a.settle(8)
        self.stamp('p1loop')
        self.stamp('p1tab')
        MR = 80
        a("s_mov_b32 exec_lo, 0x00010001\ns_mov_b32 exec_hi, 0x00010001")
        for e in range(2): a(f"ds_write_b128 v77, {vr(CSR+4*e)} offset:{64*e}")
        a("s_mov_b64 exec, -1")
        for mu in range(4): a(f"ds_read_b64 {vr(MR+2*mu, 2)}, v76 offset:{128*mu}")
        a("s_waitcnt lgkmcnt(0)")
        self.bar()
        for e in range(2): a(f"ds_read_b128 {vr(CSR+8+4*e)}, v79 offset:{64*e}")
        a(".p2align 3")
        PK = 104
        n = 0
        for nu in range(4):
            if nu == 2: a("s_waitcnt lgkmcnt(0)\ns_nop 0")
            for p in range(2):
                pk = PK + 4 * (n % 8); n += 1
                tiles = [(ACC + 16 * (2 * p + e) + 4 * nu, 2 * p + e) for e in range(2)]
                for ac, mu in tiles:
                    for h in range(2):
                        a(f"v_pk_fma_f32 {vr(ac+2*h,2)}, {vr(CSR+4*nu+2*h,2)}, {vr(MR+2*mu,2)}, {vr(ac+2*h,2)} op_sel_hi:[1,0,1] neg_lo:[0,1,0] neg_hi:[0,1,0]")
                for ac, mu in tiles:
                    for h in range(2):
                        a(f"v_pk_mul_f32 {vr(ac+2*h,2)}, {vr(ac+2*h,2)}, {vr(MR+2*mu,2)} op_sel:[0,1] op_sel_hi:[1,1]")
                for h in range(2):
                    for e, (ac, mu) in enumerate(tiles):
                        a(f"v_cvt_pk_bf16_f32 v{pk+2*e+h}, v{ac+2*h}, v{ac+2*h+1}")
                a(f"v_permlane16_swap_b32 v{pk}, v{pk+2}\ns_nop 0\nv_permlane16_swap_b32 v{pk+1}, v{pk+3}\ns_nop 0")
                a(f"buffer_store_dwordx4 {vr(pk)}, v78, {WS}, s50 offen offset:{512*p} sc1")
            if nu < 3: a("s_add_u32 s50, s50, s52\ns_nop 0" if nu == 1 else "s_add_u32 s50, s50, 65536")
        self.stamp('p1epi')
        assert self.nbar == nb_h, (self.nbar, nb_h)
        a("L_p1_join:")
        a.settle(3)

    def build(self):
        a = self.a
        a.raw(f"; @launch grid=(256,1,1) block=(512,1,1) lds={LDS_BYTES}")
        a.raw(f'.amdgcn_target "amdgcn-amd-amdhsa--gfx950"\n.text\n.globl {NAME}_kernel\n.p2align 8\n.type {NAME}_kernel,@function\n{NAME}_kernel:')
        self.p0()
        self.p1()
        if self.upto >= 2: self.p2()
        else: self.finish(M_S1, 'p1st')
        if self.upto >= 3: self.tail345()
        a("L_end:\ns_endpgm")
        self.spare_code()
        i = 0
        while i < len(self.tail):
            self.tail[i](); i += 1
        a("L_code_end:")
        a.raw(f""".section .rodata,"a"
.p2align 6
.amdhsa_kernel {NAME}_kernel
  .amdhsa_next_free_vgpr 256
  .amdhsa_next_free_sgpr 102
  .amdhsa_accum_offset 256
  .amdhsa_group_segment_fixed_size 0
  .amdhsa_kernarg_size 80
  .amdhsa_user_sgpr_count 2
  .amdhsa_user_sgpr_kernarg_segment_ptr 1
  .amdhsa_system_sgpr_workgroup_id_x 1
.end_amdhsa_kernel""")
        return a.text()

from phases import install
install(Gen, globals())

if __name__ == '__main__':
    upto = int(sys.argv[1]) if len(sys.argv) > 1 else 5
    out = sys.argv[2] if len(sys.argv) > 2 else 'k.s'
    g = Gen(upto=upto, stamps=('stamps' in sys.argv))
    open(out, 'w').write(g.build())
    open(out + '.stamps', 'w').write('\n'.join(g.stamp_names))
    print("wrote", out, "pads", g.a.pad_count)
```

```python
def install(Gen, G):
    globals().update({k: v for k, v in G.items() if not k.startswith('__')})
    for f in (p2, p3_prefetch, tail345):
        setattr(Gen, f.__name__, f)

KV0 = 102400
OCTP = 8256

def p2(self):
    a = self.a
    self.vm = VM(); self.nbar = 0
    a("s_cmp_eq_u32 s0, 1\ns_cbranch_scc1 L_p1_fin\nL_p2_pre:")
    a(f"""s_and_b32 s40, s2, 7
    s_lshl_b32 s40, s40, 2
    s_bfe_u32 s41, s2, 0x20003
    s_add_u32 s40, s40, s41
    s_lshr_b32 s41, s2, 5
    s_mul_i32 s42, s40, 5
    s_lshr_b32 s42, s42, 1
    s_and_b32 s43, s40, 1
    s_add_u32 s44, s42, s43
    s_xor_b32 s45, s43, 1
    s_lshl_b32 s45, s45, 1
    s_add_u32 s45, s45, s42""")
    a(f"""s_add_u32 s46, s42, 2
    s_lshr_b32 s46, s46, 4
    s_lshr_b32 s47, s42, 4
    s_sub_u32 s46, s46, s47
    s_add_u32 s46, s46, 1
    s_cmp_eq_u32 s41, 0
    s_cselect_b32 s47, 2, 4
    s_mul_i32 s48, s46, s47
    s_add_u32 s47, s47, {2 if opt('vdef', 1) else 0}
    {'' if opt('vdef', 1) else 's_lshl_b32 s47, s47, 1' + chr(10) + 's_add_u32 s47, s47, 2'}
    s_mul_i32 s46, s46, s47
    s_lshl_b32 s47, s41, 5
    s_add_u32 s47, s47, s40
    s_lshl_b32 s47, s47, 7
    s_add_u32 s47, s47, {4*M_S1}""")
    pf = self.p3_prefetch() if self.upto >= 3 else []
    a(f"""v_and_b32 v2, 31, v1
    v_lshrrev_b32 v3, 5, v1
    v_lshlrev_b32 v4, 4, v1""")
    a(f"""s_lshl_b32 s50, s41, 2
    s_add_u32 s50, s50, s{sWAVE}
    s_cmp_lt_u32 s50, 4
    s_mov_b32 s51, 0x3f803f80
    s_cselect_b32 s50, 0x3f80ff7f, s51
    v_mov_b32 v8, s50
    v_mov_b32 v9, 0x3f803f80
    v_mov_b32 v10, 0x3f803f80
    v_mov_b32 v11, 0x3f803f80
    s_lshl_b32 s49, s{sWAVE}, 10
    s_add_u32 s50, s49, {KV0+6*OCTP}
    v_add_u32 v5, s50, v4
    ds_write_b128 v5, v[8:11]
    s_cmp_eq_u32 s41, 0
    s_cselect_b32 s50, 0xbf803f80, 0
    v_mul_lo_u32 v15, s50, v3""")
    a("v_lshlrev_b32 v5, 2, v3\nv_sub_u32 v5, v2, v5")
    for r in range(16):
        a(f"v_cmp_le_i32 s[{64+2*r}:{65+2*r}], {8*(r>>2)+(r&3)}, v5")
    PM = 52
    a("v_mov_b32 v6, 0xffff\nv_mov_b32 v7, 0xffff0000")
    for i in range(8):
        a(f"v_cndmask_b32 v{PM+i}, 0, v6, s[{64+4*i}:{65+4*i}]\nv_cndmask_b32 v8, 0, v7, s[{66+4*i}:{67+4*i}]\nv_or_b32 v{PM+i}, v{PM+i}, v8")
    a(f"""s_lshl_b32 s50, s{sWAVE}, 9
    s_add_u32 s50, s50, {KV0}
    v_lshl_add_u32 v13, v2, 4, s50
    v_mul_u32_u24 v12, {OCTP}, v3
    v_lshl_add_u32 v5, v12, 2, v13
    v_add_u32 v12, v12, v13
    v_add_u32 v13, {2*OCTP}, v5""")
    a(f"""v_bfe_u32 v5, v1, 2, 2
    v_lshl_add_u32 v5, v3, 2, v5
    v_lshl_add_u32 v14, v5, 4, s50
    v_and_b32 v5, 1, v1
    v_bfe_u32 v6, v1, 1, 1
    v_mov_b32 v7, s43
    v_cmp_eq_u32 vcc, 1, v6
    v_cndmask_b32 v7, v7, v5, vcc
    v_add_u32 v8, 2, v6
    v_and_b32 v9, 16, v1
    v_cmp_eq_u32 vcc, 0, v9
    v_cndmask_b32 v8, v8, v5, vcc
    v_cndmask_b32 v7, v7, v6, vcc
    v_mul_u32_u24 v8, {OCTP}, v8
    v_lshl_add_u32 v8, v7, 3, v8
    v_add_u32 v14, v14, v8
    v_add_u32 v14, {3*OCTP}, v14""")
    a(f"""s_lshl_b32 s50, s41, 2
    s_add_u32 s50, s50, s{sWAVE}
    s_cmp_lt_u32 s50, 4
    s_cselect_b32 s51, 0, 4
    s_sub_u32 s50, s50, s51
    s_lshl_b32 s50, s50, 10
    s_add_u32 s50, s50, {QKV + 80*32768}
    s_lshl_b32 s51, s44, 15
    s_add_u32 s51, s51, s50
    s_lshl_b32 s52, s45, 15
    s_add_u32 s52, s52, s50
    s_add_u32 s49, s49, {KV0}""")
    a(f"""s_lshl_b32 s53, s41, 3
    s_add_u32 s53, s53, s{sWAVE}
    s_lshl_b32 s54, s53, 9
    s_add_u32 s54, s54, {QKV}
    s_lshl_b32 s55, s44, 15
    s_add_u32 s55, s55, s54
    s_lshl_b32 s56, s45, 15
    s_add_u32 s56, s56, s54
    v_lshlrev_b32 v5, 15, v3
    v_lshl_add_u32 v5, v2, 4, v5
    v_lshlrev_b32 v6, 4, v2
    v_mov_b32 v8, {OOB}
    v_add_u32 v9, s43, v3
    v_cmp_eq_u32 vcc, 0, v9
    v_cndmask_b32 v7, v8, v6, vcc
    v_cmp_gt_u32 vcc, s43, v3
    v_cndmask_b32 v6, v8, v6, vcc""")
    self.stamp('p2pre')
    a("s_cmp_eq_u32 s0, 1\ns_cbranch_scc1 L_p2_poll")
    self.p1_vstores()
    a("L_p1_fin:")
    self.finish(M_S1, 'p1st')
    a("s_cmp_eq_u32 s0, 1\ns_cbranch_scc1 L_p2_pre\nL_p2_poll:")
    self.poll1(5, "s47", "s46", 8, 9)
    self.stamp('p2poll')
    Q0, Q1 = 16, 20
    if 'p2twice' in sys.argv:
        a("s_mov_b32 s61, 2\nL_p2_again:\nv_mov_b32 v240, v5\nv_mov_b32 v241, v6\ns_mov_b32 s40, s55\ns_mov_b32 s42, s56")
        if 'nopf' in sys.argv: pf = []
    def dma(o, goff, add, tag):
        a(f"s_add_u32 m0, s49, {o*OCTP}")
        if add: a(f"s_add_u32 s57, s{goff}, {add}")
        self.vmem(f"buffer_load_dwordx4 v4, {WS}, s{57 if add else goff} offen sc1 lds", tag)
    dma(0, 51, 0, 'K'); dma(1, 51, 32768, 'K'); dma(2, 52, 0, 'K')
    self.vmem(f"buffer_load_dwordx4 {vr(Q0)}, v5, {WS}, s55 offen sc1", 'K')
    self.vmem(f"buffer_load_dwordx2 {vr(Q1,2)}, v7, {WS}, s56 offen sc1", 'K')
    self.vmem(f"buffer_load_dwordx2 {vr(Q1+2,2)}, v6, {WS}, s56 offen offset:8 sc1", 'K')
    if opt('vdef', 1):
        a(f"s_cmp_lg_u32 s{sWAVE}, 1\ns_cbranch_scc1 L_p2_vok\ns_add_u32 s47, s47, {4*(M_S1V-M_S1)}")
        self.pollw("s47", "s48", 8, 9)
        a("L_p2_vok:")
    self.wait_vm('K')
    a(f"v_or_b32 v{Q1}, v{Q1}, v15\ns_waitcnt lgkmcnt(0)")
    self.bar()
    self.stamp('p2k')
    SB = 64; OA = 208; KF = 24
    Sr = lambda t: SB + 16 * t
    order = [1, 8, 0, 2, 3, 4, 5, 6, 7]
    Pr = lambda t: Sr(8) + 8 if t == 8 else Sr(t)
    Vr = lambda t: Sr(8) if t == 8 else Sr(t) + 8
    M0, M1 = 60, 61
    VrF = {1: 226, 8: Sr(1)+8, 0: Sr(8), 2: Sr(0)+8, 3: Sr(2)+8, 4: Sr(3)+8, 5: Sr(4)+8, 6: Sr(5)+8, 7: Sr(6)+8}.__getitem__
    def mk(lg, first_pv, Vr=Vr):
        def kread(n):
            t = order[n]; kb = KF + 8 * (n % 3)
            lg.op(f"ds_read_b128 {vr(kb)}, v12 offset:{512*t}", ('K', n, 0))
            lg.op(f"ds_read_b128 {vr(kb+4)}, v13 offset:{512*t}", ('K', n, 1))
        def qk(n, h):
            t = order[n]; kb = KF + 8 * (n % 3)
            lg.need(('K', n, h))
            if h == 0: a(f"v_mfma_f32_32x32x16_bf16 {vr(Sr(t),16)}, {vr(kb)}, {vr(Q0)}, 0")
            else: a(f"v_mfma_f32_32x32x16_bf16 {vr(Sr(t),16)}, {vr(kb+4)}, {vr(Q1)}, {vr(Sr(t),16)}")
        def vread(t):
            for sp in range(2):
                for tt in range(2):
                    lg.op(f"ds_read_b64_tr_b16 {vr(Vr(t)+4*sp+2*tt,2)}, v14 offset:{(32*t+16*sp+8*tt)*16}", ('V', t, sp))
        def pv(t, sp):
            lg.need(('V', t, sp))
            c = "0" if (t == first_pv and sp == 0) else vr(OA, 16)
            a(f"v_mfma_f32_32x32x16_bf16 {vr(OA,16)}, {vr(Vr(t)+4*sp)}, {vr(Pr(t)+4*sp)}, {c}")
        def merge():
            for r in range(16):
                a(f"v_cndmask_b32 v{Sr(8)+r}, v{Sr(0)+r}, v{Sr(8)+r}, s[{64+2*r}:{65+2*r}]")
        def cvt(t):
            a(".p2align 3")
            for i in range(8): a(f"v_cvt_pk_bf16_f32 v{Sr(t)+i}, v{Sr(t)+2*i}, v{Sr(t)+2*i+1}")
            if t == 8:
                for i in range(8):
                    a(f"v_and_b32_e64 v{Sr(8)+8+i}, v{Sr(8)+i}, v{PM+i}\nv_bfi_b32 v{Sr(0)+i}, v{PM+i}, 0, v{Sr(8)+i}")
        return kread, qk, vread, pv, merge, cvt
    lg = LG(a)
    kread, qk, vread, pv, merge, cvt = mk(lg, 1, VrF)
    kread(0); kread(1); kread(2)
    dma(3, 51, 80*32768, 'V'); dma(4, 51, 81*32768, 'V'); dma(5, 52, 80*32768, 'V')
    qk(0, 0); qk(0, 1); kread(3); qk(1, 0)
    def kr(n, h):
        t = order[n]; kb = KF + 8 * (n % 3)
        lg.op(f"ds_read_b128 {vr(kb+4*h)}, v{12+h} offset:{512*t}", ('K', n, h))
    def vr1(t, q):
        lg.op(f"ds_read_b64_tr_b16 {vr(VrF(t)+2*q,2)}, v14 offset:{(32*t+8*q)*16}", ('V', t, q >> 1))
    qs = []
    for n in range(1, 9):
        if n > 1: qs += [('w', lambda n=n: lg.need(('K', n, 1))), ('m', lambda n=n: qk(n, 0))]
        qs += [('m', lambda n=n: qk(n, 1), n)]
        if n + 3 < 9: qs += [('l', lambda n=n: kr(n + 3, 0)), ('l', lambda n=n: kr(n + 3, 1))]
    ls = []
    ps = []
    qdone = {order[0]}
    since = [0]
    slot = [0]; vat = {}
    def mf(urgent_q):
        if since[0] < opt('mgap', 32): return
        pok = ps and slot[0] - vat.get(ps[0][2], 1 << 30) >= 5
        if qs and qs[0][0] == 'm' and (urgent_q or not pok):
            it = qs.pop(0); it[1](); since[0] = 0
            if len(it) > 2: qdone.add(order[it[2]])
        elif pok:
            ps.pop(0)[1](); since[0] = 0
    def side():
        slot[0] += 1
        if qs and qs[0][0] != 'm': qs.pop(0)[1]()
        elif ls:
            it = ls.pop(0); it[1](); vat[it[2]] = slot[0] if it[3] == 3 else 1 << 30
        elif ps and ps[0][3] == 0 and slot[0] - vat.get(ps[0][2], 1 << 30) >= 4 and lg.pos[('V', ps[0][2], 1)] > lg.done:
            lg.need(('V', ps[0][2], 1))
        elif pf: pf.pop(0)()
    vok = False
    seq = (1, 8, 2, 3, 4, 5, 6, 7)
    vq = [1, 8, 0, 2, 3, 4, 5, 6, 7]
    vfree = {1}
    after = {1: [8], 8: [0, 2], 2: [3], 3: [4], 4: [5], 5: [6], 6: [7], 7: []}
    for idx, t in enumerate(seq):
        need = {8, 0} if t == 8 else {t}
        assert need <= qdone, (t, qdone)
        if t == 8: merge()
        nxt = set() if idx + 1 >= len(seq) else ({8, 0} if seq[idx + 1] == 8 else {seq[idx + 1]})
        for i in range(16):
            a(f"v_exp_f32 v{Sr(t)+i}, v{Sr(t)+i}")
            since[0] += 8
            mf(not nxt <= qdone)
            side()
        if t == 7:
            for it in ps: it[1]()
            ps = []
            break
        cvt(t)
        since[0] += 32
        vfree |= set(after[t])
        for d in ([8, 0] if t == 8 else [t]):
            ps += [('m', lambda d=d: pv(d, 0), d, 0), ('m', lambda d=d: pv(d, 1), d, 1)]
        if t == opt('vbt', 2):
            self.wait_vm('V')
            self.bar()
            vok = True
        while vok and vq and vq[0] in vfree:
            d = vq.pop(0)
            ls += [('l', lambda d=d, q=q: vr1(d, q), d, q) for q in range(4)]
    assert not qs and not ls and not vq and not pf
    a(".p2align 3")
    for sp in range(2):
        for i in range(4*sp, 4*sp+4): a(f"v_cvt_pk_bf16_f32 v{Sr(7)+i}, v{Sr(7)+2*i}, v{Sr(7)+2*i+1}")
        if sp == 1: pv(7, 0)
    pv(7, 1)
    pvq = []
    while pf: pf.pop(0)()
    a(f"""v_bfe_u32 v5, v1, 4, 1
    v_mul_u32_u24 v5, 20480, v5
    v_and_b32 v7, 15, v1
    v_lshl_add_u32 v6, v7, 3, v5
    v_lshl_add_u32 v5, v7, 4, v5
    v_mov_b32 v8, {OOB}
    v_cmp_eq_u32 vcc, 0, v3
    v_cndmask_b32 v6, v8, v6, vcc
    v_lshl_add_u32 v5, v3, 8, v5
    s_mul_i32 s54, s53, 40960
    s_add_u32 s54, s54, {OO}
    s_lshl_b32 s55, s40, 9
    s_add_u32 s55, s55, s54
    s_lshl_b32 s56, s40, 7
    s_add_u32 s56, s56, s54
    s_add_u32 s56, s56, 16384
    s_mov_b32 s57, {(127+64-(127-64))<<23}""")
    while pvq: pvq.pop(0)()
    a(f"""v_subrev_u32 v8, {(127-64)<<23}, v{OA+12}
    v_cmp_lt_u32 vcc, s57, v8
    s_cbranch_vccnz L_p2_slow
    L_p2_norm:
    v_rcp_f32 v8, v{OA+12}""")
    def slow():
        a("L_p2_slow:")
        a.settle()
        lg = LG(a)
        kread, qk, vread, pv, merge, cvt = mk(lg, 8)
        first = [True]
        def vmax(t):
            b = Sr(t)
            for i in range(0, 16, 4):
                if first[0]:
                    a(f"v_max_f32 v{M0}, v{b}, v{b+1}\nv_max_f32 v{M1}, v{b+2}, v{b+3}")
                    first[0] = False
                else:
                    a(f"v_max3_f32 v{M0}, v{M0}, v{b+i}, v{b+i+1}\nv_max3_f32 v{M1}, v{M1}, v{b+i+2}, v{b+i+3}")
        for n in range(9):
            kread(n); qk(n, 0); qk(n, 1)
        merge()
        for t in range(1, 9): vmax(t)
        a(f"""v_max_f32 v{M0}, v{M0}, v{M1}
        v_mov_b32 v{M1}, v{M0}
        v_permlane32_swap_b32 v{M0}, v{M1}
        v_max_f32 v{M0}, v{M0}, v{M1}""")
        for t in (8, 1, 2, 3, 4, 5, 6, 7):
            for i in range(16): a(f"v_sub_f32 v{Sr(t)+i}, v{Sr(t)+i}, v{M0}")
            for i in range(16): a(f"v_exp_f32 v{Sr(t)+i}, v{Sr(t)+i}")
            cvt(t)
            for d in ([8, 0] if t == 8 else [t]):
                vread(d); pv(d, 0); pv(d, 1)
        a.settle()
        a("s_branch L_p2_norm")
    self.tail.append(slow)
    for i in range(12): a(f"v_mul_f32 v{OA+i}, v{OA+i}, v8")
    for i in range(6): a(f"v_cvt_pk_bf16_f32 v{16+i}, v{OA+2*i}, v{OA+2*i+1}")
    a(f"buffer_store_dwordx4 v[16:19], v5, {WS}, s55 offen sc1")
    a(f"buffer_store_dwordx2 v[20:21], v6, {WS}, s56 offen sc1")
    self.stamp('p2cmp')
    self.stamp('p2cmp4', 4)
    if 'p2twice' in sys.argv:
        a("s_waitcnt vmcnt(0)\ns_barrier\nv_mov_b32 v5, v240\nv_mov_b32 v6, v241\ns_mov_b32 s55, s40\ns_mov_b32 s56, s42\ns_sub_u32 s59, s59, 4\ns_sub_u32 s61, s61, 1\ns_cmp_lg_u32 s61, 0\ns_cbranch_scc1 L_p2_again")
    sig96(self, 41, 4)
    if self.upto == 2: self.finish(M_S2, 'p2st')

def sig96(self, srb, wave):
    self.a(f"""s_lshl_b32 s52, s{srb}, 3
    s_mul_i32 s51, s52, 21846
    s_lshr_b32 s51, s51, 16
    s_add_u32 s52, s52, 7
    s_mul_i32 s52, s52, 21846
    s_lshr_b32 s52, s52, 16
    s_sub_u32 s52, s52, s51
    s_add_u32 s52, s52, 1
    s_mul_i32 s52, s52, 10
    s_mul_i32 s51, s51, 10
    v_add_u32 v247, s51, v1
    v_cmp_gt_u32 vcc, s52, v1""")
    self.sigprep(wave)

def p3_prefetch(self):
    a = self.a
    p5_coords(a, 58, 59, 60)
    self.w128_dma_voff(1280, 224, 5, 6)
    a(f"""s_and_b32 s60, s{sWAVE}, 1
    s_lshl_b32 s60, s60, 6
    v_xor_b32 v224, s60, v224
    s_lshl_b32 s59, s59, 7
    s_lshr_b32 s60, s{sWAVE}, 2
    s_mul_i32 s60, s60, 5
    s_add_u32 s60, s60, s{sHW}
    s_lshr_b32 s61, s{sHW}, 1
    s_add_u32 s60, s60, s61
    s_mul_i32 s60, s60, {8*1280}
    s_add_u32 s60, s60, s59
    s_mul_i32 s61, s{sWAVE}, {40*1280}
    s_add_u32 s61, s61, s59
    s_lshl_b32 s59, s{sWAVE}, 10
    s_cmp_ge_u32 s2, 220
    s_cselect_b32 s60, {OOB//2}, s60
    s_cselect_b32 s61, {OOB//2}, s61""")
    out = []
    for n in range(10):
        g = f"s_add_u32 s98, s60, {n*80*1280}" if n < 8 else f"s_add_u32 s98, s61, {(320*(n-8)+16)*1280}"
        out += [lambda n=n: a(f"s_add_u32 m0, s59, {8192*n}"), lambda g=g: a(g),
                lambda: self.vmem(f"buffer_load_dwordx4 v224, {srd(SRD_WO)}, s98 offen lds", 'wo')]
    return out

P3_A, P3_X, P3_ST = 81920, 143360, 155648
P4_R, P4_SLOT = 3, 24576
P4_TAB = 3 * 24576
RA, LA96 = 5, 3
P5_RW, P5_PRE = 20, int(dict(a.split('=') for a in __import__('sys').argv[1:] if '=' in a).get('w5p', 8))
P5_S0 = 10
def p5_wslot(st): return 8192 * ((st + P5_S0) % P5_RW)

def p4_coords(a):
    a("""s_and_b32 s40, s2, 3
    s_mul_i32 s40, s40, 27
    s_lshr_b32 s41, s2, 3
    s_add_u32 s40, s40, s41
    s_lshr_b32 s41, s40, 2
    s_and_b32 s40, s40, 3
    s_and_b32 s42, s2, 4
    s_add_u32 s40, s40, s42""")

def p5_coords(a, r, c, t):
    if opt('map5', 0):
        a(f"""s_and_b32 s{r}, s2, 7
        s_mul_i32 s{r}, s{r}, 27
        s_lshr_b32 s{c}, s2, 3
        s_add_u32 s{t}, s{r}, s{c}
        s_cmp_ge_u32 s2, 216
        s_cselect_b32 s{t}, s2, s{t}
        s_mul_i32 s{r}, s{t}, 6554
        s_lshr_b32 s{r}, s{r}, 16
        s_mul_i32 s{c}, s{r}, 10
        s_sub_u32 s{c}, s{t}, s{c}
        s_mov_b32 s{t+1}, s{c}""")
        return
    a(f"""s_bfe_u32 s{r}, s2, 0x20001
    s_add_u32 s{t+1}, s{r}, 108
    s_mul_i32 s{r}, s{r}, 27
    s_lshr_b32 s{c}, s2, 3
    s_add_u32 s{t}, s{r}, s{c}
    s_cmp_ge_u32 s2, 216
    s_cselect_b32 s{t}, s{t+1}, s{t}
    s_mul_i32 s{r}, s{t}, 13108
    s_lshr_b32 s{r}, s{r}, 16
    s_mul_i32 s{c}, s{r}, 5
    s_sub_u32 s{t+1}, s{t}, s{c}
    s_and_b32 s{c}, s2, 1
    s_mul_i32 s{c}, s{c}, 5
    s_add_u32 s{c}, s{c}, s{t+1}""")

def tail345(self):
    a = self.a
    self.tail.append(lambda: idle_code(self))
    a(f"s_cmp_ge_u32 s{sWAVE}, 4\ns_cbranch_scc1 L_h345")
    self.nbar = 0
    marks_c = []
    p3_c(self); marks_c.append(self.nbar)
    if self.upto >= 4: p4_c(self); marks_c.append(self.nbar)
    if self.upto >= 5: p5_c(self); marks_c.append(self.nbar)
    a("s_endpgm")
    a("L_h345:")
    self.nbar = 0
    marks_h = []
    p3_h(self); marks_h.append(self.nbar)
    if self.upto >= 4: p4_h(self); marks_h.append(self.nbar)
    if self.upto >= 5: p5_h(self); marks_h.append(self.nbar)
    assert marks_c == marks_h, (marks_c, marks_h)

G_FR, G_ACC = 16, 96
def g96_loop(self, nst, aread, wread, hook=None):
    a = self.a
    FR, ACC = G_FR, G_ACC
    lg = LG(a)
    def reads(st):
        fb = FR + 40 * (st & 1)
        out = []
        for j in range(2):
            W = lambda nu: [(wread(st, j, nu, t, fb + 20*j + 12 + 4*nu + 2*t), ('W', st, j, nu)) for t in range(2)]
            X = lambda i: [(r, ('X', st, j, i)) for r in aread(st, j, i, fb + 20*j + 4*i)]
            out += W(0) + X(0) + W(1) + X(1) + X(2)
        return out
    for r in reads(0): lg.op(*r)
    for st in range(nst):
        nxt = []
        fb = FR + 40 * (st & 1)
        k = 0; n = 0
        for j in range(2):
            for mu in range(3):
                for nu in range(2):
                    if n == 1 and st + 1 < nst:
                        self.bar()
                        nxt = reads(st + 1)
                    ac = ACC + 8 * mu + 4 * nu
                    c = "0" if (st == 0 and j == 0) else vr(ac)
                    if st > 0 and mu == 0 and nu == 0: lg.need(('X', st, j, 2))
                    lg.need(('W', st, j, nu), ('X', st, j, mu))
                    a(f"v_mfma_f32_16x16x32_bf16 {vr(ac)}, {vr(fb+20*j+12+4*nu)}, {vr(fb+20*j+4*mu)}, {c}")
                    left = len(nxt) - k
                    for _ in range(-(-left // (12 - n)) if nxt else 0):
                        lg.op(*nxt[k]); k += 1
                    n += 1
        assert k == len(nxt)
        if hook: hook(st, lg)
    return lg

def p3_c(self):
    a = self.a
    self.vm = VM()
    ACC = G_ACC
    p5_coords(a, 40, 41, 42)
    a(f"""s_and_b32 s48, s{sWAVE}, 1
    s_lshr_b32 s49, s{sWAVE}, 1
    v_and_b32 v2, 15, v1
    v_lshrrev_b32 v3, 4, v1""")
    self.w128_read_addr(14, 4)
    a(f"""s_lshl_b32 s50, s49, 6
    v_xor_b32 v14, s50, v14
    v_xor_b32 v11, 32, v14
    v_add_u32 v12, 40960, v14
    v_add_u32 v13, 40960, v11
    s_mul_i32 s50, s48, 6144
    s_add_u32 s50, s50, {P3_A}
    v_lshl_add_u32 v8, v1, 4, s50
    v_lshlrev_b32 v9, 8, v3
    v_lshl_add_u32 v9, v2, 3, v9
    v_add_u32 v9, s50, v9""")
    a(f"""v_lshrrev_b32 v7, 1, v3
    s_lshl_b32 s50, s49, 2
    v_add_u32 v4, s50, v7
    v_and_b32 v5, 7, v2
    v_xor_b32 v4, v4, v5
    v_lshlrev_b32 v4, 4, v4
    v_lshl_add_u32 v4, v2, 7, v4
    v_and_b32 v5, 1, v3
    v_lshl_add_u32 v4, v5, 3, v4
    s_mul_i32 s50, s48, 6144
    s_add_u32 s50, s50, {P3_X}
    v_add_u32 v4, s50, v4
    v_xor_b32 v10, 32, v4""")
    a(f"""v_lshlrev_b32 v6, 9, v5
    v_lshl_add_u32 v6, v7, 8, v6
    v_lshl_add_u32 v6, v2, 4, v6
    s_lshl_b32 s50, s40, 1
    s_add_u32 s50, s50, s48
    s_mul_i32 s50, s50, {3*20480}
    s_lshl_b32 s53, s41, 1
    s_add_u32 s53, s53, s49
    s_lshl_b32 s53, s53, 10
    s_add_u32 s53, s53, s50
    s_add_u32 s53, s53, {HH}""")
    a(f"""v_lshlrev_b32 v15, 3, v2
    v_lshl_add_u32 v15, v5, 2, v15
    s_mul_i32 s50, s{sWAVE}, 384
    s_add_u32 s50, s50, {P3_ST}
    v_add_u32 v15, s50, v15""")
    self.finish(M_S2, 'p2st')
    a("s_cmp_ge_u32 s2, 220\ns_cbranch_scc1 L_idle")
    a("s_mov_b64 s[62:63], 0")
    self.bar()
    self.stamp('p3poll')
    self.bar()
    self.stamp('p3b0')
    XR = 120
    def aread(st, j, i, dst):
        off = (st % RA) * 12288 + 2048 * i + 1024 * j
        if st < 8: return [f"ds_read_b128 {vr(dst)}, v8 offset:{off}"]
        return [f"ds_read_b64 {vr(dst+2*e,2)}, v9 offset:{off+128*e}" for e in range(2)]
    def wread(st, j, nu, t, dst):
        b = (14, 11, 12, 13)[2 * (st >= 5) + nu]
        return f"ds_read_b64_tr_b16 {vr(dst,2)}, v{b} offset:{8192*(st%5)+4096*j+512*t}"
    def hook(st, lg):
        if st == 4:
            for mu in range(3):
                for nu in range(2):
                    lg.op(f"ds_read_b64 {vr(XR+4*mu+2*nu,2)}, v{10 if nu else 4} offset:{2048*mu}", 'xr')
        if st == 6:
            lg.need('xr')
            for i in range(12):
                a(f"v_lshlrev_b32 v{136+2*i}, 16, v{XR+i}\nv_and_b32 v{137+2*i}, 0xffff0000, v{XR+i}")
    g96_loop(self, 10, aread, wread, hook)
    self.stamp('p3loop')
    a(".p2align 3")
    for i in range(12): a(f"v_pk_add_f32 {vr(136+2*i,2)}, {vr(136+2*i,2)}, {vr(ACC+2*i,2)}")
    for i in range(12): a(f"v_cvt_pk_bf16_f32 v{160+i}, v{136+2*i}, v{137+2*i}")
    for mu in range(3):
        pk = 160 + 4 * mu
        a(f"v_permlane16_swap_b32 v{pk}, v{pk+2}\nv_permlane16_swap_b32 v{pk+1}, v{pk+3}")
        a(f"buffer_store_dwordx4 {vr(pk)}, v6, {WS}, s53 offen sc1")
        if mu < 2: a("s_add_u32 s53, s53, 20480")
    self.stamp('p3epi')
    self.finish(M_S3, 'p3st')
    for mu in range(3):
        b = 136 + 8 * mu
        a(f"v_pk_add_f32 {vr(176+4*mu,2)}, {vr(b,2)}, {vr(b+2,2)}\nv_pk_mul_f32 {vr(178+4*mu,2)}, {vr(b,2)}, {vr(b,2)}")
    for i in range(1, 4):
        for mu in range(3):
            b = 136 + 8 * mu + 2 * i
            if i > 1: a(f"v_pk_add_f32 {vr(176+4*mu,2)}, {vr(176+4*mu,2)}, {vr(b,2)}")
            a(f"v_pk_fma_f32 {vr(178+4*mu,2)}, {vr(b,2)}, {vr(b,2)}, {vr(178+4*mu,2)}")
    for mu in range(3): a(f"v_add_f32 v{176+4*mu}, v{176+4*mu}, v{177+4*mu}\nv_add_f32 v{177+4*mu}, v{178+4*mu}, v{179+4*mu}")
    for mu in range(3): a(f"v_permlane16_swap_b32 v{176+4*mu}, v{177+4*mu}")
    for mu in range(3): a(f"v_add_f32 v{176+4*mu}, v{176+4*mu}, v{177+4*mu}")
    for mu in range(3): a(f"v_mov_b32 v{177+4*mu}, v{176+4*mu}")
    for mu in range(3): a(f"v_permlane32_swap_b32 v{176+4*mu}, v{177+4*mu}")
    for mu in range(3): a(f"v_add_f32 v{176+4*mu}, v{176+4*mu}, v{177+4*mu}")
    for mu in range(3): a(f"ds_write_b32 v15, v{176+4*mu} offset:{128*mu}")
    if self.upto >= 4: p4_c_pre(self)
    a("s_waitcnt lgkmcnt(0)")
    if self.upto == 3: self.bar()

def g96_apieces(a, pitch, vb):
    a(f"s_mul_i32 s76, s{sHW}, 3")
    for i in range(3):
        a(f"""s_add_u32 s77, s76, {i}
        s_lshr_b32 s79, s77, 1
        s_mul_i32 s78, s79, {pitch}
        s_and_b32 s77, s77, 1
        s_lshl_b32 s77, s77, 10
        s_add_u32 s78, s78, s77
        s_add_u32 s78, s78, {4096 - 1024*i}
        s_mul_i32 s77, s64, 6
        s_add_u32 s77, s77, s79
        s_cmp_ge_u32 s77, 128
        s_cselect_b32 s78, {OOB//2}, s78
        v_lshl_add_u32 v{vb+i}, v1, 4, s78""")

def p3_h(self):
    a = self.a
    self.vm = VM()
    p5_h_pre(self)
    g96_apieces(a, 20480, 105)
    a(f"""v_lshrrev_b32 v10, 3, v1
    v_and_b32 v11, 7, v1
    v_xor_b32 v11, v11, v10
    v_mul_u32_u24 v108, 1280, v10
    v_lshl_add_u32 v108, v11, 4, v108
    s_lshl_b32 s44, s64, 2
    s_add_u32 s44, s44, s{sHW}
    s_mul_i32 s44, s44, {24*1280}
    s_lshl_b32 s45, s65, 7
    s_add_u32 s44, s44, s45
    s_mul_i32 s45, s64, {6*20480}
    s_add_u32 s45, s45, {OO - 4096}
    s_sub_u32 s46, s72, {4*(M_S4-M_S2)}
    s_cmp_eq_u32 s73, 27
    s_cselect_b32 s47, 32, 64""")
    self.finish(M_S2, 'p2st_h')
    a("s_cmp_ge_u32 s2, 220\ns_cbranch_scc1 L_idle")
    L = a.newlabel('Lx')
    for i in range(3):
        a(f"s_add_u32 m0, s70, {P3_X + 1024*i}")
        self.vmem(f"buffer_load_dwordx4 v108, {srd(SRD_X)}, s44 offen lds", 'x')
        if i < 2: a(f"s_add_u32 s44, s44, {8*1280}")
    a(f"""s_mul_i32 s50, s64, 3
    s_lshr_b32 s50, s50, 3
    s_mul_i32 s50, s50, 27
    v_add_u32 v247, s50, v1
    v_cmp_gt_u32 vcc, s73, v1
    s_lshl_b32 s60, 0x11111111, s{sHW}
    s_mov_b32 s61, s60
    s_and_b64 s[60:61], s[60:61], vcc""")
    self.sigprep(4)
    self.poll1(5, "s46", "s47", 8, 9)
    def adma(st):
        a(f"s_add_u32 m0, s70, {P3_A + (st % RA)*12288}")
        for i in range(3):
            self.vmem(f"buffer_load_dwordx4 v{105+i}, {WS}, s45 offen offset:{1024*i} sc1 lds", ('p3', st))
        if st < 9: a("s_add_u32 s45, s45, 2048")
    for st in range(4): adma(st)
    a(f"""s_lshl_b32 s50, s{sHW}, 8
    v_lshl_add_u32 v12, v1, 2, s50
    v_add_u32 v13, {P3_ST}, v12
    s_lshl_b32 s54, s65, 15
    s_mul_i32 s55, s64, 768
    s_add_u32 s54, s54, s55
    s_add_u32 s54, s54, {ST2}
    s_cmp_eq_u32 s{sHW}, 3
    s_cselect_b32 s54, {OOB//2}, s54""")
    for st in range(10):
        self.wait_vm(('p3', st))
        self.bar()
        if st >= 1 and st + LA96 < 10: adma(st + LA96)
    if self.upto >= 4: p4_h_pre(self)
    self.finish(M_S3, 'p3st_h')
    if self.upto == 3:
        self.bar(); st2_store(self)

def st2_store(self):
    self.a("""ds_read_b32 v14, v13
    ds_read_b32 v15, v13 offset:768
    s_waitcnt lgkmcnt(0)
    v_add_f32 v14, v14, v15""")
    self.vmem(f"buffer_store_dword v14, v12, {WS}, s54 offen sc1", 'st2st')

def aux_signal(self):
    self.a(f"""v_mov_b32 v246, 1
    s_mov_b64 exec, s[60:61]""")
    self.vmem(f"buffer_atomic_add v246, v247, {WS}, 0 offen offset:{4*M_CS4} sc1", 'aux')
    self.a("s_mov_b64 exec, -1")

def p4_c_pre(self):
    a = self.a
    SLOT, T = P4_SLOT, P4_TAB
    p4_coords(a)
    XA, WA = 8, 10
    a(f"""s_lshl_b32 s50, s48, 13
    v_lshl_add_u32 v{XA}, v1, 4, s50
    v_add_u32 v{XA+1}, {2*SLOT}, v{XA}
    v_add_u32 v{WA}, 16384, v14
    v_xor_b32 v{WA+1}, 32, v{WA}
    v_add_u32 v{WA+2}, {2*SLOT}, v{WA}
    v_add_u32 v{WA+3}, {2*SLOT}, v{WA+1}
    s_lshl_b32 s50, s48, 11
    s_add_u32 s50, s50, {T}
    v_lshl_add_u32 v4, v2, 4, s50
    s_lshl_b32 s50, s49, 7
    s_add_u32 s50, s50, {T+4096}
    v_lshl_add_u32 v5, v3, 4, s50""")
    a(f"""v_and_b32 v6, 1, v3
    v_lshlrev_b32 v6, 9, v6
    v_lshrrev_b32 v7, 1, v3
    v_lshl_add_u32 v6, v7, 8, v6
    v_lshl_add_u32 v6, v2, 4, v6
    s_lshl_b32 s50, s40, 1
    s_add_u32 s50, s50, s48
    s_mul_i32 s50, s50, {8*216*256}
    s_lshl_b32 s51, s41, 1
    s_add_u32 s51, s51, s49
    s_lshl_b32 s51, s51, 10
    s_add_u32 s50, s50, s51
    s_add_u32 s50, s50, {HP}""")

def p4_c(self):
    a = self.a
    R, SLOT = P4_R, P4_SLOT
    a("s_cmp_ge_u32 s2, 216\ns_cbranch_scc1 L_p4_skipc")
    XA, WA = 8, 10
    FR = 16; ACC = 112
    sig96(self, 40, 0)
    lg = LG(a)
    def reads(g):
        slot = g % R
        win, off = 0, slot * SLOT
        fb = FR + 48 * (g & 1)
        W = lambda nu: [(f"ds_read_b64_tr_b16 {vr(fb+32+4*nu+2*t,2)}, v{WA+2*win+(nu&1)} offset:{off+4096*(nu>>1)+512*t}", ('W', g, nu)) for t in range(2)]
        X = lambda i: [(f"ds_read_b128 {vr(fb+4*i)}, v{XA+win} offset:{off+1024*i}", ('X', g, i))]
        out = W(0) + X(0) + W(1) + W(2) + W(3)
        for i in range(1, 8): out += X(i)
        return out
    self.bar()
    self.bar()
    self.stamp('p4b0')
    for r in reads(0): lg.op(*r)
    ST, CSR, PK = 16, 48, 64
    for g in range(20):
        fb = FR + 48 * (g & 1)
        nxt = []
        k = 0; n = 0
        for mu in range(8):
            for nu in range(4):
                if n == 8:
                    self.bar()
                    if g + 1 < 20: nxt = reads(g + 1)
                    else:
                        nxt = [(f"ds_read_b128 {vr(CSR+4*q)}, v5 offset:{256*(q>>1)+64*(q&1)}", None) for q in range(4)]
                        nxt += [(f"ds_read_b128 {vr(ST+4*q)}, v4 offset:{256*q}", None) for q in range(8)]
                ac = ACC + 16 * mu + 4 * nu
                c = "0" if g == 0 else vr(ac)
                if g > 0 and n == 0: lg.need(('X', g, 1))
                if n == (4 if g else 7): lg.need(('X', g, 7))
                lg.need(('W', g, nu), ('X', g, mu))
                a(f"v_mfma_f32_16x16x32_bf16 {vr(ac)}, {vr(fb+32+4*nu)}, {vr(fb+4*mu)}, {c}")
                if k < len(nxt) and n % 4 != 3: lg.op(*nxt[k]); k += 1
                n += 1
        assert k == len(nxt)
    lg.drain()
    self.stamp('p4loop')
    a(".p2align 3")
    def A(mu):
        st = ST + 4 * mu; b = ACC + 16 * mu
        o = [f"v_pk_fma_f32 {vr(b+2*h,2)}, {vr(CSR+2*h,2)}, {vr(st,2)}, {vr(b+2*h,2)} op_sel_hi:[1,0,1] neg_lo:[0,1,0] neg_hi:[0,1,0]" for h in range(4)]
        o += [f"v_pk_mul_f32 {vr(b+2*h,2)}, {vr(b+2*h,2)}, {vr(st,2)} op_sel:[0,1] op_sel_hi:[1,1]" for h in range(4)]
        o += [f"v_exp_f32 v{b+i}, v{b+i}" for i in range(8)]
        o += [f"v_pk_fma_f32 {vr(b+2*h,2)}, {vr(CSR+2*h,2)}, {vr(st,2)}, {vr(b+2*h,2)} op_sel_hi:[1,0,1] neg_lo:[0,1,0] neg_hi:[0,1,0]" for h in range(4, 8)]
        o += [f"v_pk_fma_f32 {vr(b+2*h,2)}, {vr(b+2*h,2)}, {vr(st+2,2)}, {vr(st+2,2)} op_sel_hi:[1,0,0]" for h in range(4)]
        o += [f"v_rcp_f32 v{b+i}, v{b+i}" for i in range(8)]
        return o
    def B(mu):
        b = ACC + 16 * mu; pk = PK + 4 * (mu % 4)
        o = [f"v_pk_mul_f32 {vr(b+2*h,2)}, {vr(b+2*h,2)}, {vr(b+8+2*h,2)}" for h in range(4)]
        o += [f"v_cvt_pk_bf16_f32 v{pk+h}, v{b+2*h}, v{b+2*h+1}" for h in (0, 2, 1, 3)]
        return o
    def C(mu):
        pk = PK + 4 * (mu % 4)
        o = [f"v_permlane16_swap_b32 v{pk}, v{pk+2}", f"v_permlane16_swap_b32 v{pk+1}, v{pk+3}",
             f"buffer_store_dwordx4 {vr(pk)}, v6, {WS}, s50 offen sc1"]
        if mu < 7: o.append(f"s_add_u32 s50, s50, {216*256}")
        return o
    for mu in range(9):
        cur = A(mu) if mu < 8 else []
        seq = cur[:4] + (B(mu - 1) if mu else []) + cur[4:8] + (C(mu - 1) if mu else []) + cur[8:]
        for t in seq: a(t)
    self.stamp('p4epi')
    a("L_p5_c_pre:")
    if self.upto >= 5: p5_c_pre(self)
    self.finish(M_S4, 'p4st')

def p4_h_pre(self):
    a = self.a
    p4_coords(a)
    self.w128_dma_voff(3456, 3, 10, 11)
    a(f"""s_and_b32 s42, s{sHW}, 1
    s_lshl_b32 s42, s42, 6
    v_xor_b32 v3, s42, v3
    v_lshlrev_b32 v2, 4, v1
    v_add_u32 v4, {20480-1024}, v2
    v_add_u32 v5, {2*(20480-1024)}, v2
    v_add_u32 v6, {3*(20480-1024)}, v2
    s_lshl_b32 s44, s40, 2
    s_add_u32 s44, s44, s{sHW}
    s_mul_i32 s44, s44, {4*20480}
    s_add_u32 s44, s44, {HH}
    s_mul_i32 s45, s{sHW}, {8*3456}
    s_lshl_b32 s46, s41, 7
    s_add_u32 s45, s45, s46
    s_lshl_b32 s47, s{sHW}, 12
    s_lshl_b32 s43, s{sHW}, 10
    s_mul_i32 s50, s40, 27
    s_add_u32 s50, s50, s41
    s_lshl_b32 s50, s50, 7
    s_add_u32 s51, s50, {4*M_S3}
    s_add_u32 s50, s50, {4*M_CS4}
    s_lshl_b32 s56, s40, 3
    s_mul_i32 s57, s56, 21846
    s_lshr_b32 s57, s57, 16
    s_add_u32 s56, s56, 7
    s_mul_i32 s56, s56, 21846
    s_lshr_b32 s56, s56, 16
    s_sub_u32 s56, s56, s57
    s_add_u32 s56, s56, 1
    s_mul_i32 s56, s56, 10""")

def p4_h(self):
    a = self.a
    R, SLOT, T = P4_R, P4_SLOT, P4_TAB
    LA = 2
    self.vm = VM()
    a("s_cmp_ge_u32 s2, 216\ns_cbranch_scc1 L_p4_skip")
    XV = [2, 4, 5, 6]
    NWP = opt('w4p', 3)
    def wdma(st):
        slot = st % R
        a(f"s_add_u32 s58, s45, {st*32*3456}\ns_add_u32 m0, s43, {slot*SLOT+16384}")
        self.vmem(f"buffer_load_dwordx4 v3, {srd(SRD_WG)}, s58 offen lds", ('p4', st))
        a(f"s_add_u32 m0, s43, {slot*SLOT+20480}")
        self.vmem(f"buffer_load_dwordx4 v3, {srd(SRD_WU)}, s58 offen lds", ('p4', st))
    def dma(st):
        slot = st % R
        a(f"s_add_u32 s59, s44, {1024*st}\ns_add_u32 m0, s47, {slot*SLOT}")
        for i in range(4):
            self.vmem(f"buffer_load_dwordx4 v{XV[i]}, {WS}, s59 offen offset:{1024*i} sc1 lds", ('p4', st))
        if st >= NWP: wdma(st)
    for st in range(NWP): wdma(st)
    self.poll1(5, "s51", "s56", 8, 9)
    a("v_mov_b32 v8, 0")
    self.stamp('p4poll', 4)
    for st in range(LA): dma(st)
    st2_store(self)
    a(f"""v_lshlrev_b32 v9, 2, v1
    s_lshl_b32 s48, s40, 2
    s_add_u32 s48, s48, s{sHW}
    s_lshl_b32 s48, s48, 9
    s_add_u32 s48, s48, {ST2}
    v_lshlrev_b32 v7, 3, v1
    s_and_b32 s52, s{sHW}, 1
    s_mul_i32 s49, s52, {1728*4}
    s_lshl_b32 s53, s41, 8
    s_add_u32 s49, s49, s53
    s_add_u32 s49, s49, {CS4}
    s_add_u32 s56, s56, 8""")
    for st in range(20):
        self.wait_vm(('p4', st))
        self.bar()
        if st % 2 == 1: self.sstamp(f'h4b{st}')
        if st == 6:
            self.vmem(f"buffer_load_dword v36, v8, {WS}, s50 offen sc1", 'mb')
        if st == 8:
            a("v_cmp_ne_u32 vcc, s56, v36\ns_cbranch_vccz L_p4_csok")
            keep = list(self.vm.ops)
            self.poll("s50", "s56", 8, 36)
            self.vm.ops = keep
            a("L_p4_csok:")
        if 8 <= st < 13:
            for i in range(2):
                self.vmem(f"buffer_load_dwordx2 {vr(40+4*(st-8)+2*i,2)}, v7, {WS}, s48 offen sc1", 'st2')
                a("s_add_u32 s48, s48, 32768")
        if st == 13:
            for q in range(4):
                self.vmem(f"buffer_load_dword v{32+q}, v9, {WS}, s49 offen sc1", 'cs')
                if q < 3: a(f"s_add_u32 s49, s49, {3456*4}")
        if st + LA < 20: dma(st + LA)
        if st == 2:
            aux_signal(self)
        if self.upto >= 5 and 20 - P5_PRE <= st: p5_wdma(self, st - 20 + P5_PRE)
        if st == 17:
            self.wait_vm('cs')
            a("v_add_f32 v16, v40, v42\nv_add_f32 v17, v41, v43")
            for i in range(2, 10): a(f"v_add_f32 v16, v16, v{40+2*i}\nv_add_f32 v17, v17, v{41+2*i}")
            a(f"""v_add_f32 v32, v32, v33
            v_add_f32 v34, v34, v35
            v_add_f32 v32, v32, v34
            v_mov_b32 v20, {f32hex(1.0/D)}
            v_mul_f32 v12, v16, v20
            v_mul_f32 v17, v17, v20
            v_fma_f32 v17, -v12, v12, v17
            v_max_f32 v17, 0, v17
            v_add_f32 v17, {f32hex(1e-5)}, v17
            v_rsq_f32 v13, v17
            v_sqrt_f32 v14, v17
            v_mov_b32 v15, 0
            v_mul_f32 v13, {f32hex(-LOG2E)}, v13
            s_lshl_b32 s52, s52, 8
            s_add_u32 s52, s52, {T+4096}
            v_add_u32 v10, s52, v9
            s_add_u32 s52, s43, {T}
            v_add_u32 v11, s52, v2
            ds_write_b32 v10, v32
            ds_write_b128 v11, v[12:15]
            s_waitcnt lgkmcnt(0)""")
    self.sdump(6)
    self.bar()
    a("L_p5_h_pre:")
    if self.upto >= 5:
        self.vm = VM()
        E = opt('w5e', 19)
        self.vm.add(('p5w', P5_PRE - 1))
        for st in range(P5_PRE, E):
            p5_wdma(self, st)
            if opt('w5d', 0): a(f"s_waitcnt vmcnt({opt('w5d', 0)})")
        self.wait_vm(('p5w', min(12, E - 1)))
    self.bar()

def idle_code(self):
    a = self.a
    self.vm = VM()
    if self.upto >= 4:
        a("L_p4_skipc:\ns_barrier\ns_barrier\ns_branch L_p5_c_pre")
        a("L_p4_skip:\ns_barrier")
        st2_store(self)
        a("s_waitcnt vmcnt(0)\ns_barrier")
        aux_signal(self)
        if self.upto >= 5:
            for i in range(P5_PRE): p5_wdma(self, i)
        a("s_branch L_p5_h_pre")
    a(f"""L_idle:
    s_mul_i32 s40, s{sWAVE}, 36
    s_add_u32 s40, s40, s2
    s_sub_u32 s40, s40, 220
    s_cmp_ge_u32 s40, 216
    s_cbranch_scc1 L_cs4_done
    s_mul_i32 s46, s40, 1214
    s_lshr_b32 s46, s46, 16
    s_mul_i32 s41, s46, 54
    s_sub_u32 s40, s40, s41
    s_cmp_ge_u32 s40, 27
    s_cselect_b32 s44, 27, 0
    s_cselect_b32 s56, s{SRD_WU}, s{SRD_WG}
    s_cselect_b32 s57, s{SRD_WU+1}, s{SRD_WG+1}
    s_mov_b32 s58, {D*F*2}
    s_mov_b32 s59, 0x20000
    s_sub_u32 s45, s40, s44
    s_lshl_b32 s47, s45, 7
    s_mul_i32 s41, s46, {160*3456}
    s_add_u32 s47, s47, s41
    s_mul_i32 s50, s{sWAVE}, 20480""")
    self.colsum_issue("s[56:59]", 3456, 47, 50, 16, 17, 18)
    a(f"""s_mul_i32 s47, s46, {3456*4}
    s_lshl_b32 s41, s40, 8
    s_add_u32 s47, s47, s41
    s_add_u32 s47, s47, {CS4}
    s_waitcnt vmcnt(0)""")
    self.colsum_finish(50, 47, 16)
    a(f"""v_mul_u32_u24 v16, 27, v1
    v_add_u32 v16, s45, v16
    v_cmp_gt_u32 vcc, 8, v1
    s_waitcnt vmcnt(0)""")
    self.signal(16, M_CS4, 17)
    a("L_cs4_done:")
    a.settle()
    self.stamp('csdone')
    a("s_barrier\ns_cmp_lt_u32 s2, 224\ns_cbranch_scc1 L_end")
    a(f"""v_mul_u32_u24 v16, 13108, v1
    v_lshrrev_b32 v16, 16, v16
    v_mul_u32_u24 v17, 5, v16
    v_sub_u32 v17, v1, v17
    v_mul_u32_u24 v16, 1280, v16
    v_lshl_add_u32 v16, v17, 7, v16
    s_lshr_b32 s40, s2, 3
    s_sub_u32 s40, s40, 28
    s_lshl_b32 s40, s40, 3
    s_add_u32 s40, s40, s{sWAVE}
    s_mul_i32 s40, s40, {12*1280}
    s_and_b32 s41, s2, 1
    s_mul_i32 s41, s41, 640
    s_add_u32 s40, s40, s41""")
    for n in range(5):
        self.touch(srd(SRD_WD), 16, "s40", n)
        a("s_waitcnt vmcnt(0)")
        if n < 4: a(f"s_add_u32 s40, s40, {32*12*1280}")
    self.stamp('wddone')
    a("s_endpgm")

def p5_h_pre(self):
    a = self.a
    p5_coords(a, 64, 65, 66)
    self.w128_dma_voff(1280, 103, 10, 11)
    a(f"""v_xor_b32 v104, 64, v103
    v_add_u32 v104, {8*1280-1024}, v104""")
    a(f"""s_mul_i32 s68, s64, {6*55296}
    s_add_u32 s68, s68, {HP - 4096}
    s_mul_i32 s69, s{sHW}, {16*1280}
    s_lshl_b32 s70, s65, 7
    s_add_u32 s69, s69, s70
    s_mul_i32 s70, s{sHW}, 3072
    s_lshl_b32 s71, s{sHW}, 11
    s_mul_i32 s72, s64, 10
    s_add_u32 s72, s72, s65
    s_lshl_b32 s72, s72, 7
    s_add_u32 s72, s72, {4*M_S4}
    s_mul_i32 s73, s64, 3
    s_add_u32 s74, s73, 2
    s_min_u32 s74, s74, 63
    s_lshr_b32 s73, s73, 3
    s_lshr_b32 s74, s74, 3
    s_cmp_eq_u32 s73, s74
    s_cselect_b32 s73, 27, 54
    s_lshl_b32 s67, s67, 1""" + ("\ns_mov_b32 s67, 0" if 'norot5' in sys.argv else ""))

def p5_wdma(self, st):
    a = self.a
    a(f"s_add_u32 s76, s69, {st*64*1280}\ns_add_u32 m0, s71, {p5_wslot(st)}")
    for i in range(2):
        self.vmem(f"buffer_load_dwordx4 v{103+i}, {srd(SRD_WD)}, s76 offen offset:{1024*i} lds", ('p5w', st))

def p5_sched():
    E = opt('w5e', 19)
    return ([(E - 6, 12)] if E < 13 else []) + [(7, 19), (14, 26)]

def p5_h(self):
    a = self.a
    E = opt('w5e', 19)
    for st in range(E, 20): p5_wdma(self, st)
    self.bar()
    for st in range(20, 27): p5_wdma(self, st)
    for step, cover in p5_sched():
        self.wait_vm(('p5w', cover))
        self.bar()
    self.nbar += 1

def p5_c_pre(self):
    a = self.a
    p5_coords(a, 40, 41, 42)
    a(f"""s_lshl_b32 s50, s49, 12
    s_add_u32 s50, s50, {P5_S0*8192}
    v_add_u32 v10, s50, v14
    v_xor_b32 v11, 32, v10
    v_xor_b32 v12, 64, v10
    v_xor_b32 v13, 96, v10
    s_mul_i32 s50, s{sWAVE}, 6144
    v_lshl_add_u32 v8, v1, 4, s50
    s_xor_b32 s50, s{sWAVE}, 2
    s_mul_i32 s50, s50, 6144
    v_lshl_add_u32 v15, v1, 4, s50""")
    a(f"""v_lshrrev_b32 v7, 1, v3
    v_lshlrev_b32 v4, 8, v7
    v_lshl_add_u32 v4, v2, 4, v4
    v_and_b32 v5, 1, v3
    v_lshl_add_u32 v4, v5, 3, v4
    s_lshl_b32 s55, s40, 1
    s_add_u32 s55, s55, s48
    s_mul_i32 s55, s55, 3
    s_mul_i32 s50, s55, 20480
    s_lshl_b32 s52, s41, 1
    s_add_u32 s52, s52, s49
    s_lshl_b32 s53, s52, 10
    s_add_u32 s51, s50, s53
    s_add_u32 s51, s51, {HH}""")
    a(f"""v_mul_u32_u24 v9, 1280, v2
    v_lshl_add_u32 v9, v5, 5, v9
    v_lshl_add_u32 v9, v7, 4, v9
    s_lshl_b32 s54, s52, 6
    s_add_u32 s53, s50, s54
    v_add_u32 v9, s53, v9""")
    for mu in range(3):
        a(f"""s_add_u32 s56, s55, {mu}
        s_cmp_ge_u32 s56, 128
        s_cselect_b32 s56, {OOB//2}, {55296*mu if mu else 0}
        v_lshl_add_u32 v{5+mu}, v1, 4, s56""".replace(f"s_cselect_b32 s56, {OOB//2}, {55296*mu}", f"s_mov_b32 s57, {55296*mu}\n        s_cselect_b32 s56, {OOB//2}, s57"))
    a(f"""s_mul_i32 s56, s55, 55296
    s_lshl_b32 s57, s49, 10
    s_add_u32 s56, s56, s57
    s_add_u32 s56, s56, {HP}
    s_mul_i32 s57, s40, 10
    s_add_u32 s57, s57, s41
    s_lshl_b32 s57, s57, 7
    s_add_u32 s57, s57, {4*M_S4}
    s_mul_i32 s58, s40, 3
    s_add_u32 s59, s58, 2
    s_min_u32 s59, s59, 63
    s_lshr_b32 s58, s58, 3
    s_lshr_b32 s59, s59, 3
    s_cmp_eq_u32 s58, s59
    s_cselect_b32 s58, 27, 54""")

def p5_c(self):
    a = self.a
    self.vm = VM()
    ACC, WR, AR, HR = 16, 64, 176, 236
    NW, NA = 7, 5
    lg = LG(a)
    win = [P5_S0]
    def wreads(st):
        sl = (st + P5_S0) % P5_RW
        out = []
        if not (0 <= sl - win[0] <= 6):
            d = (sl - win[0]) * 8192
            out.append(("\n".join(f"v_add_u32 v{10+i}, {d & 0xffffffff}, v{10+i}" for i in range(4)), 'valu'))
            win[0] = sl
        wb = WR + 16 * (st % NW)
        out += [(f"ds_read_b64_tr_b16 {vr(wb+4*i+2*t,2)}, v{10+i} offset:{8192*(sl-win[0])+512*t}", ('W', st)) for i in range(4) for t in range(2)]
        return out
    def emit(op):
        if op[1] == 'valu': a(op[0])
        else: lg.op(*op)
    def aload(st, mu):
        self.vmem(f"buffer_load_dwordx4 {vr(AR+12*(st%NA)+4*mu)}, v{5+mu}, {WS}, s56 offen offset:{2048*(st&1)} sc1", ('A', st))
        if mu == 2 and st & 1: a("s_add_u32 s56, s56, 4096")
    for mu in range(3):
        for nu in range(2):
            a(f"buffer_load_dwordx2 {vr(HR+4*mu+2*nu,2)}, v4, {WS}, s51 offen offset:{512*nu} sc1")
        if mu < 2: a("s_add_u32 s51, s51, 20480")
    for st in range(NW):
        for op in wreads(st): emit(op)
        if st: lg.need(('W', st - 1))
    lg.drain()
    self.bar()
    self.pollw("s57", "s58", 4, AR)
    self.stamp('p5poll')
    for st in range(NA):
        for mu in range(3): aload(st, mu)
    for st in range(27):
        if st in [x[0] for x in p5_sched()]: self.bar()
        self.wait_vm(('A', st))
        if st == 0: self.stamp('p5b0')
        lg.need(('W', st))
        nxt = wreads(st - 1 + NW) if st >= 1 and st - 1 + NW < 27 else []
        k = 0; n = 0
        for mu in range(3):
            for i in range(4):
                ac = ACC + 16 * mu + 4 * i
                c = "0" if st == 0 else vr(ac)
                a(f"v_mfma_f32_16x16x32_bf16 {vr(ac)}, {vr(WR+16*(st%NW)+4*i)}, {vr(AR+12*(st%NA)+4*mu)}, {c}")
                if n < 3 and st >= 1 and st - 1 + NA < 27: aload(st - 1 + NA, n)
                elif k < len(nxt): emit(nxt[k]); k += 1
                n += 1
        assert k == len(nxt)
        if st == 23 and opt('otr', 0):
            a(f"""s_mul_i32 s50, s{sWAVE}, 3072
            s_add_u32 s50, s50, 24576
            v_and_b32 v6, 1, v3
            v_lshlrev_b32 v6, 1, v6
            v_lshrrev_b32 v7, 1, v3
            v_add_u32 v6, v6, v7
            v_lshrrev_b32 v7, 2, v2
            v_xor_b32 v6, v6, v7
            v_lshlrev_b32 v6, 4, v6
            v_lshl_add_u32 v6, v2, 6, v6
            v_add_u32 v6, s50, v6
            v_lshl_add_u32 v7, v1, 4, s50
            v_lshrrev_b32 v5, 2, v1
            v_mul_u32_u24 v5, 1280, v5
            v_and_b32 v4, 3, v1
            v_xor_b32 v4, v4, v3
            v_lshl_add_u32 v5, v4, 4, v5
            v_add_u32 v5, s53, v5""")
        if st == 22:
            pass
    self.stamp('p5loop')
    for mu in range(3):
        for e in range(2):
            a(f"ds_write_b128 v8, {vr(ACC+16*mu+8+4*e)} offset:{1024*(2*mu+e)}")
    for i in range(12):
        a(f"v_lshlrev_b32 v{64+2*i}, 16, v{HR+i}\nv_and_b32 v{65+2*i}, 0xffff0000, v{HR+i}")
    a("s_waitcnt lgkmcnt(0)")
    self.bar()
    for q in range(6): a(f"ds_read_b128 {vr(96+4*q)}, v15 offset:{1024*q}")
    for mu in range(3):
        for h in range(4): a(f"v_pk_add_f32 {vr(64+8*mu+2*h,2)}, {vr(64+8*mu+2*h,2)}, {vr(ACC+16*mu+2*h,2)}")
    for mu in range(3):
        a(f"s_waitcnt lgkmcnt({4-2*mu})")
        for h in range(4): a(f"v_pk_add_f32 {vr(64+8*mu+2*h,2)}, {vr(64+8*mu+2*h,2)}, {vr(96+8*mu+2*h,2)}")
        pk = 128 + 4 * mu
        for h in (0, 2, 1, 3): a(f"v_cvt_pk_bf16_f32 v{pk+h}, v{64+8*mu+2*h}, v{65+8*mu+2*h}")
        a(f"v_permlane16_swap_b32 v{pk}, v{pk+2}\nv_permlane16_swap_b32 v{pk+1}, v{pk+3}")
        if opt('otr', 0): a(f"ds_write_b128 v6, {vr(pk)} offset:{1024*mu}")
        else:
            a(f"buffer_store_dwordx4 {vr(pk)}, v9, {srd(SRD_OUT)}, 0 offen {opt('opol', 'sc1')}")
            if mu < 2: a("v_add_u32 v9, 20480, v9")
    if opt('otr', 0):
        for mu in range(3): a(f"s_waitcnt lgkmcnt({2-mu})\nds_read_b128 {vr(144+4*mu)}, v7 offset:{1024*mu}".replace(f"lgkmcnt({2-mu})", f"lgkmcnt({2})"))
        for mu in range(3):
            a(f"s_waitcnt lgkmcnt({2-mu})")
            a(f"buffer_store_dwordx4 {vr(144+4*mu)}, v5, {srd(SRD_OUT)}, 0 offen {opt('opol', 'sc1')}")
            if mu < 2: a("v_add_u32 v5, 20480, v5")
    self.stamp('end')
```

```python
import sys, math, struct
from asmlib import Asm

NAME = "sequential_preLN__sliding_block__glu_gated_glu__prompt"
S, D, F = 2048, 640, 1728
MB = 0
M_S0, M_S1, M_S2, M_S3, M_S4, M_CS4, M_S1V = range(7)
MEAN1 = 0x10000
RSTD1 = 0x12000
CS1 = 0x14000
CS4 = 0x1C000
ST2 = 0x30000
TS = 0x90000
QKV = 0x100000
OO = 0x900000
HH = 0xC00000
HP = 0x1000000
WS_END = 0x1700000
LDS_BYTES = 163840
OOB = 0x7ffffff0
LOG2E = math.log2(math.e)

sWAVE = 3
SRD_WS, SRD_X, SRD_WQKV, SRD_WO, SRD_WG, SRD_WU, SRD_WD, SRD_OUT, SRD_DBG = [4 + 4 * i for i in range(9)]
def srd(b): return f"s[{b}:{b+3}]"
WS = srd(SRD_WS)
sBOUND = 96
sHW = 97
def vr(b, n=4): return f"v[{b}:{b+n-1}]"
def f32hex(x): return "0x%08x" % struct.unpack('<I', struct.pack('<f', x))[0]

OPT = dict(a.split('=') for a in sys.argv[1:] if '=' in a)
def opt(k, d): return type(d)(OPT.get(k, d))

class VM:
    def __init__(self): self.ops = []
    def add(self, tag): self.ops.append(tag)
    def count_after(self, tag):
        idx = max(i for i, t in enumerate(self.ops) if t == tag)
        return len(self.ops) - 1 - idx
    def clear(self): self.ops = []

class LG:
    def __init__(self, a): self.a = a; self.n = 0; self.pos = {}; self.done = 0
    def op(self, text, tag=None):
        self.a(text); self.n += 1
        if tag is not None: self.pos[tag] = self.n
    def need(self, *tags):
        p = max(self.pos[t] for t in tags)
        if p > self.done:
            c = min(self.n - p, 15)
            self.a(f"s_waitcnt lgkmcnt({c})")
            self.done = self.n - c
    def drain(self):
        if self.done < self.n:
            self.a("s_waitcnt lgkmcnt(0)"); self.done = self.n

class Gen:
    def __init__(self, upto=5, stamps=False):
        self.a = Asm()
        self.vm = VM()
        self.upto = upto
        self.stamps = stamps
        self.tail = []
        self.stamp_names = []
        self.nbar = 0
        self.spend = []
        self.sbase = 80

    def vmem(self, text, tag):
        self.a(text); self.vm.add(tag)
    def wait_vm(self, tag):
        n = self.vm.count_after(tag)
        assert n <= 63, n
        self.a(f"s_waitcnt vmcnt({n})")
    def bar(self):
        self.a("s_barrier"); self.nbar += 1
    def build_srd(self, b, ptr, nbytes):
        self.a(f"s_mov_b32 s{b}, s{ptr}\ns_mov_b32 s{b+1}, s{ptr+1}\ns_mov_b32 s{b+2}, {nbytes}\ns_mov_b32 s{b+3}, 0x20000")
    def stamp(self, name, wave=0):
        if not self.stamps: return
        a = self.a
        if name in self.stamp_names: i = self.stamp_names.index(name)
        else:
            i = len(self.stamp_names); self.stamp_names.append(name)
        assert i < 64
        L = a.newlabel('Lst')
        a(f"""s_cmp_lg_u32 s{sWAVE}, {wave}
        s_cbranch_scc1 {L}
        s_memrealtime s[100:101]
        v_mov_b32 v255, s2
        v_lshlrev_b32 v255, 9, v255
        v_add_u32 v255, {TS + 8*i}, v255
        s_waitcnt lgkmcnt(0)
        v_mov_b32 v252, s100
        s_memtime s[100:101]
        s_waitcnt lgkmcnt(0)
        v_mov_b32 v253, s100
        s_mov_b64 exec, 1
        buffer_store_dwordx2 v[252:253], v255, {WS}, 0 offen
        s_mov_b64 exec, -1
        {L}:""")

    def sstamp(self, name):
        if not self.stamps: return
        k = len(self.spend); assert k < 16
        self.spend.append(name)
        self.a(f"s_memtime s[100:101]\ns_waitcnt lgkmcnt(0)\ns_mov_b32 s{self.sbase+k}, s100")
    def sdump(self, wave):
        if not self.stamps: return
        a = self.a
        L = a.newlabel('Lsd')
        a(f"""s_cmp_lg_u32 s{sWAVE}, {wave}
        s_cbranch_scc1 {L}
        v_mov_b32 v255, s2
        v_lshlrev_b32 v255, 9, v255
        v_add_u32 v255, {TS}, v255
        v_mov_b32 v252, 0
        s_mov_b64 exec, 1""")
        for k, name in enumerate(self.spend):
            i = len(self.stamp_names); self.stamp_names.append(name); assert i < 64
            a(f"v_mov_b32 v253, s{self.sbase+k}\nbuffer_store_dwordx2 v[252:253], v255, {WS}, 0 offen offset:{8*i}")
        a(f"s_mov_b64 exec, -1\n{L}:")
        self.spend = []

    def wave_sum(self, vs, sdsts):
        for mod in ("quad_perm:[1,0,3,2] row_mask:0xf", "quad_perm:[2,3,0,1] row_mask:0xf", "row_half_mirror row_mask:0xf",
                    "row_mirror row_mask:0xf", "row_bcast:15 row_mask:0xa", "row_bcast:31 row_mask:0xc"):
            for v in vs:
                self.a(f"v_add_f32_dpp v{v}, v{v}, v{v} {mod} bank_mask:0xf")
        for v, s in zip(vs, sdsts):
            self.a(f"v_readlane_b32 s{s}, v{v}, 63")

    def poll(self, soff, expect, va, vt, srdb=SRD_WS):
        a = self.a
        L = a.newlabel('Lpoll'); Ld = L + 'd'
        a(f"""v_mov_b32 v{va}, 0
        {L}:
        buffer_load_dword v{vt}, v{va}, {srd(srdb)}, {soff} offen sc1
        s_waitcnt vmcnt(0)
        v_cmp_ne_u32 vcc, {expect}, v{vt}
        s_cbranch_vccz {Ld}
        s_sub_u32 s{sBOUND}, s{sBOUND}, 1
        s_cbranch_scc1 {Ld}
        s_sleep 1
        s_branch {L}
        {Ld}:""")
        self.vm.clear()

    def pollw(self, soff, expect, va, vt, depth=1):
        a = self.a
        L = a.newlabel('Lpoll'); Ld = L + 'd'
        a(f"v_mov_b32 v{va}, 0\ns_mov_b64 exec, 1")
        pl = lambda k: a(f"v_mov_b32 v{vt+k}, 0\nbuffer_atomic_add v{vt+k}, v{va}, {WS}, {soff} offen sc0 sc1")
        for k in range(depth - 1):
            pl(k); a("s_sleep 3")
        a(f"{L}:")
        for k in range(depth):
            pl((k + depth - 1) % depth)
            a(f"s_waitcnt vmcnt({depth-1})\nv_cmp_ne_u32 vcc, {expect}, v{vt+k}\ns_cbranch_vccz {Ld}")
        a(f"""s_sub_u32 s{sBOUND}, s{sBOUND}, 1
        s_cbranch_scc0 {L}
        {Ld}:
        s_mov_b64 exec, -1""")

    def poll1(self, wave, soff, expect, va, vt):
        a = self.a
        L = a.newlabel('Lp1')
        a(f"s_cmp_lg_u32 s{sWAVE}, {wave}\ns_cbranch_scc1 {L}")
        self.pollw(soff, expect, va, 248, depth=opt('pd', 3))
        a(f"{L}:")
        self.bar()

    def signal(self, vline, dword, vt, mask='vcc'):
        self.a(f"""v_lshlrev_b32 v{vline}, 7, v{vline}
        v_mov_b32 v{vt}, 1
        s_mov_b64 exec, {mask}
        buffer_atomic_add v{vt}, v{vline}, {WS}, 0 offen offset:{4*dword} sc1
        s_mov_b64 exec, -1""")

    def w128_dma_voff(self, pitch, vE, vt, vt2):
        self.a(f"""v_lshrrev_b32 v{vt}, 3, v1
        v_mul_u32_u24 v{vE}, {pitch}, v{vt}
        v_and_b32 v{vt}, 2, v{vt}
        v_and_b32 v{vt2}, 7, v1
        v_xor_b32 v{vt}, v{vt}, v{vt2}
        v_lshl_add_u32 v{vE}, v{vt}, 4, v{vE}""")

    def colsum_issue(self, srdb, pitch, s_goff, s_lds, vE, vO, vt):
        a = self.a
        self.w128_dma_voff(pitch, vE, vt, vO)
        a(f"v_xor_b32 v{vO}, 64, v{vE}")
        for i in range(20):
            a(f"s_add_u32 m0, s{s_lds}, {1024*i}")
            self.vmem(f"buffer_load_dwordx4 v{vO if i & 1 else vE}, {srdb}, s{s_goff} offen lds", 'cs')
            if i < 19: a(f"s_add_u32 s{s_goff}, s{s_goff}, {8*pitch}")

    def w128_read_addr(self, vb, vt):
        self.a(f"""v_lshrrev_b32 v{vt}, 4, v1
        v_lshlrev_b32 v{vb}, 10, v{vt}
        v_bfe_u32 v{vt}, v1, 2, 2
        v_lshl_add_u32 v{vb}, v{vt}, 7, v{vb}
        v_and_b32 v{vt}, 3, v1
        v_lshl_add_u32 v{vb}, v{vt}, 3, v{vb}
        v_bfe_u32 v{vt}, v1, 3, 2
        v_lshl_add_u32 v{vb}, v{vt}, 5, v{vb}""")

    def colsum_finish(self, s_lds, s_out, vbase):
        a = self.a
        vb = vbase; vones = vbase + 4; vacc = vbase + 8; vf = vbase + 24
        self.w128_read_addr(vb, vones)
        a(f"v_add_u32 v{vb}, s{s_lds}, v{vb}")
        for nu in range(1, 4): a(f"v_xor_b32 v{vb+nu}, {32*nu}, v{vb}")
        for i in range(4): a(f"v_mov_b32 v{vones+i}, 0x3f803f80")
        for s in range(5):
            fb = vf + 16 * (s & 1)
            for nu in range(4):
                for t in range(2):
                    a(f"ds_read_b64_tr_b16 {vr(fb+4*nu+2*t, 2)}, v{vb+nu} offset:{(32*s+4*t)*128}")
            a("s_waitcnt lgkmcnt(0)")
            for nu in range(4):
                c = "0" if s == 0 else vr(vacc + 4 * nu)
                a(f"v_mfma_f32_16x16x32_bf16 {vr(vacc+4*nu)}, {vr(vones)}, {vr(fb+4*nu)}, {c}")
        a(f"""v_cmp_lt_u32 vcc, 15, v1
        v_cndmask_b32 v{vacc}, v{vacc}, v{vacc+4}, vcc
        v_cmp_lt_u32 vcc, 31, v1
        v_cndmask_b32 v{vacc}, v{vacc}, v{vacc+8}, vcc
        v_cmp_lt_u32 vcc, 47, v1
        v_cndmask_b32 v{vacc}, v{vacc}, v{vacc+12}, vcc
        v_lshlrev_b32 v{vb}, 2, v1""")
        self.vmem(f"buffer_store_dword v{vacc}, v{vb}, {WS}, s{s_out} offen sc1", 'csst')

    def row_stats(self, nrows):
        a = self.a
        a(f"""v_lshlrev_b32 v8, 4, v1
        v_lshlrev_b32 v9, 2, v1
        s_mul_i32 s45, s44, 1280""")
        for r in range(nrows):
            self.vmem(f"buffer_load_dwordx4 {vr(12+8*r)}, v8, {srd(SRD_X)}, s45 offen offset:{1280*r}", 'stat')
            self.vmem(f"buffer_load_dword v{16+8*r}, v9, {srd(SRD_X)}, s45 offen offset:{1280*r+1024}", 'stat')

    def row_stats_finish(self, nrows):
        a = self.a
        self.wait_vm('stat')
        E = lambda r, i: 32 + 12 * r + i
        for r in range(nrows):
            for i in range(5):
                a(f"v_lshlrev_b32 v{E(r,2*i)}, 16, v{12+8*r+i}\nv_and_b32 v{E(r,2*i+1)}, 0xffff0000, v{12+8*r+i}")
        acc = [12 + 8 * r for r in range(nrows)]
        for r in range(nrows): a(f"v_add_f32 v{acc[r]}, v{E(r,0)}, v{E(r,1)}")
        for i in range(2, 10):
            for r in range(nrows): a(f"v_add_f32 v{acc[r]}, v{acc[r]}, v{E(r,i)}")
        ss = [46 + r for r in range(nrows)]
        self.wave_sum(acc, ss)
        a(f"v_mov_b32 v10, {f32hex(1.0/D)}")
        for r in range(nrows): a(f"v_mul_f32 v{acc[r]+1}, s{ss[r]}, v10")
        for i in range(10):
            for r in range(nrows): a(f"v_sub_f32 v{E(r,i)}, v{E(r,i)}, v{acc[r]+1}")
        for r in range(nrows): a(f"v_mul_f32 v{acc[r]}, v{E(r,0)}, v{E(r,0)}")
        for i in range(1, 10):
            for r in range(nrows): a(f"v_fmac_f32 v{acc[r]}, v{E(r,i)}, v{E(r,i)}")
        self.wave_sum(acc, ss)
        for r in range(nrows):
            a(f"v_mov_b32 v{acc[r]+2}, {f32hex(1e-5)}\nv_fmac_f32 v{acc[r]+2}, s{ss[r]}, v10\nv_rsq_f32 v{acc[r]+2}, v{acc[r]+2}")
        a(f"""s_lshl_b32 s45, s44, 2
        s_add_u32 s45, s45, {MEAN1}
        s_add_u32 s46, s45, {RSTD1-MEAN1}
        v_mov_b32 v10, 0
        s_mov_b64 exec, 1""")
        for r in range(nrows):
            self.vmem(f"buffer_store_dword v{acc[r]+1}, v10, {WS}, s45 offen offset:{4*r} sc1", 'statst')
            self.vmem(f"buffer_store_dword v{acc[r]+2}, v10, {WS}, s46 offen offset:{4*r} sc1", 'statst')
        a("s_mov_b64 exec, -1")

    def sig_rowstats(self):
        a = self.a
        a("""s_lshr_b32 s53, s2, 4
        s_mul_i32 s53, s53, 15
        v_add_u32 v10, s53, v1
        v_cmp_gt_u32 vcc, 15, v1""")
        self.signal(10, M_S0, 11)

    def p0(self):
        a = self.a
        a(f"""s_cmp_ge_u32 s2, 256
        s_cbranch_scc1 L_end
        s_load_dwordx16 s[64:79], s[0:1], 0
        s_load_dwordx4 s[80:83], s[0:1], 64
        v_and_b32 v1, 63, v0
        v_lshrrev_b32 v2, 6, v0
        v_readfirstlane_b32 s{sWAVE}, v2
        v_mov_b32 v247, 0
        v_mov_b32 v78, 0
        s_mov_b32 s98, 0
        s_mov_b32 s{sBOUND}, 0x100000""")
        a(f"""s_lshr_b32 s40, s2, 3
        s_sub_u32 s40, s40, 2
        s_and_b32 s41, s2, 1
        s_mul_i32 s41, s41, 30
        s_add_u32 s40, s40, s41
        s_lshr_b32 s41, s40, 2
        s_and_b32 s40, s40, 3
        s_add_u32 s43, s40, s41
        s_mul_i32 s42, s41, 21846
        s_lshr_b32 s42, s42, 16
        s_mul_i32 s41, s41, 5
        s_mul_i32 s44, s42, 14
        s_sub_u32 s41, s41, s44
        s_and_b32 s42, s2, 6
        s_lshl_b32 s42, s42, 1
        s_add_u32 s40, s40, s42
        s_and_b32 s{sHW}, s{sWAVE}, 3
        s_waitcnt lgkmcnt(0)""")
        self.build_srd(SRD_X, 64, S * D * 2)
        self.build_srd(SRD_WQKV, 66, D * 3 * D * 2)
        self.build_srd(SRD_WS, 82, WS_END)
        self.build_srd(SRD_DBG, 80, 256)
        self.build_srd(SRD_WO, 68, D * D * 2)
        self.build_srd(SRD_WG, 72, D * F * 2)
        self.build_srd(SRD_WU, 74, D * F * 2)
        self.build_srd(SRD_WD, 76, F * D * 2)
        self.build_srd(SRD_OUT, 78, S * D * 2)
        a('s_mov_b32 s0, 0')
        self.stamp('start')
        a(f"""s_cmp_lt_u32 s2, 16
        s_cbranch_scc1 L_spare
        s_cmp_lt_u32 s{sWAVE}, 4
        s_cbranch_scc1 L_p1_c""")

    def touch(self, srdb, voff, soff, n):
        self.a(f"buffer_load_dword v{248 + n % 4}, v{voff}, {srdb}, {soff} offen")

    def spare_code(self):
        a = self.a
        self.vm = VM()
        a("L_spare:")
        a("s_cmp_eq_u32 s2, 0\ns_cbranch_scc1 L_init")
        a("L_init_back:")
        a(f"""s_getpc_b64 s[40:41]
        L_pc:
        s_sub_u32 s40, s40, L_pc-{NAME}_kernel
        s_subb_u32 s41, s41, 0
        s_lshr_b32 s42, s2, 3
        s_lshl_b32 s42, s42, 15
        v_and_b32 v2, 255, v0
        v_lshl_add_u32 v2, v2, 7, s42
        v_min_u32 v2, L_code_end-{NAME}_kernel-4, v2
        s_cmp_ge_u32 s{sWAVE}, 4
        s_cbranch_scc1 L_nocode
        global_load_dword v250, v2, s[40:41]
        L_nocode:""")
        a(f"s_lshl_b32 s44, s2, 3\ns_add_u32 s44, s44, s{sWAVE}")
        self.row_stats(1)
        a(f"""v_lshlrev_b32 v2, 7, v1
        s_lshl_b32 s50, s{sWAVE}, 4
        s_add_u32 s50, s50, s2
        s_lshl_b32 s50, s50, 13
        s_add_u32 s51, s50, {256*3840}""")
        for n in range(2):
            self.touch(srd(SRD_WQKV), 2, "s51", n); self.vm.add('t')
            if n < 1: a(f"s_add_u32 s51, s51, {128*8192}")
        self.row_stats_finish(1)
        self.poll(0, 1, 10, 11, SRD_DBG)
        a(f"""s_barrier
        s_cmp_lg_u32 s{sWAVE}, 0
        s_cbranch_scc1 L_spare4""")
        self.sig_rowstats()
        a("L_spare4:")
        self.touch(srd(SRD_WO), 2, "s50", 0)
        a("s_mov_b64 s[62:63], 0")
        self.stamp('spdone')
        a("s_branch L_p1_join")
        a("L_init:")
        a(f"""v_mov_b32 v4, 0
        v_mov_b32 v5, 0
        v_mov_b32 v6, 0
        v_mov_b32 v7, 0
        v_lshlrev_b32 v8, 4, v1
        s_lshl_b32 s40, s{sWAVE}, 12""")
        for i in range(4):
            a(f"buffer_store_dwordx4 v[4:7], v8, {WS}, s40 offen offset:{1024*i} sc1")
        a(f"""s_waitcnt vmcnt(0)
        s_barrier
        s_cmp_lg_u32 s{sWAVE}, 0
        s_cbranch_scc1 L_init_back
        v_mov_b32 v5, 1
        s_mov_b64 exec, 1
        buffer_store_dword v5, v4, {srd(SRD_DBG)}, 0 offen sc1
        s_mov_b64 exec, -1
        s_branch L_init_back""")

    def finish(self, dword, name):
        a = self.a
        a("s_waitcnt vmcnt(0)")
        self.bar()
        self.stamp(name)
        L = a.newlabel('Lfin')
        a(f"""s_cmp_eq_u64 s[62:63], 0
        s_cbranch_scc1 {L}
        v_mov_b32 v246, 1
        s_mov_b64 exec, s[62:63]
        buffer_atomic_add v246, v247, {WS}, 0 offen offset:{4*dword} sc1
        s_mov_b64 exec, -1
        {L}:""")
        self.vm.clear()

    def sigprep(self, wave):
        self.a(f"""v_lshlrev_b32 v247, 7, v247
        s_cmp_eq_u32 s{sWAVE}, {wave}
        s_cselect_b64 s[62:63], vcc, 0""")

    P1_R, P1_LA, P1_BLK = 4, 2, 4
    rot1 = 's_mov_b32 s46, 0' if 'norot' in sys.argv else ''
    P1_TAB = 131072
    CS4_LDS = 131072 + 2048

    def p1(self):
        a = self.a
        R, LA = self.P1_R, self.P1_LA
        T = self.P1_TAB
        def waddr(dst, sblk, vt):
            a(f"""v_lshrrev_b32 v{vt}, 4, v1
            v_lshlrev_b32 v{dst}, 11, v{vt}
            v_bfe_u32 v{vt}, v1, 2, 2
            v_lshl_add_u32 v{dst}, v{vt}, 8, v{dst}
            v_and_b32 v{vt}, 3, v1
            v_lshl_add_u32 v{dst}, v{vt}, 3, v{dst}
            v_bfe_u32 v{vt}, v1, 2, 3
            v_xor_b32 v{vt}, s{sblk}, v{vt}
            v_lshl_add_u32 v{dst}, v{vt}, 5, v{dst}
            v_add_u32 v{dst}, 16384, v{dst}""")
        self.vm = VM(); self.nbar = 0
        a("""v_lshrrev_b32 v10, 3, v1
        v_mul_u32_u24 v2, 1280, v10
        v_lshrrev_b32 v10, 4, v1
        v_and_b32 v11, 7, v1
        v_xor_b32 v11, v11, v10
        v_lshl_add_u32 v2, v11, 4, v2
        v_xor_b32 v3, 64, v2
        v_add_u32 v3, 9216, v3
        v_add_u32 v4, 18432, v2
        v_add_u32 v5, 18432, v3
        v_mul_u32_u24 v6, 3840, v10
        v_lshlrev_b32 v10, 1, v10
        v_and_b32 v11, 15, v1
        v_xor_b32 v11, v11, v10
        v_lshl_add_u32 v6, v11, 4, v6
        v_add_u32 v7, 14336, v6
        v_xor_b32 v8, 128, v6
        v_add_u32 v8, 28672, v8
        v_add_u32 v9, 14336, v8""")
        a(f"""s_lshl_b32 s44, s40, 2
        s_add_u32 s44, s44, s{sHW}
        s_mul_i32 s44, s44, {32*1280}
        s_mul_i32 s45, s{sHW}, {16*3840}
        s_lshl_b32 s46, s41, 8
        s_add_u32 s45, s45, s46
        s_and_b32 s46, s43, 3
        {self.rot1}
        s_lshl_b32 s47, s{sHW}, 12""")
        def dma(st):
            slot = st % R
            a(f"""s_lshl_b32 s48, s46, 7
            s_add_u32 s48, s48, s44
            s_mul_i32 s49, s46, {64*3840}
            s_add_u32 s49, s49, s45
            s_add_u32 m0, s47, {slot*32768}""")
            for i in range(4):
                self.vmem(f"buffer_load_dwordx4 v{2+i}, {srd(SRD_X)}, s48 offen offset:{1024*i} lds", ('p1', st))
            a(f"s_add_u32 m0, s47, {slot*32768+16384}")
            for i in range(4):
                self.vmem(f"buffer_load_dwordx4 v{6+i}, {srd(SRD_WQKV)}, s49 offen offset:{1024*i} lds", ('p1', st))
            B = self.P1_BLK
            if st + 1 < B: a(f"s_add_u32 s46, s46, 1\ns_and_b32 s46, s46, {B-1}")
            elif opt('rot1b', 0) and st + 1 < 8: a(f"s_add_u32 s46, s46, 1\ns_and_b32 s46, s46, 3\ns_or_b32 s46, s46, 4")
            elif opt('rot1b', 0) and st < 9: a(f"s_add_u32 s46, s46, 1\ns_and_b32 s46, s46, 1\ns_or_b32 s46, s46, 8")
            elif st < 9: a(f"s_mov_b32 s46, {st+1}")
        for st in range(LA): dma(st)
        a(f"""s_mul_i32 s52, s40, 15
        s_add_u32 s52, s52, s41
        s_lshl_b32 s52, s52, 7
        v_mov_b32 v12, 0""")
        for st in range(10):
            self.wait_vm(('p1', st))
            if st == 8:
                a("v_cmp_ne_u32 vcc, 16, v14\ns_cbranch_vccz L_p1_s0ok")
                keep = list(self.vm.ops)
                self.poll("s52", 16, 10, 11)
                self.vm.ops = keep + ['t', 't']
                a("L_p1_s0ok:")
                a(f"""v_lshlrev_b32 v10, 2, v1
                s_and_b32 s48, s{sHW}, 1
                s_lshl_b32 s49, s40, 1
                s_add_u32 s49, s49, s48
                s_lshl_b32 s49, s49, 8
                s_add_u32 s49, s49, {MEAN1}
                buffer_load_dword v12, v10, {WS}, s49 offen sc1
                s_add_u32 s49, s49, {RSTD1-MEAN1}
                buffer_load_dword v13, v10, {WS}, s49 offen sc1""")
            self.bar()
            if st % 3 == 0: self.sstamp(f'hb{st}')
            if st == 1:
                self.vmem(f"buffer_load_dword v13, v12, {srd(SRD_DBG)}, 0 offen sc1", 'rdy')
            if st == 3:
                L = a.newlabel('Ls0')
                a(f"v_cmp_ne_u32 vcc, 1, v13\ns_cbranch_vccz {L}r")
                keep = list(self.vm.ops)
                self.poll(0, 1, 10, 11, SRD_DBG)
                self.vm.ops = keep
                a(f"{L}r:")
                a(f"""s_lshr_b32 s53, s2, 4
                s_mul_i32 s53, s53, 15
                s_lshl_b32 s54, s{sHW}, 2
                s_add_u32 s53, s53, s54
                v_add_u32 v10, s53, v1
                s_cmp_eq_u32 s{sHW}, 3
                s_cselect_b64 vcc, 7, 15""")
                self.signal(10, M_S0, 11)
                self.vm.add('sig')
            if st == 6:
                self.vmem(f"buffer_load_dword v14, v12, {WS}, s52 offen sc1", 'mb')
            if st + LA < 10: dma(st + LA)
        c = (20 ** -0.5) * LOG2E
        a(f"""s_cmp_lt_u32 s41, 5
        s_cselect_b32 s49, {f32hex(c)}, 1.0
        s_lshl_b32 s48, s48, 9
        s_add_u32 s48, s48, {T}
        v_lshl_add_u32 v11, v1, 3, s48
        s_waitcnt vmcnt(0)
        v_mul_f32 v13, s49, v13
        ds_write_b64 v11, v[12:13]
        s_waitcnt lgkmcnt(0)""")
        self.bar()
        self.bar()
        self.sdump(5)
        a("s_mov_b64 s[62:63], 0\ns_branch L_p1_join")
        nb_h = self.nbar
        self.vm = VM(); self.nbar = 0
        a('L_p1_c:')
        a(f"s_lshl_b32 s44, s2, 2\ns_add_u32 s44, s44, s{sWAVE}\ns_lshl_b32 s44, s44, 1")
        self.row_stats(2)
        XA, WA = 64, 68
        FR = 80
        ACC = 144
        a(f"""s_and_b32 s48, s{sWAVE}, 1
        s_lshr_b32 s49, s{sWAVE}, 1
        v_and_b32 v2, 15, v1
        v_lshrrev_b32 v3, 4, v1
        v_lshlrev_b32 v4, 7, v2
        v_bfe_u32 v5, v1, 1, 3
        v_xor_b32 v5, v5, v3
        v_lshl_add_u32 v4, v5, 4, v4
        s_lshl_b32 s50, s48, 13
        v_add_u32 v{XA}, s50, v4
        v_xor_b32 v{XA+1}, 64, v{XA}
        s_lshl_b32 s50, s49, 1
        s_add_u32 s50, s50, s48
        s_lshl_b32 s50, s50, 1""")
        waddr(WA, 50, 5)
        for nu in range(1, 4): a(f"v_xor_b32 v{WA+nu}, {32*nu}, v{WA}")
        a(f"""s_lshl_b32 s50, s48, 9
        s_add_u32 s50, s50, {T}
        v_lshl_add_u32 v76, v2, 3, s50
        s_lshl_b32 s50, s{sWAVE}, 7
        s_add_u32 s50, s50, {T+1024}
        v_lshl_add_u32 v77, v3, 4, s50
        v_xor_b32 v79, 128, v77
        v_lshrrev_b32 v78, 5, v1
        v_lshlrev_b32 v78, 15, v78
        v_and_b32 v7, 31, v1
        v_lshl_add_u32 v78, v7, 4, v78""")
        a(f"""s_cmp_ge_u32 s41, 10
        s_cselect_b32 s50, 10, 5
        s_cmp_ge_u32 s41, 5
        s_cselect_b32 s50, s50, 0
        s_sub_u32 s51, s41, s50
        s_lshl_b32 s51, s51, 4
        v_mul_u32_u24 v4, 5, v7
        v_lshrrev_b32 v4, 1, v4
        v_add_u32 v4, 2, v4
        v_subrev_u32 v4, s51, v4
        v_cmp_gt_u32 vcc, 18, v4
        s_lshr_b32 s52, s40, 1
        s_cmp_eq_u32 s52, 7
        s_cselect_b32 s50, 0, s50
        s_cmp_eq_u32 s50, 0
        s_cselect_b32 vcc_hi, 0, vcc_hi
        s_lshl_b32 s52, s52, 5
        v_add_u32 v247, s52, v1""")
        self.sigprep(0)
        if opt('vdef', 1):
            a(f"""s_cmp_ge_u32 s41, 10
            s_cselect_b32 s50, {4*(M_S1V-M_S1)}, 0
            v_add_u32 v247, s50, v247
            s_cselect_b32 s50, {OOB//2}, 0
            v_add_u32 v66, s50, v78""")
        else: a("v_mov_b32 v66, v78")
        a(f"""s_lshl_b32 s50, s41, 1
        s_add_u32 s50, s50, s49
        s_lshl_b32 s50, s50, 18
        s_lshl_b32 s51, s40, 1
        s_add_u32 s51, s51, s48
        s_lshl_b32 s51, s51, 10
        s_add_u32 s50, s50, s51
        s_lshl_b32 s51, s48, 17
        s_add_u32 s50, s50, s51
        s_add_u32 s50, s50, {QKV}
        s_lshl_b32 s52, s48, 18
        s_sub_u32 s52, 65536, s52
        s_cmp_ge_u32 s41, {10 if opt('vdef', 1) else 99}
        s_cselect_b32 s98, s50, 0
        s_cselect_b32 s0, 0, {opt('qkfirst', 1)}
        s_mov_b32 s99, s52""")
        self.row_stats_finish(2)
        CSR = 208; ONES = 72
        for i in range(72): a(f"v_mov_b32 v{ACC+i}, 0")
        for i in range(4): a(f"v_mov_b32 v{ONES+i}, 0x3f803f80")
        lg = LG(a)
        def reads(g):
            j = g & 1
            off = ((g >> 1) & 1) * 32768
            fb = FR + 32 * (g & 1)
            W = lambda i: [(f"ds_read_b64_tr_b16 {vr(fb+16+4*i, 2)}, v{WA+i} offset:{off+32*j*256}", None),
                           (f"ds_read_b64_tr_b16 {vr(fb+18+4*i, 2)}, v{WA+i} offset:{off+(32*j+4)*256}", ('W', g & 3, i))]
            X = lambda i: [(f"ds_read_b128 {vr(fb+4*i)}, v{XA+j} offset:{off+2048*i}", ('X', g & 3, i))]
            return W(0) + X(0) + W(1) + W(2) + W(3) + X(1) + X(2) + X(3)
        self.stamp('preb0')
        self.bar()
        self.stamp('b0')
        for r in reads(0): lg.op(*r)
        a("s_mov_b32 s51, 5\n.p2align 3\nL_p1_loop:")
        for g in range(4):
            fb = FR + 32 * (g & 1)
            nxt = [] if g & 1 else reads(g + 1)
            k = 0; n = 0
            for mu in range(4):
                for nu in range(4):
                    if (g & 1) and n == 2:
                        if g == 3: a("s_waitcnt vmcnt(0)")
                        a("s_barrier")
                        nxt = reads(g + 1)
                    ac = ACC + 16 * mu + 4 * nu
                    if n == 0: lg.need(('W', g, 3))
                    if n == 4: lg.need(('X', g, 3))
                    a(f"v_mfma_f32_16x16x32_bf16 {vr(ac)}, {vr(fb+16+4*nu)}, {vr(fb+4*mu)}, {vr(ac)}")
                    if k < len(nxt): lg.op(*nxt[k]); k += 1
                    elif g == 2 and n >= 12:
                        for r in ([XA, XA+1], [WA, WA+1], [WA+2], [WA+3])[n - 12]: a(f"v_xor_b32 v{r}, 65536, v{r}")
                    if n in (13, 15):
                        e = (n - 13) >> 1
                        a(f"v_mfma_f32_16x16x32_bf16 {vr(CSR+4*e)}, {vr(fb+16+4*e)}, {vr(ONES)}, {vr(CSR+4*e)}")
                    if g == 3 and n == 14: a("s_sub_u32 s51, s51, 1\ns_cmp_lg_u32 s51, 0")
                    n += 1
            assert k == len(nxt)
        a("s_cbranch_scc1 L_p1_loop")
        self.nbar += 10
        a("s_waitcnt lgkmcnt(0)")
        a.settle(8)
        self.stamp('p1loop')
        self.stamp('p1tab')
        MR = 80
        a("s_mov_b32 exec_lo, 0x00010001\ns_mov_b32 exec_hi, 0x00010001")
        for e in range(2): a(f"ds_write_b128 v77, {vr(CSR+4*e)} offset:{64*e}")
        a("s_mov_b64 exec, -1")
        for mu in range(4): a(f"ds_read_b64 {vr(MR+2*mu, 2)}, v76 offset:{128*mu}")
        a("s_waitcnt lgkmcnt(0)")
        self.bar()
        for e in range(2): a(f"ds_read_b128 {vr(CSR+8+4*e)}, v79 offset:{64*e}")
        a(".p2align 3")
        PK = 104
        n = 0
        for nu in range(4):
            if nu == 2: a("s_waitcnt lgkmcnt(0)\ns_nop 0")
            for p in range(2):
                pk = PK + 4 * (n % 8); n += 1
                tiles = [(ACC + 16 * (2 * p + e) + 4 * nu, 2 * p + e) for e in range(2)]
                for ac, mu in tiles:
                    for h in range(2):
                        a(f"v_pk_fma_f32 {vr(ac+2*h,2)}, {vr(CSR+4*nu+2*h,2)}, {vr(MR+2*mu,2)}, {vr(ac+2*h,2)} op_sel_hi:[1,0,1] neg_lo:[0,1,0] neg_hi:[0,1,0]")
                for ac, mu in tiles:
                    for h in range(2):
                        a(f"v_pk_mul_f32 {vr(ac+2*h,2)}, {vr(ac+2*h,2)}, {vr(MR+2*mu,2)} op_sel:[0,1] op_sel_hi:[1,1]")
                for h in range(2):
                    for e, (ac, mu) in enumerate(tiles):
                        a(f"v_cvt_pk_bf16_f32 v{pk+2*e+h}, v{ac+2*h}, v{ac+2*h+1}")
                a(f"v_permlane16_swap_b32 v{pk}, v{pk+2}\ns_nop 0\nv_permlane16_swap_b32 v{pk+1}, v{pk+3}\ns_nop 0")
                a(f"buffer_store_dwordx4 {vr(pk)}, v66, {WS}, s50 offen offset:{512*p} sc1")
            if nu < 3: a("s_add_u32 s50, s50, s52\ns_nop 0" if nu == 1 else "s_add_u32 s50, s50, 65536")
        self.stamp('p1epi')
        assert self.nbar == nb_h, (self.nbar, nb_h)
        a("L_p1_join:")
        a.settle(3)

    def p1_vstores(self):
        a = self.a
        a("s_cmp_eq_u32 s98, 0\ns_cbranch_scc1 L_p1_nov")
        for nu in range(4):
            for p in range(2):
                a(f"buffer_store_dwordx4 {vr(104+8*nu+4*p)}, v78, {WS}, s98 offen offset:{512*p} sc1")
            if nu < 3: a("s_add_u32 s98, s98, s99" if nu == 1 else "s_add_u32 s98, s98, 65536")
        a("L_p1_nov:")

    def build(self):
        a = self.a
        a.raw(f"; @launch grid=(256,1,1) block=(512,1,1) lds={LDS_BYTES}")
        a.raw(f'.amdgcn_target "amdgcn-amd-amdhsa--gfx950"\n.text\n.globl {NAME}_kernel\n.p2align 8\n.type {NAME}_kernel,@function\n{NAME}_kernel:')
        self.p0()
        self.p1()
        if self.upto >= 2: self.p2()
        else: self.p1_vstores(); self.finish(M_S1, 'p1st')
        if self.upto >= 3: self.tail345()
        a("L_end:\ns_endpgm")
        self.spare_code()
        i = 0
        while i < len(self.tail):
            self.tail[i](); i += 1
        a("L_code_end:")
        a.raw(f""".section .rodata,"a"
.p2align 6
.amdhsa_kernel {NAME}_kernel
  .amdhsa_next_free_vgpr 256
  .amdhsa_next_free_sgpr 102
  .amdhsa_accum_offset 256
  .amdhsa_group_segment_fixed_size 0
  .amdhsa_kernarg_size 80
  .amdhsa_user_sgpr_count 2
  .amdhsa_user_sgpr_kernarg_segment_ptr 1
  .amdhsa_system_sgpr_workgroup_id_x 1
.end_amdhsa_kernel""")
        return a.text()

from phases import install
install(Gen, globals())

if __name__ == '__main__':
    upto = int(sys.argv[1]) if len(sys.argv) > 1 else 5
    out = sys.argv[2] if len(sys.argv) > 2 else 'k.s'
    g = Gen(upto=upto, stamps=('stamps' in sys.argv))
    open(out, 'w').write(g.build())
    open(out + '.stamps', 'w').write('\n'.join(g.stamp_names))
    print("wrote", out, "pads", g.a.pad_count)
```

```python
import sys, math, struct
from asmlib import Asm

NAME = "sequential_preLN__sliding_block__glu_gated_glu__prompt"
S, D, F = 2048, 640, 1728
MB = 0
M_S0, M_S1, M_S2, M_S3, M_S4, M_CS4, M_S1V = range(7)
MEAN1 = 0x10000
RSTD1 = 0x12000
CS1 = 0x14000
CS4 = 0x1C000
ST2 = 0x30000
TS = 0x90000
QKV = 0x100000
OO = 0x900000
HH = 0xC00000
HP = 0x1000000
WS_END = 0x1700000
LDS_BYTES = 163840
OOB = 0x7ffffff0
LOG2E = math.log2(math.e)

sWAVE = 3
SRD_WS, SRD_X, SRD_WQKV, SRD_WO, SRD_WG, SRD_WU, SRD_WD, SRD_OUT, SRD_DBG = [4 + 4 * i for i in range(9)]
def srd(b): return f"s[{b}:{b+3}]"
WS = srd(SRD_WS)
sBOUND = 96
sHW = 97
def vr(b, n=4): return f"v[{b}:{b+n-1}]"
def f32hex(x): return "0x%08x" % struct.unpack('<I', struct.pack('<f', x))[0]

OPT = dict(a.split('=') for a in sys.argv[1:] if '=' in a)
def opt(k, d): return type(d)(OPT.get(k, d))

class VM:
    def __init__(self): self.ops = []
    def add(self, tag): self.ops.append(tag)
    def count_after(self, tag):
        idx = max(i for i, t in enumerate(self.ops) if t == tag)
        return len(self.ops) - 1 - idx
    def clear(self): self.ops = []

class LG:
    def __init__(self, a): self.a = a; self.n = 0; self.pos = {}; self.done = 0
    def op(self, text, tag=None):
        self.a(text); self.n += 1
        if tag is not None: self.pos[tag] = self.n
    def need(self, *tags):
        p = max(self.pos[t] for t in tags)
        if p > self.done:
            c = min(self.n - p, 15)
            self.a(f"s_waitcnt lgkmcnt({c})")
            self.done = self.n - c
    def drain(self):
        if self.done < self.n:
            self.a("s_waitcnt lgkmcnt(0)"); self.done = self.n

class Gen:
    def __init__(self, upto=5, stamps=False):
        self.a = Asm()
        self.vm = VM()
        self.upto = upto
        self.stamps = stamps
        self.tail = []
        self.stamp_names = []
        self.nbar = 0
        self.spend = []
        self.sbase = 80

    def vmem(self, text, tag):
        self.a(text); self.vm.add(tag)
    def wait_vm(self, tag):
        n = self.vm.count_after(tag)
        assert n <= 63, n
        self.a(f"s_waitcnt vmcnt({n})")
    def bar(self):
        self.a("s_barrier"); self.nbar += 1
    def build_srd(self, b, ptr, nbytes):
        self.a(f"s_mov_b32 s{b}, s{ptr}\ns_mov_b32 s{b+1}, s{ptr+1}\ns_mov_b32 s{b+2}, {nbytes}\ns_mov_b32 s{b+3}, 0x20000")
    def stamp(self, name, wave=0):
        if opt('dly', '') == name:
            self.a("s_waitcnt lgkmcnt(0)\ns_memrealtime s[100:101]\ns_waitcnt lgkmcnt(0)\ns_mov_b32 s1, s100")
        if opt('dly', '') and name == 'end':
            self.a("L_dly:\ns_memrealtime s[100:101]\ns_waitcnt lgkmcnt(0)\ns_sub_u32 s100, s100, s1\ns_cmp_lt_u32 s100, 4000\ns_cbranch_scc1 L_dly")
        if not self.stamps: return
        a = self.a
        if name in self.stamp_names: i = self.stamp_names.index(name)
        else:
            i = len(self.stamp_names); self.stamp_names.append(name)
        assert i < 64
        L = a.newlabel('Lst')
        a(f"""s_cmp_lg_u32 s{sWAVE}, {wave}
        s_cbranch_scc1 {L}
        s_memrealtime s[100:101]
        v_mov_b32 v255, s2
        v_lshlrev_b32 v255, 9, v255
        v_add_u32 v255, {TS + 8*i}, v255
        s_waitcnt lgkmcnt(0)
        v_mov_b32 v252, s100
        s_memtime s[100:101]
        s_waitcnt lgkmcnt(0)
        v_mov_b32 v253, s100
        s_mov_b64 exec, 1
        buffer_store_dwordx2 v[252:253], v255, {WS}, 0 offen
        s_mov_b64 exec, -1
        {L}:""")

    def sstamp(self, name):
        if not self.stamps: return
        k = len(self.spend); assert k < 16
        self.spend.append(name)
        self.a(f"s_memtime s[100:101]\ns_waitcnt lgkmcnt(0)\ns_mov_b32 s{self.sbase+k}, s100")
    def sdump(self, wave):
        if not self.stamps: return
        a = self.a
        L = a.newlabel('Lsd')
        a(f"""s_cmp_lg_u32 s{sWAVE}, {wave}
        s_cbranch_scc1 {L}
        v_mov_b32 v255, s2
        v_lshlrev_b32 v255, 9, v255
        v_add_u32 v255, {TS}, v255
        v_mov_b32 v252, 0
        s_mov_b64 exec, 1""")
        for k, name in enumerate(self.spend):
            i = len(self.stamp_names); self.stamp_names.append(name); assert i < 64
            a(f"v_mov_b32 v253, s{self.sbase+k}\nbuffer_store_dwordx2 v[252:253], v255, {WS}, 0 offen offset:{8*i}")
        a(f"s_mov_b64 exec, -1\n{L}:")
        self.spend = []

    def wave_sum(self, vs, sdsts):
        for mod in ("quad_perm:[1,0,3,2] row_mask:0xf", "quad_perm:[2,3,0,1] row_mask:0xf", "row_half_mirror row_mask:0xf",
                    "row_mirror row_mask:0xf", "row_bcast:15 row_mask:0xa", "row_bcast:31 row_mask:0xc"):
            for v in vs:
                self.a(f"v_add_f32_dpp v{v}, v{v}, v{v} {mod} bank_mask:0xf")
        for v, s in zip(vs, sdsts):
            self.a(f"v_readlane_b32 s{s}, v{v}, 63")

    def poll(self, soff, expect, va, vt, srdb=SRD_WS):
        a = self.a
        L = a.newlabel('Lpoll'); Ld = L + 'd'
        a(f"""v_mov_b32 v{va}, 0
        {L}:
        buffer_load_dword v{vt}, v{va}, {srd(srdb)}, {soff} offen sc1
        s_waitcnt vmcnt(0)
        v_cmp_ne_u32 vcc, {expect}, v{vt}
        s_cbranch_vccz {Ld}
        s_sub_u32 s{sBOUND}, s{sBOUND}, 1
        s_cbranch_scc1 {Ld}
        s_sleep 1
        s_branch {L}
        {Ld}:""")
        self.vm.clear()

    def pollw(self, soff, expect, va, vt, depth=1):
        a = self.a
        L = a.newlabel('Lpoll'); Ld = L + 'd'
        a(f"v_mov_b32 v{va}, 0\ns_mov_b64 exec, 1")
        pl = lambda k: a(f"v_mov_b32 v{vt+k}, 0\nbuffer_atomic_add v{vt+k}, v{va}, {WS}, {soff} offen sc0 sc1")
        for k in range(depth - 1):
            pl(k); a("s_sleep 3")
        a(f"{L}:")
        for k in range(depth):
            pl((k + depth - 1) % depth)
            a(f"s_waitcnt vmcnt({depth-1})\nv_cmp_ne_u32 vcc, {expect}, v{vt+k}\ns_cbranch_vccz {Ld}")
        a(f"""s_sub_u32 s{sBOUND}, s{sBOUND}, 1
        s_cbranch_scc0 {L}
        {Ld}:
        s_mov_b64 exec, -1""")

    def poll1(self, wave, soff, expect, va, vt):
        a = self.a
        L = a.newlabel('Lp1')
        a(f"s_cmp_lg_u32 s{sWAVE}, {wave}\ns_cbranch_scc1 {L}")
        self.pollw(soff, expect, va, 248, depth=opt('pd', 3))
        a(f"{L}:")
        self.bar()

    def signal(self, vline, dword, vt, mask='vcc'):
        self.a(f"""v_lshlrev_b32 v{vline}, 7, v{vline}
        v_mov_b32 v{vt}, 1
        s_mov_b64 exec, {mask}
        buffer_atomic_add v{vt}, v{vline}, {WS}, 0 offen offset:{4*dword} sc1
        s_mov_b64 exec, -1""")

    def w128_dma_voff(self, pitch, vE, vt, vt2):
        self.a(f"""v_lshrrev_b32 v{vt}, 3, v1
        v_mul_u32_u24 v{vE}, {pitch}, v{vt}
        v_and_b32 v{vt}, 2, v{vt}
        v_and_b32 v{vt2}, 7, v1
        v_xor_b32 v{vt}, v{vt}, v{vt2}
        v_lshl_add_u32 v{vE}, v{vt}, 4, v{vE}""")

    def colsum_issue(self, srdb, pitch, s_goff, s_lds, vE, vO, vt):
        a = self.a
        self.w128_dma_voff(pitch, vE, vt, vO)
        a(f"v_xor_b32 v{vO}, 64, v{vE}")
        for i in range(20):
            a(f"s_add_u32 m0, s{s_lds}, {1024*i}")
            self.vmem(f"buffer_load_dwordx4 v{vO if i & 1 else vE}, {srdb}, s{s_goff} offen lds", 'cs')
            if i < 19: a(f"s_add_u32 s{s_goff}, s{s_goff}, {8*pitch}")

    def w128_read_addr(self, vb, vt):
        self.a(f"""v_lshrrev_b32 v{vt}, 4, v1
        v_lshlrev_b32 v{vb}, 10, v{vt}
        v_bfe_u32 v{vt}, v1, 2, 2
        v_lshl_add_u32 v{vb}, v{vt}, 7, v{vb}
        v_and_b32 v{vt}, 3, v1
        v_lshl_add_u32 v{vb}, v{vt}, 3, v{vb}
        v_bfe_u32 v{vt}, v1, 3, 2
        v_lshl_add_u32 v{vb}, v{vt}, 5, v{vb}""")

    def colsum_finish(self, s_lds, s_out, vbase):
        a = self.a
        vb = vbase; vones = vbase + 4; vacc = vbase + 8; vf = vbase + 24
        self.w128_read_addr(vb, vones)
        a(f"v_add_u32 v{vb}, s{s_lds}, v{vb}")
        for nu in range(1, 4): a(f"v_xor_b32 v{vb+nu}, {32*nu}, v{vb}")
        for i in range(4): a(f"v_mov_b32 v{vones+i}, 0x3f803f80")
        for s in range(5):
            fb = vf + 16 * (s & 1)
            for nu in range(4):
                for t in range(2):
                    a(f"ds_read_b64_tr_b16 {vr(fb+4*nu+2*t, 2)}, v{vb+nu} offset:{(32*s+4*t)*128}")
            a("s_waitcnt lgkmcnt(0)")
            for nu in range(4):
                c = "0" if s == 0 else vr(vacc + 4 * nu)
                a(f"v_mfma_f32_16x16x32_bf16 {vr(vacc+4*nu)}, {vr(vones)}, {vr(fb+4*nu)}, {c}")
        a(f"""v_cmp_lt_u32 vcc, 15, v1
        v_cndmask_b32 v{vacc}, v{vacc}, v{vacc+4}, vcc
        v_cmp_lt_u32 vcc, 31, v1
        v_cndmask_b32 v{vacc}, v{vacc}, v{vacc+8}, vcc
        v_cmp_lt_u32 vcc, 47, v1
        v_cndmask_b32 v{vacc}, v{vacc}, v{vacc+12}, vcc
        v_lshlrev_b32 v{vb}, 2, v1""")
        self.vmem(f"buffer_store_dword v{vacc}, v{vb}, {WS}, s{s_out} offen sc1", 'csst')

    def row_stats(self, nrows):
        a = self.a
        a(f"""v_lshlrev_b32 v8, 4, v1
        v_lshlrev_b32 v9, 2, v1
        s_mul_i32 s45, s44, 1280""")
        for r in range(nrows):
            self.vmem(f"buffer_load_dwordx4 {vr(12+8*r)}, v8, {srd(SRD_X)}, s45 offen offset:{1280*r}", 'stat')
            self.vmem(f"buffer_load_dword v{16+8*r}, v9, {srd(SRD_X)}, s45 offen offset:{1280*r+1024}", 'stat')

    def row_stats_finish(self, nrows):
        a = self.a
        self.wait_vm('stat')
        E = lambda r, i: 32 + 12 * r + i
        for r in range(nrows):
            for i in range(5):
                a(f"v_lshlrev_b32 v{E(r,2*i)}, 16, v{12+8*r+i}\nv_and_b32 v{E(r,2*i+1)}, 0xffff0000, v{12+8*r+i}")
        acc = [12 + 8 * r for r in range(nrows)]
        for r in range(nrows): a(f"v_add_f32 v{acc[r]}, v{E(r,0)}, v{E(r,1)}")
        for i in range(2, 10):
            for r in range(nrows): a(f"v_add_f32 v{acc[r]}, v{acc[r]}, v{E(r,i)}")
        ss = [46 + r for r in range(nrows)]
        self.wave_sum(acc, ss)
        a(f"v_mov_b32 v10, {f32hex(1.0/D)}")
        for r in range(nrows): a(f"v_mul_f32 v{acc[r]+1}, s{ss[r]}, v10")
        for i in range(10):
            for r in range(nrows): a(f"v_sub_f32 v{E(r,i)}, v{E(r,i)}, v{acc[r]+1}")
        for r in range(nrows): a(f"v_mul_f32 v{acc[r]}, v{E(r,0)}, v{E(r,0)}")
        for i in range(1, 10):
            for r in range(nrows): a(f"v_fmac_f32 v{acc[r]}, v{E(r,i)}, v{E(r,i)}")
        self.wave_sum(acc, ss)
        for r in range(nrows):
            a(f"v_mov_b32 v{acc[r]+2}, {f32hex(1e-5)}\nv_fmac_f32 v{acc[r]+2}, s{ss[r]}, v10\nv_rsq_f32 v{acc[r]+2}, v{acc[r]+2}")
        a(f"""s_lshl_b32 s45, s44, 2
        s_add_u32 s45, s45, {MEAN1}
        s_add_u32 s46, s45, {RSTD1-MEAN1}
        v_mov_b32 v10, 0
        s_mov_b64 exec, 1""")
        for r in range(nrows):
            self.vmem(f"buffer_store_dword v{acc[r]+1}, v10, {WS}, s45 offen offset:{4*r} sc1", 'statst')
            self.vmem(f"buffer_store_dword v{acc[r]+2}, v10, {WS}, s46 offen offset:{4*r} sc1", 'statst')
        a("s_mov_b64 exec, -1")

    def sig_rowstats(self):
        a = self.a
        a("""s_lshr_b32 s53, s2, 4
        s_mul_i32 s53, s53, 15
        v_add_u32 v10, s53, v1
        v_cmp_gt_u32 vcc, 15, v1""")
        self.signal(10, M_S0, 11)

    def p0(self):
        a = self.a
        a(f"""s_cmp_ge_u32 s2, 256
        s_cbranch_scc1 L_end
        s_load_dwordx16 s[64:79], s[0:1], 0
        s_load_dwordx4 s[80:83], s[0:1], 64
        v_and_b32 v1, 63, v0
        v_lshrrev_b32 v2, 6, v0
        v_readfirstlane_b32 s{sWAVE}, v2
        v_mov_b32 v247, 0
        v_mov_b32 v78, 0
        s_mov_b32 s98, 0
        s_mov_b32 s{sBOUND}, 0x100000""")
        a(f"""s_lshr_b32 s40, s2, 3
        s_sub_u32 s40, s40, 2
        s_and_b32 s41, s2, 1
        s_mul_i32 s41, s41, 30
        s_add_u32 s40, s40, s41
        s_lshr_b32 s41, s40, 2
        s_and_b32 s40, s40, 3
        s_add_u32 s43, s40, s41
        s_mul_i32 s42, s41, 21846
        s_lshr_b32 s42, s42, 16
        s_mul_i32 s41, s41, 5
        s_mul_i32 s44, s42, 14
        s_sub_u32 s41, s41, s44
        s_and_b32 s42, s2, 6
        s_lshl_b32 s42, s42, 1
        s_add_u32 s40, s40, s42
        s_and_b32 s{sHW}, s{sWAVE}, 3
        s_waitcnt lgkmcnt(0)""")
        self.build_srd(SRD_X, 64, S * D * 2)
        self.build_srd(SRD_WQKV, 66, D * 3 * D * 2)
        self.build_srd(SRD_WS, 82, WS_END)
        self.build_srd(SRD_DBG, 80, 256)
        self.build_srd(SRD_WO, 68, D * D * 2)
        self.build_srd(SRD_WG, 72, D * F * 2)
        self.build_srd(SRD_WU, 74, D * F * 2)
        self.build_srd(SRD_WD, 76, F * D * 2)
        self.build_srd(SRD_OUT, 78, S * D * 2)
        a('s_mov_b32 s0, 0')
        self.stamp('start')
        a(f"""s_cmp_lt_u32 s2, 16
        s_cbranch_scc1 L_spare
        s_cmp_lt_u32 s{sWAVE}, 4
        s_cbranch_scc1 L_p1_c""")

    def touch(self, srdb, voff, soff, n):
        self.a(f"buffer_load_dword v{248 + n % 4}, v{voff}, {srdb}, {soff} offen")

    def spare_code(self):
        a = self.a
        self.vm = VM()
        a("L_spare:")
        a("s_cmp_eq_u32 s2, 0\ns_cbranch_scc1 L_init")
        a("L_init_back:")
        a(f"""s_getpc_b64 s[40:41]
        L_pc:
        s_sub_u32 s40, s40, L_pc-{NAME}_kernel
        s_subb_u32 s41, s41, 0
        s_lshr_b32 s42, s2, 3
        s_lshl_b32 s42, s42, 15
        v_and_b32 v2, 255, v0
        v_lshl_add_u32 v2, v2, 7, s42
        v_min_u32 v2, L_code_end-{NAME}_kernel-4, v2
        s_cmp_ge_u32 s{sWAVE}, 4
        s_cbranch_scc1 L_nocode
        global_load_dword v250, v2, s[40:41]
        L_nocode:""")
        a(f"s_lshl_b32 s44, s2, 3\ns_add_u32 s44, s44, s{sWAVE}")
        self.row_stats(1)
        a(f"""v_lshlrev_b32 v2, 7, v1
        s_lshl_b32 s50, s{sWAVE}, 4
        s_add_u32 s50, s50, s2
        s_lshl_b32 s50, s50, 13
        s_add_u32 s51, s50, {256*3840}""")
        for n in range(2):
            self.touch(srd(SRD_WQKV), 2, "s51", n); self.vm.add('t')
            if n < 1: a(f"s_add_u32 s51, s51, {128*8192}")
        self.row_stats_finish(1)
        self.poll(0, 1, 10, 11, SRD_DBG)
        a(f"""s_barrier
        s_cmp_lg_u32 s{sWAVE}, 0
        s_cbranch_scc1 L_spare4""")
        self.sig_rowstats()
        a("L_spare4:")
        self.touch(srd(SRD_WO), 2, "s50", 0)
        a("s_mov_b64 s[62:63], 0")
        self.stamp('spdone')
        a("s_branch L_p1_join")
        a("L_init:")
        a(f"""v_mov_b32 v4, 0
        v_mov_b32 v5, 0
        v_mov_b32 v6, 0
        v_mov_b32 v7, 0
        v_lshlrev_b32 v8, 4, v1
        s_lshl_b32 s40, s{sWAVE}, 12""")
        for i in range(4):
            a(f"buffer_store_dwordx4 v[4:7], v8, {WS}, s40 offen offset:{1024*i} sc1")
        a(f"""s_waitcnt vmcnt(0)
        s_barrier
        s_cmp_lg_u32 s{sWAVE}, 0
        s_cbranch_scc1 L_init_back
        v_mov_b32 v5, 1
        s_mov_b64 exec, 1
        buffer_store_dword v5, v4, {srd(SRD_DBG)}, 0 offen sc1
        s_mov_b64 exec, -1
        s_branch L_init_back""")

    def finish(self, dword, name):
        a = self.a
        a("s_waitcnt vmcnt(0)")
        self.bar()
        self.stamp(name)
        L = a.newlabel('Lfin')
        a(f"""s_cmp_eq_u64 s[62:63], 0
        s_cbranch_scc1 {L}
        v_mov_b32 v246, 1
        s_mov_b64 exec, s[62:63]
        buffer_atomic_add v246, v247, {WS}, 0 offen offset:{4*dword} sc1
        s_mov_b64 exec, -1
        {L}:""")
        self.vm.clear()

    def sigprep(self, wave):
        self.a(f"""v_lshlrev_b32 v247, 7, v247
        s_cmp_eq_u32 s{sWAVE}, {wave}
        s_cselect_b64 s[62:63], vcc, 0""")

    P1_R, P1_LA, P1_BLK = 4, 2, 4
    rot1 = 's_mov_b32 s46, 0' if 'norot' in sys.argv else ''
    P1_TAB = 131072
    CS4_LDS = 131072 + 2048

    def p1(self):
        a = self.a
        R, LA = self.P1_R, self.P1_LA
        T = self.P1_TAB
        def waddr(dst, sblk, vt):
            a(f"""v_lshrrev_b32 v{vt}, 4, v1
            v_lshlrev_b32 v{dst}, 11, v{vt}
            v_bfe_u32 v{vt}, v1, 2, 2
            v_lshl_add_u32 v{dst}, v{vt}, 8, v{dst}
            v_and_b32 v{vt}, 3, v1
            v_lshl_add_u32 v{dst}, v{vt}, 3, v{dst}
            v_bfe_u32 v{vt}, v1, 2, 3
            v_xor_b32 v{vt}, s{sblk}, v{vt}
            v_lshl_add_u32 v{dst}, v{vt}, 5, v{dst}
            v_add_u32 v{dst}, 16384, v{dst}""")
        self.vm = VM(); self.nbar = 0
        a("""v_lshrrev_b32 v10, 3, v1
        v_mul_u32_u24 v2, 1280, v10
        v_lshrrev_b32 v10, 4, v1
        v_and_b32 v11, 7, v1
        v_xor_b32 v11, v11, v10
        v_lshl_add_u32 v2, v11, 4, v2
        v_xor_b32 v3, 64, v2
        v_add_u32 v3, 9216, v3
        v_add_u32 v4, 18432, v2
        v_add_u32 v5, 18432, v3
        v_mul_u32_u24 v6, 3840, v10
        v_lshlrev_b32 v10, 1, v10
        v_and_b32 v11, 15, v1
        v_xor_b32 v11, v11, v10
        v_lshl_add_u32 v6, v11, 4, v6
        v_add_u32 v7, 14336, v6
        v_xor_b32 v8, 128, v6
        v_add_u32 v8, 28672, v8
        v_add_u32 v9, 14336, v8""")
        a(f"""s_lshl_b32 s44, s40, 2
        s_add_u32 s44, s44, s{sHW}
        s_mul_i32 s44, s44, {32*1280}
        s_mul_i32 s45, s{sHW}, {16*3840}
        s_lshl_b32 s46, s41, 8
        s_add_u32 s45, s45, s46
        s_and_b32 s46, s43, 3
        {self.rot1}
        s_lshl_b32 s47, s{sHW}, 12""")
        def dma(st):
            slot = st % R
            a(f"""s_lshl_b32 s48, s46, 7
            s_add_u32 s48, s48, s44
            s_mul_i32 s49, s46, {64*3840}
            s_add_u32 s49, s49, s45
            s_add_u32 m0, s47, {slot*32768}""")
            for i in range(4):
                self.vmem(f"buffer_load_dwordx4 v{2+i}, {srd(SRD_X)}, s48 offen offset:{1024*i} lds", ('p1', st))
            a(f"s_add_u32 m0, s47, {slot*32768+16384}")
            for i in range(4):
                self.vmem(f"buffer_load_dwordx4 v{6+i}, {srd(SRD_WQKV)}, s49 offen offset:{1024*i} lds", ('p1', st))
            B = self.P1_BLK
            if st + 1 < B: a(f"s_add_u32 s46, s46, 1\ns_and_b32 s46, s46, {B-1}")
            elif opt('rot1b', 0) and st + 1 < 8: a(f"s_add_u32 s46, s46, 1\ns_and_b32 s46, s46, 3\ns_or_b32 s46, s46, 4")
            elif opt('rot1b', 0) and st < 9: a(f"s_add_u32 s46, s46, 1\ns_and_b32 s46, s46, 1\ns_or_b32 s46, s46, 8")
            elif st < 9: a(f"s_mov_b32 s46, {st+1}")
        for st in range(LA): dma(st)
        a(f"""s_mul_i32 s52, s40, 15
        s_add_u32 s52, s52, s41
        s_lshl_b32 s52, s52, 7
        v_mov_b32 v12, 0""")
        for st in range(10):
            self.wait_vm(('p1', st))
            if st == 8:
                a("v_cmp_ne_u32 vcc, 16, v14\ns_cbranch_vccz L_p1_s0ok")
                keep = list(self.vm.ops)
                self.poll("s52", 16, 10, 11)
                self.vm.ops = keep + ['t', 't']
                a("L_p1_s0ok:")
                a(f"""v_lshlrev_b32 v10, 2, v1
                s_and_b32 s48, s{sHW}, 1
                s_lshl_b32 s49, s40, 1
                s_add_u32 s49, s49, s48
                s_lshl_b32 s49, s49, 8
                s_add_u32 s49, s49, {MEAN1}
                buffer_load_dword v12, v10, {WS}, s49 offen sc1
                s_add_u32 s49, s49, {RSTD1-MEAN1}
                buffer_load_dword v13, v10, {WS}, s49 offen sc1""")
            self.bar()
            if st % 3 == 0: self.sstamp(f'hb{st}')
            if st == 1:
                self.vmem(f"buffer_load_dword v13, v12, {srd(SRD_DBG)}, 0 offen sc1", 'rdy')
            if st == 3:
                L = a.newlabel('Ls0')
                a(f"v_cmp_ne_u32 vcc, 1, v13\ns_cbranch_vccz {L}r")
                keep = list(self.vm.ops)
                self.poll(0, 1, 10, 11, SRD_DBG)
                self.vm.ops = keep
                a(f"{L}r:")
                a(f"""s_lshr_b32 s53, s2, 4
                s_mul_i32 s53, s53, 15
                s_lshl_b32 s54, s{sHW}, 2
                s_add_u32 s53, s53, s54
                v_add_u32 v10, s53, v1
                s_cmp_eq_u32 s{sHW}, 3
                s_cselect_b64 vcc, 7, 15""")
                self.signal(10, M_S0, 11)
                self.vm.add('sig')
            if st == 6:
                self.vmem(f"buffer_load_dword v14, v12, {WS}, s52 offen sc1", 'mb')
            if st + LA < 10: dma(st + LA)
        c = (20 ** -0.5) * LOG2E
        a(f"""s_cmp_lt_u32 s41, 5
        s_cselect_b32 s49, {f32hex(c)}, 1.0
        s_lshl_b32 s48, s48, 9
        s_add_u32 s48, s48, {T}
        v_lshl_add_u32 v11, v1, 3, s48
        s_waitcnt vmcnt(0)
        v_mul_f32 v13, s49, v13
        ds_write_b64 v11, v[12:13]
        s_waitcnt lgkmcnt(0)""")
        self.bar()
        self.bar()
        self.sdump(5)
        a("s_mov_b64 s[62:63], 0\ns_branch L_p1_join")
        nb_h = self.nbar
        self.vm = VM(); self.nbar = 0
        a('L_p1_c:')
        a(f"s_lshl_b32 s44, s2, 2\ns_add_u32 s44, s44, s{sWAVE}\ns_lshl_b32 s44, s44, 1")
        self.row_stats(2)
        XA, WA = 64, 68
        FR = 80
        ACC = 144
        a(f"""s_and_b32 s48, s{sWAVE}, 1
        s_lshr_b32 s49, s{sWAVE}, 1
        v_and_b32 v2, 15, v1
        v_lshrrev_b32 v3, 4, v1
        v_lshlrev_b32 v4, 7, v2
        v_bfe_u32 v5, v1, 1, 3
        v_xor_b32 v5, v5, v3
        v_lshl_add_u32 v4, v5, 4, v4
        s_lshl_b32 s50, s48, 13
        v_add_u32 v{XA}, s50, v4
        v_xor_b32 v{XA+1}, 64, v{XA}
        s_lshl_b32 s50, s49, 1
        s_add_u32 s50, s50, s48
        s_lshl_b32 s50, s50, 1""")
        waddr(WA, 50, 5)
        for nu in range(1, 4): a(f"v_xor_b32 v{WA+nu}, {32*nu}, v{WA}")
        a(f"""s_lshl_b32 s50, s48, 9
        s_add_u32 s50, s50, {T}
        v_lshl_add_u32 v76, v2, 3, s50
        s_lshl_b32 s50, s{sWAVE}, 7
        s_add_u32 s50, s50, {T+1024}
        v_lshl_add_u32 v77, v3, 4, s50
        v_xor_b32 v79, 128, v77
        v_lshrrev_b32 v78, 5, v1
        v_lshlrev_b32 v78, 15, v78
        v_and_b32 v7, 31, v1
        v_lshl_add_u32 v78, v7, 4, v78""")
        a(f"""s_cmp_ge_u32 s41, 10
        s_cselect_b32 s50, 10, 5
        s_cmp_ge_u32 s41, 5
        s_cselect_b32 s50, s50, 0
        s_sub_u32 s51, s41, s50
        s_lshl_b32 s51, s51, 4
        v_mul_u32_u24 v4, 5, v7
        v_lshrrev_b32 v4, 1, v4
        v_add_u32 v4, 2, v4
        v_subrev_u32 v4, s51, v4
        v_cmp_gt_u32 vcc, 18, v4
        s_lshr_b32 s52, s40, 1
        s_cmp_eq_u32 s52, 7
        s_cselect_b32 s50, 0, s50
        s_cmp_eq_u32 s50, 0
        s_cselect_b32 vcc_hi, 0, vcc_hi
        s_lshl_b32 s52, s52, 5
        v_add_u32 v247, s52, v1""")
        self.sigprep(0)
        if opt('vdef', 1):
            a(f"""s_cmp_ge_u32 s41, 10
            s_cselect_b32 s50, {4*(M_S1V-M_S1)}, 0
            v_add_u32 v247, s50, v247
            s_cselect_b32 s50, {OOB//2}, 0
            v_add_u32 v66, s50, v78""")
        else: a("v_mov_b32 v66, v78")
        a(f"""s_lshl_b32 s50, s41, 1
        s_add_u32 s50, s50, s49
        s_lshl_b32 s50, s50, 18
        s_lshl_b32 s51, s40, 1
        s_add_u32 s51, s51, s48
        s_lshl_b32 s51, s51, 10
        s_add_u32 s50, s50, s51
        s_lshl_b32 s51, s48, 17
        s_add_u32 s50, s50, s51
        s_add_u32 s50, s50, {QKV}
        s_lshl_b32 s52, s48, 18
        s_sub_u32 s52, 65536, s52
        s_cmp_ge_u32 s41, {10 if opt('vdef', 1) else 99}
        s_cselect_b32 s98, s50, 0
        s_cselect_b32 s0, 0, {opt('qkfirst', 1)}
        s_mov_b32 s99, s52""")
        self.row_stats_finish(2)
        CSR = 208; ONES = 72
        for i in range(72): a(f"v_mov_b32 v{ACC+i}, 0")
        for i in range(4): a(f"v_mov_b32 v{ONES+i}, 0x3f803f80")
        lg = LG(a)
        def reads(g):
            j = g & 1
            off = ((g >> 1) & 1) * 32768
            fb = FR + 32 * (g & 1)
            W = lambda i: [(f"ds_read_b64_tr_b16 {vr(fb+16+4*i, 2)}, v{WA+i} offset:{off+32*j*256}", None),
                           (f"ds_read_b64_tr_b16 {vr(fb+18+4*i, 2)}, v{WA+i} offset:{off+(32*j+4)*256}", ('W', g & 3, i))]
            X = lambda i: [(f"ds_read_b128 {vr(fb+4*i)}, v{XA+j} offset:{off+2048*i}", ('X', g & 3, i))]
            return W(0) + X(0) + W(1) + W(2) + W(3) + X(1) + X(2) + X(3)
        self.stamp('preb0')
        self.bar()
        self.stamp('b0')
        for r in reads(0): lg.op(*r)
        a("s_mov_b32 s51, 5\n.p2align 3\nL_p1_loop:")
        for g in range(4):
            fb = FR + 32 * (g & 1)
            nxt = [] if g & 1 else reads(g + 1)
            k = 0; n = 0
            for mu in range(4):
                for nu in range(4):
                    if (g & 1) and n == 2:
                        if g == 3: a("s_waitcnt vmcnt(0)")
                        a("s_barrier")
                        nxt = reads(g + 1)
                    ac = ACC + 16 * mu + 4 * nu
                    if n == 0: lg.need(('W', g, 3))
                    if n == 4: lg.need(('X', g, 3))
                    a(f"v_mfma_f32_16x16x32_bf16 {vr(ac)}, {vr(fb+16+4*nu)}, {vr(fb+4*mu)}, {vr(ac)}")
                    if k < len(nxt): lg.op(*nxt[k]); k += 1
                    elif g == 2 and n >= 12:
                        for r in ([XA, XA+1], [WA, WA+1], [WA+2], [WA+3])[n - 12]: a(f"v_xor_b32 v{r}, 65536, v{r}")
                    if n in (13, 15):
                        e = (n - 13) >> 1
                        a(f"v_mfma_f32_16x16x32_bf16 {vr(CSR+4*e)}, {vr(fb+16+4*e)}, {vr(ONES)}, {vr(CSR+4*e)}")
                    if g == 3 and n == 14: a("s_sub_u32 s51, s51, 1\ns_cmp_lg_u32 s51, 0")
                    n += 1
            assert k == len(nxt)
        a("s_cbranch_scc1 L_p1_loop")
        self.nbar += 10
        a("s_waitcnt lgkmcnt(0)")
        a.settle(8)
        self.stamp('p1loop')
        self.stamp('p1tab')
        MR = 80
        a("s_mov_b32 exec_lo, 0x00010001\ns_mov_b32 exec_hi, 0x00010001")
        for e in range(2): a(f"ds_write_b128 v77, {vr(CSR+4*e)} offset:{64*e}")
        a("s_mov_b64 exec, -1")
        for mu in range(4): a(f"ds_read_b64 {vr(MR+2*mu, 2)}, v76 offset:{128*mu}")
        a("s_waitcnt lgkmcnt(0)")
        self.bar()
        for e in range(2): a(f"ds_read_b128 {vr(CSR+8+4*e)}, v79 offset:{64*e}")
        a(".p2align 3")
        PK = 104
        n = 0
        for nu in range(4):
            if nu == 2: a("s_waitcnt lgkmcnt(0)\ns_nop 0")
            for p in range(2):
                pk = PK + 4 * (n % 8); n += 1
                tiles = [(ACC + 16 * (2 * p + e) + 4 * nu, 2 * p + e) for e in range(2)]
                for ac, mu in tiles:
                    for h in range(2):
                        a(f"v_pk_fma_f32 {vr(ac+2*h,2)}, {vr(CSR+4*nu+2*h,2)}, {vr(MR+2*mu,2)}, {vr(ac+2*h,2)} op_sel_hi:[1,0,1] neg_lo:[0,1,0] neg_hi:[0,1,0]")
                for ac, mu in tiles:
                    for h in range(2):
                        a(f"v_pk_mul_f32 {vr(ac+2*h,2)}, {vr(ac+2*h,2)}, {vr(MR+2*mu,2)} op_sel:[0,1] op_sel_hi:[1,1]")
                for h in range(2):
                    for e, (ac, mu) in enumerate(tiles):
                        a(f"v_cvt_pk_bf16_f32 v{pk+2*e+h}, v{ac+2*h}, v{ac+2*h+1}")
                a(f"v_permlane16_swap_b32 v{pk}, v{pk+2}\ns_nop 0\nv_permlane16_swap_b32 v{pk+1}, v{pk+3}\ns_nop 0")
                a(f"buffer_store_dwordx4 {vr(pk)}, v66, {WS}, s50 offen offset:{512*p} sc1")
            if nu < 3: a("s_add_u32 s50, s50, s52\ns_nop 0" if nu == 1 else "s_add_u32 s50, s50, 65536")
        self.stamp('p1epi')
        assert self.nbar == nb_h, (self.nbar, nb_h)
        a("L_p1_join:")
        a.settle(3)

    def p1_vstores(self):
        a = self.a
        a("s_cmp_eq_u32 s98, 0\ns_cbranch_scc1 L_p1_nov")
        for nu in range(4):
            for p in range(2):
                a(f"buffer_store_dwordx4 {vr(104+8*nu+4*p)}, v78, {WS}, s98 offen offset:{512*p} sc1")
            if nu < 3: a("s_add_u32 s98, s98, s99" if nu == 1 else "s_add_u32 s98, s98, 65536")
        a("L_p1_nov:")

    def build(self):
        a = self.a
        a.raw(f"; @launch grid=(256,1,1) block=(512,1,1) lds={LDS_BYTES}")
        a.raw(f'.amdgcn_target "amdgcn-amd-amdhsa--gfx950"\n.text\n.globl {NAME}_kernel\n.p2align 8\n.type {NAME}_kernel,@function\n{NAME}_kernel:')
        self.p0()
        self.p1()
        if self.upto >= 2: self.p2()
        else: self.p1_vstores(); self.finish(M_S1, 'p1st')
        if self.upto >= 3: self.tail345()
        a("L_end:\ns_endpgm")
        self.spare_code()
        i = 0
        while i < len(self.tail):
            self.tail[i](); i += 1
        a("L_code_end:")
        a.raw(f""".section .rodata,"a"
.p2align 6
.amdhsa_kernel {NAME}_kernel
  .amdhsa_next_free_vgpr 256
  .amdhsa_next_free_sgpr 102
  .amdhsa_accum_offset 256
  .amdhsa_group_segment_fixed_size 0
  .amdhsa_kernarg_size 80
  .amdhsa_user_sgpr_count 2
  .amdhsa_user_sgpr_kernarg_segment_ptr 1
  .amdhsa_system_sgpr_workgroup_id_x 1
.end_amdhsa_kernel""")
        return a.text()

from phases import install
install(Gen, globals())

if __name__ == '__main__':
    upto = int(sys.argv[1]) if len(sys.argv) > 1 else 5
    out = sys.argv[2] if len(sys.argv) > 2 else 'k.s'
    g = Gen(upto=upto, stamps=('stamps' in sys.argv))
    open(out, 'w').write(g.build())
    open(out + '.stamps', 'w').write('\n'.join(g.stamp_names))
    print("wrote", out, "pads", g.a.pad_count)
```

```python
def install(Gen, G):
    globals().update({k: v for k, v in G.items() if not k.startswith('__')})
    for f in (p2, p3_prefetch, tail345):
        setattr(Gen, f.__name__, f)

KV0 = 102400
OCTP = 8256

def p2(self):
    a = self.a
    self.vm = VM(); self.nbar = 0
    a("s_cmp_eq_u32 s0, 1\ns_cbranch_scc1 L_p1_fin\nL_p2_pre:")
    a(f"""s_and_b32 s40, s2, 7
    s_lshl_b32 s40, s40, 2
    s_bfe_u32 s41, s2, 0x20003
    s_add_u32 s40, s40, s41
    s_lshr_b32 s41, s2, 5
    s_mul_i32 s42, s40, 5
    s_lshr_b32 s42, s42, 1
    s_and_b32 s43, s40, 1
    s_add_u32 s44, s42, s43
    s_xor_b32 s45, s43, 1
    s_lshl_b32 s45, s45, 1
    s_add_u32 s45, s45, s42""")
    a(f"""s_add_u32 s46, s42, 2
    s_lshr_b32 s46, s46, 4
    s_lshr_b32 s47, s42, 4
    s_sub_u32 s46, s46, s47
    s_add_u32 s46, s46, 1
    s_cmp_eq_u32 s41, 0
    s_cselect_b32 s47, 2, 4
    s_mul_i32 s48, s46, s47
    s_add_u32 s47, s47, {2 if opt('vdef', 1) else 0}
    {'' if opt('vdef', 1) else 's_lshl_b32 s47, s47, 1' + chr(10) + 's_add_u32 s47, s47, 2'}
    s_mul_i32 s46, s46, s47
    s_lshl_b32 s47, s41, 5
    s_add_u32 s47, s47, s40
    s_lshl_b32 s47, s47, 7
    s_add_u32 s47, s47, {4*M_S1}""")
    pf = self.p3_prefetch() if self.upto >= 3 else []
    a(f"""v_and_b32 v2, 31, v1
    v_lshrrev_b32 v3, 5, v1
    v_lshlrev_b32 v4, 4, v1""")
    a(f"""s_lshl_b32 s50, s41, 2
    s_add_u32 s50, s50, s{sWAVE}
    s_cmp_lt_u32 s50, 4
    s_mov_b32 s51, 0x3f803f80
    s_cselect_b32 s50, 0x3f80ff7f, s51
    v_mov_b32 v8, s50
    v_mov_b32 v9, 0x3f803f80
    v_mov_b32 v10, 0x3f803f80
    v_mov_b32 v11, 0x3f803f80
    s_lshl_b32 s49, s{sWAVE}, 10
    s_add_u32 s50, s49, {KV0+6*OCTP}
    v_add_u32 v5, s50, v4
    ds_write_b128 v5, v[8:11]
    s_cmp_eq_u32 s41, 0
    s_cselect_b32 s50, 0xbf803f80, 0
    v_mul_lo_u32 v15, s50, v3""")
    a("v_lshlrev_b32 v5, 2, v3\nv_sub_u32 v5, v2, v5")
    for r in range(16):
        a(f"v_cmp_le_i32 s[{64+2*r}:{65+2*r}], {8*(r>>2)+(r&3)}, v5")
    PM = 52
    a("v_mov_b32 v6, 0xffff\nv_mov_b32 v7, 0xffff0000")
    for i in range(8):
        a(f"v_cndmask_b32 v{PM+i}, 0, v6, s[{64+4*i}:{65+4*i}]\nv_cndmask_b32 v8, 0, v7, s[{66+4*i}:{67+4*i}]\nv_or_b32 v{PM+i}, v{PM+i}, v8")
    a(f"""s_lshl_b32 s50, s{sWAVE}, 9
    s_add_u32 s50, s50, {KV0}
    v_lshl_add_u32 v13, v2, 4, s50
    v_mul_u32_u24 v12, {OCTP}, v3
    v_lshl_add_u32 v5, v12, 2, v13
    v_add_u32 v12, v12, v13
    v_add_u32 v13, {2*OCTP}, v5""")
    a(f"""v_bfe_u32 v5, v1, 2, 2
    v_lshl_add_u32 v5, v3, 2, v5
    v_lshl_add_u32 v14, v5, 4, s50
    v_and_b32 v5, 1, v1
    v_bfe_u32 v6, v1, 1, 1
    v_mov_b32 v7, s43
    v_cmp_eq_u32 vcc, 1, v6
    v_cndmask_b32 v7, v7, v5, vcc
    v_add_u32 v8, 2, v6
    v_and_b32 v9, 16, v1
    v_cmp_eq_u32 vcc, 0, v9
    v_cndmask_b32 v8, v8, v5, vcc
    v_cndmask_b32 v7, v7, v6, vcc
    v_mul_u32_u24 v8, {OCTP}, v8
    v_lshl_add_u32 v8, v7, 3, v8
    v_add_u32 v14, v14, v8
    v_add_u32 v14, {3*OCTP}, v14""")
    a(f"""s_lshl_b32 s50, s41, 2
    s_add_u32 s50, s50, s{sWAVE}
    s_cmp_lt_u32 s50, 4
    s_cselect_b32 s51, 0, 4
    s_sub_u32 s50, s50, s51
    s_lshl_b32 s50, s50, 10
    s_add_u32 s50, s50, {QKV + 80*32768}
    s_lshl_b32 s51, s44, 15
    s_add_u32 s51, s51, s50
    s_lshl_b32 s52, s45, 15
    s_add_u32 s52, s52, s50
    s_add_u32 s49, s49, {KV0}""")
    a(f"""s_lshl_b32 s53, s41, 3
    s_add_u32 s53, s53, s{sWAVE}
    s_lshl_b32 s54, s53, 9
    s_add_u32 s54, s54, {QKV}
    s_lshl_b32 s55, s44, 15
    s_add_u32 s55, s55, s54
    s_lshl_b32 s56, s45, 15
    s_add_u32 s56, s56, s54
    v_lshlrev_b32 v5, 15, v3
    v_lshl_add_u32 v5, v2, 4, v5
    v_lshlrev_b32 v6, 4, v2
    v_mov_b32 v8, {OOB}
    v_add_u32 v9, s43, v3
    v_cmp_eq_u32 vcc, 0, v9
    v_cndmask_b32 v7, v8, v6, vcc
    v_cmp_gt_u32 vcc, s43, v3
    v_cndmask_b32 v6, v8, v6, vcc""")
    self.stamp('p2pre')
    a("s_cmp_eq_u32 s0, 1\ns_cbranch_scc1 L_p2_poll")
    self.p1_vstores()
    a(f"s_cmp_lg_u32 s0, 2\ns_cbranch_scc1 L_p1_fin\ns_cmp_lg_u32 s{sWAVE}, 5\ns_cbranch_scc1 L_p1_fin")
    self.pollw("s47", "s46", 8, 248, depth=3)
    a("s_branch L_p1_fin2\nL_p1_fin:")
    self.finish(M_S1, 'p1st', mid="L_p1_fin2")
    a("s_cmp_eq_u32 s0, 1\ns_cbranch_scc1 L_p2_pre\nL_p2_poll:")
    a(f"s_cmp_eq_u32 s0, 2\ns_cbranch_scc1 L_p2_polled\ns_cmp_lg_u32 s{sWAVE}, 5\ns_cbranch_scc1 L_p2_polled")
    self.pollw("s47", "s46", 8, 248, depth=3)
    a("L_p2_polled:")
    self.bar()
    self.stamp('p2poll')
    Q0, Q1 = 16, 20
    if 'p2twice' in sys.argv:
        a("s_mov_b32 s61, 2\nL_p2_again:\nv_mov_b32 v240, v5\nv_mov_b32 v241, v6\ns_mov_b32 s40, s55\ns_mov_b32 s42, s56")
        if 'nopf' in sys.argv: pf = []
    def dma(o, goff, add, tag):
        a(f"s_add_u32 m0, s49, {o*OCTP}")
        if add: a(f"s_add_u32 s57, s{goff}, {add}")
        self.vmem(f"buffer_load_dwordx4 v4, {WS}, s{57 if add else goff} offen sc1 lds", tag)
    dma(0, 51, 0, 'K'); dma(1, 51, 32768, 'K'); dma(2, 52, 0, 'K')
    self.vmem(f"buffer_load_dwordx4 {vr(Q0)}, v5, {WS}, s55 offen sc1", 'K')
    self.vmem(f"buffer_load_dwordx2 {vr(Q1,2)}, v7, {WS}, s56 offen sc1", 'K')
    self.vmem(f"buffer_load_dwordx2 {vr(Q1+2,2)}, v6, {WS}, s56 offen offset:8 sc1", 'K')
    VL = opt('vlate', 0)
    a(f"s_add_u32 s47, s47, {4*(M_S1V-M_S1)}")
    if not VL:
        a(f"s_cmp_lg_u32 s{sWAVE}, 1\ns_cbranch_scc1 L_p2_vok")
        self.pollw("s47", "s48", 8, 9)
        a("L_p2_vok:")
    self.wait_vm('K')
    a(f"v_or_b32 v{Q1}, v{Q1}, v15\ns_waitcnt lgkmcnt(0)")
    self.bar()
    self.stamp('p2k')
    SB = 64; OA = 208; KF = 24
    Sr = lambda t: SB + 16 * t
    order = [1, 8, 0, 2, 3, 4, 5, 6, 7]
    Pr = lambda t: Sr(8) + 8 if t == 8 else Sr(t)
    Vr = lambda t: Sr(8) if t == 8 else Sr(t) + 8
    M0, M1 = 60, 61
    VrF = {1: 226, 8: Sr(1)+8, 0: Sr(8), 2: Sr(0)+8, 3: Sr(2)+8, 4: Sr(3)+8, 5: Sr(4)+8, 6: Sr(5)+8, 7: Sr(6)+8}.__getitem__
    def mk(lg, first_pv, Vr=Vr):
        def kread(n):
            t = order[n]; kb = KF + 8 * (n % 3)
            lg.op(f"ds_read_b128 {vr(kb)}, v12 offset:{512*t}", ('K', n, 0))
            lg.op(f"ds_read_b128 {vr(kb+4)}, v13 offset:{512*t}", ('K', n, 1))
        def qk(n, h):
            t = order[n]; kb = KF + 8 * (n % 3)
            lg.need(('K', n, h))
            if h == 0: a(f"v_mfma_f32_32x32x16_bf16 {vr(Sr(t),16)}, {vr(kb)}, {vr(Q0)}, 0")
            else: a(f"v_mfma_f32_32x32x16_bf16 {vr(Sr(t),16)}, {vr(kb+4)}, {vr(Q1)}, {vr(Sr(t),16)}")
        def vread(t):
            for sp in range(2):
                for tt in range(2):
                    lg.op(f"ds_read_b64_tr_b16 {vr(Vr(t)+4*sp+2*tt,2)}, v14 offset:{(32*t+16*sp+8*tt)*16}", ('V', t, sp))
        def pv(t, sp):
            lg.need(('V', t, sp))
            c = "0" if (t == first_pv and sp == 0) else vr(OA, 16)
            a(f"v_mfma_f32_32x32x16_bf16 {vr(OA,16)}, {vr(Vr(t)+4*sp)}, {vr(Pr(t)+4*sp)}, {c}")
        def merge():
            for r in range(16):
                a(f"v_cndmask_b32 v{Sr(8)+r}, v{Sr(0)+r}, v{Sr(8)+r}, s[{64+2*r}:{65+2*r}]")
        def cvt(t):
            a(".p2align 3")
            for i in range(8): a(f"v_cvt_pk_bf16_f32 v{Sr(t)+i}, v{Sr(t)+2*i}, v{Sr(t)+2*i+1}")
            if t == 8:
                for i in range(8):
                    a(f"v_and_b32_e64 v{Sr(8)+8+i}, v{Sr(8)+i}, v{PM+i}\nv_bfi_b32 v{Sr(0)+i}, v{PM+i}, 0, v{Sr(8)+i}")
        return kread, qk, vread, pv, merge, cvt
    lg = LG(a)
    kread, qk, vread, pv, merge, cvt = mk(lg, 1, VrF)
    kread(0); kread(1); kread(2)
    def vdma(): dma(3, 51, 80*32768, 'V'); dma(4, 51, 81*32768, 'V'); dma(5, 52, 80*32768, 'V')
    if VL:
        a("v_mov_b32 v8, 0")
        self.vmem(f"buffer_load_dword v9, v8, {WS}, s47 offen sc1", 'vf')
    else: vdma()
    qk(0, 0); qk(0, 1); kread(3); qk(1, 0)
    def kr(n, h):
        t = order[n]; kb = KF + 8 * (n % 3)
        lg.op(f"ds_read_b128 {vr(kb+4*h)}, v{12+h} offset:{512*t}", ('K', n, h))
    def vr1(t, q):
        lg.op(f"ds_read_b64_tr_b16 {vr(VrF(t)+2*q,2)}, v14 offset:{(32*t+8*q)*16}", ('V', t, q >> 1))
    qs = []
    for n in range(1, 9):
        if n > 1: qs += [('w', lambda n=n: lg.need(('K', n, 1))), ('m', lambda n=n: qk(n, 0))]
        qs += [('m', lambda n=n: qk(n, 1), n)]
        if n + 3 < 9: qs += [('l', lambda n=n: kr(n + 3, 0)), ('l', lambda n=n: kr(n + 3, 1))]
    ls = []
    ps = []
    qdone = {order[0]}
    since = [0]
    slot = [0]; vat = {}
    def mf(urgent_q):
        if since[0] < opt('mgap', 32): return
        pok = ps and slot[0] - vat.get(ps[0][2], 1 << 30) >= 5
        if qs and qs[0][0] == 'm' and (urgent_q or not pok):
            it = qs.pop(0); it[1](); since[0] = 0
            if len(it) > 2: qdone.add(order[it[2]])
        elif pok:
            ps.pop(0)[1](); since[0] = 0
    def side():
        slot[0] += 1
        if qs and qs[0][0] != 'm': qs.pop(0)[1]()
        elif ls:
            it = ls.pop(0); it[1](); vat[it[2]] = slot[0] if it[3] == 3 else 1 << 30
        elif ps and ps[0][3] == 0 and slot[0] - vat.get(ps[0][2], 1 << 30) >= 4 and lg.pos[('V', ps[0][2], 1)] > lg.done:
            lg.need(('V', ps[0][2], 1))
        elif pf: pf.pop(0)()
    vok = False
    seq = (1, 8, 2, 3, 4, 5, 6, 7)
    vq = [1, 8, 0, 2, 3, 4, 5, 6, 7]
    vfree = {1}
    after = {1: [8], 8: [0, 2], 2: [3], 3: [4], 4: [5], 5: [6], 6: [7], 7: []}
    for idx, t in enumerate(seq):
        need = {8, 0} if t == 8 else {t}
        assert need <= qdone, (t, qdone)
        if t == 8: merge()
        nxt = set() if idx + 1 >= len(seq) else ({8, 0} if seq[idx + 1] == 8 else {seq[idx + 1]})
        for i in range(16):
            a(f"v_exp_f32 v{Sr(t)+i}, v{Sr(t)+i}")
            since[0] += 8
            mf(not nxt <= qdone)
            side()
        if t == 7:
            for it in ps: it[1]()
            ps = []
            break
        cvt(t)
        if VL and idx == 0:
            while len(pf) % 3: pf.pop(0)()
            self.wait_vm('vf')
            a("v_cmp_ne_u32 vcc, s48, v9\ns_cbranch_vccz L_p2_vok")
            self.pollw("s47", "s48", 8, 9)
            a("L_p2_vok:")
            vdma()
        since[0] += 32
        vfree |= set(after[t])
        for d in ([8, 0] if t == 8 else [t]):
            ps += [('m', lambda d=d: pv(d, 0), d, 0), ('m', lambda d=d: pv(d, 1), d, 1)]
        if t == opt('vbt', 2):
            self.wait_vm('V')
            self.bar()
            if opt('wdw', 1):
                a(f"v_lshlrev_b32 v225, 7, v1\ns_and_b32 s98, s{sWAVE}, 1\ns_lshl_b32 s98, s98, 8\ns_add_u32 s98, s98, s2\ns_lshl_b32 s98, s98, 13")
                for k, sr in enumerate([SRD_WD, SRD_WU]):
                    a(f"s_lshr_b32 s99, s{sWAVE}, 1\ns_cmp_lg_u32 s99, {3-k}\ns_cbranch_scc1 L_nowd{k}")
                    if k: a(f"s_add_u32 s98, s98, {64*8192}")
                    self.touch(srd(sr), 225, "s98", 0)
                    a(f"L_nowd{k}:")
                assert not pf
            vok = True
        while vok and vq and vq[0] in vfree:
            d = vq.pop(0)
            ls += [('l', lambda d=d, q=q: vr1(d, q), d, q) for q in range(4)]
    assert not qs and not ls and not vq and not pf
    a(".p2align 3")
    for sp in range(2):
        for i in range(4*sp, 4*sp+4): a(f"v_cvt_pk_bf16_f32 v{Sr(7)+i}, v{Sr(7)+2*i}, v{Sr(7)+2*i+1}")
        if sp == 1: pv(7, 0)
    pv(7, 1)
    pvq = []
    while pf: pf.pop(0)()
    a(f"""v_bfe_u32 v5, v1, 4, 1
    v_mul_u32_u24 v5, 20480, v5
    v_and_b32 v7, 15, v1
    v_lshl_add_u32 v6, v7, 3, v5
    v_lshl_add_u32 v5, v7, 4, v5
    v_mov_b32 v8, {OOB}
    v_cmp_eq_u32 vcc, 0, v3
    v_cndmask_b32 v6, v8, v6, vcc
    v_lshl_add_u32 v5, v3, 8, v5
    s_mul_i32 s54, s53, 40960
    s_add_u32 s54, s54, {OO}
    s_lshl_b32 s55, s40, 9
    s_add_u32 s55, s55, s54
    s_lshl_b32 s56, s40, 7
    s_add_u32 s56, s56, s54
    s_add_u32 s56, s56, 16384
    s_mov_b32 s57, {(127+64-(127-64))<<23}""")
    while pvq: pvq.pop(0)()
    a(f"""v_subrev_u32 v8, {(127-64)<<23}, v{OA+12}
    v_cmp_lt_u32 vcc, s57, v8
    s_cbranch_vccnz L_p2_slow
    L_p2_norm:
    v_rcp_f32 v8, v{OA+12}""")
    def slow():
        a("L_p2_slow:")
        a.settle()
        lg = LG(a)
        kread, qk, vread, pv, merge, cvt = mk(lg, 8)
        first = [True]
        def vmax(t):
            b = Sr(t)
            for i in range(0, 16, 4):
                if first[0]:
                    a(f"v_max_f32 v{M0}, v{b}, v{b+1}\nv_max_f32 v{M1}, v{b+2}, v{b+3}")
                    first[0] = False
                else:
                    a(f"v_max3_f32 v{M0}, v{M0}, v{b+i}, v{b+i+1}\nv_max3_f32 v{M1}, v{M1}, v{b+i+2}, v{b+i+3}")
        for n in range(9):
            kread(n); qk(n, 0); qk(n, 1)
        merge()
        for t in range(1, 9): vmax(t)
        a(f"""v_max_f32 v{M0}, v{M0}, v{M1}
        v_mov_b32 v{M1}, v{M0}
        v_permlane32_swap_b32 v{M0}, v{M1}
        v_max_f32 v{M0}, v{M0}, v{M1}""")
        for t in (8, 1, 2, 3, 4, 5, 6, 7):
            for i in range(16): a(f"v_sub_f32 v{Sr(t)+i}, v{Sr(t)+i}, v{M0}")
            for i in range(16): a(f"v_exp_f32 v{Sr(t)+i}, v{Sr(t)+i}")
            cvt(t)
            for d in ([8, 0] if t == 8 else [t]):
                vread(d); pv(d, 0); pv(d, 1)
        a.settle()
        a("s_branch L_p2_norm")
    self.tail.append(slow)
    for i in range(12): a(f"v_mul_f32 v{OA+i}, v{OA+i}, v8")
    for i in range(6): a(f"v_cvt_pk_bf16_f32 v{16+i}, v{OA+2*i}, v{OA+2*i+1}")
    a(f"buffer_store_dwordx4 v[16:19], v5, {WS}, s55 offen sc1")
    a(f"buffer_store_dwordx2 v[20:21], v6, {WS}, s56 offen sc1")
    self.stamp('p2cmp')
    self.stamp('p2cmp4', 4)
    if 'p2twice' in sys.argv:
        a("s_waitcnt vmcnt(0)\ns_barrier\nv_mov_b32 v5, v240\nv_mov_b32 v6, v241\ns_mov_b32 s55, s40\ns_mov_b32 s56, s42\ns_sub_u32 s59, s59, 4\ns_sub_u32 s61, s61, 1\ns_cmp_lg_u32 s61, 0\ns_cbranch_scc1 L_p2_again")
    sig96(self, 41, 4)
    if self.upto == 2: self.finish(M_S2, 'p2st')

def sig96(self, srb, wave):
    self.a(f"""s_lshl_b32 s52, s{srb}, 3
    s_mul_i32 s51, s52, 21846
    s_lshr_b32 s51, s51, 16
    s_add_u32 s52, s52, 7
    s_mul_i32 s52, s52, 21846
    s_lshr_b32 s52, s52, 16
    s_sub_u32 s52, s52, s51
    s_add_u32 s52, s52, 1
    s_mul_i32 s52, s52, 10
    s_mul_i32 s51, s51, 10
    v_add_u32 v247, s51, v1
    v_cmp_gt_u32 vcc, s52, v1""")
    self.sigprep(wave)

def p3_prefetch(self):
    a = self.a
    p5_coords(a, 58, 59, 60)
    self.w128_dma_voff(1280, 224, 5, 6)
    a(f"""s_and_b32 s60, s{sWAVE}, 1
    s_lshl_b32 s60, s60, 6
    v_xor_b32 v224, s60, v224
    s_lshl_b32 s59, s59, 7
    s_lshr_b32 s60, s{sWAVE}, 2
    s_mul_i32 s60, s60, 5
    s_add_u32 s60, s60, s{sHW}
    s_lshr_b32 s61, s{sHW}, 1
    s_add_u32 s60, s60, s61
    s_mul_i32 s60, s60, {8*1280}
    s_add_u32 s60, s60, s59
    s_mul_i32 s61, s{sWAVE}, {40*1280}
    s_add_u32 s61, s61, s59
    s_lshl_b32 s59, s{sWAVE}, 10
    s_cmp_ge_u32 s2, 220
    s_cselect_b32 s60, {OOB//2}, s60
    s_cselect_b32 s61, {OOB//2}, s61""")
    out = []
    for n in range(10):
        g = f"s_add_u32 s98, s60, {n*80*1280}" if n < 8 else f"s_add_u32 s98, s61, {(320*(n-8)+16)*1280}"
        out += [lambda n=n: a(f"s_add_u32 m0, s59, {8192*n}"), lambda g=g: a(g),
                lambda: self.vmem(f"buffer_load_dwordx4 v224, {srd(SRD_WO)}, s98 offen lds", 'wo')]
    return out

P3_A, P3_X, P3_ST = 81920, 143360, 155648
_o = dict(a.split('=') for a in __import__('sys').argv[1:] if '=' in a)
P4_R, P4_SLOT = int(_o.get('r4', 4)), 24576
P4_TAB = P4_R * 24576
RA, LA96 = 5, 3
W5PLAN = {int(x.split(':')[0]): int(x.split(':')[1]) for x in _o.get('w5plan', '16:1,17:3,18:3,19:3').split(',')}
P5_RW, P5_PRE = 20, sum(W5PLAN.values())
P5_S0 = 3 * P4_R + 1
def p5_wslot(st): return 8192 * ((st + P5_S0) % P5_RW)

def p4_coords(a):
    a("""s_and_b32 s40, s2, 7
    s_min_u32 s41, s40, 3
    s_mul_i32 s40, s40, 30
    s_add_u32 s40, s40, s41
    s_lshr_b32 s41, s2, 3
    s_add_u32 s40, s40, s41
    s_mul_i32 s41, s40, 1041
    s_lshr_b32 s41, s41, 16
    s_mul_i32 s42, s41, 63
    s_sub_u32 s40, s40, s42
    s_cmp_eq_u32 s41, 3
    s_cselect_b32 s42, 6, 7
    s_mov_b32 s43, 9363
    s_cselect_b32 s43, 10923, s43
    s_mul_i32 s41, s41, 7
    s_add_u32 s41, s41, s40
    s_mul_i32 s40, s40, s43
    s_lshr_b32 s40, s40, 16
    s_mul_i32 s42, s42, s40
    s_sub_u32 s41, s41, s42""")

def n4_blocks(a, r, d, t):
    a(f"""s_mul_i32 s{d}, s{r}, {3*9363}
    s_add_u32 s{t}, s{d}, {2*9363}
    s_lshr_b32 s{d}, s{d}, 16
    s_lshr_b32 s{t}, s{t}, 16
    s_cmp_eq_u32 s{d}, s{t}
    s_cselect_b32 s{d}, 27, 54""")

def p5_coords(a, r, c, t):
    if opt('map5', 0):
        a(f"""s_and_b32 s{r}, s2, 7
        s_mul_i32 s{r}, s{r}, 27
        s_lshr_b32 s{c}, s2, 3
        s_add_u32 s{t}, s{r}, s{c}
        s_cmp_ge_u32 s2, 216
        s_cselect_b32 s{t}, s2, s{t}
        s_mul_i32 s{r}, s{t}, 6554
        s_lshr_b32 s{r}, s{r}, 16
        s_mul_i32 s{c}, s{r}, 10
        s_sub_u32 s{c}, s{t}, s{c}
        s_mov_b32 s{t+1}, s{c}""")
        return
    a(f"""s_bfe_u32 s{r}, s2, 0x20001
    s_add_u32 s{t+1}, s{r}, 108
    s_mul_i32 s{r}, s{r}, 27
    s_lshr_b32 s{c}, s2, 3
    s_add_u32 s{t}, s{r}, s{c}
    s_cmp_ge_u32 s2, 216
    s_cselect_b32 s{t}, s{t+1}, s{t}
    s_mul_i32 s{r}, s{t}, 13108
    s_lshr_b32 s{r}, s{r}, 16
    s_mul_i32 s{c}, s{r}, 5
    s_sub_u32 s{t+1}, s{t}, s{c}
    s_and_b32 s{c}, s2, 1
    s_mul_i32 s{c}, s{c}, 5
    s_add_u32 s{c}, s{c}, s{t+1}""")

def tail345(self):
    a = self.a
    self.tail.append(lambda: idle_code(self))
    a(f"s_cmp_ge_u32 s{sWAVE}, 4\ns_cbranch_scc1 L_h345")
    self.nbar = 0
    marks_c = []
    p3_c(self); marks_c.append(self.nbar)
    if self.upto >= 4: p4_c(self); marks_c.append(self.nbar)
    if self.upto >= 5: p5_c(self); marks_c.append(self.nbar)
    a("s_endpgm")
    a("L_h345:")
    self.nbar = 0
    marks_h = []
    p3_h(self); marks_h.append(self.nbar)
    if self.upto >= 4: p4_h(self); marks_h.append(self.nbar)
    if self.upto >= 5: p5_h(self); marks_h.append(self.nbar)
    assert marks_c == marks_h, (marks_c, marks_h)

G_FR, G_ACC = 16, 96
def g96_loop(self, nst, aread, wread, hook=None):
    a = self.a
    FR, ACC = G_FR, G_ACC
    lg = LG(a)
    def reads(st):
        fb = FR + 40 * (st & 1)
        out = []
        for j in range(2):
            W = lambda nu: [(wread(st, j, nu, t, fb + 20*j + 12 + 4*nu + 2*t), ('W', st, j, nu)) for t in range(2)]
            X = lambda i: [(r, ('X', st, j, i)) for r in aread(st, j, i, fb + 20*j + 4*i)]
            out += W(0) + X(0) + W(1) + X(1) + X(2)
        return out
    for r in reads(0): lg.op(*r)
    for st in range(nst):
        nxt = []
        fb = FR + 40 * (st & 1)
        k = 0; n = 0
        for j in range(2):
            for mu in range(3):
                for nu in range(2):
                    if n == 1 and st + 1 < nst:
                        self.bar()
                        nxt = reads(st + 1)
                    ac = ACC + 8 * mu + 4 * nu
                    c = "0" if (st == 0 and j == 0) else vr(ac)
                    if st > 0 and mu == 0 and nu == 0: lg.need(('X', st, j, 2))
                    lg.need(('W', st, j, nu), ('X', st, j, mu))
                    a(f"v_mfma_f32_16x16x32_bf16 {vr(ac)}, {vr(fb+20*j+12+4*nu)}, {vr(fb+20*j+4*mu)}, {c}")
                    left = len(nxt) - k
                    for _ in range(-(-left // (12 - n)) if nxt else 0):
                        lg.op(*nxt[k]); k += 1
                    n += 1
        assert k == len(nxt)
        if hook: hook(st, lg)
    return lg

def p3_c(self):
    a = self.a
    self.vm = VM()
    ACC = G_ACC
    p5_coords(a, 40, 41, 42)
    a(f"""s_and_b32 s48, s{sWAVE}, 1
    s_lshr_b32 s49, s{sWAVE}, 1
    v_and_b32 v2, 15, v1
    v_lshrrev_b32 v3, 4, v1""")
    self.w128_read_addr(14, 4)
    a(f"""s_lshl_b32 s50, s49, 6
    v_xor_b32 v14, s50, v14
    v_xor_b32 v11, 32, v14
    v_add_u32 v12, 40960, v14
    v_add_u32 v13, 40960, v11
    s_mul_i32 s50, s48, 6144
    s_add_u32 s50, s50, {P3_A}
    v_lshl_add_u32 v8, v1, 4, s50
    v_lshlrev_b32 v9, 8, v3
    v_lshl_add_u32 v9, v2, 3, v9
    v_add_u32 v9, s50, v9""")
    a(f"""v_lshrrev_b32 v7, 1, v3
    s_lshl_b32 s50, s49, 2
    v_add_u32 v4, s50, v7
    v_and_b32 v5, 7, v2
    v_xor_b32 v4, v4, v5
    v_lshlrev_b32 v4, 4, v4
    v_lshl_add_u32 v4, v2, 7, v4
    v_and_b32 v5, 1, v3
    v_lshl_add_u32 v4, v5, 3, v4
    s_mul_i32 s50, s48, 6144
    s_add_u32 s50, s50, {P3_X}
    v_add_u32 v4, s50, v4
    v_xor_b32 v10, 32, v4""")
    a(f"""v_lshlrev_b32 v6, 9, v5
    v_lshl_add_u32 v6, v7, 8, v6
    v_lshl_add_u32 v6, v2, 4, v6
    s_lshl_b32 s50, s40, 1
    s_add_u32 s50, s50, s48
    s_mul_i32 s50, s50, {3*20480}
    s_lshl_b32 s53, s41, 1
    s_add_u32 s53, s53, s49
    s_lshl_b32 s53, s53, 10
    s_add_u32 s53, s53, s50
    s_add_u32 s53, s53, {HH}""")
    a(f"""v_lshlrev_b32 v15, 3, v2
    v_lshl_add_u32 v15, v5, 2, v15
    s_mul_i32 s50, s{sWAVE}, 384
    s_add_u32 s50, s50, {P3_ST}
    v_add_u32 v15, s50, v15""")
    self.finish(M_S2, 'p2st')
    a("s_cmp_ge_u32 s2, 220\ns_cbranch_scc1 L_idle")
    a("s_mov_b64 s[62:63], 0")
    self.bar()
    self.bar()
    self.stamp('p3b0')
    XR = 120
    def aread(st, j, i, dst):
        off = (st % RA) * 12288 + 2048 * i + 1024 * j
        if st < 8: return [f"ds_read_b128 {vr(dst)}, v8 offset:{off}"]
        return [f"ds_read_b64 {vr(dst+2*e,2)}, v9 offset:{off+128*e}" for e in range(2)]
    def wread(st, j, nu, t, dst):
        b = (14, 11, 12, 13)[2 * (st >= 5) + nu]
        return f"ds_read_b64_tr_b16 {vr(dst,2)}, v{b} offset:{8192*(st%5)+4096*j+512*t}"
    def hook(st, lg):
        if st == (7 if opt('xlate', 0) else 4):
            for mu in range(3):
                for nu in range(2):
                    lg.op(f"ds_read_b64 {vr(XR+4*mu+2*nu,2)}, v{10 if nu else 4} offset:{2048*mu}", 'xr')
        if st == (8 if opt('xlate', 0) else 6):
            lg.need('xr')
            for i in range(12):
                a(f"v_lshlrev_b32 v{136+2*i}, 16, v{XR+i}\nv_and_b32 v{137+2*i}, 0xffff0000, v{XR+i}")
    g96_loop(self, 10, aread, wread, hook)
    self.stamp('p3loop')
    a(".p2align 3")
    for i in range(12): a(f"v_pk_add_f32 {vr(136+2*i,2)}, {vr(136+2*i,2)}, {vr(ACC+2*i,2)}")
    for i in range(12): a(f"v_cvt_pk_bf16_f32 v{160+i}, v{136+2*i}, v{137+2*i}")
    for mu in range(3):
        pk = 160 + 4 * mu
        a(f"v_permlane16_swap_b32 v{pk}, v{pk+2}\nv_permlane16_swap_b32 v{pk+1}, v{pk+3}")
        a(f"buffer_store_dwordx4 {vr(pk)}, v6, {WS}, s53 offen sc1")
        if mu < 2: a("s_add_u32 s53, s53, 20480")
    self.stamp('p3epi')
    self.finish(M_S3, 'p3st')
    for mu in range(3):
        b = 136 + 8 * mu
        a(f"v_pk_add_f32 {vr(176+4*mu,2)}, {vr(b,2)}, {vr(b+2,2)}\nv_pk_mul_f32 {vr(178+4*mu,2)}, {vr(b,2)}, {vr(b,2)}")
    for i in range(1, 4):
        for mu in range(3):
            b = 136 + 8 * mu + 2 * i
            if i > 1: a(f"v_pk_add_f32 {vr(176+4*mu,2)}, {vr(176+4*mu,2)}, {vr(b,2)}")
            a(f"v_pk_fma_f32 {vr(178+4*mu,2)}, {vr(b,2)}, {vr(b,2)}, {vr(178+4*mu,2)}")
    for mu in range(3): a(f"v_add_f32 v{176+4*mu}, v{176+4*mu}, v{177+4*mu}\nv_add_f32 v{177+4*mu}, v{178+4*mu}, v{179+4*mu}")
    for mu in range(3): a(f"v_permlane16_swap_b32 v{176+4*mu}, v{177+4*mu}")
    for mu in range(3): a(f"v_add_f32 v{176+4*mu}, v{176+4*mu}, v{177+4*mu}")
    for mu in range(3): a(f"v_mov_b32 v{177+4*mu}, v{176+4*mu}")
    for mu in range(3): a(f"v_permlane32_swap_b32 v{176+4*mu}, v{177+4*mu}")
    for mu in range(3): a(f"v_add_f32 v{176+4*mu}, v{176+4*mu}, v{177+4*mu}")
    for mu in range(3): a(f"ds_write_b32 v15, v{176+4*mu} offset:{128*mu}")
    a("L_p4_c_in:")
    if self.upto >= 4: p4_c_pre(self)
    a("s_waitcnt lgkmcnt(0)")
    if self.upto == 3: self.bar()

def g96_apieces(a, pitch, vb):
    a(f"s_mul_i32 s76, s{sHW}, 3")
    for i in range(3):
        a(f"""s_add_u32 s77, s76, {i}
        s_lshr_b32 s79, s77, 1
        s_mul_i32 s78, s79, {pitch}
        s_and_b32 s77, s77, 1
        s_lshl_b32 s77, s77, 10
        s_add_u32 s78, s78, s77
        s_add_u32 s78, s78, {4096 - 1024*i}
        s_mul_i32 s77, s64, 6
        s_add_u32 s77, s77, s79
        s_cmp_ge_u32 s77, 128
        s_cselect_b32 s78, {OOB//2}, s78
        v_lshl_add_u32 v{vb+i}, v1, 4, s78""")

def p3_h(self):
    a = self.a
    self.vm = VM()
    p5_h_pre(self)
    g96_apieces(a, 20480, 105)
    a(f"""v_lshrrev_b32 v10, 3, v1
    v_and_b32 v11, 7, v1
    v_xor_b32 v11, v11, v10
    v_mul_u32_u24 v108, 1280, v10
    v_lshl_add_u32 v108, v11, 4, v108
    s_lshl_b32 s44, s64, 2
    s_add_u32 s44, s44, s{sHW}
    s_mul_i32 s44, s44, {24*1280}
    s_lshl_b32 s45, s65, 7
    s_add_u32 s44, s44, s45
    s_mul_i32 s45, s64, {6*20480}
    s_add_u32 s45, s45, {OO - 4096}
    s_sub_u32 s46, s72, {4*(M_S4-M_S2)}
    s_mul_i32 s47, s64, 3
    s_add_u32 s48, s47, 2
    s_min_u32 s48, s48, 63
    s_lshr_b32 s47, s47, 3
    s_lshr_b32 s48, s48, 3
    s_cmp_eq_u32 s47, s48
    s_cselect_b32 s47, 32, 64""")
    self.finish(M_S2, 'p2st_h')
    a("s_cmp_ge_u32 s2, 220\ns_cbranch_scc1 L_idle")
    def xdma():
        for i in range(3):
            a(f"s_add_u32 m0, s70, {P3_X + 1024*i}")
            self.vmem(f"buffer_load_dwordx4 v108, {srd(SRD_X)}, s44 offen lds", 'x')
            if i < 2: a(f"s_add_u32 s44, s44, {8*1280}")
    if not opt('xlate', 0): xdma()
    a(f"""s_mul_i32 s50, s64, {3*9363}
    s_lshr_b32 s50, s50, 16
    s_mul_i32 s50, s50, 27
    v_add_u32 v247, s50, v1
    s_cmp_eq_u32 s64, 21
    s_cselect_b32 s50, 13, s73
    v_cmp_gt_u32 vcc, s50, v1
    s_lshl_b32 s60, 0x11111111, s{sHW}
    s_mov_b32 s61, s60
    s_and_b64 s[60:61], s[60:61], vcc""")
    self.sigprep(4)
    self.poll1(5, "s46", "s47", 8, 9)
    self.stamp('p3poll', 4)
    def adma(st):
        a(f"s_add_u32 m0, s70, {P3_A + (st % RA)*12288}")
        for i in range(3):
            self.vmem(f"buffer_load_dwordx4 v{105+i}, {WS}, s45 offen offset:{1024*i} sc1 lds", ('p3', st))
        if st < 9: a("s_add_u32 s45, s45, 2048")
    for st in range(4): adma(st)
    a(f"""s_lshl_b32 s50, s{sHW}, 8
    v_lshl_add_u32 v12, v1, 2, s50
    v_add_u32 v13, {P3_ST}, v12
    s_lshl_b32 s54, s65, 15
    s_mul_i32 s55, s64, 768
    s_add_u32 s54, s54, s55
    s_add_u32 s54, s54, {ST2}
    s_cmp_eq_u32 s{sHW}, 3
    s_cselect_b32 s54, {OOB//2}, s54""")
    for st in range(10):
        self.wait_vm(('p3', st))
        self.bar()
        if st == 5 and opt('xlate', 0): xdma()
        if st >= 1 and st + LA96 < 10: adma(st + LA96)
    if self.upto >= 4: p4_h_pre(self)
    self.finish(M_S3, 'p3st_h')
    if self.upto == 3:
        self.bar(); st2_store(self)

def st2_store(self):
    self.a("""ds_read_b32 v14, v13
    ds_read_b32 v15, v13 offset:768
    s_waitcnt lgkmcnt(0)
    v_add_f32 v14, v14, v15""")
    self.vmem(f"buffer_store_dword v14, v12, {WS}, s54 offen sc1", 'st2st')

def aux_signal(self):
    self.a(f"""v_mov_b32 v246, 1
    s_mov_b64 exec, s[60:61]""")
    self.vmem(f"buffer_atomic_add v246, v247, {WS}, 0 offen offset:{4*M_CS4} sc1", 'aux')
    self.a("s_mov_b64 exec, -1")

def p4_c_pre(self):
    a = self.a
    SLOT, T = P4_SLOT, P4_TAB
    p4_coords(a)
    XA, WA = 8, 10
    a(f"""s_mul_i32 s50, s48, 7168
    v_lshl_add_u32 v{XA}, v1, 4, s50
    v_add_u32 v{XA+1}, {2*SLOT}, v{XA}
    v_add_u32 v{WA}, 16384, v14
    v_xor_b32 v{WA+1}, 32, v{WA}
    v_add_u32 v{WA+2}, {2*SLOT}, v{WA}
    v_add_u32 v{WA+3}, {2*SLOT}, v{WA+1}
    s_mul_i32 s50, s48, 1792
    s_add_u32 s50, s50, {T}
    v_lshl_add_u32 v4, v2, 4, s50
    s_lshl_b32 s50, s49, 7
    s_add_u32 s50, s50, {T+4096}
    v_lshl_add_u32 v5, v3, 4, s50""")
    a(f"""v_and_b32 v6, 1, v3
    v_lshlrev_b32 v6, 9, v6
    v_lshrrev_b32 v7, 1, v3
    v_lshl_add_u32 v6, v7, 8, v6
    v_lshl_add_u32 v6, v2, 4, v6
    s_lshl_b32 s50, s40, 1
    s_add_u32 s50, s50, s48
    s_mul_i32 s50, s50, {7*216*256}
    s_lshl_b32 s51, s41, 1
    s_add_u32 s51, s51, s49
    s_lshl_b32 s51, s51, 10
    s_add_u32 s50, s50, s51
    s_add_u32 s50, s50, {HP}""")

def glu_epilogue(a, units, PK, store):
    NEG = "op_sel_hi:[1,0,1] neg_lo:[0,1,0] neg_hi:[0,1,0]"
    def A(u):
        b, cs, st = units[u]
        o = [f"v_pk_fma_f32 {vr(b+2*h,2)}, {vr(cs+2*h,2)}, {vr(st,2)}, {vr(b+2*h,2)} {NEG}" for h in range(4)]
        o += [f"v_pk_mul_f32 {vr(b+2*h,2)}, {vr(b+2*h,2)}, {vr(st,2)} op_sel:[0,1] op_sel_hi:[1,1]" for h in range(4)]
        o += [f"v_exp_f32 v{b+i}, v{b+i}" for i in range(8)]
        o += [f"v_pk_fma_f32 {vr(b+2*h,2)}, {vr(cs+2*h,2)}, {vr(st,2)}, {vr(b+2*h,2)} {NEG}" for h in range(4, 8)]
        o += [f"v_pk_fma_f32 {vr(b+2*h,2)}, {vr(b+2*h,2)}, {vr(st+2,2)}, {vr(st+2,2)} op_sel_hi:[1,0,0]" for h in range(4)]
        o += [f"v_rcp_f32 v{b+i}, v{b+i}" for i in range(8)]
        return o
    def B(u):
        b = units[u][0]; pk = PK + 4 * (u % 4)
        o = [f"v_pk_mul_f32 {vr(b+2*h,2)}, {vr(b+2*h,2)}, {vr(b+8+2*h,2)}" for h in range(4)]
        o += [f"v_cvt_pk_bf16_f32 v{pk+h}, v{b+2*h}, v{b+2*h+1}" for h in (0, 2, 1, 3)]
        return o
    def C(u):
        pk = PK + 4 * (u % 4)
        return [f"v_permlane16_swap_b32 v{pk}, v{pk+2}", f"v_permlane16_swap_b32 v{pk+1}, v{pk+3}"] + store(u, pk)
    n = len(units)
    for u in range(n + 1):
        cur = A(u) if u < n else []
        for t in cur[:4] + (B(u - 1) if u else []) + cur[4:8] + (C(u - 1) if u else []) + cur[8:]: a(t)

def p4_c(self):
    a = self.a
    R, SLOT = P4_R, P4_SLOT
    XA, WA = 8, 10
    FR = 16; ACC = 112
    a("""s_mul_i32 s51, s40, 152922
    s_lshr_b32 s51, s51, 16
    s_mul_i32 s51, s51, 10
    v_add_u32 v247, s51, v1
    v_cmp_gt_u32 vcc, 30, v1""")
    self.sigprep(0)
    lg = LG(a)
    def reads(g):
        slot = g % R
        win, off = (slot >> 1, (slot & 1) * SLOT) if R == 4 else (0, slot * SLOT)
        fb = FR + 48 * (g & 1)
        W = lambda nu: [(f"ds_read_b64_tr_b16 {vr(fb+32+4*nu+2*t,2)}, v{WA+2*win+(nu&1)} offset:{off+4096*(nu>>1)+512*t}", ('W', g, nu)) for t in range(2)]
        X = lambda i: [(f"ds_read_b128 {vr(fb+4*i)}, v{XA+win} offset:{off+1024*i}", ('X', g, i))]
        out = W(0) + X(0) + W(1) + W(2) + W(3)
        for i in range(1, 7): out += X(i)
        return out
    self.bar()
    self.bar()
    self.stamp('p4b0')
    for r in reads(0): lg.op(*r)
    ST, CSR, PK = 16, 48, 64
    for g in range(20):
        fb = FR + 48 * (g & 1)
        nxt = []
        k = 0; n = 0
        for mu in range(7):
            for nu in range(4):
                if n == 8:
                    self.bar()
                    if g + 1 < 20: nxt = reads(g + 1)
                    else:
                        nxt = [(f"ds_read_b128 {vr(CSR+4*q)}, v5 offset:{256*(q>>1)+64*(q&1)}", None) for q in range(4)]
                        nxt += [(f"ds_read_b128 {vr(ST+4*q)}, v4 offset:{256*q}", None) for q in range(7)]
                ac = ACC + 16 * mu + 4 * nu
                c = "0" if g == 0 else vr(ac)
                if g > 0 and n == 0: lg.need(('X', g, 1))
                if n == (4 if g else 7): lg.need(('X', g, 6))
                lg.need(('W', g, nu), ('X', g, mu))
                a(f"v_mfma_f32_16x16x32_bf16 {vr(ac)}, {vr(fb+32+4*nu)}, {vr(fb+4*mu)}, {c}")
                if k < len(nxt) and n % 8 != 7: lg.op(*nxt[k]); k += 1
                n += 1
        assert k == len(nxt)
    lg.drain()
    self.stamp('p4loop')
    a(".p2align 3")
    glu_epilogue(a, [(ACC + 16 * mu, CSR, ST + 4 * mu) for mu in range(7)], PK,
                 lambda u, pk: [f"buffer_store_dwordx4 {vr(pk)}, v6, {WS}, s50 offen sc1", f"s_add_u32 s50, s50, {216*256}"])
    self.stamp('p4epi')
    a("L_p5_c_pre:")
    if self.upto >= 5: p5_c_pre(self)
    self.finish(M_S4, 'p4st')
    a("s_cmp_ge_u32 s2, 220\ns_cbranch_scc1 L_end")

def p4_h_pre(self):
    a = self.a
    p4_coords(a)
    self.w128_dma_voff(3456, 3, 10, 11)
    a(f"""s_and_b32 s42, s{sHW}, 1
    s_lshl_b32 s42, s42, 6
    v_xor_b32 v3, s42, v3
    v_lshlrev_b32 v2, 4, v1
    v_add_u32 v4, {20480-1024}, v2
    v_add_u32 v5, {2*(20480-1024)}, v2
    v_add_u32 v6, {3*(20480-1024)}, v2
    s_cmp_eq_u32 s{sHW}, 3
    s_cselect_b32 s44, {OOB//2}, 0
    v_add_u32 v5, s44, v5
    v_add_u32 v6, s44, v6
    s_mul_i32 s44, s40, {14*20480}
    s_mul_i32 s45, s{sHW}, {4*20480}
    s_add_u32 s44, s44, s45
    s_add_u32 s44, s44, {HH}
    s_mul_i32 s45, s{sHW}, {8*3456}
    s_lshl_b32 s46, s41, 7
    s_add_u32 s45, s45, s46
    s_lshl_b32 s47, s{sHW}, 12
    s_lshl_b32 s43, s{sHW}, 10
    s_mul_i32 s50, s40, 27
    s_add_u32 s50, s50, s41
    s_lshl_b32 s50, s50, 7
    s_add_u32 s51, s50, {4*M_S3}
    s_add_u32 s50, s50, {4*M_CS4}
    s_mov_b32 s56, 30""")

def p4_h(self):
    a = self.a
    R, SLOT, T = P4_R, P4_SLOT, P4_TAB
    LA = R - 1
    self.vm = VM()
    a("L_p4_h_in:")
    XV = [2, 4, 5, 6]
    NWP = opt('w4p', 3)
    w5n = [0]
    def wdma(st):
        slot = st % R
        a(f"s_add_u32 s58, s45, {st*32*3456}\ns_add_u32 m0, s43, {slot*SLOT+16384}")
        self.vmem(f"buffer_load_dwordx4 v3, {srd(SRD_WG)}, s58 offen lds", ('p4', st))
        a(f"s_add_u32 m0, s43, {slot*SLOT+20480}")
        self.vmem(f"buffer_load_dwordx4 v3, {srd(SRD_WU)}, s58 offen lds", ('p4', st))
    def dma(st):
        slot = st % R
        a(f"s_add_u32 s59, s44, {1024*st}\ns_add_u32 m0, s47, {slot*SLOT}")
        for i in range(4):
            self.vmem(f"buffer_load_dwordx4 v{XV[i]}, {WS}, s59 offen offset:{1024*i} sc1 lds", ('p4', st))
        if st >= NWP: wdma(st)
    for st in range(NWP): wdma(st)
    self.poll1(5, "s51", "s56", 8, 9)
    a("v_mov_b32 v8, 0")
    self.stamp('p4poll', 4)
    for st in range(LA): dma(st)
    a(f"""v_lshlrev_b32 v9, 2, v1
    s_mul_i32 s48, s40, 1792
    s_lshl_b32 s49, s{sHW}, 9
    s_add_u32 s48, s48, s49
    s_add_u32 s48, s48, {ST2}
    v_lshlrev_b32 v7, 3, v1
    s_and_b32 s52, s{sHW}, 1
    s_mul_i32 s49, s52, {1728*4}
    s_lshl_b32 s53, s41, 8
    s_add_u32 s49, s49, s53
    s_add_u32 s49, s49, {CS4}
    s_add_u32 s56, s56, 8""")
    for st in range(20):
        self.wait_vm(('p4', st))
        self.bar()
        if st % 2 == 1: self.sstamp(f'h4b{st}')
        if st == 0: st2_store(self)
        if st + LA < 20: dma(st + LA)
        if st == LA:
            aux_signal(self)
        C0 = opt('c0', 11)
        if st == C0 - 2:
            self.vmem(f"buffer_load_dword v36, v8, {WS}, s50 offen sc1", 'mb')
        if st == C0:
            self.wait_vm('mb')
            a("v_cmp_ne_u32 vcc, s56, v36\ns_cbranch_vccz L_p4_csok")
            keep = list(self.vm.ops)
            self.poll("s50", "s56", 8, 36)
            self.vm.ops = keep
            a("L_p4_csok:")
        CN = opt('cn', 3)
        if C0 <= st:
            for i in range(CN):
                q = CN * (st - C0) + i
                if q >= 14: continue
                if q < 10:
                    self.vmem(f"buffer_load_dwordx2 {vr(40+2*q,2)}, v7, {WS}, s48 offen sc1", ('st2', q))
                    a("s_add_u32 s48, s48, 32768")
                else:
                    self.vmem(f"buffer_load_dword v{22+q}, v9, {WS}, s49 offen sc1", ('st2', q))
                    a(f"s_add_u32 s49, s49, {3456*4}")
        if self.upto >= 5:
            for _ in range(W5PLAN.get(st, 0)):
                k = w5n[0]; w5n[0] += 1
                assert k < 20 - P5_S0 or (k - (20 - P5_S0)) // 3 <= st - 17
                p5_wdma(self, k)
        if st in (15, 16, 17):
            qs = {15: range(0, 4), 16: range(4, 8), 17: range(8, 10)}[st]
            self.wait_vm(('st2', qs[-1]))
            for q in qs:
                if q == 0: continue
                a(f"v_add_f32 v16, v{16 if q > 1 else 40}, v{40+2*q}\nv_add_f32 v17, v{17 if q > 1 else 41}, v{41+2*q}")
        if st == 17:
            a(f"""v_mov_b32 v20, {f32hex(1.0/D)}
            v_mul_f32 v12, v16, v20
            v_mul_f32 v17, v17, v20
            v_fma_f32 v17, -v12, v12, v17
            v_max_f32 v17, 0, v17
            v_add_f32 v17, {f32hex(1e-5)}, v17
            v_rsq_f32 v13, v17
            v_sqrt_f32 v14, v17""")
        if st == 18:
            self.wait_vm(('st2', 13))
            a(f"""v_add_f32 v32, v32, v33
            v_add_f32 v34, v34, v35
            v_add_f32 v32, v32, v34
            v_mov_b32 v15, 0
            v_mul_f32 v13, {f32hex(-LOG2E)}, v13
            s_lshl_b32 s52, s52, 8
            s_add_u32 s52, s52, {T+4096}
            v_add_u32 v10, s52, v9
            s_add_u32 s52, s43, {T}
            v_add_u32 v11, s52, v2""")
        if st == 19: a("ds_write_b32 v10, v32\nds_write_b128 v11, v[12:15]")
    a("s_waitcnt lgkmcnt(0)")
    self.sdump(6)
    self.bar()
    a("L_p5_h_pre:")
    if self.upto >= 5:
        self.vm = VM()
        E = opt('w5e', 19)
        self.vm.add(('p5w', P5_PRE - 1))
        for st in range(P5_PRE, E):
            p5_wdma(self, st)
            if opt('w5d', 0): a(f"s_waitcnt vmcnt({opt('w5d', 0)})")
        self.wait_vm(('p5w', min(12, E - 1)))
    self.bar()
    a("s_cmp_ge_u32 s2, 220\ns_cbranch_scc1 L_end")

def idle_code(self):
    a = self.a
    self.vm = VM()
    a(f"""L_idle:
    s_mul_i32 s40, s{sWAVE}, 36
    s_add_u32 s40, s40, s2
    s_sub_u32 s40, s40, 220
    s_cmp_ge_u32 s40, 216
    s_cbranch_scc1 L_cs4_done
    s_mul_i32 s46, s40, 1214
    s_lshr_b32 s46, s46, 16
    s_mul_i32 s41, s46, 54
    s_sub_u32 s40, s40, s41
    s_cmp_ge_u32 s40, 27
    s_cselect_b32 s44, 27, 0
    s_cselect_b32 s56, s{SRD_WU}, s{SRD_WG}
    s_cselect_b32 s57, s{SRD_WU+1}, s{SRD_WG+1}
    s_mov_b32 s58, {D*F*2}
    s_mov_b32 s59, 0x20000
    s_sub_u32 s45, s40, s44
    s_lshl_b32 s47, s45, 7
    s_mul_i32 s41, s46, {160*3456}
    s_add_u32 s47, s47, s41
    s_mul_i32 s50, s{sWAVE}, 20480""")
    self.colsum_issue("s[56:59]", 3456, 47, 50, 16, 17, 18)
    a(f"""s_mul_i32 s47, s46, {3456*4}
    s_lshl_b32 s41, s40, 8
    s_add_u32 s47, s47, s41
    s_add_u32 s47, s47, {CS4}
    s_waitcnt vmcnt(0)""")
    self.colsum_finish(50, 47, 16)
    a(f"""v_mul_u32_u24 v16, 27, v1
    v_add_u32 v16, s45, v16
    v_cmp_gt_u32 vcc, 9, v1
    s_waitcnt vmcnt(0)""")
    self.signal(16, M_CS4, 17)
    a("L_cs4_done:")
    a.settle()
    self.stamp('csdone')
    a("s_barrier")
    if self.upto < 4:
        a("s_endpgm"); return
    a(f"""s_cmp_ge_u32 s2, 243
    s_cbranch_scc1 L_rem
    s_cmp_lt_u32 s{sWAVE}, 4
    s_cbranch_scc1 L_p4_c_in""")
    p4_h_pre(self)
    a(f"""s_mov_b32 s54, {OOB//2}
    v_mov_b32 v12, 0
    v_mov_b32 v13, 0
    v_mov_b32 v247, {OOB//2}
    s_mov_b64 s[60:61], 1
    s_branch L_p4_h_in""")
    p4_rem(self)

def p4_rem(self):
    a = self.a
    SL = 10240
    ACC, CS, RS, SQ, ONES, FR, ST, PK = 64, 128, 160, 168, 176, 16, 180, 192
    a(f"""L_rem:
    s_mul_i32 s41, s{sWAVE}, 13
    s_add_u32 s41, s41, s2
    s_sub_u32 s41, s41, 243
    s_cmp_ge_u32 s41, 27
    s_cbranch_scc1 L_end""")
    self.w128_dma_voff(3456, 4, 10, 11)
    self.w128_read_addr(10, 2)
    a(f"""v_xor_b32 v5, 64, v4
    v_add_u32 v5, {8*3456-1024}, v5
    v_add_u32 v6, {2*(8*3456-1024)}, v4
    v_add_u32 v7, {2*(8*3456-1024)}, v5
    v_lshlrev_b32 v8, 4, v1
    v_add_u32 v9, {20480-1024}, v8
    s_mul_i32 s42, s{sWAVE}, {5*SL}
    v_add_u32 v10, s42, v10
    v_xor_b32 v11, 32, v10
    v_xor_b32 v12, 64, v10
    v_xor_b32 v13, 96, v10
    v_add_u32 v14, s42, v8
    v_and_b32 v2, 15, v1
    v_lshrrev_b32 v3, 4, v1
    s_lshl_b32 s44, s41, 7
    s_mov_b32 s45, {HH + 126*20480}
    s_lshl_b32 s46, s2, 7
    s_add_u32 s46, s46, {4*M_S3}""")
    for i in range(ONES - ACC): a(f"v_mov_b32 v{ACC+i}, 0")
    for i in range(4): a(f"v_mov_b32 v{ONES+i}, 0x3f803f80")
    def wd(m0):
        o = []
        for k, sr in enumerate((SRD_WG, SRD_WU)):
            o.append(f"s_add_u32 m0, {m0}, {4096*k}")
            o += [f"buffer_load_dwordx4 v{4+i}, {srd(sr)}, s44 offen offset:{1024*i} lds" for i in range(4)]
        return o + [f"s_add_u32 s44, s44, {32*3456}"]
    def xd(m0):
        return [f"s_add_u32 m0, {m0}, 8192"] + [f"buffer_load_dwordx4 v{8+i}, {WS}, s45 offen offset:{1024*i} sc1 lds" for i in range(2)] + ["s_add_u32 s45, s45, 1024"]
    for i in range(5):
        a(f"s_add_u32 s47, s42, {SL*i}")
        for t in wd("s47"): a(t)
    self.pollw("s46", 10, 15, 248)
    for i in range(5):
        a(f"s_add_u32 s47, s42, {SL*i}")
        for t in xd("s47"): a(t)
    a(f"s_mov_b32 s47, s42\ns_mov_b32 s48, 0\ns_mov_b32 s49, 0\ns_waitcnt vmcnt(0)\nL_rem_l:\ns_waitcnt vmcnt(40)")
    for m in range(2): a(f"ds_read_b128 {vr(FR+4*m)}, v14 offset:{8192+1024*m}")
    for n in range(8):
        for t in range(2): a(f"ds_read_b64_tr_b16 {vr(FR+8+4*n+2*t,2)}, v{10+(n&3)} offset:{4096*(n>>2)+512*t}")
    a(f"""s_cmp_ge_u32 s48, 15
    s_cselect_b32 s45, {OOB//2}, s45
    s_add_u32 s48, s48, 1
    s_add_u32 s49, s49, 1
    s_cmp_eq_u32 s49, 5
    s_cselect_b32 s49, 0, s49
    s_mov_b32 s50, {SL}
    s_cselect_b32 s50, {(-4*SL) & 0xffffffff}, s50
    s_waitcnt lgkmcnt(15)""")
    pos = lambda n: 16 * ((n & 3) >> 1) + 8 * (n >> 2) + 4 * (n & 1)
    for m in range(2):
        a(f"v_mfma_f32_16x16x32_bf16 {vr(RS+4*m)}, {vr(ONES)}, {vr(FR+4*m)}, {vr(RS+4*m)}")
        a(f"v_mfma_f32_16x16x32_bf16 {vr(SQ+4*m)}, {vr(FR+4*m)}, {vr(FR+4*m)}, {vr(SQ+4*m)}")
    a("s_waitcnt lgkmcnt(0)")
    side = wd("s47") + xd("s47") + [f"v_add_u32 v{r}, s50, v{r}" for r in range(10, 15)] + ["s_add_u32 s47, s47, s50"]
    for n in range(8):
        for d, B in ((ACC + pos(n), FR), (ACC + 32 + pos(n), FR + 4), (CS + pos(n), ONES)):
            a(f"v_mfma_f32_16x16x32_bf16 {vr(d)}, {vr(FR+8+4*n)}, {vr(B)}, {vr(d)}")
            if side: a(side.pop(0))
    assert not side
    a("s_cmp_lt_u32 s48, 20\ns_cbranch_scc1 L_rem_l")
    a.settle(10)
    a("v_and_b32 v4, 3, v2\nv_lshrrev_b32 v5, 2, v2\nv_cmp_eq_u32 s[50:51], v5, v3")
    for m in range(2):
        q = SQ + 4 * m
        for i in range(1, 4): a(f"v_cmp_eq_u32 vcc, {i}, v4\nv_cndmask_b32 v{q}, v{q}, v{q+i}, vcc")
        a(f"""v_cndmask_b32 v{q}, 0, v{q}, s[50:51]
        v_mov_b32 v{q+1}, v{q}
        v_permlane16_swap_b32 v{q}, v{q+1}
        v_add_f32 v{q}, v{q}, v{q+1}
        v_mov_b32 v{q+1}, v{q}
        v_permlane32_swap_b32 v{q}, v{q+1}
        v_add_f32 v{q}, v{q}, v{q+1}
        v_mul_f32 v{ST+4*m}, {f32hex(1.0/D)}, v{RS+4*m}
        v_mul_f32 v{q}, {f32hex(1.0/D)}, v{q}
        v_fma_f32 v{q}, -v{ST+4*m}, v{ST+4*m}, v{q}
        v_max_f32 v{q}, 0, v{q}
        v_add_f32 v{q}, {f32hex(1e-5)}, v{q}
        v_rsq_f32 v{ST+4*m+1}, v{q}
        v_sqrt_f32 v{ST+4*m+2}, v{q}
        v_mov_b32 v{ST+4*m+3}, 0
        v_mul_f32 v{ST+4*m+1}, {f32hex(-LOG2E)}, v{ST+4*m+1}""")
    a(f"""v_and_b32 v6, 1, v3
    v_lshlrev_b32 v6, 9, v6
    v_lshrrev_b32 v7, 1, v3
    v_lshl_add_u32 v6, v7, 8, v6
    v_lshl_add_u32 v6, v2, 4, v6
    s_lshl_b32 s50, s41, 11
    s_add_u32 s50, s50, {HP + 126*55296}
    s_add_u32 s51, s50, 55296""")
    glu_epilogue(a, [(ACC + 32 * m + 16 * p, CS + 16 * p, ST + 4 * m) for m in range(2) for p in range(2)], PK,
                 lambda u, pk: [f"buffer_store_dwordx4 {vr(pk)}, v6, {WS}, s{50 + (u >> 1)} offen offset:{1024*(u&1)} sc1"])
    a("v_add_u32 v16, 210, v1\ns_waitcnt vmcnt(0)")
    self.signal(16, M_S4, 17, mask='0x3ff')
    self.stamp('remdone')
    a("s_endpgm")

def p5_h_pre(self):
    a = self.a
    p5_coords(a, 64, 65, 66)
    self.w128_dma_voff(1280, 103, 10, 11)
    a(f"""v_xor_b32 v104, 64, v103
    v_add_u32 v104, {8*1280-1024}, v104""")
    a(f"""s_mul_i32 s68, s64, {6*55296}
    s_add_u32 s68, s68, {HP - 4096}
    s_mul_i32 s69, s{sHW}, {16*1280}
    s_lshl_b32 s70, s65, 7
    s_add_u32 s69, s69, s70
    s_mul_i32 s70, s{sHW}, 3072
    s_lshl_b32 s71, s{sHW}, 11
    s_mul_i32 s72, s64, 10
    s_add_u32 s72, s72, s65
    s_lshl_b32 s72, s72, 7
    s_add_u32 s72, s72, {4*M_S4}
    s_cmp_ge_u32 s2, 220
    s_cselect_b32 s69, {OOB//2}, s69""")
    n4_blocks(a, 64, 73, 74)

def p5_wdma(self, st):
    a = self.a
    a(f"s_add_u32 s76, s69, {st*64*1280}\ns_add_u32 m0, s71, {p5_wslot(st)}")
    for i in range(2):
        self.vmem(f"buffer_load_dwordx4 v{103+i}, {srd(SRD_WD)}, s76 offen offset:{1024*i} lds", ('p5w', st))

def p5_sched():
    E = opt('w5e', 19)
    return ([(E - 6, 12)] if E < 13 else []) + [(7, 19), (14, 26)]

def p5_h(self):
    a = self.a
    E = opt('w5e', 19)
    for st in range(E, 20): p5_wdma(self, st)
    self.bar()
    NR = opt('w5r', 7)
    for st in range(20, 20 + NR): p5_wdma(self, st)
    if opt('p5p1', 1): self.bar()
    for step, cover in p5_sched():
        if cover == 26:
            for st in range(20 + NR, 27): p5_wdma(self, st)
        self.wait_vm(('p5w', cover))
        self.bar()
    self.nbar += 1

def p5_c_pre(self):
    a = self.a
    p5_coords(a, 40, 41, 42)
    a(f"""s_lshl_b32 s50, s49, 12
    s_add_u32 s50, s50, {P5_S0*8192}
    v_add_u32 v10, s50, v14
    v_xor_b32 v11, 32, v10
    v_xor_b32 v12, 64, v10
    v_xor_b32 v13, 96, v10
    s_mul_i32 s50, s{sWAVE}, 6144
    v_lshl_add_u32 v8, v1, 4, s50
    s_xor_b32 s50, s{sWAVE}, 2
    s_mul_i32 s50, s50, 6144
    v_lshl_add_u32 v15, v1, 4, s50""")
    a(f"""v_lshrrev_b32 v7, 1, v3
    v_lshlrev_b32 v4, 8, v7
    v_lshl_add_u32 v4, v2, 4, v4
    v_and_b32 v5, 1, v3
    v_lshl_add_u32 v4, v5, 3, v4
    s_lshl_b32 s55, s40, 1
    s_add_u32 s55, s55, s48
    s_mul_i32 s55, s55, 3
    s_mul_i32 s50, s55, 20480
    s_lshl_b32 s52, s41, 1
    s_add_u32 s52, s52, s49
    s_lshl_b32 s53, s52, 10
    s_add_u32 s51, s50, s53
    s_add_u32 s51, s51, {HH}""")
    a(f"""v_mul_u32_u24 v9, 1280, v2
    v_lshl_add_u32 v9, v5, 5, v9
    v_lshl_add_u32 v9, v7, 4, v9
    s_lshl_b32 s54, s52, 6
    s_add_u32 s53, s50, s54
    v_add_u32 v9, s53, v9""")
    for mu in range(3):
        a(f"""s_add_u32 s56, s55, {mu}
        s_cmp_ge_u32 s56, 128
        s_cselect_b32 s56, {OOB//2}, {55296*mu if mu else 0}
        v_lshl_add_u32 v{5+mu}, v1, 4, s56""".replace(f"s_cselect_b32 s56, {OOB//2}, {55296*mu}", f"s_mov_b32 s57, {55296*mu}\n        s_cselect_b32 s56, {OOB//2}, s57"))
    a(f"""s_mul_i32 s56, s55, 55296
    s_lshl_b32 s57, s49, 10
    s_add_u32 s56, s56, s57
    s_add_u32 s56, s56, {HP}
    s_mul_i32 s57, s40, 10
    s_add_u32 s57, s57, s41
    s_lshl_b32 s57, s57, 7
    s_add_u32 s57, s57, {4*M_S4}
    s_nop 0""")
    n4_blocks(a, 40, 58, 59)

def p5_c(self):
    a = self.a
    self.vm = VM()
    ACC, WR, AR, HR = 16, 64, 176, 236
    NW, NA = 7, 5
    lg = LG(a)
    win = [P5_S0]
    def wreads(st):
        sl = (st + P5_S0) % P5_RW
        out = []
        if not (0 <= sl - win[0] <= 6):
            d = (sl - win[0]) * 8192
            out.append(("\n".join(f"v_add_u32 v{10+i}, {d & 0xffffffff}, v{10+i}" for i in range(4)), 'valu'))
            win[0] = sl
        wb = WR + 16 * (st % NW)
        out += [(f"ds_read_b64_tr_b16 {vr(wb+4*i+2*t,2)}, v{10+i} offset:{8192*(sl-win[0])+512*t}", ('W', st)) for i in range(4) for t in range(2)]
        return out
    def emit(op):
        if op[1] == 'valu': a(op[0])
        else: lg.op(*op)
    def aload(st, mu):
        self.vmem(f"buffer_load_dwordx4 {vr(AR+12*(st%NA)+4*mu)}, v{5+mu}, {WS}, s56 offen offset:{2048*(st&1)} sc1", ('A', st))
        if mu == 2 and st & 1: a("s_add_u32 s56, s56, 4096")
    for mu in range(3):
        for nu in range(2):
            a(f"buffer_load_dwordx2 {vr(HR+4*mu+2*nu,2)}, v4, {WS}, s51 offen offset:{512*nu} sc1")
        if mu < 2: a("s_add_u32 s51, s51, 20480")
    for st in range(NW):
        for op in wreads(st): emit(op)
        if st: lg.need(('W', st - 1))
    lg.drain()
    self.bar()
    if opt('p5p1', 1): self.poll1(1, "s57", "s58", 4, 0)
    else: self.pollw("s57", "s58", 4, AR)
    self.stamp('p5poll')
    for st in range(NA):
        for mu in range(3): aload(st, mu)
    for st in range(27):
        if st in [x[0] for x in p5_sched()]: self.bar()
        self.wait_vm(('A', st))
        if st == 0: self.stamp('p5b0')
        lg.need(('W', st))
        nxt = wreads(st - 1 + NW) if st >= 1 and st - 1 + NW < 27 else []
        k = 0; n = 0
        seq = [(mu, i) for mu in range(3) for i in range(4)]
        if st == 26: seq = [x for x in seq if x[1] >= 2] + [x for x in seq if x[1] < 2]
        for mu, i in seq:
                ac = ACC + 16 * mu + 4 * i
                c = "0" if st == 0 else vr(ac)
                a(f"v_mfma_f32_16x16x32_bf16 {vr(ac)}, {vr(WR+16*(st%NW)+4*i)}, {vr(AR+12*(st%NA)+4*mu)}, {c}")
                if n < 3 and st >= 1 and st - 1 + NA < 27: aload(st - 1 + NA, n)
                elif k < len(nxt): emit(nxt[k]); k += 1
                if st == 24:
                    a(f"v_lshlrev_b32 v{64+2*n}, 16, v{HR+n}\nv_and_b32 v{65+2*n}, 0xffff0000, v{HR+n}")
                if st == 26 and n >= 6:
                    q = n - 6
                    a(f"ds_write_b128 v8, {vr(ACC+16*(q>>1)+8+4*(q&1))} offset:{1024*q}")
                n += 1
        assert k == len(nxt)
        if st == 23 and opt('otr', 0):
            a(f"""s_mul_i32 s50, s{sWAVE}, 3072
            s_add_u32 s50, s50, 24576
            v_and_b32 v6, 1, v3
            v_lshlrev_b32 v6, 1, v6
            v_lshrrev_b32 v7, 1, v3
            v_add_u32 v6, v6, v7
            v_lshrrev_b32 v7, 2, v2
            v_xor_b32 v6, v6, v7
            v_lshlrev_b32 v6, 4, v6
            v_lshl_add_u32 v6, v2, 6, v6
            v_add_u32 v6, s50, v6
            v_lshl_add_u32 v7, v1, 4, s50
            v_lshrrev_b32 v5, 2, v1
            v_mul_u32_u24 v5, 1280, v5
            v_and_b32 v4, 3, v1
            v_xor_b32 v4, v4, v3
            v_lshl_add_u32 v5, v4, 4, v5
            v_add_u32 v5, s53, v5""")
        if st == 22:
            pass
    self.stamp('p5loop')
    a("s_waitcnt lgkmcnt(0)")
    self.bar()
    for q in range(6): a(f"ds_read_b128 {vr(96+4*q)}, v15 offset:{1024*q}")
    for mu in range(3):
        for h in range(4): a(f"v_pk_add_f32 {vr(64+8*mu+2*h,2)}, {vr(64+8*mu+2*h,2)}, {vr(ACC+16*mu+2*h,2)}")
    for mu in range(3):
        a(f"s_waitcnt lgkmcnt({4-2*mu})")
        for h in range(4): a(f"v_pk_add_f32 {vr(64+8*mu+2*h,2)}, {vr(64+8*mu+2*h,2)}, {vr(96+8*mu+2*h,2)}")
        pk = 128 + 4 * mu
        for h in (0, 2, 1, 3): a(f"v_cvt_pk_bf16_f32 v{pk+h}, v{64+8*mu+2*h}, v{65+8*mu+2*h}")
        a(f"v_permlane16_swap_b32 v{pk}, v{pk+2}\nv_permlane16_swap_b32 v{pk+1}, v{pk+3}")
        if opt('otr', 0): a(f"ds_write_b128 v6, {vr(pk)} offset:{1024*mu}")
        else:
            a(f"buffer_store_dwordx4 {vr(pk)}, v9, {srd(SRD_OUT)}, 0 offen {opt('opol', 'sc1')}")
            if mu < 2: a("v_add_u32 v9, 20480, v9")
    if opt('otr', 0):
        for mu in range(3): a(f"s_waitcnt lgkmcnt({2-mu})\nds_read_b128 {vr(144+4*mu)}, v7 offset:{1024*mu}".replace(f"lgkmcnt({2-mu})", f"lgkmcnt({2})"))
        for mu in range(3):
            a(f"s_waitcnt lgkmcnt({2-mu})")
            a(f"buffer_store_dwordx4 {vr(144+4*mu)}, v5, {srd(SRD_OUT)}, 0 offen {opt('opol', 'sc1')}")
            if mu < 2: a("v_add_u32 v5, 20480, v5")
    self.stamp('end')
```

```python
import sys, math, struct
from asmlib import Asm

NAME = "sequential_preLN__sliding_block__glu_gated_glu__prompt"
S, D, F = 2048, 640, 1728
MB = 0
M_S0, M_S1, M_S2, M_S3, M_S4, M_CS4, M_S1V, M_S4B = range(8)
MEAN1 = 0x10000
RSTD1 = 0x12000
CS1 = 0x14000
CS4 = 0x1C000
ST2 = 0x30000
TS = 0x90000
QKV = 0x100000
OO = 0x900000
HH = 0xC00000
HP = 0x1000000
WS_END = 0x1700000
LDS_BYTES = 163840
OOB = 0x7ffffff0
LOG2E = math.log2(math.e)

sWAVE = 3
SRD_WS, SRD_X, SRD_WQKV, SRD_WO, SRD_WG, SRD_WU, SRD_WD, SRD_OUT, SRD_DBG = [4 + 4 * i for i in range(9)]
def srd(b): return f"s[{b}:{b+3}]"
WS = srd(SRD_WS)
sBOUND = 96
sHW = 97
def vr(b, n=4): return f"v[{b}:{b+n-1}]"
def f32hex(x): return "0x%08x" % struct.unpack('<I', struct.pack('<f', x))[0]

OPT = dict(a.split('=') for a in sys.argv[1:] if '=' in a)
def opt(k, d): return type(d)(OPT.get(k, d))

class VM:
    def __init__(self): self.ops = []
    def add(self, tag): self.ops.append(tag)
    def count_after(self, tag):
        idx = max(i for i, t in enumerate(self.ops) if t == tag)
        return len(self.ops) - 1 - idx
    def clear(self): self.ops = []

class LG:
    def __init__(self, a): self.a = a; self.n = 0; self.pos = {}; self.done = 0
    def op(self, text, tag=None):
        self.a(text); self.n += 1
        if tag is not None: self.pos[tag] = self.n
    def need(self, *tags):
        p = max(self.pos[t] for t in tags)
        if p > self.done:
            c = min(self.n - p, 15)
            self.a(f"s_waitcnt lgkmcnt({c})")
            self.done = self.n - c
    def drain(self):
        if self.done < self.n:
            self.a("s_waitcnt lgkmcnt(0)"); self.done = self.n

class Gen:
    def __init__(self, upto=5, stamps=False):
        self.a = Asm()
        self.vm = VM()
        self.upto = upto
        self.stamps = stamps
        self.tail = []
        self.stamp_names = []
        self.nbar = 0
        self.spend = []
        self.sbase = 80

    def vmem(self, text, tag):
        self.a(text); self.vm.add(tag)
    def wait_vm(self, tag):
        n = self.vm.count_after(tag)
        assert n <= 63, n
        self.a(f"s_waitcnt vmcnt({n})")
    def bar(self):
        self.a("s_barrier"); self.nbar += 1
    def build_srd(self, b, ptr, nbytes):
        self.a(f"s_mov_b32 s{b}, s{ptr}\ns_mov_b32 s{b+1}, s{ptr+1}\ns_mov_b32 s{b+2}, {nbytes}\ns_mov_b32 s{b+3}, 0x20000")
    def stamp(self, name, wave=0):
        if opt('dly', '') == name:
            self.a("s_waitcnt lgkmcnt(0)\ns_memrealtime s[100:101]\ns_waitcnt lgkmcnt(0)\ns_mov_b32 s1, s100")
        if opt('dly', '') and name == 'end':
            if opt('dlyx', -1) >= 0: self.a(f"s_and_b32 s100, s2, 7\ns_cmp_lg_u32 s100, {opt('dlyx', -1)}\ns_cbranch_scc1 L_end")
            self.a("L_dly:\ns_memrealtime s[100:101]\ns_waitcnt lgkmcnt(0)\ns_sub_u32 s100, s100, s1\ns_cmp_lt_u32 s100, 4000\ns_cbranch_scc1 L_dly")
        if not self.stamps: return
        a = self.a
        if name in self.stamp_names: i = self.stamp_names.index(name)
        else:
            i = len(self.stamp_names); self.stamp_names.append(name)
        assert i < 64
        L = a.newlabel('Lst')
        a(f"""s_cmp_lg_u32 s{sWAVE}, {wave}
        s_cbranch_scc1 {L}
        s_memrealtime s[100:101]
        v_mov_b32 v255, s2
        v_lshlrev_b32 v255, 9, v255
        v_add_u32 v255, {TS + 8*i}, v255
        s_waitcnt lgkmcnt(0)
        v_mov_b32 v252, s100
        s_memtime s[100:101]
        s_waitcnt lgkmcnt(0)
        v_mov_b32 v253, s100
        s_mov_b64 exec, 1
        buffer_store_dwordx2 v[252:253], v255, {WS}, 0 offen
        s_mov_b64 exec, -1
        {L}:""")

    def sstamp(self, name):
        if not self.stamps: return
        k = len(self.spend); assert k < 16
        self.spend.append(name)
        self.a(f"s_memtime s[100:101]\ns_waitcnt lgkmcnt(0)\ns_mov_b32 s{self.sbase+k}, s100")
    def sdump(self, wave):
        if not self.stamps: return
        a = self.a
        L = a.newlabel('Lsd')
        a(f"""s_cmp_lg_u32 s{sWAVE}, {wave}
        s_cbranch_scc1 {L}
        v_mov_b32 v255, s2
        v_lshlrev_b32 v255, 9, v255
        v_add_u32 v255, {TS}, v255
        v_mov_b32 v252, 0
        s_mov_b64 exec, 1""")
        for k, name in enumerate(self.spend):
            i = len(self.stamp_names); self.stamp_names.append(name); assert i < 64
            a(f"v_mov_b32 v253, s{self.sbase+k}\nbuffer_store_dwordx2 v[252:253], v255, {WS}, 0 offen offset:{8*i}")
        a(f"s_mov_b64 exec, -1\n{L}:")
        self.spend = []

    def wave_sum(self, vs, sdsts):
        for mod in ("quad_perm:[1,0,3,2] row_mask:0xf", "quad_perm:[2,3,0,1] row_mask:0xf", "row_half_mirror row_mask:0xf",
                    "row_mirror row_mask:0xf", "row_bcast:15 row_mask:0xa", "row_bcast:31 row_mask:0xc"):
            for v in vs:
                self.a(f"v_add_f32_dpp v{v}, v{v}, v{v} {mod} bank_mask:0xf")
        for v, s in zip(vs, sdsts):
            self.a(f"v_readlane_b32 s{s}, v{v}, 63")

    def poll(self, soff, expect, va, vt, srdb=SRD_WS):
        a = self.a
        L = a.newlabel('Lpoll'); Ld = L + 'd'
        a(f"""v_mov_b32 v{va}, 0
        {L}:
        buffer_load_dword v{vt}, v{va}, {srd(srdb)}, {soff} offen sc1
        s_waitcnt vmcnt(0)
        v_cmp_ne_u32 vcc, {expect}, v{vt}
        s_cbranch_vccz {Ld}
        s_sleep 1
        s_sub_u32 s{sBOUND}, s{sBOUND}, 1
        s_cbranch_scc0 {L}
        s_mov_b32 s{sBOUND}, 0
        {Ld}:""")
        self.vm.clear()

    def pollw(self, soff, expect, va, vt, depth=1):
        a = self.a
        L = a.newlabel('Lpoll'); Ld = L + 'd'
        a(f"v_mov_b32 v{va}, 0\ns_mov_b64 exec, 1")
        pl = lambda k: a(f"v_mov_b32 v{vt+k}, 0\nbuffer_atomic_add v{vt+k}, v{va}, {WS}, {soff} offen sc0 sc1")
        for k in range(depth - 1):
            pl(k); a("s_sleep 3")
        a(f"{L}:")
        for k in range(depth):
            pl((k + depth - 1) % depth)
            a(f"s_waitcnt vmcnt({depth-1})\nv_cmp_ne_u32 vcc, {expect}, v{vt+k}\ns_cbranch_vccz {Ld}")
        a(f"""s_sub_u32 s{sBOUND}, s{sBOUND}, 1
        s_cbranch_scc0 {L}
        s_mov_b32 s{sBOUND}, 0
        {Ld}:
        s_mov_b64 exec, -1""")

    def poll1(self, wave, soff, expect, va, vt):
        a = self.a
        L = a.newlabel('Lp1')
        a(f"s_cmp_lg_u32 s{sWAVE}, {wave}\ns_cbranch_scc1 {L}")
        self.pollw(soff, expect, va, 248, depth=opt('pd', 3))
        a(f"{L}:")
        self.bar()

    def signal(self, vline, dword, vt, mask='vcc'):
        self.a(f"""v_lshlrev_b32 v{vline}, 7, v{vline}
        v_mov_b32 v{vt}, 1
        s_mov_b64 exec, {mask}
        buffer_atomic_add v{vt}, v{vline}, {WS}, 0 offen offset:{4*dword} sc1
        s_mov_b64 exec, -1""")

    def w128_dma_voff(self, pitch, vE, vt, vt2):
        self.a(f"""v_lshrrev_b32 v{vt}, 3, v1
        v_mul_u32_u24 v{vE}, {pitch}, v{vt}
        v_and_b32 v{vt}, 2, v{vt}
        v_and_b32 v{vt2}, 7, v1
        v_xor_b32 v{vt}, v{vt}, v{vt2}
        v_lshl_add_u32 v{vE}, v{vt}, 4, v{vE}""")

    def colsum_issue(self, srdb, pitch, s_goff, s_lds, vE, vO, vt):
        a = self.a
        self.w128_dma_voff(pitch, vE, vt, vO)
        a(f"v_xor_b32 v{vO}, 64, v{vE}")
        for i in range(20):
            a(f"s_add_u32 m0, s{s_lds}, {1024*i}")
            self.vmem(f"buffer_load_dwordx4 v{vO if i & 1 else vE}, {srdb}, s{s_goff} offen lds", 'cs')
            if i < 19: a(f"s_add_u32 s{s_goff}, s{s_goff}, {8*pitch}")

    def w128_read_addr(self, vb, vt):
        self.a(f"""v_lshrrev_b32 v{vt}, 4, v1
        v_lshlrev_b32 v{vb}, 10, v{vt}
        v_bfe_u32 v{vt}, v1, 2, 2
        v_lshl_add_u32 v{vb}, v{vt}, 7, v{vb}
        v_and_b32 v{vt}, 3, v1
        v_lshl_add_u32 v{vb}, v{vt}, 3, v{vb}
        v_bfe_u32 v{vt}, v1, 3, 2
        v_lshl_add_u32 v{vb}, v{vt}, 5, v{vb}""")

    def colsum_finish(self, s_lds, s_out, vbase):
        a = self.a
        vb = vbase; vones = vbase + 4; vacc = vbase + 8; vf = vbase + 24
        self.w128_read_addr(vb, vones)
        a(f"v_add_u32 v{vb}, s{s_lds}, v{vb}")
        for nu in range(1, 4): a(f"v_xor_b32 v{vb+nu}, {32*nu}, v{vb}")
        for i in range(4): a(f"v_mov_b32 v{vones+i}, 0x3f803f80")
        for s in range(5):
            fb = vf + 16 * (s & 1)
            for nu in range(4):
                for t in range(2):
                    a(f"ds_read_b64_tr_b16 {vr(fb+4*nu+2*t, 2)}, v{vb+nu} offset:{(32*s+4*t)*128}")
            a("s_waitcnt lgkmcnt(0)")
            for nu in range(4):
                c = "0" if s == 0 else vr(vacc + 4 * nu)
                a(f"v_mfma_f32_16x16x32_bf16 {vr(vacc+4*nu)}, {vr(vones)}, {vr(fb+4*nu)}, {c}")
        a(f"""v_cmp_lt_u32 vcc, 15, v1
        v_cndmask_b32 v{vacc}, v{vacc}, v{vacc+4}, vcc
        v_cmp_lt_u32 vcc, 31, v1
        v_cndmask_b32 v{vacc}, v{vacc}, v{vacc+8}, vcc
        v_cmp_lt_u32 vcc, 47, v1
        v_cndmask_b32 v{vacc}, v{vacc}, v{vacc+12}, vcc
        v_lshlrev_b32 v{vb}, 2, v1""")
        self.vmem(f"buffer_store_dword v{vacc}, v{vb}, {WS}, s{s_out} offen sc1", 'csst')

    def row_stats(self, nrows):
        a = self.a
        a(f"""v_lshlrev_b32 v8, 4, v1
        v_lshlrev_b32 v9, 2, v1
        s_mul_i32 s45, s44, 1280""")
        for r in range(nrows):
            self.vmem(f"buffer_load_dwordx4 {vr(12+8*r)}, v8, {srd(SRD_X)}, s45 offen offset:{1280*r}", 'stat')
            self.vmem(f"buffer_load_dword v{16+8*r}, v9, {srd(SRD_X)}, s45 offen offset:{1280*r+1024}", 'stat')

    def row_stats_finish(self, nrows):
        a = self.a
        self.wait_vm('stat')
        E = lambda r, i: 32 + 12 * r + i
        for r in range(nrows):
            for i in range(5):
                a(f"v_lshlrev_b32 v{E(r,2*i)}, 16, v{12+8*r+i}\nv_and_b32 v{E(r,2*i+1)}, 0xffff0000, v{12+8*r+i}")
        acc = [12 + 8 * r for r in range(nrows)]
        for r in range(nrows): a(f"v_add_f32 v{acc[r]}, v{E(r,0)}, v{E(r,1)}")
        for i in range(2, 10):
            for r in range(nrows): a(f"v_add_f32 v{acc[r]}, v{acc[r]}, v{E(r,i)}")
        ss = [46 + r for r in range(nrows)]
        self.wave_sum(acc, ss)
        a(f"v_mov_b32 v10, {f32hex(1.0/D)}")
        for r in range(nrows): a(f"v_mul_f32 v{acc[r]+1}, s{ss[r]}, v10")
        for i in range(10):
            for r in range(nrows): a(f"v_sub_f32 v{E(r,i)}, v{E(r,i)}, v{acc[r]+1}")
        for r in range(nrows): a(f"v_mul_f32 v{acc[r]}, v{E(r,0)}, v{E(r,0)}")
        for i in range(1, 10):
            for r in range(nrows): a(f"v_fmac_f32 v{acc[r]}, v{E(r,i)}, v{E(r,i)}")
        self.wave_sum(acc, ss)
        for r in range(nrows):
            a(f"v_mov_b32 v{acc[r]+2}, {f32hex(1e-5)}\nv_fmac_f32 v{acc[r]+2}, s{ss[r]}, v10\nv_rsq_f32 v{acc[r]+2}, v{acc[r]+2}")
        a(f"""s_lshl_b32 s45, s44, 2
        s_add_u32 s45, s45, {MEAN1}
        s_add_u32 s46, s45, {RSTD1-MEAN1}
        v_mov_b32 v10, 0
        s_mov_b64 exec, 1""")
        for r in range(nrows):
            self.vmem(f"buffer_store_dword v{acc[r]+1}, v10, {WS}, s45 offen offset:{4*r} sc1", 'statst')
            self.vmem(f"buffer_store_dword v{acc[r]+2}, v10, {WS}, s46 offen offset:{4*r} sc1", 'statst')
        a("s_mov_b64 exec, -1")

    def sig_rowstats(self):
        a = self.a
        a("""s_lshr_b32 s53, s2, 4
        s_mul_i32 s53, s53, 15
        v_add_u32 v10, s53, v1
        v_cmp_gt_u32 vcc, 15, v1""")
        self.signal(10, M_S0, 11)

    def p0(self):
        a = self.a
        a(f"""s_cmp_ge_u32 s2, 256
        s_cbranch_scc1 L_end
        s_load_dwordx16 s[64:79], s[0:1], 0
        s_load_dwordx4 s[80:83], s[0:1], 64
        s_sub_u32 s40, s2, 1
        s_cmp_ge_u32 s40, 15
        s_cbranch_scc1 L_nocode
        s_getpc_b64 s[40:41]
        L_pc:
        s_sub_u32 s40, s40, L_pc-{NAME}_kernel
        s_subb_u32 s41, s41, 0
        s_and_b32 s42, s2, 8
        s_lshl_b32 s42, s42, 5
        v_and_b32 v2, 256, v0
        v_cmp_ne_u32 vcc, s42, v2
        s_cmp_eq_u32 s2, 8
        s_cselect_b64 vcc, -1, vcc
        s_cbranch_vccz L_nocode
        v_lshlrev_b32 v2, 7, v0
        v_min_u32 v2, L_code_end-{NAME}_kernel-4, v2
        global_load_dword v250, v2, s[40:41]
        L_nocode:
        v_and_b32 v1, 63, v0
        v_lshrrev_b32 v2, 6, v0
        v_readfirstlane_b32 s{sWAVE}, v2
        v_mov_b32 v247, 0
        v_mov_b32 v78, 0
        s_mov_b32 s98, 0
        s_mov_b32 s{sBOUND}, 0x100000""")
        a(f"""s_lshr_b32 s40, s2, 3
        s_sub_u32 s40, s40, 2
        s_and_b32 s41, s2, 1
        s_mul_i32 s41, s41, 30
        s_add_u32 s40, s40, s41
        s_lshr_b32 s41, s40, 2
        s_and_b32 s40, s40, 3
        s_add_u32 s43, s40, s41
        s_mul_i32 s42, s41, 21846
        s_lshr_b32 s42, s42, 16
        s_mul_i32 s41, s41, 5
        s_mul_i32 s44, s42, 14
        s_sub_u32 s41, s41, s44
        s_and_b32 s42, s2, 6
        s_lshl_b32 s42, s42, 1
        s_add_u32 s40, s40, s42
        s_and_b32 s{sHW}, s{sWAVE}, 3""")
        a("""v_lshrrev_b32 v10, 3, v1
        v_mul_u32_u24 v2, 1280, v10
        v_lshrrev_b32 v10, 4, v1
        v_and_b32 v11, 7, v1
        v_xor_b32 v11, v11, v10
        v_lshl_add_u32 v2, v11, 4, v2
        v_xor_b32 v3, 64, v2
        v_add_u32 v3, 9216, v3
        v_add_u32 v4, 18432, v2
        v_add_u32 v5, 18432, v3
        v_mul_u32_u24 v6, 3840, v10
        v_lshlrev_b32 v10, 1, v10
        v_and_b32 v11, 15, v1
        v_xor_b32 v11, v11, v10
        v_lshl_add_u32 v6, v11, 4, v6
        v_add_u32 v7, 14336, v6
        v_xor_b32 v8, 128, v6
        v_add_u32 v8, 28672, v8
        v_add_u32 v9, 14336, v8""")
        a(f"""s_lshl_b32 s44, s40, 2
        s_add_u32 s44, s44, s{sHW}
        s_mul_i32 s44, s44, {32*1280}
        s_mul_i32 s45, s{sHW}, {16*3840}
        s_lshl_b32 s46, s41, 8
        s_add_u32 s45, s45, s46
        s_and_b32 s46, s43, 3
        {self.rot1}
        s_lshl_b32 s47, s{sHW}, 12""")
        a("s_waitcnt lgkmcnt(0)")
        self.build_srd(SRD_X, 64, S * D * 2)
        self.build_srd(SRD_WQKV, 66, D * 3 * D * 2)
        if self.stamps or opt('dly', ''):
            self.build_srd(SRD_WS, 82, WS_END)
            self.stamp('start')
        a("s_cmp_eq_u32 s2, 0\ns_cbranch_scc1 L_init\nL_init_back:")
        a(f"s_cmp_ge_u32 s{sWAVE}, 4\ns_cbranch_scc1 L_w47")
        a(f"s_lshl_b32 s44, s2, 2\ns_add_u32 s44, s44, s{sWAVE}\ns_lshl_b32 s44, s44, 1")
        if not opt('searly', 0): a("s_cmp_ge_u32 s2, 16\ns_cbranch_scc1 L_p1_c")
        self.row_stats(2)
        a(f"""s_cmp_lt_u32 s2, 16
        s_cbranch_scc1 L_spare
        s_branch L_p1_c
        L_w47:
        s_cmp_lt_u32 s2, 16
        s_cbranch_scc1 L_spare""")

    def more_srds(self):
        self.build_srd(SRD_WS, 82, WS_END)
        self.build_srd(SRD_DBG, 80, 256)
        self.build_srd(SRD_WO, 68, D * D * 2)
        self.build_srd(SRD_WG, 72, D * F * 2)
        self.build_srd(SRD_WU, 74, D * F * 2)
        self.build_srd(SRD_WD, 76, F * D * 2)
        self.build_srd(SRD_OUT, 78, S * D * 2)
        self.a('s_mov_b32 s0, 0')

    def touch(self, srdb, voff, soff, n):
        self.a(f"buffer_load_dword v{248 + n % 4}, v{voff}, {srdb}, {soff} offen")

    def spare_code(self):
        a = self.a
        self.vm = VM()
        a("L_spare:")
        for i in range(4): self.vm.add('stat')
        a(f"""v_lshlrev_b32 v2, 7, v1
        s_lshl_b32 s50, s{sWAVE}, 4
        s_add_u32 s50, s50, s2
        s_lshl_b32 s50, s50, 13
        s_add_u32 s51, s50, {256*3840}""")
        self.more_srds()
        for n in range(2):
            self.touch(srd(SRD_WQKV), 2, "s51", n); self.vm.add('t')
            if n < 1: a(f"s_add_u32 s51, s51, {128*8192}")
        a(f"s_cmp_ge_u32 s{sWAVE}, 4\ns_cbranch_scc1 L_spare3")
        self.row_stats_finish(2)
        a("L_spare3:")
        self.poll(0, 1, 10, 11, SRD_DBG)
        a(f"""s_barrier
        s_cmp_lg_u32 s{sWAVE}, 0
        s_cbranch_scc1 L_spare4""")
        self.sig_rowstats()
        a("L_spare4:")
        if opt('wgw', 1):
            a(f"s_and_b32 s51, s50, {64*8192-1}\ns_cmp_ge_u32 s{sWAVE}, 4\ns_cbranch_scc1 L_spare5")
            self.touch(srd(SRD_WG), 2, "s51", 1)
            a("s_branch L_spare6\nL_spare5:")
            self.touch(srd(SRD_WU), 2, "s51", 1)
            a("L_spare6:")
        a("s_mov_b64 s[62:63], 0")
        self.stamp('spdone')
        a("s_branch L_p1_join")
        a("L_init:")
        self.build_srd(SRD_WS, 82, WS_END)
        self.build_srd(SRD_DBG, 80, 256)
        a(f"""v_mov_b32 v4, 0
        v_mov_b32 v5, 0
        v_mov_b32 v6, 0
        v_mov_b32 v7, 0
        v_lshlrev_b32 v8, 4, v1
        s_lshl_b32 s40, s{sWAVE}, 12""")
        for i in range(4):
            a(f"buffer_store_dwordx4 v[4:7], v8, {WS}, s40 offen offset:{1024*i} sc1")
        a(f"""s_waitcnt vmcnt(0)
        s_barrier
        s_cmp_lg_u32 s{sWAVE}, 0
        s_cbranch_scc1 L_init_back
        v_mov_b32 v5, 1
        s_mov_b64 exec, 1
        buffer_store_dword v5, v4, {srd(SRD_DBG)}, 0 offen sc1
        s_mov_b64 exec, -1
        s_branch L_init_back""")

    def finish(self, dword, name, mid=None):
        a = self.a
        a("s_waitcnt vmcnt(0)")
        if mid: a(mid + ":")
        self.bar()
        self.stamp(name)
        L = a.newlabel('Lfin')
        a(f"""s_cmp_eq_u64 s[62:63], 0
        s_cbranch_scc1 {L}
        v_mov_b32 v246, 1
        s_mov_b64 exec, s[62:63]
        buffer_atomic_add v246, v247, {WS}, 0 offen offset:{4*dword} sc1
        s_mov_b64 exec, -1
        {L}:""")
        self.vm.clear()

    def sigprep(self, wave):
        self.a(f"""v_lshlrev_b32 v247, 7, v247
        s_cmp_eq_u32 s{sWAVE}, {wave}
        s_cselect_b64 s[62:63], vcc, 0""")

    P1_R, P1_LA, P1_BLK = 4, opt('la1', 3), 4
    rot1 = 's_mov_b32 s46, 0' if 'norot' in sys.argv else ''
    P1_TAB = 131072
    CS4_LDS = 131072 + 2048

    def p1(self):
        a = self.a
        R, LA = self.P1_R, self.P1_LA
        T = self.P1_TAB
        def waddr(dst, sblk, vt):
            a(f"""v_lshrrev_b32 v{vt}, 4, v1
            v_lshlrev_b32 v{dst}, 11, v{vt}
            v_bfe_u32 v{vt}, v1, 2, 2
            v_lshl_add_u32 v{dst}, v{vt}, 8, v{dst}
            v_and_b32 v{vt}, 3, v1
            v_lshl_add_u32 v{dst}, v{vt}, 3, v{dst}
            v_bfe_u32 v{vt}, v1, 2, 3
            v_xor_b32 v{vt}, s{sblk}, v{vt}
            v_lshl_add_u32 v{dst}, v{vt}, 5, v{dst}
            v_add_u32 v{dst}, 16384, v{dst}""")
        self.vm = VM(); self.nbar = 0
        def dma(st):
            slot = st % R
            a(f"""s_lshl_b32 s48, s46, 7
            s_add_u32 s48, s48, s44
            s_mul_i32 s49, s46, {64*3840}
            s_add_u32 s49, s49, s45
            s_add_u32 m0, s47, {slot*32768}""")
            for i in range(4):
                self.vmem(f"buffer_load_dwordx4 v{2+i}, {srd(SRD_X)}, s48 offen offset:{1024*i} lds", ('p1', st))
            a(f"s_add_u32 m0, s47, {slot*32768+16384}")
            for i in range(4):
                self.vmem(f"buffer_load_dwordx4 v{6+i}, {srd(SRD_WQKV)}, s49 offen offset:{1024*i} lds", ('p1', st))
            B = self.P1_BLK
            if st + 1 < B: a(f"s_add_u32 s46, s46, 1\ns_and_b32 s46, s46, {B-1}")
            elif opt('rot1b', 1) and st + 1 < 8: a(f"s_add_u32 s46, s46, 1\ns_and_b32 s46, s46, 3\ns_or_b32 s46, s46, 4")
            elif opt('rot1b', 1) and st < 9: a(f"s_add_u32 s46, s46, 1\ns_and_b32 s46, s46, 1\ns_or_b32 s46, s46, 8")
            elif st < 9: a(f"s_mov_b32 s46, {st+1}")
        dma(0)
        self.more_srds()
        dma(1)
        a(f"""s_mul_i32 s52, s40, 15
        s_add_u32 s52, s52, s41
        s_lshl_b32 s52, s52, 7
        v_mov_b32 v12, 0""")
        for st in range(10):
            self.wait_vm(('p1', st))
            if st == 8:
                self.wait_vm('mb')
                a("v_cmp_ne_u32 vcc, 16, v14\ns_cbranch_vccz L_p1_s0ok")
                keep = list(self.vm.ops)
                self.poll("s52", 16, 10, 11)
                self.vm.ops = keep + ['t', 't']
                a("L_p1_s0ok:")
                a(f"""v_lshlrev_b32 v10, 2, v1
                s_and_b32 s48, s{sHW}, 1
                s_lshl_b32 s49, s40, 1
                s_add_u32 s49, s49, s48
                s_lshl_b32 s49, s49, 8
                s_add_u32 s49, s49, {MEAN1}
                buffer_load_dword v12, v10, {WS}, s49 offen sc1
                s_add_u32 s49, s49, {RSTD1-MEAN1}
                buffer_load_dword v13, v10, {WS}, s49 offen sc1""")
            self.bar()
            if st % 3 == 0: self.sstamp(f'hb{st}')
            if st == opt('hw1', 8):
                a(f"""v_lshlrev_b32 v15, 7, v1
                s_cmp_eq_u32 s{sHW}, 0
                s_cselect_b32 s56, s{SRD_WG}, s{SRD_WO}
                s_cselect_b32 s57, s{SRD_WG+1}, s{SRD_WO+1}
                s_cselect_b32 s58, s{SRD_WG+2}, s{SRD_WO+2}
                s_cselect_b32 s53, 48, -156
                s_mov_b32 s59, 0x20000
                s_add_u32 s53, s2, s53
                s_and_b32 s53, s53, 511
                s_lshl_b32 s53, s53, 13
                s_cmp_ge_u32 s{sHW}, 2
                s_cselect_b32 s53, {OOB//2}, s53""")
                self.touch("s[56:59]", 15, "s53", 3)
                self.vm.add('touch')
            if st == 1:
                self.vmem(f"buffer_load_dword v13, v12, {srd(SRD_DBG)}, 0 offen sc1", 'rdy')
            if st == 3:
                L = a.newlabel('Ls0')
                self.wait_vm('rdy')
                a(f"v_cmp_ne_u32 vcc, 1, v13\ns_cbranch_vccz {L}r")
                keep = list(self.vm.ops)
                self.poll(0, 1, 10, 11, SRD_DBG)
                self.vm.ops = keep
                a(f"{L}r:")
                a(f"""s_lshr_b32 s53, s2, 4
                s_mul_i32 s53, s53, 15
                s_lshl_b32 s54, s{sHW}, 2
                s_add_u32 s53, s53, s54
                v_add_u32 v10, s53, v1
                s_cmp_eq_u32 s{sHW}, 3
                s_cselect_b64 vcc, 7, 15""")
                self.signal(10, M_S0, 11)
                self.vm.add('sig')
            if st == 6:
                self.vmem(f"buffer_load_dword v14, v12, {WS}, s52 offen sc1", 'mb')
            if LA == 3 and st == opt('la1s', 1): dma(st + 2)
            if LA == 3 and st < opt('la1s', 1): dma(st + 2)
            elif st + LA < 10: dma(st + LA)
        c = (20 ** -0.5) * LOG2E
        a(f"""s_cmp_lt_u32 s41, 5
        s_cselect_b32 s49, {f32hex(c)}, 1.0
        s_lshl_b32 s48, s48, 9
        s_add_u32 s48, s48, {T}
        v_lshl_add_u32 v11, v1, 3, s48
        s_waitcnt vmcnt({self.vm.count_after('t')})
        v_mul_f32 v13, s49, v13
        ds_write_b64 v11, v[12:13]
        s_waitcnt lgkmcnt(0)""")
        self.bar()
        self.sdump(5)
        if opt('vpoll', 0): a("s_cmp_ge_u32 s41, 10\ns_cselect_b32 s0, 2, 0")
        a("s_mov_b64 s[62:63], 0\ns_branch L_p1_join")
        nb_h = self.nbar
        self.vm = VM(); self.nbar = 0
        a('L_p1_c:')
        if opt('searly', 0):
            for i in range(4): self.vm.add('stat')
        else: self.row_stats(2)
        self.more_srds()
        XA, WA = 64, 68
        FR = 80
        ACC = 144
        a(f"""s_and_b32 s48, s{sWAVE}, 1
        s_lshr_b32 s49, s{sWAVE}, 1
        v_and_b32 v2, 15, v1
        v_lshrrev_b32 v3, 4, v1
        v_lshlrev_b32 v4, 7, v2
        v_bfe_u32 v5, v1, 1, 3
        v_xor_b32 v5, v5, v3
        v_lshl_add_u32 v4, v5, 4, v4
        s_lshl_b32 s50, s48, 13
        v_add_u32 v{XA}, s50, v4
        v_xor_b32 v{XA+1}, 64, v{XA}
        s_lshl_b32 s50, s49, 1
        s_add_u32 s50, s50, s48
        s_lshl_b32 s50, s50, 1""")
        waddr(WA, 50, 5)
        for nu in range(1, 4): a(f"v_xor_b32 v{WA+nu}, {32*nu}, v{WA}")
        a(f"""s_lshl_b32 s50, s48, 9
        s_add_u32 s50, s50, {T}
        v_lshl_add_u32 v76, v2, 3, s50
        s_lshl_b32 s50, s{sWAVE}, 7
        s_add_u32 s50, s50, {T+1024}
        v_lshl_add_u32 v77, v3, 4, s50
        v_xor_b32 v79, 128, v77
        v_lshrrev_b32 v78, 5, v1
        v_lshlrev_b32 v78, 15, v78
        v_and_b32 v7, 31, v1
        v_lshl_add_u32 v78, v7, 4, v78""")
        a(f"""s_cmp_ge_u32 s41, 10
        s_cselect_b32 s50, 10, 5
        s_cmp_ge_u32 s41, 5
        s_cselect_b32 s50, s50, 0
        s_sub_u32 s51, s41, s50
        s_lshl_b32 s51, s51, 4
        v_mul_u32_u24 v4, 5, v7
        v_lshrrev_b32 v4, 1, v4
        v_add_u32 v4, 2, v4
        v_subrev_u32 v4, s51, v4
        v_cmp_gt_u32 vcc, 18, v4
        s_lshr_b32 s52, s40, 1
        s_cmp_eq_u32 s52, 7
        s_cselect_b32 s50, 0, s50
        s_cmp_eq_u32 s50, 0
        s_cselect_b32 vcc_hi, 0, vcc_hi
        s_lshl_b32 s52, s52, 5
        v_add_u32 v247, s52, v1""")
        self.sigprep(0)
        if opt('vdef', 1):
            a(f"""s_cmp_ge_u32 s41, 10
            s_cselect_b32 s50, {4*(M_S1V-M_S1)}, 0
            v_add_u32 v247, s50, v247
            s_cselect_b32 s50, {OOB//2}, 0
            v_add_u32 v66, s50, v78""")
        else: a("v_mov_b32 v66, v78")
        a(f"""s_lshl_b32 s50, s41, 1
        s_add_u32 s50, s50, s49
        s_lshl_b32 s50, s50, 18
        s_lshl_b32 s51, s40, 1
        s_add_u32 s51, s51, s48
        s_lshl_b32 s51, s51, 10
        s_add_u32 s50, s50, s51
        s_lshl_b32 s51, s48, 17
        s_add_u32 s50, s50, s51
        s_add_u32 s50, s50, {QKV}
        s_lshl_b32 s52, s48, 18
        s_sub_u32 s52, 65536, s52
        s_cmp_ge_u32 s41, {10 if opt('vdef', 1) else 99}
        s_cselect_b32 s98, s50, 0
        s_cselect_b32 s0, 0, {opt('qkfirst', 1)}
        s_mov_b32 s99, s52""")
        CSR = 208; ONES = 72
        for i in range(72): a(f"v_mov_b32 v{ACC+i}, 0")
        for i in range(4): a(f"v_mov_b32 v{ONES+i}, 0x3f803f80")
        self.row_stats_finish(2)
        lg = LG(a)
        def reads(g):
            j = g & 1
            off = ((g >> 1) & 1) * 32768
            fb = FR + 32 * (g & 1)
            W = lambda i: [(f"ds_read_b64_tr_b16 {vr(fb+16+4*i, 2)}, v{WA+i} offset:{off+32*j*256}", None),
                           (f"ds_read_b64_tr_b16 {vr(fb+18+4*i, 2)}, v{WA+i} offset:{off+(32*j+4)*256}", ('W', g & 3, i))]
            X = lambda i: [(f"ds_read_b128 {vr(fb+4*i)}, v{XA+j} offset:{off+2048*i}", ('X', g & 3, i))]
            return W(0) + X(0) + W(1) + W(2) + W(3) + X(1) + X(2) + X(3)
        self.stamp('preb0')
        self.bar()
        self.stamp('b0')
        for r in reads(0): lg.op(*r)
        MR = 80
        csm = lambda fb, e: a(f"v_mfma_f32_16x16x32_bf16 {vr(CSR+4*e)}, {vr(fb+16+4*e)}, {vr(ONES)}, {vr(CSR+4*e)}")
        for last in (False, True):
            if not last: a("s_mov_b32 s51, 4\n.p2align 3\nL_p1_loop:")
            lg.done = lg.n - 12
            for g in range(4):
                fb = FR + 32 * (g & 1)
                fin = last and g == 3
                nxt = [] if g & 1 else reads(g + 1)
                k = 0
                for n in range(16):
                    mu, nu = (n & 3, n >> 2) if fin else (n >> 2, n & 3)
                    if (g & 1) and n == (2 if LA == 2 else 4) and not fin:
                        if LA == 3: lg.drain()
                        if g == 3: a("s_waitcnt vmcnt(0)")
                        a("s_barrier")
                        nxt = reads(g + 1)
                    if fin and n == 0:
                        lg.drain(); csm(fb, 0); csm(fb, 1)
                    if fin and n == 4:
                        a("s_mov_b32 exec_lo, 0x00010001\ns_mov_b32 exec_hi, 0x00010001")
                        for e in range(2): lg.op(f"ds_write_b128 v77, {vr(CSR+4*e)} offset:{64*e}")
                        a("s_mov_b64 exec, -1")
                    if fin and n == 8:
                        lg.drain(); a("s_barrier")
                        nxt = [(f"ds_read_b64 {vr(MR+2*q, 2)}, v76 offset:{128*q}", None) for q in range(4)]
                        nxt += [(f"ds_read_b128 {vr(CSR+8+4*e)}, v79 offset:{64*e}", None) for e in range(2)]
                    ac = ACC + 16 * mu + 4 * nu
                    if n == 0: lg.need(('W', g, 3))
                    if n == 4: lg.need(('X', g, 3))
                    a(f"v_mfma_f32_16x16x32_bf16 {vr(ac)}, {vr(fb+16+4*nu)}, {vr(fb+4*mu)}, {vr(ac)}")
                    if k < len(nxt): lg.op(*nxt[k]); k += 1
                    elif g == 2 and n >= 12 and not last:
                        for r in ([XA, XA+1], [WA, WA+1], [WA+2], [WA+3])[n - 12]: a(f"v_xor_b32 v{r}, 65536, v{r}")
                    if n in (13, 15) and not fin: csm(fb, (n - 13) >> 1)
                    if g == 3 and n == 14 and not last: a("s_sub_u32 s51, s51, 1\ns_cmp_lg_u32 s51, 0")
                assert k == len(nxt)
            if not last: a("s_cbranch_scc1 L_p1_loop")
        self.nbar += 10
        lg.drain()
        self.stamp('p1loop')
        a(".p2align 3")
        PK = 104
        n = 0
        for nu in range(4):
            for p in range(2):
                pk = PK + 4 * (n % 8); n += 1
                tiles = [(ACC + 16 * (2 * p + e) + 4 * nu, 2 * p + e) for e in range(2)]
                for ac, mu in tiles:
                    for h in range(2):
                        a(f"v_pk_fma_f32 {vr(ac+2*h,2)}, {vr(CSR+4*nu+2*h,2)}, {vr(MR+2*mu,2)}, {vr(ac+2*h,2)} op_sel_hi:[1,0,1] neg_lo:[0,1,0] neg_hi:[0,1,0]")
                for ac, mu in tiles:
                    for h in range(2):
                        a(f"v_pk_mul_f32 {vr(ac+2*h,2)}, {vr(ac+2*h,2)}, {vr(MR+2*mu,2)} op_sel:[0,1] op_sel_hi:[1,1]")
                for h in range(2):
                    for e, (ac, mu) in enumerate(tiles):
                        a(f"v_cvt_pk_bf16_f32 v{pk+2*e+h}, v{ac+2*h}, v{ac+2*h+1}")
                a(f"v_permlane16_swap_b32 v{pk}, v{pk+2}\ns_nop 0\nv_permlane16_swap_b32 v{pk+1}, v{pk+3}\ns_nop 0")
                a(f"buffer_store_dwordx4 {vr(pk)}, v66, {WS}, s50 offen offset:{512*p} sc1")
            if nu < 3: a("s_add_u32 s50, s50, s52\ns_nop 0" if nu == 1 else "s_add_u32 s50, s50, 65536")
        self.stamp('p1epi')
        assert self.nbar == nb_h, (self.nbar, nb_h)
        a("L_p1_join:")
        a.settle(3)

    def p1_vstores(self):
        a = self.a
        a("s_cmp_eq_u32 s98, 0\ns_cbranch_scc1 L_p1_nov")
        for nu in range(4):
            for p in range(2):
                a(f"buffer_store_dwordx4 {vr(104+8*nu+4*p)}, v78, {WS}, s98 offen offset:{512*p} sc1")
            if nu < 3: a("s_add_u32 s98, s98, s99" if nu == 1 else "s_add_u32 s98, s98, 65536")
        a("L_p1_nov:")

    def build(self):
        a = self.a
        a.raw(f"; @launch grid=(256,1,1) block=(512,1,1) lds={LDS_BYTES}")
        a.raw(f'.amdgcn_target "amdgcn-amd-amdhsa--gfx950"\n.text\n.globl {NAME}_kernel\n.p2align 8\n.type {NAME}_kernel,@function\n{NAME}_kernel:')
        self.p0()
        self.p1()
        if self.upto >= 2: self.p2()
        else: self.p1_vstores(); self.finish(M_S1, 'p1st')
        if self.upto >= 3: self.tail345()
        a("L_end:\ns_endpgm")
        self.spare_code()
        i = 0
        while i < len(self.tail):
            self.tail[i](); i += 1
        a("L_code_end:")
        a.raw(f""".section .rodata,"a"
.p2align 6
.amdhsa_kernel {NAME}_kernel
  .amdhsa_next_free_vgpr 256
  .amdhsa_next_free_sgpr 102
  .amdhsa_accum_offset 256
  .amdhsa_group_segment_fixed_size 0
  .amdhsa_kernarg_size 80
  .amdhsa_user_sgpr_count 2
  .amdhsa_user_sgpr_kernarg_segment_ptr 1
  .amdhsa_system_sgpr_workgroup_id_x 1
.end_amdhsa_kernel""")
        return a.text()

from phases import install
install(Gen, globals())

if __name__ == '__main__':
    upto = int(sys.argv[1]) if len(sys.argv) > 1 else 5
    out = sys.argv[2] if len(sys.argv) > 2 else 'k.s'
    g = Gen(upto=upto, stamps=('stamps' in sys.argv))
    open(out, 'w').write(g.build())
    open(out + '.stamps', 'w').write('\n'.join(g.stamp_names))
    print("wrote", out, "pads", g.a.pad_count)
```

```python
def install(Gen, G):
    globals().update({k: v for k, v in G.items() if not k.startswith('__')})
    global MT, BM, NRB, NT, NS, XB, SLOT, T1, MAG
    MT = opt('mt', 5); BM = 32 * MT; NRB = -(-2048 // BM); NT = 15 * NRB; NS = 256 - NT
    XB = BM * 128; SLOT = XB + 16384; T1 = opt('r1', 4) * SLOT
    MAG = -(-65536 // MT)
    assert all((v * MAG) >> 16 == v // MT for v in range(64))
    assert T1 + 2048 + 512 <= 151936
    for f in (p0, p1, spare_code, p1_vstores, s1_expect):
        setattr(Gen, f.__name__, f)

def magic(d, n):
    m = -(-65536 // d)
    assert all((v * m) >> 16 == v // d for v in range(n)), (d, n)
    return m

def p0(self):
    a = self.a
    q, r = NS >> 3, NS & 7
    a(f"""s_cmp_ge_u32 s2, 256
    s_cbranch_scc1 L_end
    s_load_dwordx16 s[64:79], s[0:1], 0
    s_load_dwordx4 s[80:83], s[0:1], 64
    s_sub_u32 s42, s2, 240
    s_cmp_ge_u32 s42, 16
    s_cbranch_scc1 L_nocode
    s_getpc_b64 s[40:41]
    L_pc:
    s_sub_u32 s40, s40, L_pc-{NAME}_kernel
    s_subb_u32 s41, s41, 0
    s_lshr_b32 s42, s42, 3
    s_mul_i32 s42, s42, 192
    s_sub_u32 s42, s42, 320
    v_cmp_le_u32 vcc, 320, v0
    s_cbranch_vccz L_nocode
    v_add_u32 v2, s42, v0
    v_lshlrev_b32 v2, 7, v2
    v_min_u32 v2, L_code_end-{NAME}_kernel-4, v2
    global_load_dword v250, v2, s[40:41]
    L_nocode:
    v_and_b32 v1, 63, v0
    v_lshrrev_b32 v2, 6, v0
    v_readfirstlane_b32 s{sWAVE}, v2
    v_mov_b32 v247, 0
    v_mov_b32 v222, 0
    s_mov_b32 s98, 0
    s_mov_b32 s99, 0
    s_mov_b32 s{sBOUND}, 0x100000""")
    assert MT == 5
    a(f"""s_bfe_u32 s42, s2, 0x20001
    s_cmp_eq_u32 s42, 3
    s_cselect_b32 s43, 3, 4
    s_cselect_b32 s54, 20, 26
    s_mov_b32 s44, 16384
    s_cselect_b32 s44, 21846, s44
    s_and_b32 s40, s2, 1
    s_mul_i32 s41, s40, s54
    s_lshr_b32 s55, s2, 3
    s_add_u32 s41, s41, s55
    s_and_b32 s40, s2, 7
    s_cmp_eq_u32 s40, 7
    s_subb_u32 s54, s54, 0
    s_sub_u32 s55, s55, s54
    s_mul_i32 s40, s41, s44
    s_lshr_b32 s40, s40, 16
    s_mul_i32 s43, s43, s40
    s_sub_u32 s41, s41, s43
    s_lshl_b32 s42, s42, 2
    s_add_u32 s41, s41, s42
    s_add_u32 s43, s40, s41
    s_mul_i32 s42, s41, 21846
    s_lshr_b32 s42, s42, 16
    s_mul_i32 s41, s41, 5
    s_mul_i32 s44, s42, 14
    s_sub_u32 s41, s41, s44
    s_and_b32 s{sHW}, s{sWAVE}, 3""")
    a("""v_lshrrev_b32 v10, 3, v1
    v_mul_u32_u24 v2, 1280, v10
    v_lshrrev_b32 v10, 4, v1
    v_and_b32 v11, 7, v1
    v_xor_b32 v11, v11, v10
    v_lshl_add_u32 v2, v11, 4, v2
    v_xor_b32 v3, 64, v2
    v_mul_u32_u24 v6, 3840, v10
    v_lshlrev_b32 v10, 1, v10
    v_and_b32 v11, 15, v1
    v_xor_b32 v11, v11, v10
    v_lshl_add_u32 v6, v11, 4, v6
    v_add_u32 v7, 14336, v6
    v_xor_b32 v8, 128, v6
    v_add_u32 v8, 28672, v8
    v_add_u32 v9, 14336, v8""")
    a(f"""s_bitcmp1_b32 s{sWAVE}, 0
    s_cselect_b64 vcc, -1, 0
    v_cndmask_b32 v4, v2, v3, vcc
    s_mul_i32 s44, s40, {BM//8}
    s_add_u32 s44, s44, s{sHW}
    s_mul_i32 s44, s44, {8*1280}
    s_mul_i32 s45, s{sHW}, {16*3840}
    s_lshl_b32 s46, s41, 8
    s_add_u32 s45, s45, s46
    s_lshl_b32 s47, s{sHW}, 10
    s_lshl_b32 s50, s{sHW}, 12
    s_waitcnt lgkmcnt(0)""")
    self.build_srd(SRD_X, 64, S * D * 2)
    self.build_srd(SRD_WQKV, 66, D * 3 * D * 2)
    if self.stamps or opt('dly', ''):
        self.build_srd(SRD_WS, 82, WS_END)
        self.stamp('start')
    a(f"""s_cmp_ge_i32 s55, 0
    s_cbranch_scc1 L_spare
    s_cmp_lt_u32 s{sWAVE}, 4
    s_cbranch_scc1 L_p1_c""")

def spare_code(self):
    a = self.a
    self.vm = VM()
    a(f"""L_spare:
    s_cmp_eq_u32 s2, {INITWG}
    s_cbranch_scc1 L_init
    L_init_back:
    s_and_b32 s54, s2, 7
    s_cmp_eq_u32 s54, 7
    s_addc_u32 s54, s54, 0
    s_mul_i32 s54, s54, 6
    s_add_u32 s54, s54, s55
    s_sub_u32 s54, {NS-1}, s54
    s_mul_i32 s40, s{sWAVE}, {NS}
    s_add_u32 s40, s40, s54
    s_mul_i32 s41, s{sWAVE}, 20480
    s_cmp_ge_u32 s40, 248
    s_cbranch_scc1 L_sv_none
    s_cmp_ge_u32 s40, 128
    s_cbranch_scc1 L_sv_w
    v_add_u32 v3, 9216, v3
    s_mul_i32 s42, s40, {16*1280}""")
    for s in range(10):
        a(f"s_add_u32 m0, s41, {2048*s}\nbuffer_load_dwordx4 v2, {srd(SRD_X)}, s42 offen lds\nbuffer_load_dwordx4 v3, {srd(SRD_X)}, s42 offen offset:1024 lds")
        if s < 9: a("s_add_u32 s42, s42, 128")
    self.more_srds()
    a(f"""v_and_b32 v2, 15, v1
    v_lshrrev_b32 v3, 4, v1
    v_lshlrev_b32 v4, 7, v2
    v_bfe_u32 v5, v1, 1, 3
    v_xor_b32 v5, v5, v3
    v_lshl_add_u32 v4, v5, 4, v4
    v_add_u32 v4, s41, v4
    v_xor_b32 v5, 64, v4""")
    for i in range(4): a(f"v_mov_b32 v{12+i}, 0x3f803f80")
    RS, SQ = 16, 20
    for half in range(2):
        a(f"s_waitcnt vmcnt({10 - 10*half})")
        for k in range(10):
            g = 10 * half + k
            a(f"ds_read_b128 {vr(24+4*k)}, v{4+(g&1)} offset:{2048*(g>>1)}")
        for k in range(10):
            a(f"s_waitcnt lgkmcnt({9-k})")
            c = lambda r: "0" if (half == 0 and k == 0) else vr(r)
            a(f"v_mfma_f32_16x16x32_bf16 {vr(RS)}, {vr(12)}, {vr(24+4*k)}, {c(RS)}")
            a(f"v_mfma_f32_16x16x32_bf16 {vr(SQ)}, {vr(24+4*k)}, {vr(24+4*k)}, {c(SQ)}")
    a("v_and_b32 v6, 3, v2\nv_lshrrev_b32 v7, 2, v2\nv_cmp_eq_u32 s[50:51], v7, v3")
    for i in range(1, 4): a(f"v_cmp_eq_u32 vcc, {i}, v6\nv_cndmask_b32 v{SQ}, v{SQ}, v{SQ+i}, vcc")
    a(f"""v_mul_f32 v8, {f32hex(1.0/D)}, v{RS}
    v_mul_f32 v9, {f32hex(1.0/D)}, v{SQ}
    v_fma_f32 v9, -v8, v8, v9
    v_max_f32 v9, 0, v9
    v_add_f32 v9, {f32hex(1e-5)}, v9
    v_rsq_f32 v9, v9
    v_lshlrev_b32 v6, 3, v2
    s_lshl_b32 s42, s40, 7
    s_add_u32 s42, s42, {MEAN1}
    s_mov_b64 exec, s[50:51]
    buffer_store_dwordx2 v[8:9], v6, {WS}, s42 offen sc1
    s_mov_b64 exec, -1
    s_mul_i32 s42, s40, {magic(2*MT, 128)}
    s_lshr_b32 s42, s42, 16
    s_mul_i32 s42, s42, 15
    v_add_u32 v16, s42, v1
    s_mov_b64 s[52:53], 0x7fff
    s_branch L_sv_sig""")
    a(f"""L_sv_w:
    s_sub_u32 s40, s40, 128
    s_lshr_b32 s43, s40, 2
    s_and_b32 s44, s40, 3
    s_mul_i32 s42, s44, {8*3840}
    s_lshl_b32 s45, s43, 7
    s_add_u32 s42, s42, s45""")
    self.colsum_issue(srd(SRD_WQKV), 3840, 42, 41, 3, 4, 5, n=20, step=32)
    self.more_srds()
    a(f"""s_mul_i32 s42, s44, {1920*4}
    s_lshl_b32 s45, s43, 8
    s_add_u32 s42, s42, s45
    s_add_u32 s42, s42, {CS1}
    s_waitcnt vmcnt(0)""")
    self.colsum_finish(41, 42, 64)
    a(f"""s_lshr_b32 s42, s43, 1
    v_mul_u32_u24 v16, 15, v1
    v_add_u32 v16, s42, v16
    s_mov_b64 s[52:53], {(1 << NRB) - 1}
    L_sv_sig:""")
    self.poll(0, 1, 10, 11, SRD_DBG)
    self.signal(16, M_S0, 17, mask='s[52:53]')
    self.stamp('svdone')
    a("s_branch L_sv_warm\nL_sv_none:")
    if opt('sweep', 0):
        S0 = opt('sw0', 1)
        a(f"""s_lshl_b32 s42, s55, 2
        s_add_u32 s42, s42, s{sHW}
        s_cmp_ge_u32 s42, 22
        s_cbranch_scc1 L_sw_done
        s_cmp_ge_u32 s42, 18
        s_cbranch_scc1 L_sw_w
        s_and_b32 s43, s2, 1
        s_mul_i32 s43, s43, 15
        s_add_u32 s43, s43, s42
        s_mul_i32 s43, s43, {64*1280}
        v_mul_u32_u24 v2, 1280, v1""")
        for st in range(S0, 10):
            a(f"buffer_load_dword v{248 + st % 2}, v2, {srd(SRD_X)}, s43 offen offset:{128*st}\ns_waitcnt vmcnt({opt('swq', 1)})")
        a(f"""s_branch L_sw_done
        L_sw_w:
        s_and_b32 s43, s2, 6
        s_lshl_b32 s43, s43, 1
        s_add_u32 s43, s43, s42
        s_sub_u32 s43, s43, 18
        s_cmp_eq_u32 s43, 15
        s_cbranch_scc1 L_sw_done
        s_mul_i32 s44, s43, 21846
        s_lshr_b32 s44, s44, 16
        s_mul_i32 s43, s43, 5
        s_mul_i32 s44, s44, 14
        s_sub_u32 s43, s43, s44
        s_lshl_b32 s43, s43, 8
        s_add_u32 s43, s43, {S0*64*3840}
        v_mul_u32_u24 v2, 3840, v1""")
        for st in range(S0, 10):
            a(f"buffer_load_dword v248, v2, {srd(SRD_WQKV)}, s43 offen\nbuffer_load_dword v249, v2, {srd(SRD_WQKV)}, s43 offen offset:128\ns_add_u32 s43, s43, {64*3840}\ns_waitcnt vmcnt({2*opt('swq', 1)})")
        a("L_sw_done:")
    self.more_srds()
    self.poll(0, 1, 10, 11, SRD_DBG)
    a("L_sv_warm:\ns_barrier")
    a(f"v_lshlrev_b32 v2, 7, v1\ns_mul_i32 s40, s{sWAVE}, {NS}\ns_add_u32 s40, s40, s54\ns_mov_b32 s59, 0x20000")
    for n in range(opt('svr', 1)):
        a(f"s_mov_b32 s41, s40\ns_mov_b32 s56, s{SRD_WO}\ns_mov_b32 s57, s{SRD_WO+1}\ns_mov_b32 s58, s{SRD_WO+2}")
        for lo, sr in ((100, SRD_WG), (370, SRD_WU), (640, SRD_WD)):
            a(f"""s_sub_u32 s42, s40, {lo}
            s_cmp_ge_u32 s40, {lo}
            s_cselect_b32 s41, s42, s41
            s_cselect_b32 s56, s{sr}, s56
            s_cselect_b32 s57, s{sr+1}, s57
            s_cselect_b32 s58, s{sr+2}, s58""")
        a("s_lshl_b32 s41, s41, 13")
        self.touch("s[56:59]", 2, "s41", n)
        a(f"s_add_u32 s40, s40, {8*NS}")
    a("s_mov_b64 s[62:63], 0\ns_branch L_p1_join")
    a("L_init:")
    self.build_srd(SRD_WS, 82, WS_END)
    self.build_srd(SRD_DBG, 80, 256)
    a(f"""v_mov_b32 v12, 0
    v_mov_b32 v13, 0
    v_mov_b32 v14, 0
    v_mov_b32 v15, 0
    v_lshlrev_b32 v16, 4, v1
    s_lshl_b32 s40, s{sWAVE}, 12""")
    for i in range(4):
        a(f"buffer_store_dwordx4 v[12:15], v16, {WS}, s40 offen offset:{1024*i} sc1")
    a(f"""s_waitcnt vmcnt(0)
    s_barrier
    s_cmp_lg_u32 s{sWAVE}, 0
    s_cbranch_scc1 L_init_back
    v_mov_b32 v13, 1
    s_mov_b64 exec, 1
    buffer_store_dword v13, v12, {srd(SRD_DBG)}, 0 offen sc1
    s_mov_b64 exec, -1
    s_branch L_init_back""")

PK1 = 100
def p1(self):
    a = self.a
    R = opt('r1', 4); LA = R - 1
    T = T1
    self.vm = VM(); self.nbar = 0
    B0 = opt('b0', 1)
    def dma(st):
        slot = st % R
        if opt('rot', 1) and B0 <= st < B0 + 8:
            blk = B0 + 4 * ((st - B0) >> 2)
            a(f"s_add_u32 s46, s43, {st}\ns_and_b32 s46, s46, 3\ns_add_u32 s46, s46, {blk}")
        else: a(f"s_mov_b32 s46, {st}")
        a(f"""s_lshl_b32 s48, s46, 7
        s_add_u32 s48, s48, s44
        s_mul_i32 s49, s46, {64*3840}
        s_add_u32 s49, s49, s45""")
        for i in range(MT):
            a(f"s_add_u32 m0, s47, {slot*SLOT + 4096*i}")
            self.vmem(f"buffer_load_dwordx4 v4, {srd(SRD_X)}, s48 offen lds", ('p1', st))
            if i < MT - 1: a(f"s_add_u32 s48, s48, {32*1280}")
        a(f"s_add_u32 m0, s50, {slot*SLOT + XB}")
        for i in range(4):
            self.vmem(f"buffer_load_dwordx4 v{6+i}, {srd(SRD_WQKV)}, s49 offen offset:{1024*i} lds", ('p1', st))
    dma(0)
    self.more_srds()
    issued = 1
    a(f"""s_mul_i32 s52, s40, 15
    s_add_u32 s52, s52, s41
    s_lshl_b32 s52, s52, 7
    s_cmp_eq_u32 s40, {NRB-1}
    s_cselect_b32 s53, {128 - 2*MT*(NRB-1) + 8}, {2*MT + 8}
    v_mov_b32 v12, 0""")
    if opt('i2', 1): dma(1); issued = 2
    MBS = opt('mbs', 6)
    for st in range(10):
        self.wait_vm(('p1', st))
        if st == MBS + 2:
            self.wait_vm('mb')
            a("v_cmp_ne_u32 vcc, s53, v14\ns_cbranch_vccz L_p1_s0ok")
            keep = list(self.vm.ops)
            self.poll("s52", "s53", 10, 11)
            self.vm.ops = keep + ['t'] * 4
            a(f"""L_p1_s0ok:
            v_lshlrev_b32 v10, 3, v1
            s_mul_i32 s48, s40, {BM*8}
            s_lshl_b32 s49, s{sHW}, 9
            s_add_u32 s48, s48, s49
            s_add_u32 s48, s48, {MEAN1}
            s_lshl_b32 s49, s41, 9
            s_add_u32 s49, s49, {CS1}
            s_cmp_eq_u32 s{sHW}, 3
            s_cselect_b32 s48, s49, s48
            s_cselect_b32 s49, {1920*4}, 0""")
            for q in range(4): a(f"buffer_load_dwordx2 {vr(16+2*q,2)}, v10, {WS}, s48 offen sc1\ns_add_u32 s48, s48, s49")
        self.bar()
        self.sstamp(f'hb{st}')
        if st == 2: self.vmem(f"buffer_load_dword v13, v12, {srd(SRD_DBG)}, 0 offen sc1", 'rdy')
        if st == MBS:
            L = a.newlabel('Ls0')
            self.wait_vm('rdy')
            a(f"v_cmp_ne_u32 vcc, 1, v13\ns_cbranch_vccz {L}r")
            keep = list(self.vm.ops)
            self.poll(0, 1, 10, 11, SRD_DBG)
            self.vm.ops = keep
            a(f"{L}r:")
            self.vmem(f"buffer_load_dword v14, v12, {WS}, s52 offen sc1", 'mb')
        n = 0
        while issued < min(st + LA + 1, 10) and n < (1 if st < opt('ramp', 1) else 2):
            dma(issued); issued += 1; n += 1
    assert issued == 10
    c = (20 ** -0.5) * LOG2E
    a(f"""s_cmp_lt_u32 s41, 5
    s_cselect_b32 s49, {f32hex(c)}, 1.0
    s_lshl_b32 s48, s{sHW}, 9
    s_add_u32 s48, s48, {T}
    v_add_u32 v10, s48, v10
    s_waitcnt vmcnt(0)
    s_cmp_eq_u32 s{sHW}, 3
    s_cbranch_scc1 L_p1_tcs
    v_mul_f32 v17, s49, v17
    s_branch L_p1_tdone
    L_p1_tcs:
    v_pk_add_f32 v[16:17], v[16:17], v[18:19]
    v_pk_add_f32 v[20:21], v[20:21], v[22:23]
    v_pk_add_f32 v[16:17], v[16:17], v[20:21]
    L_p1_tdone:
    ds_write_b64 v10, v[16:17]
    s_waitcnt lgkmcnt(0)""")
    self.bar()
    self.sdump(5)
    a("s_mov_b64 s[62:63], 0\ns_branch L_p1_join")
    nb_h = self.nbar
    self.vm = VM(); self.nbar = 0
    a('L_p1_c:')
    self.more_srds()
    FS = 4 * MT + 16
    FR = 140 - 2 * FS if MT <= 5 else 60
    ACC = FR + 2 * FS
    XA, WA = 16, 18
    assert ACC + 16 * MT <= 220 or MT > 5
    a(f"""s_and_b32 s48, s{sWAVE}, 1
    s_lshr_b32 s49, s{sWAVE}, 1
    v_and_b32 v2, 15, v1
    v_lshrrev_b32 v3, 4, v1
    v_lshlrev_b32 v4, 7, v2
    v_bfe_u32 v5, v1, 1, 3
    v_xor_b32 v5, v5, v3
    v_lshl_add_u32 v4, v5, 4, v4
    s_mul_i32 s50, s48, {2048*MT}
    v_add_u32 v{XA}, s50, v4
    v_xor_b32 v{XA+1}, 64, v{XA}
    s_lshl_b32 s50, s49, 2
    v_lshlrev_b32 v{WA}, 11, v3
    v_bfe_u32 v5, v1, 2, 2
    v_lshl_add_u32 v{WA}, v5, 8, v{WA}
    v_and_b32 v5, 3, v1
    v_lshl_add_u32 v{WA}, v5, 3, v{WA}
    v_bfe_u32 v5, v1, 2, 3
    v_xor_b32 v5, s50, v5
    v_lshl_add_u32 v{WA}, v5, 5, v{WA}
    v_add_u32 v{WA}, {XB}, v{WA}""")
    for nu in range(1, 4): a(f"v_xor_b32 v{WA+nu}, {32*nu}, v{WA}")
    a(f"""s_mul_i32 s50, s48, {128*MT}
    s_add_u32 s50, s50, {T}
    v_lshl_add_u32 v22, v2, 3, s50
    s_lshl_b32 s50, s49, 8
    s_add_u32 s50, s50, {T+1536}
    v_lshl_add_u32 v23, v3, 4, s50
    v_and_b32 v4, 1, v3
    v_lshlrev_b32 v222, 16, v4
    v_lshrrev_b32 v4, 1, v3
    v_lshl_add_u32 v222, v4, 15, v222
    v_lshl_add_u32 v222, v2, 4, v222""")
    a(f"""s_cmp_ge_u32 s41, 10
    s_cselect_b32 s50, 10, 5
    s_cmp_ge_u32 s41, 5
    s_cselect_b32 s50, s50, 0
    s_sub_u32 s51, s41, s50
    s_mul_i32 s52, s51, 6
    v_add_u32 v5, s52, v2
    s_lshl_b32 s51, s51, 4
    v_mul_u32_u24 v4, 5, v5
    v_lshrrev_b32 v4, 1, v4
    v_add_u32 v4, 2, v4
    v_subrev_u32 v4, s51, v4
    s_mul_i32 s52, s40, {MT}
    s_add_u32 s53, s52, {MT-1}
    s_lshr_b32 s52, s52, 3
    s_lshr_b32 s53, s53, 3
    s_cmp_lg_u32 s50, 0
    s_addc_u32 s53, s53, 0
    s_min_u32 s53, s53, 7
    s_sub_u32 s53, s53, s52
    v_cmp_gt_u32 vcc, 18, v4
    v_cmp_ge_u32 s[50:51], s53, v3
    s_and_b64 vcc, vcc, s[50:51]
    v_add_u32 v4, s52, v3
    v_lshl_add_u32 v247, v4, 5, v5""")
    self.sigprep(0)
    a(f"""s_lshl_b32 s50, s41, 1
    s_add_u32 s50, s50, s49
    s_lshl_b32 s50, s50, 18
    s_lshl_b32 s51, s40, 1
    s_add_u32 s51, s51, s48
    s_mul_i32 s51, s51, {MT}
    s_sub_u32 s99, 128, s51
    s_lshl_b32 s51, s51, 8
    s_add_u32 s50, s50, s51
    s_add_u32 s50, s50, {QKV}
    s_cmp_ge_u32 s41, 10
    s_cselect_b32 s51, {4*(M_S1V-M_S1)}, 0
    v_add_u32 v247, s51, v247
    s_cselect_b32 s98, s50, 0
    s_cselect_b32 s50, {OOB//2}, s50
    s_cselect_b32 s0, 0, 1
    s_mov_b32 s52, {2*SLOT}""")
    for i in range(16 * MT): a(f"v_mov_b32 v{ACC+i}, 0")
    lg = LG(a)
    NR = 8 + MT; NM = 4 * MT
    def reads(g):
        j = g & 1
        off = ((g >> 1) & 1) * SLOT
        fb = FR + FS * (g & 1)
        W = lambda i: [(f"ds_read_b64_tr_b16 {vr(fb+4*MT+4*i, 2)}, v{WA+i} offset:{off+32*j*256}", None),
                       (f"ds_read_b64_tr_b16 {vr(fb+4*MT+2+4*i, 2)}, v{WA+i} offset:{off+(32*j+4)*256}", ('W', g & 3, i))]
        X = lambda i: [(f"ds_read_b128 {vr(fb+4*i)}, v{XA+j} offset:{off+2048*i}", ('X', g & 3, i))]
        return W(0) + X(0) + W(1) + W(2) + W(3) + sum([X(i) for i in range(1, MT)], [])
    assert R == 4
    self.stamp('preb0')
    self.bar()
    self.stamp('b0')
    for r in reads(0): lg.op(*r)
    MR, CSR = 24, 36
    for last in (False, True):
        if not last: a("s_mov_b32 s51, 4\n.p2align 3\nL_p1_loop:")
        lg.done = lg.n - NR
        for g in range(4):
            fb = FR + FS * (g & 1)
            fin = last and g == 3
            nxt = [] if g & 1 else reads(g + 1)
            k = 0
            flips = [XA, XA+1, WA, WA+1, WA+2, WA+3]
            for n in range(NM):
                mu, nu = n >> 2, n & 3
                if (g & 1) and n == (8 if fin else 4):
                    lg.drain(); a("s_barrier")
                    if not fin: nxt = reads(g + 1)
                    else:
                        nxt = [(f"ds_read_b64 {vr(MR+2*q, 2)}, v22 offset:{128*q}", None) for q in range(MT)]
                        nxt += [(f"ds_read_b128 {vr(CSR+4*e)}, v23 offset:{64*e}", None) for e in range(4)]
                ac = ACC + 16 * mu + 4 * nu
                if n == 0: lg.need(('W', g, 3))
                if n == 4: lg.need(('X', g, MT - 1))
                a(f"v_mfma_f32_16x16x32_bf16 {vr(ac)}, {vr(fb+4*MT+4*nu)}, {vr(fb+4*mu)}, {vr(ac)}")
                if k < len(nxt): lg.op(*nxt[k]); k += 1
                elif g == 2 and not last:
                    for _ in range(2):
                        if flips: r = flips.pop(); a(f"v_add_u32 v{r}, s52, v{r}")
                if g == 3 and n == NM - 2 and not last: a("s_sub_u32 s52, 0, s52\ns_sub_u32 s51, s51, 1\ns_cmp_lg_u32 s51, 0")
            assert k == len(nxt) and (g != 2 or last or not flips)
        if not last: a("s_cbranch_scc1 L_p1_loop")
    self.nbar += 10
    lg.drain()
    self.stamp('p1loop')
    a(".p2align 3")
    for mu in range(MT):
        a(f"s_cmp_gt_i32 s99, {mu}\ns_cselect_b32 s51, s50, {OOB//2}\ns_add_u32 s53, s51, 131072\ns_nop 0")
        for p in range(2):
            pk = PK1 + 8 * mu + 4 * p
            P = [(ACC + 16 * mu + 8 * p + 2 * h, CSR + 8 * p + 2 * h) for h in range(4)]
            for ac, cs in P: a(f"v_pk_fma_f32 {vr(ac,2)}, {vr(cs,2)}, {vr(MR+2*mu,2)}, {vr(ac,2)} op_sel_hi:[1,0,1] neg_lo:[0,1,0] neg_hi:[0,1,0]")
            for ac, cs in P: a(f"v_pk_mul_f32 {vr(ac,2)}, {vr(ac,2)}, {vr(MR+2*mu,2)} op_sel:[0,1] op_sel_hi:[1,1]")
            for h in (0, 2, 1, 3): a(f"v_cvt_pk_bf16_f32 v{pk+h}, v{P[h][0]}, v{P[h][0]+1}")
            a(f"v_permlane16_swap_b32 v{pk}, v{pk+2}\ns_nop 0\nv_permlane16_swap_b32 v{pk+1}, v{pk+3}\ns_nop 0")
            a(f"buffer_store_dwordx4 {vr(pk)}, v222, {WS}, s{53 if p else 51} offen offset:{256*mu} sc1")
    assert PK1 + 8 * MT <= ACC
    self.stamp('p1epi')
    assert self.nbar == nb_h, (self.nbar, nb_h)
    a("L_p1_join:")
    a.settle(3)

def p1_vstores(self):
    a = self.a
    a("s_cmp_eq_u32 s98, 0\ns_cbranch_scc1 L_p1_nov")
    for mu in range(MT):
        a(f"s_cmp_gt_i32 s99, {mu}\ns_cselect_b32 s57, s98, {OOB//2}")
        a(f"buffer_store_dwordx4 {vr(PK1+8*mu)}, v222, {WS}, s57 offen offset:{256*mu} sc1\ns_add_u32 s57, s57, 131072")
        a(f"buffer_store_dwordx4 {vr(PK1+8*mu+4)}, v222, {WS}, s57 offen offset:{256*mu} sc1")
    a("L_p1_nov:")

def s1_expect(self):
    self.a(f"""s_lshl_b32 s47, s41, 3
    s_add_u32 s48, s47, 7
    s_mul_i32 s48, s48, {MAG}
    s_lshr_b32 s48, s48, 16
    s_add_u32 s48, s48, 1
    s_mul_i32 s49, s47, {MAG}
    s_lshr_b32 s49, s49, 16
    s_sub_u32 s49, s48, s49
    s_sub_u32 s47, s47, 8
    s_max_i32 s47, s47, 0
    s_mul_i32 s47, s47, {MAG}
    s_lshr_b32 s47, s47, 16
    s_sub_u32 s48, s48, s47
    s_add_u32 s49, s49, s48
    s_mul_i32 s48, s48, s46
    s_mul_i32 s46, s49, s46""")
```

```python
def install(Gen, G):
    globals().update({k: v for k, v in G.items() if not k.startswith('__')})
    for f in (p2, p3_prefetch, tail345):
        setattr(Gen, f.__name__, f)

KV0 = 102400
OCTP = 8256

def p2(self):
    a = self.a
    self.vm = VM(); self.nbar = 0
    a("s_cmp_eq_u32 s0, 1\ns_cbranch_scc1 L_p1_fin\nL_p2_pre:")
    a(f"""s_and_b32 s40, s2, 7
    s_lshl_b32 s40, s40, 2
    s_bfe_u32 s41, s2, 0x20003
    s_add_u32 s40, s40, s41
    s_lshr_b32 s41, s2, 5
    s_mul_i32 s42, s40, 5
    s_lshr_b32 s42, s42, 1
    s_and_b32 s43, s40, 1
    s_add_u32 s44, s42, s43
    s_xor_b32 s45, s43, 1
    s_lshl_b32 s45, s45, 1
    s_add_u32 s45, s45, s42""")
    a(f"""s_add_u32 s46, s42, 2
    s_lshr_b32 s46, s46, 4
    s_lshr_b32 s47, s42, 4
    s_sub_u32 s46, s46, s47
    s_add_u32 s46, s46, 1
    s_nop 0""")
    if opt('p1n', 0): self.s1_expect()
    else: a("""s_cmp_eq_u32 s41, 0
    s_cselect_b32 s47, 2, 4
    s_mul_i32 s48, s46, s47
    s_add_u32 s47, s47, 2
    s_mul_i32 s46, s46, s47""")
    a(f"""
    s_lshl_b32 s47, s41, 5
    s_add_u32 s47, s47, s40
    s_lshl_b32 s47, s47, 7
    s_add_u32 s47, s47, {4*M_S1}""")
    pf = self.p3_prefetch() if self.upto >= 3 else []
    a(f"""v_and_b32 v2, 31, v1
    v_lshrrev_b32 v3, 5, v1
    v_lshlrev_b32 v4, 4, v1""")
    a(f"""s_lshl_b32 s50, s41, 2
    s_add_u32 s50, s50, s{sWAVE}
    s_cmp_lt_u32 s50, 4
    s_mov_b32 s51, 0x3f803f80
    s_cselect_b32 s50, 0x3f80ff7f, s51
    v_mov_b32 v8, s50
    v_mov_b32 v9, 0x3f803f80
    v_mov_b32 v10, 0x3f803f80
    v_mov_b32 v11, 0x3f803f80
    s_lshl_b32 s49, s{sWAVE}, 10
    s_add_u32 s50, s49, {KV0+6*OCTP}
    v_add_u32 v5, s50, v4
    ds_write_b128 v5, v[8:11]
    s_cmp_eq_u32 s41, 0
    s_cselect_b32 s50, 0xbf803f80, 0
    v_mul_lo_u32 v15, s50, v3""")
    a("v_lshlrev_b32 v5, 2, v3\nv_sub_u32 v5, v2, v5")
    for r in range(16):
        a(f"v_cmp_le_i32 s[{64+2*r}:{65+2*r}], {8*(r>>2)+(r&3)}, v5")
    PM = 52
    a("v_mov_b32 v6, 0xffff\nv_mov_b32 v7, 0xffff0000")
    for i in range(8):
        a(f"v_cndmask_b32 v{PM+i}, 0, v6, s[{64+4*i}:{65+4*i}]\nv_cndmask_b32 v8, 0, v7, s[{66+4*i}:{67+4*i}]\nv_or_b32 v{PM+i}, v{PM+i}, v8")
    a(f"""s_lshl_b32 s50, s{sWAVE}, 9
    s_add_u32 s50, s50, {KV0}
    v_lshl_add_u32 v13, v2, 4, s50
    v_mul_u32_u24 v12, {OCTP}, v3
    v_lshl_add_u32 v5, v12, 2, v13
    v_add_u32 v12, v12, v13
    v_add_u32 v13, {2*OCTP}, v5""")
    a(f"""v_bfe_u32 v5, v1, 2, 2
    v_lshl_add_u32 v5, v3, 2, v5
    v_lshl_add_u32 v14, v5, 4, s50
    v_and_b32 v5, 1, v1
    v_bfe_u32 v6, v1, 1, 1
    v_mov_b32 v7, s43
    v_cmp_eq_u32 vcc, 1, v6
    v_cndmask_b32 v7, v7, v5, vcc
    v_add_u32 v8, 2, v6
    v_and_b32 v9, 16, v1
    v_cmp_eq_u32 vcc, 0, v9
    v_cndmask_b32 v8, v8, v5, vcc
    v_cndmask_b32 v7, v7, v6, vcc
    v_mul_u32_u24 v8, {OCTP}, v8
    v_lshl_add_u32 v8, v7, 3, v8
    v_add_u32 v14, v14, v8
    v_add_u32 v14, {3*OCTP}, v14""")
    a(f"""s_lshl_b32 s50, s41, 2
    s_add_u32 s50, s50, s{sWAVE}
    s_cmp_lt_u32 s50, 4
    s_cselect_b32 s51, 0, 4
    s_sub_u32 s50, s50, s51
    s_lshl_b32 s50, s50, 10
    s_add_u32 s50, s50, {QKV + 80*32768}
    s_lshl_b32 s51, s44, 15
    s_add_u32 s51, s51, s50
    s_lshl_b32 s52, s45, 15
    s_add_u32 s52, s52, s50
    s_add_u32 s49, s49, {KV0}""")
    a(f"""s_lshl_b32 s53, s41, 3
    s_add_u32 s53, s53, s{sWAVE}
    s_lshl_b32 s54, s53, 9
    s_add_u32 s54, s54, {QKV}
    s_lshl_b32 s55, s44, 15
    s_add_u32 s55, s55, s54
    s_lshl_b32 s56, s45, 15
    s_add_u32 s56, s56, s54
    v_lshlrev_b32 v5, 15, v3
    v_lshl_add_u32 v5, v2, 4, v5
    v_lshlrev_b32 v6, 4, v2
    v_mov_b32 v8, {OOB}
    v_add_u32 v9, s43, v3
    v_cmp_eq_u32 vcc, 0, v9
    v_cndmask_b32 v7, v8, v6, vcc
    v_cmp_gt_u32 vcc, s43, v3
    v_cndmask_b32 v6, v8, v6, vcc""")
    self.stamp('p2pre')
    a("s_cmp_eq_u32 s0, 1\ns_cbranch_scc1 L_p2_poll")
    self.p1_vstores()
    a(f"s_cmp_lg_u32 s0, 2\ns_cbranch_scc1 L_p1_fin\ns_cmp_lg_u32 s{sWAVE}, 5\ns_cbranch_scc1 L_p1_fin")
    self.pollw("s47", "s46", 8, 248, depth=3)
    a("s_branch L_p1_fin2\nL_p1_fin:")
    self.finish(M_S1, 'p1st', mid="L_p1_fin2")
    a("s_cmp_eq_u32 s0, 1\ns_cbranch_scc1 L_p2_pre\nL_p2_poll:")
    a(f"s_cmp_eq_u32 s0, 2\ns_cbranch_scc1 L_p2_polled\ns_cmp_lg_u32 s{sWAVE}, 5\ns_cbranch_scc1 L_p2_polled")
    self.pollw("s47", "s46", 8, 248, depth=3)
    a("L_p2_polled:")
    self.bar()
    self.stamp('p2poll')
    Q0, Q1 = 16, 20
    if 'p2twice' in sys.argv:
        a("s_mov_b32 s61, 2\nL_p2_again:\nv_mov_b32 v240, v5\nv_mov_b32 v241, v6\ns_mov_b32 s40, s55\ns_mov_b32 s42, s56")
        if 'nopf' in sys.argv: pf = []
    def dma(o, goff, add, tag):
        a(f"s_add_u32 m0, s49, {o*OCTP}")
        if add: a(f"s_add_u32 s57, s{goff}, {add}")
        self.vmem(f"buffer_load_dwordx4 v4, {WS}, s{57 if add else goff} offen sc1 lds", tag)
    dma(0, 51, 0, 'K'); dma(1, 51, 32768, 'K'); dma(2, 52, 0, 'K')
    self.vmem(f"buffer_load_dwordx4 {vr(Q0)}, v5, {WS}, s55 offen sc1", 'K')
    self.vmem(f"buffer_load_dwordx2 {vr(Q1,2)}, v7, {WS}, s56 offen sc1", 'K')
    self.vmem(f"buffer_load_dwordx2 {vr(Q1+2,2)}, v6, {WS}, s56 offen offset:8 sc1", 'K')
    VL = opt('vlate', 0)
    a(f"s_add_u32 s47, s47, {4*(M_S1V-M_S1)}")
    if not VL:
        a(f"s_cmp_lg_u32 s{sWAVE}, 1\ns_cbranch_scc1 L_p2_vok")
        self.pollw("s47", "s48", 8, 9)
        a("L_p2_vok:")
    self.wait_vm('K')
    a(f"v_or_b32 v{Q1}, v{Q1}, v15\ns_waitcnt lgkmcnt(0)")
    self.bar()
    self.stamp('p2k')
    SB = 64; OA = 208; KF = 24
    Sr = lambda t: SB + 16 * t
    order = [1, 8, 0, 2, 3, 4, 5, 6, 7]
    Pr = lambda t: Sr(8) + 8 if t == 8 else Sr(t)
    Vr = lambda t: Sr(8) if t == 8 else Sr(t) + 8
    M0, M1 = 60, 61
    VrF = {1: 226, 8: Sr(1)+8, 0: Sr(8), 2: Sr(0)+8, 3: Sr(2)+8, 4: Sr(3)+8, 5: Sr(4)+8, 6: Sr(5)+8, 7: Sr(6)+8}.__getitem__
    def mk(lg, first_pv, Vr=Vr):
        def kread(n):
            t = order[n]; kb = KF + 8 * (n % 3)
            lg.op(f"ds_read_b128 {vr(kb)}, v12 offset:{512*t}", ('K', n, 0))
            lg.op(f"ds_read_b128 {vr(kb+4)}, v13 offset:{512*t}", ('K', n, 1))
        def qk(n, h):
            t = order[n]; kb = KF + 8 * (n % 3)
            lg.need(('K', n, h))
            if h == 0: a(f"v_mfma_f32_32x32x16_bf16 {vr(Sr(t),16)}, {vr(kb)}, {vr(Q0)}, 0")
            else: a(f"v_mfma_f32_32x32x16_bf16 {vr(Sr(t),16)}, {vr(kb+4)}, {vr(Q1)}, {vr(Sr(t),16)}")
        def vread(t):
            for sp in range(2):
                for tt in range(2):
                    lg.op(f"ds_read_b64_tr_b16 {vr(Vr(t)+4*sp+2*tt,2)}, v14 offset:{(32*t+16*sp+8*tt)*16}", ('V', t, sp))
        def pv(t, sp):
            lg.need(('V', t, sp))
            c = "0" if (t == first_pv and sp == 0) else vr(OA, 16)
            a(f"v_mfma_f32_32x32x16_bf16 {vr(OA,16)}, {vr(Vr(t)+4*sp)}, {vr(Pr(t)+4*sp)}, {c}")
        def merge():
            for r in range(16):
                a(f"v_cndmask_b32 v{Sr(8)+r}, v{Sr(0)+r}, v{Sr(8)+r}, s[{64+2*r}:{65+2*r}]")
        def cvt(t):
            a(".p2align 3")
            for i in range(8): a(f"v_cvt_pk_bf16_f32 v{Sr(t)+i}, v{Sr(t)+2*i}, v{Sr(t)+2*i+1}")
            if t == 8:
                for i in range(8):
                    a(f"v_and_b32_e64 v{Sr(8)+8+i}, v{Sr(8)+i}, v{PM+i}\nv_bfi_b32 v{Sr(0)+i}, v{PM+i}, 0, v{Sr(8)+i}")
        return kread, qk, vread, pv, merge, cvt
    lg = LG(a)
    kread, qk, vread, pv, merge, cvt = mk(lg, 1, VrF)
    kread(0); kread(1); kread(2)
    def vdma(): dma(3, 51, 80*32768, 'V'); dma(4, 51, 81*32768, 'V'); dma(5, 52, 80*32768, 'V')
    if VL:
        a("v_mov_b32 v8, 0")
        self.vmem(f"buffer_load_dword v9, v8, {WS}, s47 offen sc1", 'vf')
    else: vdma()
    qk(0, 0); qk(0, 1); kread(3); qk(1, 0)
    def kr(n, h):
        t = order[n]; kb = KF + 8 * (n % 3)
        lg.op(f"ds_read_b128 {vr(kb+4*h)}, v{12+h} offset:{512*t}", ('K', n, h))
    def vr1(t, q):
        lg.op(f"ds_read_b64_tr_b16 {vr(VrF(t)+2*q,2)}, v14 offset:{(32*t+8*q)*16}", ('V', t, q >> 1))
    qs = []
    for n in range(1, 9):
        if n > 1: qs += [('w', lambda n=n: lg.need(('K', n, 1))), ('m', lambda n=n: qk(n, 0))]
        qs += [('m', lambda n=n: qk(n, 1), n)]
        if n + 3 < 9: qs += [('l', lambda n=n: kr(n + 3, 0)), ('l', lambda n=n: kr(n + 3, 1))]
    ls = []
    ps = []
    qdone = {order[0]}
    since = [0]
    slot = [0]; vat = {}
    def mf(urgent_q):
        if since[0] < opt('mgap', 32): return
        pok = ps and slot[0] - vat.get(ps[0][2], 1 << 30) >= 5
        if qs and qs[0][0] == 'm' and (urgent_q or not pok):
            it = qs.pop(0); it[1](); since[0] = 0
            if len(it) > 2: qdone.add(order[it[2]])
        elif pok:
            ps.pop(0)[1](); since[0] = 0
    def side():
        slot[0] += 1
        if qs and qs[0][0] != 'm': qs.pop(0)[1]()
        elif ls:
            it = ls.pop(0); it[1](); vat[it[2]] = slot[0] if it[3] == 3 else 1 << 30
        elif ps and ps[0][3] == 0 and slot[0] - vat.get(ps[0][2], 1 << 30) >= 4 and lg.pos[('V', ps[0][2], 1)] > lg.done:
            lg.need(('V', ps[0][2], 1))
        elif pf: pf.pop(0)()
    vok = False
    seq = (1, 8, 2, 3, 4, 5, 6, 7)
    vq = [1, 8, 0, 2, 3, 4, 5, 6, 7]
    vfree = {1}
    after = {1: [8], 8: [0, 2], 2: [3], 3: [4], 4: [5], 5: [6], 6: [7], 7: []}
    for idx, t in enumerate(seq):
        need = {8, 0} if t == 8 else {t}
        assert need <= qdone, (t, qdone)
        if t == 8: merge()
        nxt = set() if idx + 1 >= len(seq) else ({8, 0} if seq[idx + 1] == 8 else {seq[idx + 1]})
        for i in range(16):
            a(f"v_exp_f32 v{Sr(t)+i}, v{Sr(t)+i}")
            since[0] += 8
            mf(not nxt <= qdone)
            side()
        if t == 7:
            for it in ps: it[1]()
            ps = []
            break
        cvt(t)
        if VL and idx == 0:
            while len(pf) % 3: pf.pop(0)()
            self.wait_vm('vf')
            a("v_cmp_ne_u32 vcc, s48, v9\ns_cbranch_vccz L_p2_vok")
            self.pollw("s47", "s48", 8, 9)
            a("L_p2_vok:")
            vdma()
        since[0] += 32
        vfree |= set(after[t])
        for d in ([8, 0] if t == 8 else [t]):
            ps += [('m', lambda d=d: pv(d, 0), d, 0), ('m', lambda d=d: pv(d, 1), d, 1)]
        if t == opt('vbt', 2):
            self.wait_vm('V')
            self.bar()
            if opt('wdw', 1):
                a(f"v_lshlrev_b32 v225, 7, v1\ns_and_b32 s98, s{sWAVE}, 1\ns_lshl_b32 s98, s98, 8\ns_add_u32 s98, s98, s2\ns_lshl_b32 s98, s98, 13")
                for k, sr in enumerate([SRD_WD, SRD_WU]):
                    a(f"s_lshr_b32 s99, s{sWAVE}, 1\ns_cmp_lg_u32 s99, {3-k}\ns_cbranch_scc1 L_nowd{k}")
                    if k: a(f"s_add_u32 s98, s98, {64*8192}")
                    self.touch(srd(sr), 225, "s98", 0)
                    a(f"L_nowd{k}:")
                assert not pf
            vok = True
        while vok and vq and vq[0] in vfree:
            d = vq.pop(0)
            ls += [('l', lambda d=d, q=q: vr1(d, q), d, q) for q in range(4)]
    assert not qs and not ls and not vq and not pf
    a(".p2align 3")
    for sp in range(2):
        for i in range(4*sp, 4*sp+4): a(f"v_cvt_pk_bf16_f32 v{Sr(7)+i}, v{Sr(7)+2*i}, v{Sr(7)+2*i+1}")
        if sp == 1: pv(7, 0)
    pv(7, 1)
    pvq = []
    while pf: pf.pop(0)()
    a(f"""v_bfe_u32 v5, v1, 4, 1
    v_mul_u32_u24 v5, 20480, v5
    v_and_b32 v7, 15, v1
    v_lshl_add_u32 v6, v7, 3, v5
    v_lshl_add_u32 v5, v7, 4, v5
    v_mov_b32 v8, {OOB}
    v_cmp_eq_u32 vcc, 0, v3
    v_cndmask_b32 v6, v8, v6, vcc
    v_lshl_add_u32 v5, v3, 8, v5
    s_mul_i32 s54, s53, 40960
    s_add_u32 s54, s54, {OO}
    s_lshl_b32 s55, s40, 9
    s_add_u32 s55, s55, s54
    s_lshl_b32 s56, s40, 7
    s_add_u32 s56, s56, s54
    s_add_u32 s56, s56, 16384
    s_mov_b32 s57, {(127+64-(127-64))<<23}""")
    while pvq: pvq.pop(0)()
    a(f"""v_subrev_u32 v8, {(127-64)<<23}, v{OA+12}
    v_cmp_lt_u32 vcc, s57, v8
    s_cbranch_vccnz L_p2_slow
    L_p2_norm:
    v_rcp_f32 v8, v{OA+12}""")
    def slow():
        a("L_p2_slow:")
        a.settle()
        lg = LG(a)
        kread, qk, vread, pv, merge, cvt = mk(lg, 8)
        first = [True]
        def vmax(t):
            b = Sr(t)
            for i in range(0, 16, 4):
                if first[0]:
                    a(f"v_max_f32 v{M0}, v{b}, v{b+1}\nv_max_f32 v{M1}, v{b+2}, v{b+3}")
                    first[0] = False
                else:
                    a(f"v_max3_f32 v{M0}, v{M0}, v{b+i}, v{b+i+1}\nv_max3_f32 v{M1}, v{M1}, v{b+i+2}, v{b+i+3}")
        for n in range(9):
            kread(n); qk(n, 0); qk(n, 1)
        merge()
        for t in range(1, 9): vmax(t)
        a(f"""v_max_f32 v{M0}, v{M0}, v{M1}
        v_mov_b32 v{M1}, v{M0}
        v_permlane32_swap_b32 v{M0}, v{M1}
        v_max_f32 v{M0}, v{M0}, v{M1}""")
        for t in (8, 1, 2, 3, 4, 5, 6, 7):
            for i in range(16): a(f"v_sub_f32 v{Sr(t)+i}, v{Sr(t)+i}, v{M0}")
            for i in range(16): a(f"v_exp_f32 v{Sr(t)+i}, v{Sr(t)+i}")
            cvt(t)
            for d in ([8, 0] if t == 8 else [t]):
                vread(d); pv(d, 0); pv(d, 1)
        a.settle()
        a("s_branch L_p2_norm")
    self.tail.append(slow)
    for i in range(12): a(f"v_mul_f32 v{OA+i}, v{OA+i}, v8")
    for i in range(6): a(f"v_cvt_pk_bf16_f32 v{16+i}, v{OA+2*i}, v{OA+2*i+1}")
    a(f"buffer_store_dwordx4 v[16:19], v5, {WS}, s55 offen sc1")
    a(f"buffer_store_dwordx2 v[20:21], v6, {WS}, s56 offen sc1")
    self.stamp('p2cmp')
    self.stamp('p2cmp4', 4)
    if 'p2twice' in sys.argv:
        a("s_waitcnt vmcnt(0)\ns_barrier\nv_mov_b32 v5, v240\nv_mov_b32 v6, v241\ns_mov_b32 s55, s40\ns_mov_b32 s56, s42\ns_sub_u32 s59, s59, 4\ns_sub_u32 s61, s61, 1\ns_cmp_lg_u32 s61, 0\ns_cbranch_scc1 L_p2_again")
    sig96(self, 41, 4)
    if self.upto == 2: self.finish(M_S2, 'p2st')

def sig96(self, srb, wave):
    self.a(f"""s_lshl_b32 s52, s{srb}, 3
    s_mul_i32 s51, s52, 21846
    s_lshr_b32 s51, s51, 16
    s_add_u32 s52, s52, 7
    s_mul_i32 s52, s52, 21846
    s_lshr_b32 s52, s52, 16
    s_sub_u32 s52, s52, s51
    s_add_u32 s52, s52, 1
    s_mul_i32 s52, s52, 10
    s_mul_i32 s51, s51, 10
    v_add_u32 v247, s51, v1
    v_cmp_gt_u32 vcc, s52, v1""")
    self.sigprep(wave)

def p3_prefetch(self):
    a = self.a
    p5_coords(a, 58, 59, 60)
    self.w128_dma_voff(1280, 224, 5, 6)
    if opt('rot3', 0):
        a(f"s_mul_i32 s58, s61, {opt('rot3', 0)}\ns_lshr_b32 s58, s58, 1\ns_add_u32 s58, s58, 7\ns_and_b32 s58, s58, 7\ns_mul_i32 s58, s58, {80*1280}")
    a(f"""s_and_b32 s60, s{sWAVE}, 1
    s_lshl_b32 s60, s60, 6
    v_xor_b32 v224, s60, v224
    s_lshl_b32 s59, s59, 7
    s_lshr_b32 s60, s{sWAVE}, 2
    s_mul_i32 s60, s60, 5
    s_add_u32 s60, s60, s{sHW}
    s_lshr_b32 s61, s{sHW}, 1
    s_add_u32 s60, s60, s61
    s_mul_i32 s60, s60, {8*1280}
    s_add_u32 s60, s60, s59
    s_mul_i32 s61, s{sWAVE}, {40*1280}
    s_add_u32 s61, s61, s59
    s_lshl_b32 s59, s{sWAVE}, 10
    s_cmp_ge_u32 s2, 220
    s_cselect_b32 s60, {OOB//2}, s60
    s_cselect_b32 s61, {OOB//2}, s61""")
    out = []
    R3 = opt('rot3', 0)
    for n in range(10):
        if n < 8 and R3:
            g = f"s_add_u32 s58, s58, {80*1280}\ns_cmp_ge_u32 s58, {8*80*1280}\ns_cselect_b32 s58, 0, s58\ns_add_u32 s98, s60, s58"
        else: g = f"s_add_u32 s98, s60, {n*80*1280}" if n < 8 else f"s_add_u32 s98, s61, {(320*(n-8)+16)*1280}"
        out += [lambda n=n: a(f"s_add_u32 m0, s59, {8192*n}"), lambda g=g: a(g),
                lambda: self.vmem(f"buffer_load_dwordx4 v224, {srd(SRD_WO)}, s98 offen lds", 'wo')]
    return out

P3_A, P3_X, P3_ST = 81920, 143360, 155648
_o = dict(a.split('=') for a in __import__('sys').argv[1:] if '=' in a)
P4_R, P4_SLOT = int(_o.get('r4', 4)), 24576
P4_TAB = P4_R * 24576
RA, LA96 = 5, 3
W5PLAN = {int(x.split(':')[0]): int(x.split(':')[1]) for x in _o.get('w5plan', '16:1,17:3,18:3,19:3').split(',')}
P5_RW, P5_PRE = 20, sum(W5PLAN.values())
P5_S0 = 3 * P4_R + 1
def p5_wslot(st): return 8192 * ((st + P5_S0) % P5_RW)

def p4_coords(a):
    a("""s_and_b32 s40, s2, 7
    s_min_u32 s41, s40, 3
    s_mul_i32 s40, s40, 30
    s_add_u32 s40, s40, s41
    s_lshr_b32 s41, s2, 3
    s_add_u32 s40, s40, s41
    s_mul_i32 s41, s40, 1041
    s_lshr_b32 s41, s41, 16
    s_mul_i32 s42, s41, 63
    s_sub_u32 s40, s40, s42
    s_cmp_eq_u32 s41, 3
    s_cselect_b32 s42, 6, 7
    s_mov_b32 s43, 9363
    s_cselect_b32 s43, 10923, s43
    s_mul_i32 s41, s41, 7
    s_add_u32 s41, s41, s40
    s_mul_i32 s40, s40, s43
    s_lshr_b32 s40, s40, 16
    s_mul_i32 s42, s42, s40
    s_sub_u32 s41, s41, s42""")

def n4_blocks(a, r, d, t):
    a(f"""s_mul_i32 s{d}, s{r}, {3*9363}
    s_add_u32 s{t}, s{d}, {2*9363}
    s_lshr_b32 s{d}, s{d}, 16
    s_lshr_b32 s{t}, s{t}, 16
    s_cmp_eq_u32 s{d}, s{t}
    s_cselect_b32 s{d}, 27, 54""")

def p5_coords(a, r, c, t):
    if opt('map5', 0):
        a(f"""s_and_b32 s{r}, s2, 7
        s_mul_i32 s{r}, s{r}, 27
        s_lshr_b32 s{c}, s2, 3
        s_add_u32 s{t}, s{r}, s{c}
        s_cmp_ge_u32 s2, 216
        s_cselect_b32 s{t}, s2, s{t}
        s_mul_i32 s{r}, s{t}, 6554
        s_lshr_b32 s{r}, s{r}, 16
        s_mul_i32 s{c}, s{r}, 10
        s_sub_u32 s{c}, s{t}, s{c}
        s_mov_b32 s{t+1}, s{c}""")
        return
    a(f"""s_bfe_u32 s{r}, s2, 0x20001
    s_add_u32 s{t+1}, s{r}, 108
    s_mul_i32 s{r}, s{r}, 27
    s_lshr_b32 s{c}, s2, 3
    s_add_u32 s{t}, s{r}, s{c}
    s_cmp_ge_u32 s2, 216
    s_cselect_b32 s{t}, s{t+1}, s{t}
    s_mul_i32 s{r}, s{t}, 13108
    s_lshr_b32 s{r}, s{r}, 16
    s_mul_i32 s{c}, s{r}, 5
    s_sub_u32 s{t+1}, s{t}, s{c}
    s_and_b32 s{c}, s2, 1
    s_mul_i32 s{c}, s{c}, 5
    s_add_u32 s{c}, s{c}, s{t+1}""")

def tail345(self):
    a = self.a
    self.tail.append(lambda: idle_code(self))
    a(f"s_cmp_ge_u32 s{sWAVE}, 4\ns_cbranch_scc1 L_h345")
    self.nbar = 0
    marks_c = []
    p3_c(self); marks_c.append(self.nbar)
    if self.upto >= 4: p4_c(self); marks_c.append(self.nbar)
    if self.upto >= 5: p5_c(self); marks_c.append(self.nbar)
    a("s_endpgm")
    a("L_h345:")
    self.nbar = 0
    marks_h = []
    p3_h(self); marks_h.append(self.nbar)
    if self.upto >= 4: p4_h(self); marks_h.append(self.nbar)
    if self.upto >= 5: p5_h(self); marks_h.append(self.nbar)
    assert marks_c == marks_h, (marks_c, marks_h)

G_FR, G_ACC = 16, 96
def g96_loop(self, nst, aread, wread, hook=None):
    a = self.a
    FR, ACC = G_FR, G_ACC
    lg = LG(a)
    def reads(st):
        fb = FR + 40 * (st & 1)
        out = []
        for j in range(2):
            W = lambda nu: [(wread(st, j, nu, t, fb + 20*j + 12 + 4*nu + 2*t), ('W', st, j, nu)) for t in range(2)]
            X = lambda i: [(r, ('X', st, j, i)) for r in aread(st, j, i, fb + 20*j + 4*i)]
            out += W(0) + X(0) + W(1) + X(1) + X(2)
        return out
    for r in reads(0): lg.op(*r)
    for st in range(nst):
        nxt = []
        fb = FR + 40 * (st & 1)
        k = 0; n = 0
        for j in range(2):
            for mu in range(3):
                for nu in range(2):
                    if n == 1 and st + 1 < nst:
                        self.bar()
                        nxt = reads(st + 1)
                    ac = ACC + 8 * mu + 4 * nu
                    c = "0" if (st == 0 and j == 0) else vr(ac)
                    if st > 0 and mu == 0 and nu == 0: lg.need(('X', st, j, 2))
                    lg.need(('W', st, j, nu), ('X', st, j, mu))
                    a(f"v_mfma_f32_16x16x32_bf16 {vr(ac)}, {vr(fb+20*j+12+4*nu)}, {vr(fb+20*j+4*mu)}, {c}")
                    left = len(nxt) - k
                    for _ in range(-(-left // (12 - n)) if nxt else 0):
                        lg.op(*nxt[k]); k += 1
                    n += 1
        assert k == len(nxt)
        if hook: hook(st, lg)
    return lg

def p3_c(self):
    a = self.a
    self.vm = VM()
    ACC = G_ACC
    p5_coords(a, 40, 41, 42)
    a(f"""s_and_b32 s48, s{sWAVE}, 1
    s_lshr_b32 s49, s{sWAVE}, 1
    v_and_b32 v2, 15, v1
    v_lshrrev_b32 v3, 4, v1""")
    self.w128_read_addr(14, 4)
    a(f"""s_lshl_b32 s50, s49, 6
    v_xor_b32 v14, s50, v14
    v_xor_b32 v11, 32, v14
    v_add_u32 v12, 40960, v14
    v_add_u32 v13, 40960, v11
    s_mul_i32 s50, s48, 6144
    s_add_u32 s50, s50, {P3_A}
    v_lshl_add_u32 v8, v1, 4, s50
    v_lshlrev_b32 v9, 8, v3
    v_lshl_add_u32 v9, v2, 3, v9
    v_add_u32 v9, s50, v9""")
    a(f"""v_lshrrev_b32 v7, 1, v3
    s_lshl_b32 s50, s49, 2
    v_add_u32 v4, s50, v7
    v_and_b32 v5, 7, v2
    v_xor_b32 v4, v4, v5
    v_lshlrev_b32 v4, 4, v4
    v_lshl_add_u32 v4, v2, 7, v4
    v_and_b32 v5, 1, v3
    v_lshl_add_u32 v4, v5, 3, v4
    s_mul_i32 s50, s48, 6144
    s_add_u32 s50, s50, {P3_X}
    v_add_u32 v4, s50, v4
    v_xor_b32 v10, 32, v4""")
    a(f"""v_lshlrev_b32 v6, 9, v5
    v_lshl_add_u32 v6, v7, 8, v6
    v_lshl_add_u32 v6, v2, 4, v6
    s_lshl_b32 s50, s40, 1
    s_add_u32 s50, s50, s48
    s_mul_i32 s50, s50, {3*20480}
    s_lshl_b32 s53, s41, 1
    s_add_u32 s53, s53, s49
    s_lshl_b32 s53, s53, 10
    s_add_u32 s53, s53, s50
    s_add_u32 s53, s53, {HH}""")
    a(f"""v_lshlrev_b32 v15, 3, v2
    v_lshl_add_u32 v15, v5, 2, v15
    s_mul_i32 s50, s{sWAVE}, 384
    s_add_u32 s50, s50, {P3_ST}
    v_add_u32 v15, s50, v15""")
    self.finish(M_S2, 'p2st')
    a("s_cmp_ge_u32 s2, 220\ns_cbranch_scc1 L_idle")
    a("s_mov_b64 s[62:63], 0")
    self.bar()
    self.bar()
    self.stamp('p3b0')
    XR = 120
    def aread(st, j, i, dst):
        off = (st % RA) * 12288 + 2048 * i + 1024 * j
        if st < 8: return [f"ds_read_b128 {vr(dst)}, v8 offset:{off}"]
        return [f"ds_read_b64 {vr(dst+2*e,2)}, v9 offset:{off+128*e}" for e in range(2)]
    def wread(st, j, nu, t, dst):
        b = (14, 11, 12, 13)[2 * (st >= 5) + nu]
        return f"ds_read_b64_tr_b16 {vr(dst,2)}, v{b} offset:{8192*(st%5)+4096*j+512*t}"
    def hook(st, lg):
        if st == (7 if opt('xlate', 0) else 4):
            for mu in range(3):
                for nu in range(2):
                    lg.op(f"ds_read_b64 {vr(XR+4*mu+2*nu,2)}, v{10 if nu else 4} offset:{2048*mu}", 'xr')
        if st == (8 if opt('xlate', 0) else 6):
            lg.need('xr')
            for i in range(12):
                a(f"v_lshlrev_b32 v{136+2*i}, 16, v{XR+i}\nv_and_b32 v{137+2*i}, 0xffff0000, v{XR+i}")
    g96_loop(self, 10, aread, wread, hook)
    self.stamp('p3loop')
    a(".p2align 3")
    for i in range(12): a(f"v_pk_add_f32 {vr(136+2*i,2)}, {vr(136+2*i,2)}, {vr(ACC+2*i,2)}")
    for i in range(12): a(f"v_cvt_pk_bf16_f32 v{160+i}, v{136+2*i}, v{137+2*i}")
    for mu in range(3):
        pk = 160 + 4 * mu
        a(f"v_permlane16_swap_b32 v{pk}, v{pk+2}\nv_permlane16_swap_b32 v{pk+1}, v{pk+3}")
        a(f"buffer_store_dwordx4 {vr(pk)}, v6, {WS}, s53 offen sc1")
        if mu < 2: a("s_add_u32 s53, s53, 20480")
    self.stamp('p3epi')
    self.finish(M_S3, 'p3st')
    for mu in range(3):
        b = 136 + 8 * mu
        a(f"v_pk_add_f32 {vr(176+4*mu,2)}, {vr(b,2)}, {vr(b+2,2)}\nv_pk_mul_f32 {vr(178+4*mu,2)}, {vr(b,2)}, {vr(b,2)}")
    for i in range(1, 4):
        for mu in range(3):
            b = 136 + 8 * mu + 2 * i
            if i > 1: a(f"v_pk_add_f32 {vr(176+4*mu,2)}, {vr(176+4*mu,2)}, {vr(b,2)}")
            a(f"v_pk_fma_f32 {vr(178+4*mu,2)}, {vr(b,2)}, {vr(b,2)}, {vr(178+4*mu,2)}")
    for mu in range(3): a(f"v_add_f32 v{176+4*mu}, v{176+4*mu}, v{177+4*mu}\nv_add_f32 v{177+4*mu}, v{178+4*mu}, v{179+4*mu}")
    for mu in range(3): a(f"v_permlane16_swap_b32 v{176+4*mu}, v{177+4*mu}")
    for mu in range(3): a(f"v_add_f32 v{176+4*mu}, v{176+4*mu}, v{177+4*mu}")
    for mu in range(3): a(f"v_mov_b32 v{177+4*mu}, v{176+4*mu}")
    for mu in range(3): a(f"v_permlane32_swap_b32 v{176+4*mu}, v{177+4*mu}")
    for mu in range(3): a(f"v_add_f32 v{176+4*mu}, v{176+4*mu}, v{177+4*mu}")
    for mu in range(3): a(f"ds_write_b32 v15, v{176+4*mu} offset:{128*mu}")
    a("L_p4_c_in:")
    if self.upto >= 4: p4_c_pre(self)
    a("s_waitcnt lgkmcnt(0)")
    if self.upto == 3: self.bar()

def g96_apieces(a, pitch, vb):
    a(f"s_mul_i32 s76, s{sHW}, 3")
    for i in range(3):
        a(f"""s_add_u32 s77, s76, {i}
        s_lshr_b32 s79, s77, 1
        s_mul_i32 s78, s79, {pitch}
        s_and_b32 s77, s77, 1
        s_lshl_b32 s77, s77, 10
        s_add_u32 s78, s78, s77
        s_add_u32 s78, s78, {4096 - 1024*i}
        s_mul_i32 s77, s64, 6
        s_add_u32 s77, s77, s79
        s_cmp_ge_u32 s77, 128
        s_cselect_b32 s78, {OOB//2}, s78
        v_lshl_add_u32 v{vb+i}, v1, 4, s78""")

def p3_h(self):
    a = self.a
    self.vm = VM()
    p5_h_pre(self)
    g96_apieces(a, 20480, 105)
    a(f"""v_lshrrev_b32 v10, 3, v1
    v_and_b32 v11, 7, v1
    v_xor_b32 v11, v11, v10
    v_mul_u32_u24 v108, 1280, v10
    v_lshl_add_u32 v108, v11, 4, v108
    s_lshl_b32 s44, s64, 2
    s_add_u32 s44, s44, s{sHW}
    s_mul_i32 s44, s44, {24*1280}
    s_lshl_b32 s45, s65, 7
    s_add_u32 s44, s44, s45
    s_mul_i32 s45, s64, {6*20480}
    s_add_u32 s45, s45, {OO - 4096}
    s_sub_u32 s46, s72, {4*(M_S4-M_S2)}
    s_mul_i32 s47, s64, 3
    s_add_u32 s48, s47, 2
    s_min_u32 s48, s48, 63
    s_lshr_b32 s47, s47, 3
    s_lshr_b32 s48, s48, 3
    s_cmp_eq_u32 s47, s48
    s_cselect_b32 s47, 32, 64""")
    self.finish(M_S2, 'p2st_h')
    a("s_cmp_ge_u32 s2, 220\ns_cbranch_scc1 L_idle")
    def xdma():
        for i in range(3):
            a(f"s_add_u32 m0, s70, {P3_X + 1024*i}")
            self.vmem(f"buffer_load_dwordx4 v108, {srd(SRD_X)}, s44 offen lds", 'x')
            if i < 2: a(f"s_add_u32 s44, s44, {8*1280}")
    if not opt('xlate', 0): xdma()
    a(f"""s_mul_i32 s50, s64, {3*9363}
    s_lshr_b32 s50, s50, 16
    s_mul_i32 s50, s50, 27
    v_add_u32 v247, s50, v1
    s_cmp_eq_u32 s64, 21
    s_cselect_b32 s50, 13, s73
    v_cmp_gt_u32 vcc, s50, v1
    s_lshl_b32 s60, 0x11111111, s{sHW}
    s_mov_b32 s61, s60
    s_and_b64 s[60:61], s[60:61], vcc""")
    self.sigprep(4)
    self.poll1(5, "s46", "s47", 8, 9)
    self.stamp('p3poll', 4)
    if opt('rot3', 0): a(f"s_mul_i32 s48, s67, {opt('rot3', 0)}\ns_lshr_b32 s48, s48, 1")
    def adma(st):
        if st < 8 and opt('rot3', 0): a(f"s_and_b32 s48, s48, 7\ns_lshl_b32 s49, s48, 11\ns_add_u32 s49, s49, s45\ns_add_u32 s48, s48, 1")
        else: a(f"s_add_u32 s49, s45, {2048*st}")
        a(f"s_add_u32 m0, s70, {P3_A + (st % RA)*12288}")
        for i in range(3):
            self.vmem(f"buffer_load_dwordx4 v{105+i}, {WS}, s49 offen offset:{1024*i} sc1 lds", ('p3', st))
    for st in range(4): adma(st)
    a(f"""s_lshl_b32 s50, s{sHW}, 8
    v_lshl_add_u32 v12, v1, 2, s50
    v_add_u32 v13, {P3_ST}, v12
    s_lshl_b32 s54, s65, 15
    s_mul_i32 s55, s64, 768
    s_add_u32 s54, s54, s55
    s_add_u32 s54, s54, {ST2}
    s_cmp_eq_u32 s{sHW}, 3
    s_cselect_b32 s54, {OOB//2}, s54""")
    for st in range(10):
        self.wait_vm(('p3', st))
        self.bar()
        if st == 5 and opt('xlate', 0): xdma()
        if st >= 1 and st + LA96 < 10: adma(st + LA96)
    if self.upto >= 4: p4_h_pre(self)
    self.finish(M_S3, 'p3st_h')
    if self.upto == 3:
        self.bar(); st2_store(self)

def st2_store(self):
    self.a("""ds_read_b32 v14, v13
    ds_read_b32 v15, v13 offset:768
    s_waitcnt lgkmcnt(0)
    v_add_f32 v14, v14, v15""")
    self.vmem(f"buffer_store_dword v14, v12, {WS}, s54 offen sc1", 'st2st')

def aux_signal(self):
    self.a(f"""v_mov_b32 v246, 1
    s_mov_b64 exec, s[60:61]""")
    self.vmem(f"buffer_atomic_add v246, v247, {WS}, 0 offen offset:{4*M_CS4} sc1", 'aux')
    self.a("s_mov_b64 exec, -1")

def p4_c_pre(self):
    a = self.a
    SLOT, T = P4_SLOT, P4_TAB
    p4_coords(a)
    XA, WA = 8, 10
    a(f"""s_mul_i32 s50, s48, 7168
    v_lshl_add_u32 v{XA}, v1, 4, s50
    v_add_u32 v{XA+1}, {2*SLOT}, v{XA}
    v_add_u32 v{WA}, 16384, v14
    v_xor_b32 v{WA+1}, 32, v{WA}
    v_add_u32 v{WA+2}, {2*SLOT}, v{WA}
    v_add_u32 v{WA+3}, {2*SLOT}, v{WA+1}
    s_mul_i32 s50, s48, 1792
    s_add_u32 s50, s50, {T}
    v_lshl_add_u32 v4, v2, 4, s50
    s_lshl_b32 s50, s49, 7
    s_add_u32 s50, s50, {T+4096}
    v_lshl_add_u32 v5, v3, 4, s50""")
    a(f"""v_and_b32 v6, 1, v3
    v_lshlrev_b32 v6, 9, v6
    v_lshrrev_b32 v7, 1, v3
    v_lshl_add_u32 v6, v7, 8, v6
    v_lshl_add_u32 v6, v2, 4, v6
    s_lshl_b32 s50, s40, 1
    s_add_u32 s50, s50, s48
    s_mul_i32 s50, s50, {7*216*256}
    s_lshl_b32 s51, s41, 1
    s_add_u32 s51, s51, s49
    s_lshl_b32 s51, s51, 10
    s_add_u32 s50, s50, s51
    s_add_u32 s50, s50, {HP}""")

def glu_epilogue(a, units, PK, store, hook=None):
    NEG = "op_sel_hi:[1,0,1] neg_lo:[0,1,0] neg_hi:[0,1,0]"
    def A(u):
        b, cs, st = units[u]
        o = [f"v_pk_fma_f32 {vr(b+2*h,2)}, {vr(cs+2*h,2)}, {vr(st,2)}, {vr(b+2*h,2)} {NEG}" for h in range(4)]
        o += [f"v_pk_mul_f32 {vr(b+2*h,2)}, {vr(b+2*h,2)}, {vr(st,2)} op_sel:[0,1] op_sel_hi:[1,1]" for h in range(4)]
        o += [f"v_exp_f32 v{b+i}, v{b+i}" for i in range(8)]
        o += [f"v_pk_fma_f32 {vr(b+2*h,2)}, {vr(cs+2*h,2)}, {vr(st,2)}, {vr(b+2*h,2)} {NEG}" for h in range(4, 8)]
        o += [f"v_pk_fma_f32 {vr(b+2*h,2)}, {vr(b+2*h,2)}, {vr(st+2,2)}, {vr(st+2,2)} op_sel_hi:[1,0,0]" for h in range(4)]
        o += [f"v_rcp_f32 v{b+i}, v{b+i}" for i in range(8)]
        return o
    def B(u):
        b = units[u][0]; pk = PK + 4 * (u % 4)
        o = [f"v_pk_mul_f32 {vr(b+2*h,2)}, {vr(b+2*h,2)}, {vr(b+8+2*h,2)}" for h in range(4)]
        o += [f"v_cvt_pk_bf16_f32 v{pk+h}, v{b+2*h}, v{b+2*h+1}" for h in (0, 2, 1, 3)]
        return o
    def C(u):
        pk = PK + 4 * (u % 4)
        return [f"v_permlane16_swap_b32 v{pk}, v{pk+2}", f"v_permlane16_swap_b32 v{pk+1}, v{pk+3}"] + store(u, pk)
    n = len(units)
    for u in range(n + 1):
        cur = A(u) if u < n else []
        for i, t in enumerate(cur[:4] + (B(u - 1) if u else []) + cur[4:8] + (C(u - 1) if u else []) + cur[8:]):
            a(t)
            if hook: hook(u, i, t)

def p4_c(self):
    a = self.a
    R, SLOT = P4_R, P4_SLOT
    XA, WA = 8, 10
    FR = 16; ACC = 112
    a("""s_mul_i32 s51, s40, 152922
    s_lshr_b32 s51, s51, 16
    s_mul_i32 s51, s51, 10
    v_add_u32 v247, s51, v1
    v_cmp_gt_u32 vcc, 30, v1""")
    self.sigprep(0)
    lg = LG(a)
    def reads(g):
        slot = g % R
        win, off = (slot >> 1, (slot & 1) * SLOT) if R == 4 else (0, slot * SLOT)
        fb = FR + 48 * (g & 1)
        W = lambda nu: [(f"ds_read_b64_tr_b16 {vr(fb+32+4*nu+2*t,2)}, v{WA+2*win+(nu&1)} offset:{off+4096*(nu>>1)+512*t}", ('W', g, nu)) for t in range(2)]
        X = lambda i: [(f"ds_read_b128 {vr(fb+4*i)}, v{XA+win} offset:{off+1024*i}", ('X', g, i))]
        out = W(0) + X(0) + W(1) + W(2) + W(3)
        for i in range(1, 7): out += X(i)
        return out
    self.bar()
    self.bar()
    self.stamp('p4b0')
    for r in reads(0): lg.op(*r)
    ST, CSR, PK = 16, 48, (224 if opt('wpre', 0) else 64)
    for g in range(20):
        fb = FR + 48 * (g & 1)
        nxt = []
        k = 0; n = 0
        for mu in range(7):
            for nu in range(4):
                if n == 8:
                    self.bar()
                    if g + 1 < 20: nxt = reads(g + 1)
                    else:
                        nxt = [(f"ds_read_b128 {vr(CSR+4*q)}, v5 offset:{256*(q>>1)+64*(q&1)}", None) for q in range(4)]
                        nxt += [(f"ds_read_b128 {vr(ST+4*q)}, v4 offset:{256*q}", None) for q in range(7)]
                ac = ACC + 16 * mu + 4 * nu
                c = "0" if g == 0 else vr(ac)
                if g > 0 and n == 0: lg.need(('X', g, 1))
                if n == (4 if g else 7): lg.need(('X', g, 6))
                lg.need(('W', g, nu), ('X', g, mu))
                a(f"v_mfma_f32_16x16x32_bf16 {vr(ac)}, {vr(fb+32+4*nu)}, {vr(fb+4*mu)}, {c}")
                if k < len(nxt) and n % 8 != 7: lg.op(*nxt[k]); k += 1
                n += 1
        assert k == len(nxt)
    lg.drain()
    self.stamp('p4loop')
    a(".p2align 3")
    hook = None
    if opt('wpre', 0) and self.upto >= 5:
        p5_waddr(self)
        a(".p2align 3")
        pre = [f"ds_read_b64_tr_b16 {vr(64+16*st+4*i+2*t,2)}, v{10+i} offset:{8192*st+512*t}" for st in range(7) for i in range(4) for t in range(2)]
        MU = opt('mu', 3)
        def hook(u, i, t):
            if u == MU and i == 0: self.bar(); a("s_nop 0")
            done = 56 - len(pre)
            ok = u >= MU and pre and (done < 24 or (done - 24) // 8 < u - 1 or ((done - 24) // 8 == u - 1 and i >= 12))
            if ok and ('v_exp' in t or 'v_rcp' in t): a(pre.pop(0)); a("s_nop 0") if False else None
    glu_epilogue(a, [(ACC + 16 * mu, CSR, ST + 4 * mu) for mu in range(7)], PK,
                 lambda u, pk: [f"buffer_store_dwordx4 {vr(pk)}, v6, {WS}, s50 offen sc1", f"s_add_u32 s50, s50, {216*256}"], hook)
    if hook:
        assert not pre
        a("s_waitcnt lgkmcnt(0)")
    self.stamp('p4epi')
    a("L_p5_c_pre:")
    if self.upto >= 5: p5_c_pre(self)
    self.finish(M_S4, 'p4st')
    a("s_cmp_ge_u32 s2, 220\ns_cbranch_scc1 L_end")

def p4_h_pre(self):
    a = self.a
    p4_coords(a)
    self.w128_dma_voff(3456, 3, 10, 11)
    a(f"""s_and_b32 s42, s{sHW}, 1
    s_lshl_b32 s42, s42, 6
    v_xor_b32 v3, s42, v3
    v_lshlrev_b32 v2, 4, v1
    v_add_u32 v4, {20480-1024}, v2
    v_add_u32 v5, {2*(20480-1024)}, v2
    v_add_u32 v6, {3*(20480-1024)}, v2
    s_cmp_eq_u32 s{sHW}, 3
    s_cselect_b32 s44, {OOB//2}, 0
    v_add_u32 v5, s44, v5
    v_add_u32 v6, s44, v6
    s_mul_i32 s44, s40, {14*20480}
    s_mul_i32 s45, s{sHW}, {4*20480}
    s_add_u32 s44, s44, s45
    s_add_u32 s44, s44, {HH}
    s_mul_i32 s45, s{sHW}, {8*3456}
    s_lshl_b32 s46, s41, 7
    s_add_u32 s45, s45, s46
    s_lshl_b32 s47, s{sHW}, 12
    s_lshl_b32 s43, s{sHW}, 10
    s_mul_i32 s50, s40, 27
    s_add_u32 s50, s50, s41
    s_lshl_b32 s50, s50, 7
    s_add_u32 s51, s50, {4*M_S3}
    s_add_u32 s50, s50, {4*M_CS4}
    s_mov_b32 s56, 30""")

def p4_h(self):
    a = self.a
    R, SLOT, T = P4_R, P4_SLOT, P4_TAB
    LA = R - 1
    self.vm = VM()
    a("L_p4_h_in:")
    XV = [2, 4, 5, 6]
    NWP = opt('w4p', 3)
    w5n = [0]
    def wdma(st):
        slot = st % R
        a(f"s_add_u32 s58, s45, {st*32*3456}\ns_add_u32 m0, s43, {slot*SLOT+16384}")
        self.vmem(f"buffer_load_dwordx4 v3, {srd(SRD_WG)}, s58 offen lds", ('p4', st))
        a(f"s_add_u32 m0, s43, {slot*SLOT+20480}")
        self.vmem(f"buffer_load_dwordx4 v3, {srd(SRD_WU)}, s58 offen lds", ('p4', st))
    def dma(st):
        slot = st % R
        a(f"s_add_u32 s59, s44, {1024*st}\ns_add_u32 m0, s47, {slot*SLOT}")
        for i in range(4):
            self.vmem(f"buffer_load_dwordx4 v{XV[i]}, {WS}, s59 offen offset:{1024*i} sc1 lds", ('p4', st))
        if st >= NWP: wdma(st)
    for st in range(NWP): wdma(st)
    self.poll1(5, "s51", "s56", 8, 9)
    a("v_mov_b32 v8, 0")
    self.stamp('p4poll', 4)
    for st in range(LA): dma(st)
    a(f"""v_lshlrev_b32 v9, 2, v1
    s_mul_i32 s48, s40, 1792
    s_lshl_b32 s49, s{sHW}, 9
    s_add_u32 s48, s48, s49
    s_add_u32 s48, s48, {ST2}
    v_lshlrev_b32 v7, 3, v1
    s_and_b32 s52, s{sHW}, 1
    s_mul_i32 s49, s52, {1728*4}
    s_lshl_b32 s53, s41, 8
    s_add_u32 s49, s49, s53
    s_add_u32 s49, s49, {CS4}
    s_add_u32 s56, s56, 8""")
    for st in range(20):
        self.wait_vm(('p4', st))
        self.bar()
        if st % 2 == 1: self.sstamp(f'h4b{st}')
        if st == 0: st2_store(self)
        if st + LA < 20: dma(st + LA)
        if st == LA:
            aux_signal(self)
        C0 = opt('c0', 11)
        if st == C0 - 2:
            self.vmem(f"buffer_load_dword v36, v8, {WS}, s50 offen sc1", 'mb')
        if st == C0:
            self.wait_vm('mb')
            a("v_cmp_ne_u32 vcc, s56, v36\ns_cbranch_vccz L_p4_csok")
            keep = list(self.vm.ops)
            self.poll("s50", "s56", 8, 36)
            self.vm.ops = keep
            a("L_p4_csok:")
        CN = opt('cn', 3)
        if C0 <= st:
            for i in range(CN):
                q = CN * (st - C0) + i
                if q >= 14: continue
                if q < 10:
                    self.vmem(f"buffer_load_dwordx2 {vr(40+2*q,2)}, v7, {WS}, s48 offen sc1", ('st2', q))
                    a("s_add_u32 s48, s48, 32768")
                else:
                    self.vmem(f"buffer_load_dword v{22+q}, v9, {WS}, s49 offen sc1", ('st2', q))
                    a(f"s_add_u32 s49, s49, {3456*4}")
        if st in (15, 16, 17):
            qs = {15: range(0, 4), 16: range(4, 8), 17: range(8, 10)}[st]
            self.wait_vm(('st2', qs[-1]))
            for q in qs:
                if q == 0: continue
                a(f"v_add_f32 v16, v{16 if q > 1 else 40}, v{40+2*q}\nv_add_f32 v17, v{17 if q > 1 else 41}, v{41+2*q}")
        if st == 17:
            a(f"""v_mov_b32 v20, {f32hex(1.0/D)}
            v_mul_f32 v12, v16, v20
            v_mul_f32 v17, v17, v20
            v_fma_f32 v17, -v12, v12, v17
            v_max_f32 v17, 0, v17
            v_add_f32 v17, {f32hex(1e-5)}, v17
            v_rsq_f32 v13, v17
            v_sqrt_f32 v14, v17""")
        if st == 18:
            self.wait_vm(('st2', 13))
            a(f"""v_add_f32 v32, v32, v33
            v_add_f32 v34, v34, v35
            v_add_f32 v32, v32, v34
            v_mov_b32 v15, 0
            v_mul_f32 v13, {f32hex(-LOG2E)}, v13
            s_lshl_b32 s52, s52, 8
            s_add_u32 s52, s52, {T+4096}
            v_add_u32 v10, s52, v9
            s_add_u32 s52, s43, {T}
            v_add_u32 v11, s52, v2""")
        if st == opt('tw', 18): a("ds_write_b32 v10, v32\nds_write_b128 v11, v[12:15]")
        if self.upto >= 5:
            for _ in range(W5PLAN.get(st, 0)):
                k = w5n[0]; w5n[0] += 1
                assert k < 20 - P5_S0 or (k - (20 - P5_S0)) // 3 <= st - 17
                p5_wdma(self, k)
    a("s_waitcnt lgkmcnt(0)")
    self.sdump(6)
    self.bar()
    a("L_p5_h_pre:")
    if self.upto >= 5:
        E = opt('w5e', 19)
        for st in range(P5_PRE, E):
            p5_wdma(self, st)
            if opt('wpre', 0) and st == opt('mst', 14):
                self.wait_vm(('p5w', 6))
                self.bar()
        self.wait_vm(('p5w', min(12, E - 1)))
    self.bar()
    a("s_cmp_ge_u32 s2, 220\ns_cbranch_scc1 L_end")

def idle_code(self):
    a = self.a
    self.vm = VM()
    a(f"""L_idle:
    s_mul_i32 s40, s{sWAVE}, 36
    s_add_u32 s40, s40, s2
    s_sub_u32 s40, s40, 220
    s_cmp_ge_u32 s40, 216
    s_cbranch_scc1 {'L_ct2' if opt('ct2', 1) else 'L_cs4_done'}
    s_mul_i32 s46, s40, 1214
    s_lshr_b32 s46, s46, 16
    s_mul_i32 s41, s46, 54
    s_sub_u32 s40, s40, s41
    s_cmp_ge_u32 s40, 27
    s_cselect_b32 s44, 27, 0
    s_cselect_b32 s56, s{SRD_WU}, s{SRD_WG}
    s_cselect_b32 s57, s{SRD_WU+1}, s{SRD_WG+1}
    s_mov_b32 s58, {D*F*2}
    s_mov_b32 s59, 0x20000
    s_sub_u32 s45, s40, s44
    s_lshl_b32 s47, s45, 7
    s_mul_i32 s41, s46, {160*3456}
    s_add_u32 s47, s47, s41
    s_mul_i32 s50, s{sWAVE}, 20480""")
    self.colsum_issue("s[56:59]", 3456, 47, 50, 16, 17, 18)
    a(f"""s_mul_i32 s47, s46, {3456*4}
    s_lshl_b32 s41, s40, 8
    s_add_u32 s47, s47, s41
    s_add_u32 s47, s47, {CS4}
    s_waitcnt vmcnt(0)""")
    self.colsum_finish(50, 47, 16)
    a(f"""v_mul_u32_u24 v16, 27, v1
    v_add_u32 v16, s45, v16
    v_cmp_gt_u32 vcc, 9, v1
    s_waitcnt vmcnt(0)""")
    self.signal(16, M_CS4, 17)
    if opt('ct2', 1):
        a(f"s_branch L_cs4_done\nL_ct2:\ns_sub_u32 s41, s{sWAVE}, 6\ns_mul_i32 s41, s41, 3")
        self.code_touch('b', 41, 3)
        a("s_waitcnt vmcnt(0)")
    a("L_cs4_done:")
    a.settle()
    self.stamp('csdone')
    a("s_barrier")
    if self.upto < 4:
        a("s_endpgm"); return
    a(f"""s_cmp_ge_u32 s2, 243
    s_cbranch_scc1 L_rem
    s_cmp_lt_u32 s{sWAVE}, 4
    s_cbranch_scc1 L_p4_c_in""")
    p4_h_pre(self)
    a(f"""s_mov_b32 s54, {OOB//2}
    v_mov_b32 v12, 0
    v_mov_b32 v13, 0
    v_mov_b32 v247, {OOB//2}
    s_mov_b64 s[60:61], 1
    s_branch L_p4_h_in""")
    p4_rem(self)

def p4_rem(self):
    a = self.a
    SL = 10240
    ACC, CS, RS, SQ, ONES, FR, ST, PK = 64, 128, 160, 168, 176, 16, 180, 192
    a(f"""L_rem:
    s_mul_i32 s41, s{sWAVE}, 13
    s_add_u32 s41, s41, s2
    s_sub_u32 s41, s41, 243
    s_cmp_ge_u32 s41, 27
    s_cbranch_scc1 L_end""")
    self.w128_dma_voff(3456, 4, 10, 11)
    self.w128_read_addr(10, 2)
    a(f"""v_xor_b32 v5, 64, v4
    v_add_u32 v5, {8*3456-1024}, v5
    v_add_u32 v6, {2*(8*3456-1024)}, v4
    v_add_u32 v7, {2*(8*3456-1024)}, v5
    v_lshlrev_b32 v8, 4, v1
    v_add_u32 v9, {20480-1024}, v8
    s_mul_i32 s42, s{sWAVE}, {5*SL}
    v_add_u32 v10, s42, v10
    v_xor_b32 v11, 32, v10
    v_xor_b32 v12, 64, v10
    v_xor_b32 v13, 96, v10
    v_add_u32 v14, s42, v8
    v_and_b32 v2, 15, v1
    v_lshrrev_b32 v3, 4, v1
    s_lshl_b32 s44, s41, 7
    s_mov_b32 s45, {HH + 126*20480}
    s_lshl_b32 s46, s2, 7
    s_add_u32 s46, s46, {4*M_S3}""")
    for i in range(ONES - ACC): a(f"v_mov_b32 v{ACC+i}, 0")
    for i in range(4): a(f"v_mov_b32 v{ONES+i}, 0x3f803f80")
    def wd(m0):
        o = []
        for k, sr in enumerate((SRD_WG, SRD_WU)):
            o.append(f"s_add_u32 m0, {m0}, {4096*k}")
            o += [f"buffer_load_dwordx4 v{4+i}, {srd(sr)}, s44 offen offset:{1024*i} lds" for i in range(4)]
        return o + [f"s_add_u32 s44, s44, {32*3456}"]
    def xd(m0):
        return [f"s_add_u32 m0, {m0}, 8192"] + [f"buffer_load_dwordx4 v{8+i}, {WS}, s45 offen offset:{1024*i} sc1 lds" for i in range(2)] + ["s_add_u32 s45, s45, 1024"]
    for i in range(5):
        a(f"s_add_u32 s47, s42, {SL*i}")
        for t in wd("s47"): a(t)
    self.pollw("s46", 10, 15, 248)
    for i in range(5):
        a(f"s_add_u32 s47, s42, {SL*i}")
        for t in xd("s47"): a(t)
    a(f"s_mov_b32 s47, s42\ns_mov_b32 s48, 0\ns_mov_b32 s49, 0\ns_waitcnt vmcnt(0)\nL_rem_l:\ns_waitcnt vmcnt(40)")
    for m in range(2): a(f"ds_read_b128 {vr(FR+4*m)}, v14 offset:{8192+1024*m}")
    for n in range(8):
        for t in range(2): a(f"ds_read_b64_tr_b16 {vr(FR+8+4*n+2*t,2)}, v{10+(n&3)} offset:{4096*(n>>2)+512*t}")
    a(f"""s_cmp_ge_u32 s48, 15
    s_cselect_b32 s45, {OOB//2}, s45
    s_add_u32 s48, s48, 1
    s_add_u32 s49, s49, 1
    s_cmp_eq_u32 s49, 5
    s_cselect_b32 s49, 0, s49
    s_mov_b32 s50, {SL}
    s_cselect_b32 s50, {(-4*SL) & 0xffffffff}, s50
    s_waitcnt lgkmcnt(15)""")
    pos = lambda n: 16 * ((n & 3) >> 1) + 8 * (n >> 2) + 4 * (n & 1)
    for m in range(2):
        a(f"v_mfma_f32_16x16x32_bf16 {vr(RS+4*m)}, {vr(ONES)}, {vr(FR+4*m)}, {vr(RS+4*m)}")
        a(f"v_mfma_f32_16x16x32_bf16 {vr(SQ+4*m)}, {vr(FR+4*m)}, {vr(FR+4*m)}, {vr(SQ+4*m)}")
    a("s_waitcnt lgkmcnt(0)")
    side = wd("s47") + xd("s47") + [f"v_add_u32 v{r}, s50, v{r}" for r in range(10, 15)] + ["s_add_u32 s47, s47, s50"]
    for n in range(8):
        for d, B in ((ACC + pos(n), FR), (ACC + 32 + pos(n), FR + 4), (CS + pos(n), ONES)):
            a(f"v_mfma_f32_16x16x32_bf16 {vr(d)}, {vr(FR+8+4*n)}, {vr(B)}, {vr(d)}")
            if side: a(side.pop(0))
    assert not side
    a("s_cmp_lt_u32 s48, 20\ns_cbranch_scc1 L_rem_l")
    a.settle(10)
    a("v_and_b32 v4, 3, v2\nv_lshrrev_b32 v5, 2, v2\nv_cmp_eq_u32 s[50:51], v5, v3")
    for m in range(2):
        q = SQ + 4 * m
        for i in range(1, 4): a(f"v_cmp_eq_u32 vcc, {i}, v4\nv_cndmask_b32 v{q}, v{q}, v{q+i}, vcc")
        a(f"""v_cndmask_b32 v{q}, 0, v{q}, s[50:51]
        v_mov_b32 v{q+1}, v{q}
        v_permlane16_swap_b32 v{q}, v{q+1}
        v_add_f32 v{q}, v{q}, v{q+1}
        v_mov_b32 v{q+1}, v{q}
        v_permlane32_swap_b32 v{q}, v{q+1}
        v_add_f32 v{q}, v{q}, v{q+1}
        v_mul_f32 v{ST+4*m}, {f32hex(1.0/D)}, v{RS+4*m}
        v_mul_f32 v{q}, {f32hex(1.0/D)}, v{q}
        v_fma_f32 v{q}, -v{ST+4*m}, v{ST+4*m}, v{q}
        v_max_f32 v{q}, 0, v{q}
        v_add_f32 v{q}, {f32hex(1e-5)}, v{q}
        v_rsq_f32 v{ST+4*m+1}, v{q}
        v_sqrt_f32 v{ST+4*m+2}, v{q}
        v_mov_b32 v{ST+4*m+3}, 0
        v_mul_f32 v{ST+4*m+1}, {f32hex(-LOG2E)}, v{ST+4*m+1}""")
    a(f"""v_and_b32 v6, 1, v3
    v_lshlrev_b32 v6, 9, v6
    v_lshrrev_b32 v7, 1, v3
    v_lshl_add_u32 v6, v7, 8, v6
    v_lshl_add_u32 v6, v2, 4, v6
    s_lshl_b32 s50, s41, 11
    s_add_u32 s50, s50, {HP + 126*55296}
    s_add_u32 s51, s50, 55296""")
    glu_epilogue(a, [(ACC + 32 * m + 16 * p, CS + 16 * p, ST + 4 * m) for m in range(2) for p in range(2)], PK,
                 lambda u, pk: [f"buffer_store_dwordx4 {vr(pk)}, v6, {WS}, s{50 + (u >> 1)} offen offset:{1024*(u&1)} sc1"])
    a("v_add_u32 v16, 210, v1\ns_waitcnt vmcnt(0)")
    self.signal(16, M_S4, 17, mask='0x3ff')
    self.stamp('remdone')
    a("s_endpgm")

def p5_h_pre(self):
    a = self.a
    p5_coords(a, 64, 65, 66)
    self.w128_dma_voff(1280, 103, 10, 11)
    a(f"""v_xor_b32 v104, 64, v103
    v_add_u32 v104, {8*1280-1024}, v104""")
    a(f"""s_mul_i32 s68, s64, {6*55296}
    s_add_u32 s68, s68, {HP - 4096}
    s_mul_i32 s69, s{sHW}, {16*1280}
    s_lshl_b32 s70, s65, 7
    s_add_u32 s69, s69, s70
    s_mul_i32 s70, s{sHW}, 3072
    s_lshl_b32 s71, s{sHW}, 11
    s_mul_i32 s72, s64, 10
    s_add_u32 s72, s72, s65
    s_lshl_b32 s72, s72, 7
    s_add_u32 s72, s72, {4*M_S4}
    s_cmp_ge_u32 s2, 220
    s_cselect_b32 s69, {OOB//2}, s69""")
    n4_blocks(a, 64, 73, 74)

def p5_wdma(self, st):
    a = self.a
    a(f"s_add_u32 s76, s69, {st*64*1280}\ns_add_u32 m0, s71, {p5_wslot(st)}")
    for i in range(2):
        self.vmem(f"buffer_load_dwordx4 v{103+i}, {srd(SRD_WD)}, s76 offen offset:{1024*i} lds", ('p5w', st))

def p5_sched():
    E = opt('w5e', 19)
    return ([(E - 6, 12)] if E < 13 else []) + [(7, 19), (14, 26)]

def p5_h(self):
    a = self.a
    E = opt('w5e', 19)
    for st in range(E, 20): p5_wdma(self, st)
    if not opt('wpre', 0): self.bar()
    NR = opt('w5r', 7)
    for st in range(20, 20 + NR): p5_wdma(self, st)
    if opt('p5p1', 1): self.bar()
    for step, cover in p5_sched():
        if cover == 26:
            for st in range(20 + NR, 27): p5_wdma(self, st)
        self.wait_vm(('p5w', cover))
        self.bar()
    self.nbar += 1

def p5_waddr(self):
    self.a(f"""s_lshl_b32 s51, s49, 12
    s_add_u32 s51, s51, {P5_S0*8192}
    v_add_u32 v10, s51, v14
    v_xor_b32 v11, 32, v10
    v_xor_b32 v12, 64, v10
    v_xor_b32 v13, 96, v10""")

def p5_c_pre(self):
    a = self.a
    p5_coords(a, 40, 41, 42)
    if not opt('wpre', 0): p5_waddr(self)
    a(f"""    s_mul_i32 s50, s{sWAVE}, 6144
    v_lshl_add_u32 v8, v1, 4, s50
    s_xor_b32 s50, s{sWAVE}, 2
    s_mul_i32 s50, s50, 6144
    v_lshl_add_u32 v15, v1, 4, s50""")
    a(f"""v_lshrrev_b32 v7, 1, v3
    v_lshlrev_b32 v4, 8, v7
    v_lshl_add_u32 v4, v2, 4, v4
    v_and_b32 v5, 1, v3
    v_lshl_add_u32 v4, v5, 3, v4
    s_lshl_b32 s55, s40, 1
    s_add_u32 s55, s55, s48
    s_mul_i32 s55, s55, 3
    s_mul_i32 s50, s55, 20480
    s_lshl_b32 s52, s41, 1
    s_add_u32 s52, s52, s49
    s_lshl_b32 s53, s52, 10
    s_add_u32 s51, s50, s53
    s_add_u32 s51, s51, {HH}""")
    a(f"""v_mul_u32_u24 v9, 1280, v2
    v_lshl_add_u32 v9, v5, 5, v9
    v_lshl_add_u32 v9, v7, 4, v9
    s_lshl_b32 s54, s52, 6
    s_add_u32 s53, s50, s54
    v_add_u32 v9, s53, v9""")
    for mu in range(3):
        a(f"""s_add_u32 s56, s55, {mu}
        s_cmp_ge_u32 s56, 128
        s_cselect_b32 s56, {OOB//2}, {55296*mu if mu else 0}
        v_lshl_add_u32 v{5+mu}, v1, 4, s56""".replace(f"s_cselect_b32 s56, {OOB//2}, {55296*mu}", f"s_mov_b32 s57, {55296*mu}\n        s_cselect_b32 s56, {OOB//2}, s57"))
    a(f"""s_mul_i32 s56, s55, 55296
    s_lshl_b32 s57, s49, 10
    s_add_u32 s56, s56, s57
    s_add_u32 s56, s56, {HP}
    s_mul_i32 s57, s40, 10
    s_add_u32 s57, s57, s41
    s_lshl_b32 s57, s57, 7
    s_add_u32 s57, s57, {4*M_S4}
    s_nop 0""")
    n4_blocks(a, 40, 58, 59)

def p5_c(self):
    a = self.a
    self.vm = VM()
    ACC, WR, AR, HR = 16, 64, 176, 236
    NW, NA = 7, 5
    lg = LG(a)
    win = [P5_S0]
    def wreads(st):
        sl = (st + P5_S0) % P5_RW
        out = []
        if not (0 <= sl - win[0] <= 6):
            d = (sl - win[0]) * 8192
            out.append(("\n".join(f"v_add_u32 v{10+i}, {d & 0xffffffff}, v{10+i}" for i in range(4)), 'valu'))
            win[0] = sl
        wb = WR + 16 * (st % NW)
        out += [(f"ds_read_b64_tr_b16 {vr(wb+4*i+2*t,2)}, v{10+i} offset:{8192*(sl-win[0])+512*t}", ('W', st)) for i in range(4) for t in range(2)]
        return out
    def emit(op):
        if op[1] == 'valu': a(op[0])
        else: lg.op(*op)
    def aload(st, mu):
        self.vmem(f"buffer_load_dwordx4 {vr(AR+12*(st%NA)+4*mu)}, v{5+mu}, {WS}, s56 offen offset:{2048*(st&1)} sc1", ('A', st))
        if mu == 2 and st & 1: a("s_add_u32 s56, s56, 4096")
    for mu in range(3):
        for nu in range(2):
            a(f"buffer_load_dwordx2 {vr(HR+4*mu+2*nu,2)}, v4, {WS}, s51 offen offset:{512*nu} sc1")
        if mu < 2: a("s_add_u32 s51, s51, 20480")
    if opt('wpre', 0):
        for st in range(NW): lg.pos[('W', st)] = 0
    else:
        for st in range(NW):
            for op in wreads(st): emit(op)
            if st: lg.need(('W', st - 1))
        lg.drain()
        self.bar()
    if opt('p5p1', 1): self.poll1(1, "s57", "s58", 4, 0)
    else: self.pollw("s57", "s58", 4, AR)
    self.stamp('p5poll')
    NI = opt('ni', 5)
    for st in range(NI):
        for mu in range(3): aload(st, mu)
    for st in range(27):
        if st in [x[0] for x in p5_sched()]: self.bar()
        self.wait_vm(('A', st))
        if st == 0: self.stamp('p5b0')
        lg.need(('W', st))
        nxt = wreads(st - 1 + NW) if st >= 1 and st - 1 + NW < 27 else []
        k = 0; n = 0
        seq = [(mu, i) for mu in range(3) for i in range(4)]
        if st == 26: seq = [x for x in seq if x[1] >= 2] + [x for x in seq if x[1] < 2]
        for mu, i in seq:
                ac = ACC + 16 * mu + 4 * i
                c = "0" if st == 0 else vr(ac)
                a(f"v_mfma_f32_16x16x32_bf16 {vr(ac)}, {vr(WR+16*(st%NW)+4*i)}, {vr(AR+12*(st%NA)+4*mu)}, {c}")
                if st == 0 and n < 3 * (NA - NI): aload(NI + n // 3, n % 3)
                if n < 3 and st >= 1 and st - 1 + NA < 27: aload(st - 1 + NA, n)
                elif k < len(nxt): emit(nxt[k]); k += 1
                if st == 24:
                    a(f"v_lshlrev_b32 v{64+2*n}, 16, v{HR+n}\nv_and_b32 v{65+2*n}, 0xffff0000, v{HR+n}")
                if st == 26 and n >= 6:
                    q = n - 6
                    a(f"ds_write_b128 v8, {vr(ACC+16*(q>>1)+8+4*(q&1))} offset:{1024*q}")
                n += 1
        assert k == len(nxt)
        if st == 23 and opt('otr', 0):
            a(f"""s_mul_i32 s50, s{sWAVE}, 3072
            s_add_u32 s50, s50, 24576
            v_and_b32 v6, 1, v3
            v_lshlrev_b32 v6, 1, v6
            v_lshrrev_b32 v7, 1, v3
            v_add_u32 v6, v6, v7
            v_lshrrev_b32 v7, 2, v2
            v_xor_b32 v6, v6, v7
            v_lshlrev_b32 v6, 4, v6
            v_lshl_add_u32 v6, v2, 6, v6
            v_add_u32 v6, s50, v6
            v_lshl_add_u32 v7, v1, 4, s50
            v_lshrrev_b32 v5, 2, v1
            v_mul_u32_u24 v5, 1280, v5
            v_and_b32 v4, 3, v1
            v_xor_b32 v4, v4, v3
            v_lshl_add_u32 v5, v4, 4, v5
            v_add_u32 v5, s53, v5""")
        if st == 22:
            pass
    self.stamp('p5loop')
    a("s_waitcnt lgkmcnt(0)")
    self.bar()
    for q in range(6): a(f"ds_read_b128 {vr(96+4*q)}, v15 offset:{1024*q}")
    for mu in range(3):
        for h in range(4): a(f"v_pk_add_f32 {vr(64+8*mu+2*h,2)}, {vr(64+8*mu+2*h,2)}, {vr(ACC+16*mu+2*h,2)}")
    for mu in range(3):
        a(f"s_waitcnt lgkmcnt({4-2*mu})")
        for h in range(4): a(f"v_pk_add_f32 {vr(64+8*mu+2*h,2)}, {vr(64+8*mu+2*h,2)}, {vr(96+8*mu+2*h,2)}")
        pk = 128 + 4 * mu
        for h in (0, 2, 1, 3): a(f"v_cvt_pk_bf16_f32 v{pk+h}, v{64+8*mu+2*h}, v{65+8*mu+2*h}")
        a(f"v_permlane16_swap_b32 v{pk}, v{pk+2}\nv_permlane16_swap_b32 v{pk+1}, v{pk+3}")
        if opt('otr', 0): a(f"ds_write_b128 v6, {vr(pk)} offset:{1024*mu}")
        else:
            a(f"buffer_store_dwordx4 {vr(pk)}, v9, {srd(SRD_OUT)}, 0 offen {opt('opol', 'sc1')}")
            if mu < 2: a("v_add_u32 v9, 20480, v9")
    if opt('otr', 0):
        for mu in range(3): a(f"s_waitcnt lgkmcnt({2-mu})\nds_read_b128 {vr(144+4*mu)}, v7 offset:{1024*mu}".replace(f"lgkmcnt({2-mu})", f"lgkmcnt({2})"))
        for mu in range(3):
            a(f"s_waitcnt lgkmcnt({2-mu})")
            a(f"buffer_store_dwordx4 {vr(144+4*mu)}, v5, {srd(SRD_OUT)}, 0 offen {opt('opol', 'sc1')}")
            if mu < 2: a("v_add_u32 v5, 20480, v5")
    self.stamp('end')
```

```python
import sys, math, struct
from asmlib import Asm

NAME = "sequential_preLN__sliding_block__glu_gated_glu__prompt"
S, D, F = 2048, 640, 1728
MB = 0
M_S0, M_S1, M_S2, M_S3, M_S4, M_CS4, M_S1V, M_S4B = range(8)
MEAN1 = 0x10000
RSTD1 = 0x12000
CS1 = 0x14000
CS4 = 0x1C000
ST2 = 0x30000
TS = 0x90000
QKV = 0x100000
OO = 0x900000
HH = 0xC00000
HP = 0x1000000
WS_END = 0x1700000
LDS_BYTES = 163840
OOB = 0x7ffffff0
LOG2E = math.log2(math.e)

sWAVE = 3
SRD_WS, SRD_X, SRD_WQKV, SRD_WO, SRD_WG, SRD_WU, SRD_WD, SRD_OUT, SRD_DBG = [4 + 4 * i for i in range(9)]
def srd(b): return f"s[{b}:{b+3}]"
WS = srd(SRD_WS)
sBOUND = 96
sHW = 97
def vr(b, n=4): return f"v[{b}:{b+n-1}]"
def f32hex(x): return "0x%08x" % struct.unpack('<I', struct.pack('<f', x))[0]

OPT = dict(a.split('=') for a in sys.argv[1:] if '=' in a)
def opt(k, d): return type(d)(OPT.get(k, d))

INITWG = opt('initwg', 230 if opt('p1n', 0) else 5)
KALIGN = 12 if opt('iw', 0) else 8

class VM:
    def __init__(self): self.ops = []
    def add(self, tag): self.ops.append(tag)
    def count_after(self, tag):
        idx = max(i for i, t in enumerate(self.ops) if t == tag)
        return len(self.ops) - 1 - idx
    def clear(self): self.ops = []

class LG:
    def __init__(self, a): self.a = a; self.n = 0; self.pos = {}; self.done = 0
    def op(self, text, tag=None):
        self.a(text); self.n += 1
        if tag is not None: self.pos[tag] = self.n
    def need(self, *tags):
        p = max(self.pos[t] for t in tags)
        if p > self.done:
            c = min(self.n - p, 15)
            self.a(f"s_waitcnt lgkmcnt({c})")
            self.done = self.n - c
    def drain(self):
        if self.done < self.n:
            self.a("s_waitcnt lgkmcnt(0)"); self.done = self.n

class Gen:
    def __init__(self, upto=5, stamps=False):
        self.a = Asm()
        self.vm = VM()
        self.upto = upto
        self.stamps = stamps
        self.tail = []
        self.stamp_names = []
        self.nbar = 0
        self.spend = []
        self.sbase = 80

    def vmem(self, text, tag):
        self.a(text); self.vm.add(tag)
    def wait_vm(self, tag):
        n = self.vm.count_after(tag)
        assert n <= 63, n
        self.a(f"s_waitcnt vmcnt({n})")
    def bar(self):
        self.a("s_barrier"); self.nbar += 1
    def build_srd(self, b, ptr, nbytes):
        self.a(f"s_mov_b32 s{b}, s{ptr}\ns_mov_b32 s{b+1}, s{ptr+1}\ns_mov_b32 s{b+2}, {nbytes}\ns_mov_b32 s{b+3}, 0x20000")
    def stamp(self, name, wave=0):
        if opt('dly', '') == name:
            self.a("s_waitcnt lgkmcnt(0)\ns_memrealtime s[100:101]\ns_waitcnt lgkmcnt(0)\ns_mov_b32 s1, s100")
        if opt('dly', '') and name == 'end':
            if opt('dlyx', -1) >= 0: self.a(f"s_and_b32 s100, s2, 7\ns_cmp_lg_u32 s100, {opt('dlyx', -1)}\ns_cbranch_scc1 L_end")
            self.a("L_dly:\ns_memrealtime s[100:101]\ns_waitcnt lgkmcnt(0)\ns_sub_u32 s100, s100, s1\ns_cmp_lt_u32 s100, 4000\ns_cbranch_scc1 L_dly")
        if not self.stamps: return
        a = self.a
        if name in self.stamp_names: i = self.stamp_names.index(name)
        else:
            i = len(self.stamp_names); self.stamp_names.append(name)
        assert i < 64
        L = a.newlabel('Lst')
        a(f"""s_cmp_lg_u32 s{sWAVE}, {wave}
        s_cbranch_scc1 {L}
        s_memrealtime s[100:101]
        v_mov_b32 v255, s2
        v_lshlrev_b32 v255, 9, v255
        v_add_u32 v255, {TS + 8*i}, v255
        s_waitcnt lgkmcnt(0)
        v_mov_b32 v252, s100
        s_memtime s[100:101]
        s_waitcnt lgkmcnt(0)
        v_mov_b32 v253, s100
        s_mov_b64 exec, 1
        buffer_store_dwordx2 v[252:253], v255, {WS}, 0 offen
        s_mov_b64 exec, -1
        {L}:""")

    def sstamp(self, name):
        if not self.stamps: return
        k = len(self.spend); assert k < 16
        self.spend.append(name)
        self.a(f"s_memtime s[100:101]\ns_waitcnt lgkmcnt(0)\ns_mov_b32 s{self.sbase+k}, s100")
    def sdump(self, wave):
        if not self.stamps: return
        a = self.a
        L = a.newlabel('Lsd')
        a(f"""s_cmp_lg_u32 s{sWAVE}, {wave}
        s_cbranch_scc1 {L}
        v_mov_b32 v255, s2
        v_lshlrev_b32 v255, 9, v255
        v_add_u32 v255, {TS}, v255
        v_mov_b32 v252, 0
        s_mov_b64 exec, 1""")
        for k, name in enumerate(self.spend):
            i = len(self.stamp_names); self.stamp_names.append(name); assert i < 64
            a(f"v_mov_b32 v253, s{self.sbase+k}\nbuffer_store_dwordx2 v[252:253], v255, {WS}, 0 offen offset:{8*i}")
        a(f"s_mov_b64 exec, -1\n{L}:")
        self.spend = []

    def wave_sum(self, vs, sdsts):
        for mod in ("quad_perm:[1,0,3,2] row_mask:0xf", "quad_perm:[2,3,0,1] row_mask:0xf", "row_half_mirror row_mask:0xf",
                    "row_mirror row_mask:0xf", "row_bcast:15 row_mask:0xa", "row_bcast:31 row_mask:0xc"):
            for v in vs:
                self.a(f"v_add_f32_dpp v{v}, v{v}, v{v} {mod} bank_mask:0xf")
        for v, s in zip(vs, sdsts):
            self.a(f"v_readlane_b32 s{s}, v{v}, 63")

    def poll(self, soff, expect, va, vt, srdb=SRD_WS):
        a = self.a
        L = a.newlabel('Lpoll'); Ld = L + 'd'
        a(f"""v_mov_b32 v{va}, 0
        {L}:
        buffer_load_dword v{vt}, v{va}, {srd(srdb)}, {soff} offen sc1
        s_waitcnt vmcnt(0)
        v_cmp_ne_u32 vcc, {expect}, v{vt}
        s_cbranch_vccz {Ld}
        s_sleep 1
        s_sub_u32 s{sBOUND}, s{sBOUND}, 1
        s_cbranch_scc0 {L}
        s_mov_b32 s{sBOUND}, 0
        {Ld}:""")
        self.vm.clear()

    def pollw(self, soff, expect, va, vt, depth=1):
        a = self.a
        L = a.newlabel('Lpoll'); Ld = L + 'd'
        a(f"v_mov_b32 v{va}, 0\ns_mov_b64 exec, 1")
        pl = lambda k: a(f"v_mov_b32 v{vt+k}, 0\nbuffer_atomic_add v{vt+k}, v{va}, {WS}, {soff} offen sc0 sc1")
        for k in range(depth - 1):
            pl(k); a("s_sleep 3")
        a(f"{L}:")
        for k in range(depth):
            pl((k + depth - 1) % depth)
            a(f"s_waitcnt vmcnt({depth-1})\nv_cmp_ne_u32 vcc, {expect}, v{vt+k}\ns_cbranch_vccz {Ld}")
        a(f"""s_sub_u32 s{sBOUND}, s{sBOUND}, 1
        s_cbranch_scc0 {L}
        s_mov_b32 s{sBOUND}, 0
        {Ld}:
        s_mov_b64 exec, -1""")

    def poll1(self, wave, soff, expect, va, vt):
        a = self.a
        L = a.newlabel('Lp1')
        a(f"s_cmp_lg_u32 s{sWAVE}, {wave}\ns_cbranch_scc1 {L}")
        self.pollw(soff, expect, va, 248, depth=opt('pd', 3))
        a(f"{L}:")
        self.bar()

    def signal(self, vline, dword, vt, mask='vcc'):
        self.a(f"""v_lshlrev_b32 v{vline}, 7, v{vline}
        v_mov_b32 v{vt}, 1
        s_mov_b64 exec, {mask}
        buffer_atomic_add v{vt}, v{vline}, {WS}, 0 offen offset:{4*dword} sc1
        s_mov_b64 exec, -1""")

    def w128_dma_voff(self, pitch, vE, vt, vt2):
        self.a(f"""v_lshrrev_b32 v{vt}, 3, v1
        v_mul_u32_u24 v{vE}, {pitch}, v{vt}
        v_and_b32 v{vt}, 2, v{vt}
        v_and_b32 v{vt2}, 7, v1
        v_xor_b32 v{vt}, v{vt}, v{vt2}
        v_lshl_add_u32 v{vE}, v{vt}, 4, v{vE}""")

    def colsum_issue(self, srdb, pitch, s_goff, s_lds, vE, vO, vt, n=20, step=8):
        a = self.a
        self.w128_dma_voff(pitch, vE, vt, vO)
        a(f"v_xor_b32 v{vO}, 64, v{vE}")
        for i in range(n):
            a(f"s_add_u32 m0, s{s_lds}, {1024*i}")
            self.vmem(f"buffer_load_dwordx4 v{vO if i & 1 else vE}, {srdb}, s{s_goff} offen lds", 'cs')
            if i < n - 1: a(f"s_add_u32 s{s_goff}, s{s_goff}, {step*pitch}")

    def w128_read_addr(self, vb, vt):
        self.a(f"""v_lshrrev_b32 v{vt}, 4, v1
        v_lshlrev_b32 v{vb}, 10, v{vt}
        v_bfe_u32 v{vt}, v1, 2, 2
        v_lshl_add_u32 v{vb}, v{vt}, 7, v{vb}
        v_and_b32 v{vt}, 3, v1
        v_lshl_add_u32 v{vb}, v{vt}, 3, v{vb}
        v_bfe_u32 v{vt}, v1, 3, 2
        v_lshl_add_u32 v{vb}, v{vt}, 5, v{vb}""")

    def colsum_finish(self, s_lds, s_out, vbase, ks=5):
        a = self.a
        vb = vbase; vones = vbase + 4; vacc = vbase + 8; vf = vbase + 24
        self.w128_read_addr(vb, vones)
        a(f"v_add_u32 v{vb}, s{s_lds}, v{vb}")
        for nu in range(1, 4): a(f"v_xor_b32 v{vb+nu}, {32*nu}, v{vb}")
        for i in range(4): a(f"v_mov_b32 v{vones+i}, 0x3f803f80")
        for s in range(ks):
            fb = vf + 16 * (s & 1)
            for nu in range(4):
                for t in range(2):
                    a(f"ds_read_b64_tr_b16 {vr(fb+4*nu+2*t, 2)}, v{vb+nu} offset:{(32*s+4*t)*128}")
            a("s_waitcnt lgkmcnt(0)")
            for nu in range(4):
                c = "0" if s == 0 else vr(vacc + 4 * nu)
                a(f"v_mfma_f32_16x16x32_bf16 {vr(vacc+4*nu)}, {vr(vones)}, {vr(fb+4*nu)}, {c}")
        a(f"""v_cmp_lt_u32 vcc, 15, v1
        v_cndmask_b32 v{vacc}, v{vacc}, v{vacc+4}, vcc
        v_cmp_lt_u32 vcc, 31, v1
        v_cndmask_b32 v{vacc}, v{vacc}, v{vacc+8}, vcc
        v_cmp_lt_u32 vcc, 47, v1
        v_cndmask_b32 v{vacc}, v{vacc}, v{vacc+12}, vcc
        v_lshlrev_b32 v{vb}, 2, v1""")
        self.vmem(f"buffer_store_dword v{vacc}, v{vb}, {WS}, s{s_out} offen sc1", 'csst')

    def row_stats(self, nrows):
        a = self.a
        a(f"""v_lshlrev_b32 v8, 4, v1
        v_lshlrev_b32 v9, 2, v1
        s_mul_i32 s45, s44, 1280""")
        for r in range(nrows):
            self.vmem(f"buffer_load_dwordx4 {vr(12+8*r)}, v8, {srd(SRD_X)}, s45 offen offset:{1280*r} {opt('xpol', '')}", 'stat')
            self.vmem(f"buffer_load_dword v{16+8*r}, v9, {srd(SRD_X)}, s45 offen offset:{1280*r+1024} {opt('xpol', '')}", 'stat')

    def row_stats_finish(self, nrows):
        a = self.a
        self.wait_vm('stat')
        E = lambda r, i: 32 + 12 * r + i
        for r in range(nrows):
            for i in range(5):
                a(f"v_lshlrev_b32 v{E(r,2*i)}, 16, v{12+8*r+i}\nv_and_b32 v{E(r,2*i+1)}, 0xffff0000, v{12+8*r+i}")
        acc = [12 + 8 * r for r in range(nrows)]
        for r in range(nrows): a(f"v_add_f32 v{acc[r]}, v{E(r,0)}, v{E(r,1)}")
        for i in range(2, 10):
            for r in range(nrows): a(f"v_add_f32 v{acc[r]}, v{acc[r]}, v{E(r,i)}")
        ss = [46 + r for r in range(nrows)]
        self.wave_sum(acc, ss)
        a(f"v_mov_b32 v10, {f32hex(1.0/D)}")
        for r in range(nrows): a(f"v_mul_f32 v{acc[r]+1}, s{ss[r]}, v10")
        for i in range(10):
            for r in range(nrows): a(f"v_sub_f32 v{E(r,i)}, v{E(r,i)}, v{acc[r]+1}")
        for r in range(nrows): a(f"v_mul_f32 v{acc[r]}, v{E(r,0)}, v{E(r,0)}")
        for i in range(1, 10):
            for r in range(nrows): a(f"v_fmac_f32 v{acc[r]}, v{E(r,i)}, v{E(r,i)}")
        self.wave_sum(acc, ss)
        for r in range(nrows):
            a(f"v_mov_b32 v{acc[r]+2}, {f32hex(1e-5)}\nv_fmac_f32 v{acc[r]+2}, s{ss[r]}, v10\nv_rsq_f32 v{acc[r]+2}, v{acc[r]+2}")
        a(f"""s_lshl_b32 s45, s44, 2
        s_add_u32 s45, s45, {MEAN1}
        s_add_u32 s46, s45, {RSTD1-MEAN1}
        v_mov_b32 v10, 0
        s_mov_b64 exec, 1""")
        for r in range(nrows):
            self.vmem(f"buffer_store_dword v{acc[r]+1}, v10, {WS}, s45 offen offset:{4*r} sc1", 'statst')
            self.vmem(f"buffer_store_dword v{acc[r]+2}, v10, {WS}, s46 offen offset:{4*r} sc1", 'statst')
        a("s_mov_b64 exec, -1")

    def sig_rowstats(self):
        a = self.a
        a("""s_lshr_b32 s53, s55, 4
        s_mul_i32 s53, s53, 15
        v_add_u32 v10, s53, v1
        v_cmp_gt_u32 vcc, 15, v1""")
        self.signal(10, M_S0, 11)

    def p0(self):
        a = self.a
        a(f"""s_cmp_ge_u32 s2, 256
        s_cbranch_scc1 L_end
        s_load_dwordx16 s[64:79], s[0:1], 0
        s_load_dwordx4 s[80:83], s[0:1], 64
        s_cmp_ge_u32 s2, 16
        s_cbranch_scc1 L_nocode
        s_cmp_eq_u32 s2, {INITWG}
        s_cbranch_scc1 L_nocode
        s_getpc_b64 s[40:41]
        L_pc:
        s_sub_u32 s40, s40, L_pc-{NAME}_kernel
        s_subb_u32 s41, s41, 0
        s_and_b32 s42, s2, 8
        s_lshl_b32 s42, s42, 5
        v_and_b32 v2, 256, v0
        v_cmp_ne_u32 vcc, s42, v2
        s_cmp_eq_u32 s2, {INITWG + 8}
        s_cselect_b64 vcc, -1, vcc
        s_cbranch_vccz L_nocode
        v_lshlrev_b32 v2, 7, v0
        v_min_u32 v2, L_code_end-{NAME}_kernel-4, v2
        global_load_dword v250, v2, s[40:41]
        L_nocode:
        v_and_b32 v1, 63, v0
        v_lshrrev_b32 v2, 6, v0
        v_readfirstlane_b32 s{sWAVE}, v2
        v_mov_b32 v247, 0
        v_mov_b32 v78, 0
        s_mov_b32 s98, 0
        s_mov_b32 s{sBOUND}, 0x100000""")
        a(f"""s_lshr_b32 s40, s2, 3
        s_sub_u32 s40, s40, 2
        s_and_b32 s41, s2, 1
        s_mul_i32 s41, s41, 30
        s_add_u32 s40, s40, s41
        s_lshr_b32 s41, s40, 2
        s_and_b32 s40, s40, 3
        s_add_u32 s43, s40, s41
        s_mul_i32 s42, s41, 21846
        s_lshr_b32 s42, s42, 16
        s_mul_i32 s41, s41, 5
        s_mul_i32 s44, s42, 14
        s_sub_u32 s41, s41, s44
        s_and_b32 s42, s2, 6
        s_lshl_b32 s42, s42, 1
        s_add_u32 s40, s40, s42
        s_and_b32 s{sHW}, s{sWAVE}, 3""")
        if opt('map1', 0):
            a("""s_lshr_b32 s41, s2, 3
            s_sub_u32 s41, s41, 2
            s_and_b32 s40, s2, 7
            s_lshl_b32 s40, s40, 1
            s_and_b32 s42, s41, 1
            s_add_u32 s40, s40, s42
            s_lshr_b32 s41, s41, 1
            s_add_u32 s43, s40, s41""")
        if opt('stloc', 0): a("s_and_b32 s55, s2, 7\ns_lshl_b32 s55, s55, 5\ns_lshr_b32 s42, s2, 3\ns_add_u32 s55, s55, s42")
        else: a("s_mov_b32 s55, s2")
        a("""v_lshrrev_b32 v10, 3, v1
        v_mul_u32_u24 v2, 1280, v10
        v_lshrrev_b32 v10, 4, v1
        v_and_b32 v11, 7, v1
        v_xor_b32 v11, v11, v10
        v_lshl_add_u32 v2, v11, 4, v2
        v_xor_b32 v3, 64, v2
        v_add_u32 v3, 9216, v3
        v_add_u32 v4, 18432, v2
        v_add_u32 v5, 18432, v3
        v_mul_u32_u24 v6, 3840, v10
        v_lshlrev_b32 v10, 1, v10
        v_and_b32 v11, 15, v1
        v_xor_b32 v11, v11, v10
        v_lshl_add_u32 v6, v11, 4, v6
        v_add_u32 v7, 14336, v6
        v_xor_b32 v8, 128, v6
        v_add_u32 v8, 28672, v8
        v_add_u32 v9, 14336, v8""")
        a(f"""s_lshl_b32 s44, s40, 2
        s_add_u32 s44, s44, s{sHW}
        s_mul_i32 s44, s44, {32*1280}
        s_mul_i32 s45, s{sHW}, {16*3840}
        s_lshl_b32 s46, s41, 8
        s_add_u32 s45, s45, s46
        s_and_b32 s46, s43, 3
        {self.rot1}
        s_lshl_b32 s47, s{sHW}, 12""")
        a("s_waitcnt lgkmcnt(0)")
        self.build_srd(SRD_X, 64, S * D * 2)
        self.build_srd(SRD_WQKV, 66, D * 3 * D * 2)
        if self.stamps or opt('dly', ''):
            self.build_srd(SRD_WS, 82, WS_END)
            self.stamp('start')
        a(f"s_cmp_eq_u32 s2, {INITWG}\ns_cbranch_scc1 L_init\nL_init_back:")
        a(f"s_cmp_ge_u32 s{sWAVE}, 4\ns_cbranch_scc1 L_w47")
        a(f"s_lshl_b32 s44, s55, 2\ns_add_u32 s44, s44, s{sWAVE}\ns_lshl_b32 s44, s44, 1")
        if not opt('searly', 0): a("s_cmp_ge_u32 s2, 16\ns_cbranch_scc1 L_p1_c")
        self.row_stats(2)
        a(f"""s_cmp_lt_u32 s2, 16
        s_cbranch_scc1 L_spare
        s_branch L_p1_c
        L_w47:
        s_cmp_lt_u32 s2, 16
        s_cbranch_scc1 L_spare""")

    def more_srds(self):
        self.build_srd(SRD_WS, 82, WS_END)
        self.build_srd(SRD_DBG, 80, 256)
        self.build_srd(SRD_WO, 68, D * D * 2)
        self.build_srd(SRD_WG, 72, D * F * 2)
        self.build_srd(SRD_WU, 74, D * F * 2)
        self.build_srd(SRD_WD, 76, F * D * 2)
        self.build_srd(SRD_OUT, 78, S * D * 2)
        self.a('s_mov_b32 s0, 0')

    def code_touch(self, tag, sidx, n):
        a = self.a
        a(f"""s_getpc_b64 s[42:43]
        L_pc{tag}:
        s_sub_u32 s42, s42, L_pc{tag}-{NAME}_kernel
        s_subb_u32 s43, s43, 0
        s_lshl_b32 s{sidx}, s{sidx}, 13
        v_lshl_add_u32 v16, v1, 7, s{sidx}""")
        for i in range(n):
            a(f"v_min_u32 v17, L_code_end-{NAME}_kernel-4, v16\nglobal_load_dword v251, v17, s[42:43]\nv_add_u32 v16, 8192, v16")

    def touch(self, srdb, voff, soff, n):
        self.a(f"buffer_load_dword v{248 + n % 4}, v{voff}, {srdb}, {soff} offen")

    def spare_code(self):
        a = self.a
        self.vm = VM()
        a("L_spare:")
        for i in range(4): self.vm.add('stat')
        a(f"""v_lshlrev_b32 v2, 7, v1
        s_lshl_b32 s50, s{sWAVE}, 4
        s_add_u32 s50, s50, s2
        s_lshl_b32 s50, s50, 13
        s_add_u32 s51, s50, {256*3840}""")
        self.more_srds()
        CT = opt('cstail', 0)
        if CT:
            a(f"""s_cmp_gt_u32 s2, {INITWG}
            s_subb_u32 s52, s2, 0
            s_lshl_b32 s53, s52, 1
            s_and_b32 s54, s{sWAVE}, 1
            s_add_u32 s53, s53, s54
            s_lshr_b32 s54, s{sWAVE}, 1
            s_mul_i32 s55, s54, {8*3840}
            s_lshl_b32 s56, s53, 7
            s_add_u32 s55, s55, s56
            s_add_u32 s55, s55, {256*3840}
            s_cmp_eq_u32 s2, {INITWG}
            s_cselect_b32 s55, {OOB//2}, s55
            s_mul_i32 s56, s{sWAVE}, 12288""")
            self.colsum_issue(srd(SRD_WQKV), 3840, 55, 56, 3, 4, 5, n=12, step=32)
        else:
            for n in range(2):
                self.touch(srd(SRD_WQKV), 2, "s51", n); self.vm.add('t')
                if n < 1: a(f"s_add_u32 s51, s51, {128*8192}")
        a(f"s_cmp_ge_u32 s{sWAVE}, 4\ns_cbranch_scc1 L_spare3")
        self.row_stats_finish(2)
        a("L_spare3:")
        if CT:
            a(f"""s_mul_i32 s55, s54, {1920*4}
            s_lshl_b32 s57, s53, 8
            s_add_u32 s55, s55, s57
            s_add_u32 s55, s55, {CS1}
            s_cmp_eq_u32 s2, {INITWG}
            s_cselect_b32 s55, {OOB//2}, s55
            s_waitcnt vmcnt(0)""")
            self.colsum_finish(56, 55, 64, ks=3)
        self.poll(0, 1, 10, 11, SRD_DBG)
        a(f"""s_barrier
        s_cmp_lg_u32 s{sWAVE}, 0
        s_cbranch_scc1 L_spare4""")
        self.sig_rowstats()
        if CT:
            a(f"""s_cmp_eq_u32 s2, {INITWG}
            s_cbranch_scc1 L_spare4
            v_mul_u32_u24 v10, 15, v1
            v_add_u32 v10, s52, v10""")
            self.signal(10, M_S0, 11, mask='0xffff')
        a("L_spare4:")
        if opt('wgw', 1):
            a(f"s_and_b32 s51, s50, {64*8192-1}\ns_cmp_ge_u32 s{sWAVE}, 4\ns_cbranch_scc1 L_spare5")
            self.touch(srd(SRD_WG), 2, "s51", 1)
            a("s_branch L_spare6\nL_spare5:")
            self.touch(srd(SRD_WU), 2, "s51", 1)
            a("L_spare6:")
        if opt('ct1', 0):
            a(f"s_waitcnt vmcnt(0)\ns_mov_b32 s41, s{sWAVE}")
            self.code_touch('a', 41, 1)
        a("s_mov_b64 s[62:63], 0")
        self.stamp('spdone')
        a("s_branch L_p1_join")
        a("L_init:")
        self.build_srd(SRD_WS, 82, WS_END)
        self.build_srd(SRD_DBG, 80, 256)
        a(f"""v_mov_b32 v4, 0
        v_mov_b32 v5, 0
        v_mov_b32 v6, 0
        v_mov_b32 v7, 0
        v_lshlrev_b32 v8, 4, v1
        s_lshl_b32 s40, s{sWAVE}, 12""")
        for i in range(4):
            a(f"buffer_store_dwordx4 v[4:7], v8, {WS}, s40 offen offset:{1024*i} sc1")
        a(f"""s_waitcnt vmcnt(0)
        s_barrier
        s_cmp_lg_u32 s{sWAVE}, 0
        s_cbranch_scc1 L_init_back
        v_mov_b32 v5, 1
        s_mov_b64 exec, 1
        buffer_store_dword v5, v4, {srd(SRD_DBG)}, 0 offen sc1
        s_mov_b64 exec, -1
        s_branch L_init_back""")

    def finish(self, dword, name, mid=None):
        a = self.a
        a("s_waitcnt vmcnt(0)")
        if mid: a(mid + ":")
        self.bar()
        self.stamp(name)
        L = a.newlabel('Lfin')
        a(f"""s_cmp_eq_u64 s[62:63], 0
        s_cbranch_scc1 {L}
        v_mov_b32 v246, 1
        s_mov_b64 exec, s[62:63]
        buffer_atomic_add v246, v247, {WS}, 0 offen offset:{4*dword} sc1
        s_mov_b64 exec, -1
        {L}:""")
        self.vm.clear()

    def sigprep(self, wave):
        self.a(f"""v_lshlrev_b32 v247, 7, v247
        s_cmp_eq_u32 s{sWAVE}, {wave}
        s_cselect_b64 s[62:63], vcc, 0""")

    P1_R, P1_LA, P1_BLK = 4, opt('la1', 3), 4
    rot1 = 's_mov_b32 s46, 0' if 'norot' in sys.argv else ''
    P1_TAB = 131072
    CS4_LDS = 131072 + 2048

    def p1(self):
        a = self.a
        R, LA = self.P1_R, self.P1_LA
        T = self.P1_TAB
        def waddr(dst, sblk, vt):
            a(f"""v_lshrrev_b32 v{vt}, 4, v1
            v_lshlrev_b32 v{dst}, 11, v{vt}
            v_bfe_u32 v{vt}, v1, 2, 2
            v_lshl_add_u32 v{dst}, v{vt}, 8, v{dst}
            v_and_b32 v{vt}, 3, v1
            v_lshl_add_u32 v{dst}, v{vt}, 3, v{dst}
            v_bfe_u32 v{vt}, v1, 2, 3
            v_xor_b32 v{vt}, s{sblk}, v{vt}
            v_lshl_add_u32 v{dst}, v{vt}, 5, v{dst}
            v_add_u32 v{dst}, 16384, v{dst}""")
        self.vm = VM(); self.nbar = 0
        def dma(st):
            slot = st % R
            a(f"""s_lshl_b32 s48, s46, 7
            s_add_u32 s48, s48, s44
            s_mul_i32 s49, s46, {64*3840}
            s_add_u32 s49, s49, s45
            s_add_u32 m0, s47, {slot*32768}""")
            for i in range(4):
                self.vmem(f"buffer_load_dwordx4 v{2+i}, {srd(SRD_X)}, s48 offen offset:{1024*i} {opt('xpol', '')} lds", ('p1', st))
            a(f"s_add_u32 m0, s47, {slot*32768+16384}")
            for i in range(4):
                self.vmem(f"buffer_load_dwordx4 v{6+i}, {srd(SRD_WQKV)}, s49 offen offset:{1024*i} lds", ('p1', st))
            B = self.P1_BLK
            if st + 1 < B: a(f"s_add_u32 s46, s46, 1\ns_and_b32 s46, s46, {B-1}")
            elif opt('rot1b', 1) and st + 1 < 8: a(f"s_add_u32 s46, s46, 1\ns_and_b32 s46, s46, 3\ns_or_b32 s46, s46, 4")
            elif opt('rot1b', 1) and st < 9: a(f"s_add_u32 s46, s46, 1\ns_and_b32 s46, s46, 1\ns_or_b32 s46, s46, 8")
            elif st < 9: a(f"s_mov_b32 s46, {st+1}")
        dma(0)
        self.more_srds()
        dma(1)
        a(f"""s_mul_i32 s52, s40, 15
        s_add_u32 s52, s52, s41
        s_lshl_b32 s52, s52, 7
        v_mov_b32 v12, 0""")
        for st in range(10):
            self.wait_vm(('p1', st))
            if st == 8:
                self.wait_vm('mb')
                EX = 17 if opt('cstail', 0) else 16
                a(f"v_cmp_ne_u32 vcc, {EX}, v14\ns_cbranch_vccz L_p1_s0ok")
                keep = list(self.vm.ops)
                self.poll("s52", EX, 10, 11)
                self.vm.ops = keep + ['t'] * 4
                a("L_p1_s0ok:")
                a(f"""v_lshlrev_b32 v10, 2, v1
                s_and_b32 s48, s{sHW}, 1
                s_cmp_ge_u32 s{sHW}, 2
                s_cselect_b32 s49, s41, s40
                s_mov_b32 s50, {MEAN1}
                s_cselect_b32 s50, {CS1}, s50
                s_mov_b32 s51, {RSTD1-MEAN1}
                s_cselect_b32 s51, {1920*4}, s51
                s_lshl_b32 s49, s49, 1
                s_add_u32 s49, s49, s48
                s_lshl_b32 s49, s49, 8
                s_add_u32 s49, s49, s50""")
                for q in range(4):
                    a(f"buffer_load_dword v{16+q}, v10, {WS}, s49 offen sc1\ns_add_u32 s49, s49, s51")
            self.bar()
            if st % 3 == 0: self.sstamp(f'hb{st}')
            if st == opt('hw1', 8):
                a(f"""v_lshlrev_b32 v15, 7, v1
                s_cmp_eq_u32 s{sHW}, 0
                s_cselect_b32 s56, s{SRD_WG}, s{SRD_WO}
                s_cselect_b32 s57, s{SRD_WG+1}, s{SRD_WO+1}
                s_cselect_b32 s58, s{SRD_WG+2}, s{SRD_WO+2}
                s_cselect_b32 s53, 48, -156
                s_mov_b32 s59, 0x20000
                s_add_u32 s53, s2, s53
                s_and_b32 s53, s53, 511
                s_lshl_b32 s53, s53, 13
                s_cmp_ge_u32 s{sHW}, 2
                s_cselect_b32 s53, {OOB//2}, s53""")
                self.touch("s[56:59]", 15, "s53", 3)
                self.vm.add('touch')
            if st == 1:
                self.vmem(f"buffer_load_dword v13, v12, {srd(SRD_DBG)}, 0 offen sc1", 'rdy')
            if st == 3:
                L = a.newlabel('Ls0')
                self.wait_vm('rdy')
                a(f"v_cmp_ne_u32 vcc, 1, v13\ns_cbranch_vccz {L}r")
                keep = list(self.vm.ops)
                self.poll(0, 1, 10, 11, SRD_DBG)
                self.vm.ops = keep
                a(f"{L}r:")
                a(f"""s_lshr_b32 s53, s55, 4
                s_mul_i32 s53, s53, 15
                s_lshl_b32 s54, s{sHW}, 2
                s_add_u32 s53, s53, s54
                v_add_u32 v10, s53, v1
                s_cmp_eq_u32 s{sHW}, 3
                s_cselect_b64 vcc, 7, 15""")
                self.signal(10, M_S0, 11)
                self.vm.add('sig')
            if st == 6:
                self.vmem(f"buffer_load_dword v14, v12, {WS}, s52 offen sc1", 'mb')
            if LA == 3 and st == opt('la1s', 1): dma(st + 2)
            if LA == 3 and st < opt('la1s', 1): dma(st + 2)
            elif st + LA < 10: dma(st + LA)
        c = (20 ** -0.5) * LOG2E
        a(f"""s_cmp_lt_u32 s41, 5
        s_cselect_b32 s49, {f32hex(c)}, 1.0
        s_lshl_b32 s50, s48, 9
        s_add_u32 s50, s50, {T}
        v_lshl_add_u32 v11, v1, 3, s50
        s_lshl_b32 s50, s48, 8
        s_add_u32 s50, s50, {T+1536}
        v_add_u32 v10, s50, v10
        s_waitcnt vmcnt({self.vm.count_after('t')})
        s_cmp_ge_u32 s{sHW}, 2
        s_cbranch_scc1 L_p1_tcs
        v_mul_f32 v17, s49, v17
        ds_write_b64 v11, v[16:17]
        s_branch L_p1_tdone
        L_p1_tcs:
        v_add_f32 v16, v16, v17
        v_add_f32 v18, v18, v19
        v_add_f32 v16, v16, v18
        ds_write_b32 v10, v16
        L_p1_tdone:
        s_waitcnt lgkmcnt(0)""")
        self.bar()
        self.sdump(5)
        if opt('iw', 0):
            a(f"""s_mov_b64 exec, 0
            s_cmp_eq_u32 s{sHW}, 0
            s_cbranch_scc1 L_iw_0
            s_cmp_eq_u32 s{sHW}, 1
            s_cbranch_scc1 L_iw_1
            s_cmp_eq_u32 s{sHW}, 2
            s_cbranch_scc1 L_iw_2
            s_branch L_iw_3
            L_iw_end:
            s_mov_b64 exec, -1""")
        if opt('vpoll', 0): a("s_cmp_ge_u32 s41, 10\ns_cselect_b32 s0, 2, 0")
        a("s_mov_b64 s[62:63], 0\ns_branch L_p1_join")
        nb_h = self.nbar
        self.vm = VM(); self.nbar = 0
        a('L_p1_c:')
        if opt('searly', 0):
            for i in range(4): self.vm.add('stat')
        else: self.row_stats(2)
        self.more_srds()
        XA, WA = 64, 68
        FR = 80
        ACC = 144
        a(f"""s_and_b32 s48, s{sWAVE}, 1
        s_lshr_b32 s49, s{sWAVE}, 1
        v_and_b32 v2, 15, v1
        v_lshrrev_b32 v3, 4, v1
        v_lshlrev_b32 v4, 7, v2
        v_bfe_u32 v5, v1, 1, 3
        v_xor_b32 v5, v5, v3
        v_lshl_add_u32 v4, v5, 4, v4
        s_lshl_b32 s50, s48, 13
        v_add_u32 v{XA}, s50, v4
        v_xor_b32 v{XA+1}, 64, v{XA}
        s_lshl_b32 s50, s49, 1
        s_add_u32 s50, s50, s48
        s_lshl_b32 s50, s50, 1""")
        waddr(WA, 50, 5)
        for nu in range(1, 4): a(f"v_xor_b32 v{WA+nu}, {32*nu}, v{WA}")
        a(f"""s_lshl_b32 s50, s48, 9
        s_add_u32 s50, s50, {T}
        v_lshl_add_u32 v76, v2, 3, s50
        s_lshl_b32 s50, s{sWAVE}, 7
        s_add_u32 s50, s50, {T+1024}
        v_lshl_add_u32 v77, v3, 4, s50
        v_xor_b32 v79, 128, v77
        v_lshrrev_b32 v78, 5, v1
        v_lshlrev_b32 v78, 15, v78
        v_and_b32 v7, 31, v1
        v_lshl_add_u32 v78, v7, 4, v78""")
        a(f"""s_cmp_ge_u32 s41, 10
        s_cselect_b32 s50, 10, 5
        s_cmp_ge_u32 s41, 5
        s_cselect_b32 s50, s50, 0
        s_sub_u32 s51, s41, s50
        s_lshl_b32 s51, s51, 4
        v_mul_u32_u24 v4, 5, v7
        v_lshrrev_b32 v4, 1, v4
        v_add_u32 v4, 2, v4
        v_subrev_u32 v4, s51, v4
        v_cmp_gt_u32 vcc, 18, v4
        s_lshr_b32 s52, s40, 1
        s_cmp_eq_u32 s52, 7
        s_cselect_b32 s50, 0, s50
        s_cmp_eq_u32 s50, 0
        s_cselect_b32 vcc_hi, 0, vcc_hi
        s_lshl_b32 s52, s52, 5
        v_add_u32 v247, s52, v1""")
        self.sigprep(0)
        if opt('vdef', 1):
            a(f"""s_cmp_ge_u32 s41, 10
            s_cselect_b32 s50, {4*(M_S1V-M_S1)}, 0
            v_add_u32 v247, s50, v247
            s_cselect_b32 s50, {OOB//2}, 0
            v_add_u32 v66, s50, v78""")
        else: a("v_mov_b32 v66, v78")
        a(f"""s_lshl_b32 s50, s41, 1
        s_add_u32 s50, s50, s49
        s_lshl_b32 s50, s50, 18
        s_lshl_b32 s51, s40, 1
        s_add_u32 s51, s51, s48
        s_lshl_b32 s51, s51, 10
        s_add_u32 s50, s50, s51
        s_lshl_b32 s51, s48, 17
        s_add_u32 s50, s50, s51
        s_add_u32 s50, s50, {QKV}
        s_lshl_b32 s52, s48, 18
        s_sub_u32 s52, 65536, s52
        s_cmp_ge_u32 s41, {10 if opt('vdef', 1) else 99}
        s_cselect_b32 s98, s50, 0
        s_cselect_b32 s0, 0, {opt('qkfirst', 1)}
        s_mov_b32 s99, s52""")
        CSR = 208; ONES = 72
        for i in range(72): a(f"v_mov_b32 v{ACC+i}, 0")
        for i in range(4): a(f"v_mov_b32 v{ONES+i}, 0x3f803f80")
        self.row_stats_finish(2)
        lg = LG(a)
        def reads(g):
            j = g & 1
            off = ((g >> 1) & 1) * 32768
            fb = FR + 32 * (g & 1)
            W = lambda i: [(f"ds_read_b64_tr_b16 {vr(fb+16+4*i, 2)}, v{WA+i} offset:{off+32*j*256}", None),
                           (f"ds_read_b64_tr_b16 {vr(fb+18+4*i, 2)}, v{WA+i} offset:{off+(32*j+4)*256}", ('W', g & 3, i))]
            X = lambda i: [(f"ds_read_b128 {vr(fb+4*i)}, v{XA+j} offset:{off+2048*i}", ('X', g & 3, i))]
            return W(0) + X(0) + W(1) + W(2) + W(3) + X(1) + X(2) + X(3)
        self.stamp('preb0')
        self.bar()
        self.stamp('b0')
        for r in reads(0): lg.op(*r)
        MR = 80
        csm = lambda fb, e: a(f"v_mfma_f32_16x16x32_bf16 {vr(CSR+4*e)}, {vr(fb+16+4*e)}, {vr(ONES)}, {vr(CSR+4*e)}")
        CT = opt('cstail', 0)
        for sec, (cnt, cs_on) in enumerate([(2, True), (2, False), (1, False)] if CT else [(4, True), (1, True)]):
            last = cnt == 1
            if not last: a(f"s_mov_b32 s51, {cnt}\n.p2align 3\nL_p1_loop{sec}:")
            lg.done = lg.n - 12
            for g in range(4):
                fb = FR + 32 * (g & 1)
                fin = last and g == 3
                nxt = [] if g & 1 else reads(g + 1)
                k = 0
                for n in range(16):
                    mu, nu = (n & 3, n >> 2) if fin else (n >> 2, n & 3)
                    if (g & 1) and n == (2 if LA == 2 else 4) and not fin:
                        if LA == 3: lg.drain()
                        if g == 3: a("s_waitcnt vmcnt(0)")
                        a("s_barrier")
                        nxt = reads(g + 1)
                    if fin and n == 0:
                        lg.drain()
                        if cs_on: csm(fb, 0); csm(fb, 1)
                    if fin and n == (1 if CT else 4):
                        a("s_mov_b32 exec_lo, 0x00010001\ns_mov_b32 exec_hi, 0x00010001")
                        for e in range(2): lg.op(f"ds_write_b128 v77, {vr(CSR+4*e)} offset:{64*e}")
                        a("s_mov_b64 exec, -1")
                    if fin and n == (6 if CT else 8):
                        lg.drain(); a("s_barrier")
                        nxt = [(f"ds_read_b64 {vr(MR+2*q, 2)}, v76 offset:{128*q}", None) for q in range(4)]
                        nxt += [(f"ds_read_b128 {vr(CSR+8+4*e)}, v79 offset:{64*e}", None) for e in range(2)]
                        if CT: nxt += [(f"ds_read_b128 {vr(88+4*e)}, v{79 if e >> 1 else 77} offset:{512+64*(e&1)}", None) for e in range(4)]
                    ac = ACC + 16 * mu + 4 * nu
                    if n == 0: lg.need(('W', g, 3))
                    if n == 4: lg.need(('X', g, 3))
                    a(f"v_mfma_f32_16x16x32_bf16 {vr(ac)}, {vr(fb+16+4*nu)}, {vr(fb+4*mu)}, {vr(ac)}")
                    if k < len(nxt): lg.op(*nxt[k]); k += 1
                    elif g == 2 and n >= 12 and not last:
                        for r in ([XA, XA+1], [WA, WA+1], [WA+2], [WA+3])[n - 12]: a(f"v_xor_b32 v{r}, 65536, v{r}")
                    if n in (13, 15) and not fin and cs_on: csm(fb, (n - 13) >> 1)
                    if g == 3 and n == 14 and not last: a("s_sub_u32 s51, s51, 1\ns_cmp_lg_u32 s51, 0")
                assert k == len(nxt)
            if not last: a(f"s_cbranch_scc1 L_p1_loop{sec}")
        self.nbar += 10
        lg.drain()
        self.stamp('p1loop')
        a(".p2align 3")
        if CT:
            for h in range(8): a(f"v_pk_add_f32 {vr(CSR+2*h,2)}, {vr(CSR+2*h,2)}, {vr(88+2*h,2)}")
        PK = 104
        n = 0
        for nu in range(4):
            for p in range(2):
                pk = PK + 4 * (n % 8); n += 1
                tiles = [(ACC + 16 * (2 * p + e) + 4 * nu, 2 * p + e) for e in range(2)]
                for ac, mu in tiles:
                    for h in range(2):
                        a(f"v_pk_fma_f32 {vr(ac+2*h,2)}, {vr(CSR+4*nu+2*h,2)}, {vr(MR+2*mu,2)}, {vr(ac+2*h,2)} op_sel_hi:[1,0,1] neg_lo:[0,1,0] neg_hi:[0,1,0]")
                for ac, mu in tiles:
                    for h in range(2):
                        a(f"v_pk_mul_f32 {vr(ac+2*h,2)}, {vr(ac+2*h,2)}, {vr(MR+2*mu,2)} op_sel:[0,1] op_sel_hi:[1,1]")
                for h in range(2):
                    for e, (ac, mu) in enumerate(tiles):
                        a(f"v_cvt_pk_bf16_f32 v{pk+2*e+h}, v{ac+2*h}, v{ac+2*h+1}")
                a(f"v_permlane16_swap_b32 v{pk}, v{pk+2}\ns_nop 0\nv_permlane16_swap_b32 v{pk+1}, v{pk+3}\ns_nop 0")
                a(f"buffer_store_dwordx4 {vr(pk)}, v66, {WS}, s50 offen offset:{512*p} sc1")
            if nu < 3: a("s_add_u32 s50, s50, s52\ns_nop 0" if nu == 1 else "s_add_u32 s50, s50, 65536")
        self.stamp('p1epi')
        assert self.nbar == nb_h, (self.nbar, nb_h)
        a("L_p1_join:")
        a.settle(3)

    def p1_vstores(self):
        a = self.a
        a("s_cmp_eq_u32 s98, 0\ns_cbranch_scc1 L_p1_nov")
        for nu in range(4):
            for p in range(2):
                a(f"buffer_store_dwordx4 {vr(104+8*nu+4*p)}, v78, {WS}, s98 offen offset:{512*p} sc1")
            if nu < 3: a("s_add_u32 s98, s98, s99" if nu == 1 else "s_add_u32 s98, s98, 65536")
        a("L_p1_nov:")

    def build(self):
        a = self.a
        a.raw(f"; @launch grid=(256,1,1) block=(512,1,1) lds={LDS_BYTES}")
        a.raw(f'.amdgcn_target "amdgcn-amd-amdhsa--gfx950"\n.text\n.globl {NAME}_kernel\n.p2align {KALIGN}\n.type {NAME}_kernel,@function\n{NAME}_kernel:')
        self.p0()
        self.p1()
        if self.upto >= 2: self.p2()
        else: self.p1_vstores(); self.finish(M_S1, 'p1st')
        if self.upto >= 3: self.tail345()
        a("L_end:\ns_endpgm")
        self.spare_code()
        i = 0
        while i < len(self.tail):
            self.tail[i](); i += 1
        a("L_code_end:")
        a.raw(f""".section .rodata,"a"
.p2align 6
.amdhsa_kernel {NAME}_kernel
  .amdhsa_next_free_vgpr 256
  .amdhsa_next_free_sgpr 102
  .amdhsa_accum_offset 256
  .amdhsa_group_segment_fixed_size 0
  .amdhsa_kernarg_size 80
  .amdhsa_user_sgpr_count 2
  .amdhsa_user_sgpr_kernarg_segment_ptr 1
  .amdhsa_system_sgpr_workgroup_id_x 1
.end_amdhsa_kernel""")
        return a.text()

def add_islands(text):
    import subprocess, re, tempfile, os
    lines = text.split('\n')
    tmp = re.sub(r'L_iw_\d+', 'L_iw_end', text)
    d = tempfile.mkdtemp()
    open(d + '/a.s', 'w').write(tmp)
    subprocess.run(['clang', '-x', 'assembler', '-target', 'amdgcn-amd-amdhsa', '-mcpu=gfx950', '-c', d + '/a.s', '-o', d + '/a.o'], check=True)
    dis = subprocess.run(['llvm-objdump', '-d', '--mcpu=gfx950', d + '/a.o'], capture_output=True, text=True).stdout
    ins = [(int(m.group(2), 16), m.group(1)) for m in re.finditer(r'^\t(\S+).*// ([0-9A-F]{12}):', dis, re.M)]
    out = []; k = 0; shift = 0; page = opt('iw0', 2); n = 0; stop = False
    for ln in lines:
        t = ln.strip()
        isins = ln.startswith('    ') and t and not t.startswith(('.', ';'))
        if t == 'L_end:': stop = True
        if isins:
            mn = re.sub(r'_(e32|e64)$', '', t.split()[0])
            while re.sub(r'_(e32|e64)$', '', ins[k][1]) != mn:
                assert ins[k][1] == 's_nop', (ins[k], t)
                k += 1
            addr = ins[k][0] + shift; k += 1
            if addr >= page * 4096 and not stop:
                assert addr < page * 4096 + 32
                out += [f'L_iw_{n}:', f'    s_cbranch_execz L_iw_{n+4}', '    s_nop 0']
                n += 1; shift += 8; page += 1
        out.append(ln)
    res = '\n'.join(out)
    for j in range(n, n + 4): res = res.replace(f's_cbranch_execz L_iw_{j}\n', 's_cbranch_execz L_iw_end\n')
    return res

from phases import install
install(Gen, globals())
if opt('p1n', 0):
    import p1new
    p1new.install(Gen, globals())

if __name__ == '__main__':
    upto = int(sys.argv[1]) if len(sys.argv) > 1 else 5
    out = sys.argv[2] if len(sys.argv) > 2 else 'k.s'
    g = Gen(upto=upto, stamps=('stamps' in sys.argv))
    txt = g.build()
    if opt('iw', 0): txt = add_islands(txt)
    open(out, 'w').write(txt)
    open(out + '.stamps', 'w').write('\n'.join(g.stamp_names))
    print("wrote", out, "pads", g.a.pad_count)
```

```python
def install(Gen, G):
    globals().update({k: v for k, v in G.items() if not k.startswith('__')})
    global MT, BM, NRB, NT, NS, XB, SLOT, T1, MAG
    MT = opt('mt', 5); BM = 32 * MT; NRB = -(-2048 // BM); NT = 15 * NRB; NS = 256 - NT
    XB = BM * 128; SLOT = XB + 16384; T1 = opt('r1', 4) * SLOT
    MAG = -(-65536 // MT)
    assert all((v * MAG) >> 16 == v // MT for v in range(64))
    assert T1 + 2048 + 512 <= 151936
    for f in (p0, p1, spare_code, p1_vstores, s1_expect):
        setattr(Gen, f.__name__, f)

def magic(d, n):
    m = -(-65536 // d)
    assert all((v * m) >> 16 == v // d for v in range(n)), (d, n)
    return m

def p0(self):
    a = self.a
    q, r = NS >> 3, NS & 7
    a(f"""s_cmp_ge_u32 s2, 256
    s_cbranch_scc1 L_end
    s_load_dwordx16 s[64:79], s[0:1], 0
    s_load_dwordx4 s[80:83], s[0:1], 64
    s_sub_u32 s42, s2, 240
    s_cmp_ge_u32 s42, 16
    s_cbranch_scc1 L_nocode
    s_getpc_b64 s[40:41]
    L_pc:
    s_sub_u32 s40, s40, L_pc-{NAME}_kernel
    s_subb_u32 s41, s41, 0
    s_lshr_b32 s42, s42, 3
    s_mul_i32 s42, s42, 192
    s_sub_u32 s42, s42, 320
    v_cmp_le_u32 vcc, 320, v0
    s_cbranch_vccz L_nocode
    v_add_u32 v2, s42, v0
    v_lshlrev_b32 v2, 7, v2
    v_min_u32 v2, L_code_end-{NAME}_kernel-4, v2
    global_load_dword v250, v2, s[40:41]
    L_nocode:
    v_and_b32 v1, 63, v0
    v_lshrrev_b32 v2, 6, v0
    v_readfirstlane_b32 s{sWAVE}, v2
    v_mov_b32 v247, 0
    v_mov_b32 v222, 0
    s_mov_b32 s98, 0
    s_mov_b32 s99, 0
    s_mov_b32 s{sBOUND}, 0x100000""")
    a(f"""s_and_b32 s{sHW}, s{sWAVE}, 3
    s_cmp_ge_u32 s2, {NT}
    s_cbranch_scc1 L_spare
    s_and_b32 s40, s2, 7
    s_mul_i32 s41, s40, {NT >> 3}
    s_min_u32 s42, s40, {NT & 7}
    s_add_u32 s41, s41, s42
    s_lshr_b32 s42, s2, 3
    s_add_u32 s41, s41, s42
    s_mul_i32 s42, s41, {magic(4*NRB, NT)}
    s_lshr_b32 s42, s42, 16
    s_mul_i32 s43, s42, {4*NRB}
    s_sub_u32 s41, s41, s43
    s_cmp_eq_u32 s42, 3
    s_cselect_b32 s43, 3, 4
    s_mov_b32 s44, 16384
    s_cselect_b32 s44, 21846, s44
    s_mul_i32 s40, s41, s44
    s_lshr_b32 s40, s40, 16
    s_mul_i32 s43, s43, s40
    s_sub_u32 s41, s41, s43
    s_lshl_b32 s42, s42, 2
    s_add_u32 s41, s41, s42
    s_add_u32 s43, s40, s41
    s_mul_i32 s42, s41, 21846
    s_lshr_b32 s42, s42, 16
    s_mul_i32 s41, s41, 5
    s_mul_i32 s44, s42, 14
    s_sub_u32 s41, s41, s44
    s_cmp_lt_u32 s{sWAVE}, 4
    s_cbranch_scc1 L_p1_c""")
    a("""v_lshrrev_b32 v10, 3, v1
    v_mul_u32_u24 v2, 1280, v10
    v_lshrrev_b32 v10, 4, v1
    v_and_b32 v11, 7, v1
    v_xor_b32 v11, v11, v10
    v_lshl_add_u32 v2, v11, 4, v2
    v_xor_b32 v3, 64, v2
    v_mul_u32_u24 v6, 3840, v10
    v_lshlrev_b32 v10, 1, v10
    v_and_b32 v11, 15, v1
    v_xor_b32 v11, v11, v10
    v_lshl_add_u32 v6, v11, 4, v6
    v_add_u32 v7, 14336, v6
    v_xor_b32 v8, 128, v6
    v_add_u32 v8, 28672, v8
    v_add_u32 v9, 14336, v8""")
    a(f"""s_bitcmp1_b32 s{sWAVE}, 0
    s_cselect_b64 vcc, -1, 0
    v_cndmask_b32 v4, v2, v3, vcc
    s_mul_i32 s44, s40, {BM//8}
    s_add_u32 s44, s44, s{sHW}
    s_mul_i32 s44, s44, {8*1280}
    s_mul_i32 s45, s{sHW}, {16*3840}
    s_lshl_b32 s46, s41, 8
    s_add_u32 s45, s45, s46
    s_lshl_b32 s47, s{sHW}, 10
    s_lshl_b32 s50, s{sHW}, 12""")
    first_srds(self)

def first_srds(self):
    self.a("s_waitcnt lgkmcnt(0)")
    self.build_srd(SRD_X, 64, S * D * 2)
    self.build_srd(SRD_WQKV, 66, D * 3 * D * 2)
    if self.stamps or opt('dly', ''):
        self.build_srd(SRD_WS, 82, WS_END)
        self.stamp('start')

def spare_code(self):
    a = self.a
    self.vm = VM()
    a("""L_spare:
    v_lshrrev_b32 v10, 3, v1
    v_mul_u32_u24 v2, 1280, v10
    v_lshrrev_b32 v10, 4, v1
    v_and_b32 v11, 7, v1
    v_xor_b32 v11, v11, v10
    v_lshl_add_u32 v2, v11, 4, v2
    v_xor_b32 v3, 64, v2""")
    first_srds(self)
    a(f"""s_cmp_eq_u32 s2, {INITWG}
    s_cbranch_scc1 L_init
    L_init_back:
    s_sub_u32 s54, s2, {NT}
    s_mul_i32 s40, s{sWAVE}, {NS}
    s_add_u32 s40, s40, s54
    s_mul_i32 s41, s{sWAVE}, 20480
    s_cmp_ge_u32 s40, 248
    s_cbranch_scc1 L_sv_none
    s_cmp_ge_u32 s40, 128
    s_cbranch_scc1 L_sv_w
    v_add_u32 v3, 9216, v3
    s_mul_i32 s42, s40, {16*1280}""")
    for s in range(10):
        a(f"s_add_u32 m0, s41, {2048*s}\nbuffer_load_dwordx4 v2, {srd(SRD_X)}, s42 offen lds\nbuffer_load_dwordx4 v3, {srd(SRD_X)}, s42 offen offset:1024 lds")
        if s < 9: a("s_add_u32 s42, s42, 128")
    self.more_srds()
    a(f"""v_and_b32 v2, 15, v1
    v_lshrrev_b32 v3, 4, v1
    v_lshlrev_b32 v4, 7, v2
    v_bfe_u32 v5, v1, 1, 3
    v_xor_b32 v5, v5, v3
    v_lshl_add_u32 v4, v5, 4, v4
    v_add_u32 v4, s41, v4
    v_xor_b32 v5, 64, v4""")
    for i in range(4): a(f"v_mov_b32 v{12+i}, 0x3f803f80")
    RS, SQ = 16, 20
    for half in range(2):
        a(f"s_waitcnt vmcnt({10 - 10*half})")
        for k in range(10):
            g = 10 * half + k
            a(f"ds_read_b128 {vr(24+4*k)}, v{4+(g&1)} offset:{2048*(g>>1)}")
        for k in range(10):
            a(f"s_waitcnt lgkmcnt({9-k})")
            c = lambda r: "0" if (half == 0 and k == 0) else vr(r)
            a(f"v_mfma_f32_16x16x32_bf16 {vr(RS)}, {vr(12)}, {vr(24+4*k)}, {c(RS)}")
            a(f"v_mfma_f32_16x16x32_bf16 {vr(SQ)}, {vr(24+4*k)}, {vr(24+4*k)}, {c(SQ)}")
    a("v_and_b32 v6, 3, v2\nv_lshrrev_b32 v7, 2, v2\nv_cmp_eq_u32 s[50:51], v7, v3")
    for i in range(1, 4): a(f"v_cmp_eq_u32 vcc, {i}, v6\nv_cndmask_b32 v{SQ}, v{SQ}, v{SQ+i}, vcc")
    a(f"""v_mul_f32 v8, {f32hex(1.0/D)}, v{RS}
    v_mul_f32 v9, {f32hex(1.0/D)}, v{SQ}
    v_fma_f32 v9, -v8, v8, v9
    v_max_f32 v9, 0, v9
    v_add_f32 v9, {f32hex(1e-5)}, v9
    v_rsq_f32 v9, v9
    v_lshlrev_b32 v6, 3, v2
    s_lshl_b32 s42, s40, 7
    s_add_u32 s42, s42, {MEAN1}
    s_mov_b64 exec, s[50:51]
    buffer_store_dwordx2 v[8:9], v6, {WS}, s42 offen sc1
    s_mov_b64 exec, -1
    s_mul_i32 s42, s40, {magic(2*MT, 128)}
    s_lshr_b32 s42, s42, 16
    s_mul_i32 s42, s42, 15
    v_add_u32 v16, s42, v1
    s_mov_b64 s[52:53], 0x7fff
    s_branch L_sv_sig""")
    a(f"""L_sv_w:
    s_sub_u32 s40, s40, 128
    s_lshr_b32 s43, s40, 2
    s_and_b32 s44, s40, 3
    s_mul_i32 s42, s44, {8*3840}
    s_lshl_b32 s45, s43, 7
    s_add_u32 s42, s42, s45""")
    self.colsum_issue(srd(SRD_WQKV), 3840, 42, 41, 3, 4, 5, n=20, step=32)
    self.more_srds()
    a(f"""s_mul_i32 s42, s44, {1920*4}
    s_lshl_b32 s45, s43, 8
    s_add_u32 s42, s42, s45
    s_add_u32 s42, s42, {CS1}
    s_waitcnt vmcnt(0)""")
    self.colsum_finish(41, 42, 64)
    a(f"""s_lshr_b32 s42, s43, 1
    v_mul_u32_u24 v16, 15, v1
    v_add_u32 v16, s42, v16
    s_mov_b64 s[52:53], {(1 << NRB) - 1}
    L_sv_sig:""")
    self.poll(0, 1, 10, 11, SRD_DBG)
    self.signal(16, M_S0, 17, mask='s[52:53]')
    self.stamp('svdone')
    a("s_branch L_sv_warm\nL_sv_none:")
    self.more_srds()
    self.poll(0, 1, 10, 11, SRD_DBG)
    a("L_sv_warm:\ns_barrier")
    a(f"v_lshlrev_b32 v2, 7, v1\ns_mul_i32 s40, s{sWAVE}, {NS}\ns_add_u32 s40, s40, s54\ns_mov_b32 s59, 0x20000")
    for n in range(opt('svr', 1)):
        a(f"s_mov_b32 s41, s40\ns_mov_b32 s56, s{SRD_WO}\ns_mov_b32 s57, s{SRD_WO+1}\ns_mov_b32 s58, s{SRD_WO+2}")
        for lo, sr in ((100, SRD_WG), (370, SRD_WU), (640, SRD_WD)):
            a(f"""s_sub_u32 s42, s40, {lo}
            s_cmp_ge_u32 s40, {lo}
            s_cselect_b32 s41, s42, s41
            s_cselect_b32 s56, s{sr}, s56
            s_cselect_b32 s57, s{sr+1}, s57
            s_cselect_b32 s58, s{sr+2}, s58""")
        a("s_lshl_b32 s41, s41, 13")
        self.touch("s[56:59]", 2, "s41", n)
        a(f"s_add_u32 s40, s40, {8*NS}")
    a("s_mov_b64 s[62:63], 0\ns_branch L_p1_join")
    a("L_init:")
    self.build_srd(SRD_WS, 82, WS_END)
    self.build_srd(SRD_DBG, 80, 256)
    a(f"""v_mov_b32 v12, 0
    v_mov_b32 v13, 0
    v_mov_b32 v14, 0
    v_mov_b32 v15, 0
    v_lshlrev_b32 v16, 4, v1
    s_lshl_b32 s40, s{sWAVE}, 12""")
    for i in range(4):
        a(f"buffer_store_dwordx4 v[12:15], v16, {WS}, s40 offen offset:{1024*i} sc1")
    a(f"""s_waitcnt vmcnt(0)
    s_barrier
    s_cmp_lg_u32 s{sWAVE}, 0
    s_cbranch_scc1 L_init_back
    v_mov_b32 v13, 1
    s_mov_b64 exec, 1
    buffer_store_dword v13, v12, {srd(SRD_DBG)}, 0 offen sc1
    s_mov_b64 exec, -1
    s_branch L_init_back""")

PK1 = 100
def p1(self):
    a = self.a
    R = opt('r1', 4); LA = R - 1
    T = T1
    self.vm = VM(); self.nbar = 0
    B0 = opt('b0', 1)
    def dma(st):
        slot = st % R
        if opt('rot', 1) and B0 <= st < B0 + 8:
            blk = B0 + 4 * ((st - B0) >> 2)
            a(f"s_add_u32 s46, s43, {st}\ns_and_b32 s46, s46, 3\ns_add_u32 s46, s46, {blk}")
        else: a(f"s_mov_b32 s46, {st}")
        a(f"""s_lshl_b32 s48, s46, 7
        s_add_u32 s48, s48, s44
        s_mul_i32 s49, s46, {64*3840}
        s_add_u32 s49, s49, s45""")
        for i in range(MT):
            a(f"s_add_u32 m0, s47, {slot*SLOT + 4096*i}")
            self.vmem(f"buffer_load_dwordx4 v4, {srd(SRD_X)}, s48 offen lds", ('p1', st))
            if i < MT - 1: a(f"s_add_u32 s48, s48, {32*1280}")
        a(f"s_add_u32 m0, s50, {slot*SLOT + XB}")
        for i in range(4):
            self.vmem(f"buffer_load_dwordx4 v{6+i}, {srd(SRD_WQKV)}, s49 offen offset:{1024*i} lds", ('p1', st))
    dma(0)
    self.more_srds()
    issued = 1
    a(f"""s_mul_i32 s52, s40, 15
    s_add_u32 s52, s52, s41
    s_lshl_b32 s52, s52, 7
    s_cmp_eq_u32 s40, {NRB-1}
    s_cselect_b32 s53, {128 - 2*MT*(NRB-1) + 8}, {2*MT + 8}
    v_mov_b32 v12, 0""")
    if opt('i2', 1): dma(1); issued = 2
    MBS = opt('mbs', 6)
    for st in range(10):
        self.wait_vm(('p1', st))
        if st == MBS + 2:
            self.wait_vm('mb')
            a("v_cmp_ne_u32 vcc, s53, v14\ns_cbranch_vccz L_p1_s0ok")
            keep = list(self.vm.ops)
            self.poll("s52", "s53", 10, 11)
            self.vm.ops = keep + ['t'] * 4
            a(f"""L_p1_s0ok:
            v_lshlrev_b32 v10, 3, v1
            s_mul_i32 s48, s40, {BM*8}
            s_lshl_b32 s49, s{sHW}, 9
            s_add_u32 s48, s48, s49
            s_add_u32 s48, s48, {MEAN1}
            s_lshl_b32 s49, s41, 9
            s_add_u32 s49, s49, {CS1}
            s_cmp_eq_u32 s{sHW}, 3
            s_cselect_b32 s48, s49, s48
            s_cselect_b32 s49, {1920*4}, 0""")
            for q in range(4): a(f"buffer_load_dwordx2 {vr(16+2*q,2)}, v10, {WS}, s48 offen sc1\ns_add_u32 s48, s48, s49")
        self.bar()
        self.sstamp(f'hb{st}')
        if st == 2: self.vmem(f"buffer_load_dword v13, v12, {srd(SRD_DBG)}, 0 offen sc1", 'rdy')
        if st == MBS:
            L = a.newlabel('Ls0')
            self.wait_vm('rdy')
            a(f"v_cmp_ne_u32 vcc, 1, v13\ns_cbranch_vccz {L}r")
            keep = list(self.vm.ops)
            self.poll(0, 1, 10, 11, SRD_DBG)
            self.vm.ops = keep
            a(f"{L}r:")
            self.vmem(f"buffer_load_dword v14, v12, {WS}, s52 offen sc1", 'mb')
        n = 0
        while issued < min(st + LA + 1, 10) and n < (1 if st < opt('ramp', 1) else 2):
            dma(issued); issued += 1; n += 1
    assert issued == 10
    c = (20 ** -0.5) * LOG2E
    a(f"""s_cmp_lt_u32 s41, 5
    s_cselect_b32 s49, {f32hex(c)}, 1.0
    s_lshl_b32 s48, s{sHW}, 9
    s_add_u32 s48, s48, {T}
    v_add_u32 v10, s48, v10
    s_waitcnt vmcnt(0)
    s_cmp_eq_u32 s{sHW}, 3
    s_cbranch_scc1 L_p1_tcs
    v_mul_f32 v17, s49, v17
    s_branch L_p1_tdone
    L_p1_tcs:
    v_pk_add_f32 v[16:17], v[16:17], v[18:19]
    v_pk_add_f32 v[20:21], v[20:21], v[22:23]
    v_pk_add_f32 v[16:17], v[16:17], v[20:21]
    L_p1_tdone:
    ds_write_b64 v10, v[16:17]
    s_waitcnt lgkmcnt(0)""")
    self.bar()
    self.sdump(5)
    a("s_mov_b64 s[62:63], 0\ns_branch L_p1_join")
    nb_h = self.nbar
    self.vm = VM(); self.nbar = 0
    a('L_p1_c:')
    first_srds(self)
    self.more_srds()
    FS = 4 * MT + 16
    FR = 140 - 2 * FS if MT <= 5 else 60
    ACC = FR + 2 * FS
    XA, WA = 16, 18
    assert ACC + 16 * MT <= 220 or MT > 5
    a(f"""s_and_b32 s48, s{sWAVE}, 1
    s_lshr_b32 s49, s{sWAVE}, 1
    v_and_b32 v2, 15, v1
    v_lshrrev_b32 v3, 4, v1
    v_lshlrev_b32 v4, 7, v2
    v_bfe_u32 v5, v1, 1, 3
    v_xor_b32 v5, v5, v3
    v_lshl_add_u32 v4, v5, 4, v4
    s_mul_i32 s50, s48, {2048*MT}
    v_add_u32 v{XA}, s50, v4
    v_xor_b32 v{XA+1}, 64, v{XA}
    s_lshl_b32 s50, s49, 2
    v_lshlrev_b32 v{WA}, 11, v3
    v_bfe_u32 v5, v1, 2, 2
    v_lshl_add_u32 v{WA}, v5, 8, v{WA}
    v_and_b32 v5, 3, v1
    v_lshl_add_u32 v{WA}, v5, 3, v{WA}
    v_bfe_u32 v5, v1, 2, 3
    v_xor_b32 v5, s50, v5
    v_lshl_add_u32 v{WA}, v5, 5, v{WA}
    v_add_u32 v{WA}, {XB}, v{WA}""")
    for nu in range(1, 4): a(f"v_xor_b32 v{WA+nu}, {32*nu}, v{WA}")
    a(f"""s_mul_i32 s50, s48, {128*MT}
    s_add_u32 s50, s50, {T}
    v_lshl_add_u32 v22, v2, 3, s50
    s_lshl_b32 s50, s49, 8
    s_add_u32 s50, s50, {T+1536}
    v_lshl_add_u32 v23, v3, 4, s50
    v_and_b32 v4, 1, v3
    v_lshlrev_b32 v222, 16, v4
    v_lshrrev_b32 v4, 1, v3
    v_lshl_add_u32 v222, v4, 15, v222
    v_lshl_add_u32 v222, v2, 4, v222""")
    a(f"""s_cmp_ge_u32 s41, 10
    s_cselect_b32 s50, 10, 5
    s_cmp_ge_u32 s41, 5
    s_cselect_b32 s50, s50, 0
    s_sub_u32 s51, s41, s50
    s_mul_i32 s52, s51, 6
    v_add_u32 v5, s52, v2
    s_lshl_b32 s51, s51, 4
    v_mul_u32_u24 v4, 5, v5
    v_lshrrev_b32 v4, 1, v4
    v_add_u32 v4, 2, v4
    v_subrev_u32 v4, s51, v4
    s_mul_i32 s52, s40, {MT}
    s_add_u32 s53, s52, {MT-1}
    s_lshr_b32 s52, s52, 3
    s_lshr_b32 s53, s53, 3
    s_cmp_lg_u32 s50, 0
    s_addc_u32 s53, s53, 0
    s_min_u32 s53, s53, 7
    s_sub_u32 s53, s53, s52
    v_cmp_gt_u32 vcc, 18, v4
    v_cmp_ge_u32 s[50:51], s53, v3
    s_and_b64 vcc, vcc, s[50:51]
    v_add_u32 v4, s52, v3
    v_lshl_add_u32 v247, v4, 5, v5""")
    self.sigprep(0)
    a(f"""s_lshl_b32 s50, s41, 1
    s_add_u32 s50, s50, s49
    s_lshl_b32 s50, s50, 18
    s_lshl_b32 s51, s40, 1
    s_add_u32 s51, s51, s48
    s_mul_i32 s51, s51, {MT}
    s_sub_u32 s99, 128, s51
    s_lshl_b32 s51, s51, 8
    s_add_u32 s50, s50, s51
    s_add_u32 s50, s50, {QKV}
    s_cmp_ge_u32 s41, 10
    s_cselect_b32 s51, {4*(M_S1V-M_S1)}, 0
    v_add_u32 v247, s51, v247
    s_cselect_b32 s98, s50, 0
    s_cselect_b32 s50, {OOB//2}, s50
    s_cselect_b32 s0, 0, 1
    s_mov_b32 s52, {2*SLOT}""")
    for i in range(16 * MT): a(f"v_mov_b32 v{ACC+i}, 0")
    lg = LG(a)
    NR = 8 + MT; NM = 4 * MT
    def reads(g):
        j = g & 1
        off = ((g >> 1) & 1) * SLOT
        fb = FR + FS * (g & 1)
        W = lambda i: [(f"ds_read_b64_tr_b16 {vr(fb+4*MT+4*i, 2)}, v{WA+i} offset:{off+32*j*256}", None),
                       (f"ds_read_b64_tr_b16 {vr(fb+4*MT+2+4*i, 2)}, v{WA+i} offset:{off+(32*j+4)*256}", ('W', g & 3, i))]
        X = lambda i: [(f"ds_read_b128 {vr(fb+4*i)}, v{XA+j} offset:{off+2048*i}", ('X', g & 3, i))]
        return W(0) + X(0) + W(1) + W(2) + W(3) + sum([X(i) for i in range(1, MT)], [])
    assert R == 4
    self.stamp('preb0')
    self.bar()
    self.stamp('b0')
    for r in reads(0): lg.op(*r)
    MR, CSR = 24, 36
    for last in (False, True):
        if not last: a("s_mov_b32 s51, 4\n.p2align 3\nL_p1_loop:")
        lg.done = lg.n - NR
        for g in range(4):
            fb = FR + FS * (g & 1)
            fin = last and g == 3
            nxt = [] if g & 1 else reads(g + 1)
            k = 0
            flips = [XA, XA+1, WA, WA+1, WA+2, WA+3]
            for n in range(NM):
                mu, nu = n >> 2, n & 3
                if (g & 1) and n == (8 if fin else 4):
                    lg.drain(); a("s_barrier")
                    if not fin: nxt = reads(g + 1)
                    else:
                        nxt = [(f"ds_read_b64 {vr(MR+2*q, 2)}, v22 offset:{128*q}", None) for q in range(MT)]
                        nxt += [(f"ds_read_b128 {vr(CSR+4*e)}, v23 offset:{64*e}", None) for e in range(4)]
                ac = ACC + 16 * mu + 4 * nu
                if n == 0: lg.need(('W', g, 3))
                if n == 4: lg.need(('X', g, MT - 1))
                a(f"v_mfma_f32_16x16x32_bf16 {vr(ac)}, {vr(fb+4*MT+4*nu)}, {vr(fb+4*mu)}, {vr(ac)}")
                if k < len(nxt): lg.op(*nxt[k]); k += 1
                elif g == 2 and not last:
                    for _ in range(2):
                        if flips: r = flips.pop(); a(f"v_add_u32 v{r}, s52, v{r}")
                if g == 3 and n == NM - 2 and not last: a("s_sub_u32 s52, 0, s52\ns_sub_u32 s51, s51, 1\ns_cmp_lg_u32 s51, 0")
            assert k == len(nxt) and (g != 2 or last or not flips)
        if not last: a("s_cbranch_scc1 L_p1_loop")
    self.nbar += 10
    lg.drain()
    self.stamp('p1loop')
    a(".p2align 3")
    for mu in range(MT):
        a(f"s_cmp_gt_i32 s99, {mu}\ns_cselect_b32 s51, s50, {OOB//2}\ns_add_u32 s53, s51, 131072\ns_nop 0")
        for p in range(2):
            pk = PK1 + 8 * mu + 4 * p
            P = [(ACC + 16 * mu + 8 * p + 2 * h, CSR + 8 * p + 2 * h) for h in range(4)]
            for ac, cs in P: a(f"v_pk_fma_f32 {vr(ac,2)}, {vr(cs,2)}, {vr(MR+2*mu,2)}, {vr(ac,2)} op_sel_hi:[1,0,1] neg_lo:[0,1,0] neg_hi:[0,1,0]")
            for ac, cs in P: a(f"v_pk_mul_f32 {vr(ac,2)}, {vr(ac,2)}, {vr(MR+2*mu,2)} op_sel:[0,1] op_sel_hi:[1,1]")
            for h in (0, 2, 1, 3): a(f"v_cvt_pk_bf16_f32 v{pk+h}, v{P[h][0]}, v{P[h][0]+1}")
            a(f"v_permlane16_swap_b32 v{pk}, v{pk+2}\ns_nop 0\nv_permlane16_swap_b32 v{pk+1}, v{pk+3}\ns_nop 0")
            a(f"buffer_store_dwordx4 {vr(pk)}, v222, {WS}, s{53 if p else 51} offen offset:{256*mu} sc1")
    assert PK1 + 8 * MT <= ACC
    self.stamp('p1epi')
    assert self.nbar == nb_h, (self.nbar, nb_h)
    a("L_p1_join:")
    a.settle(3)

def p1_vstores(self):
    a = self.a
    a("s_cmp_eq_u32 s98, 0\ns_cbranch_scc1 L_p1_nov")
    for mu in range(MT):
        a(f"s_cmp_gt_i32 s99, {mu}\ns_cselect_b32 s57, s98, {OOB//2}")
        a(f"buffer_store_dwordx4 {vr(PK1+8*mu)}, v222, {WS}, s57 offen offset:{256*mu} sc1\ns_add_u32 s57, s57, 131072")
        a(f"buffer_store_dwordx4 {vr(PK1+8*mu+4)}, v222, {WS}, s57 offen offset:{256*mu} sc1")
    a("L_p1_nov:")

def s1_expect(self):
    self.a(f"""s_lshl_b32 s47, s41, 3
    s_add_u32 s48, s47, 7
    s_mul_i32 s48, s48, {MAG}
    s_lshr_b32 s48, s48, 16
    s_add_u32 s48, s48, 1
    s_mul_i32 s49, s47, {MAG}
    s_lshr_b32 s49, s49, 16
    s_sub_u32 s49, s48, s49
    s_sub_u32 s47, s47, 8
    s_max_i32 s47, s47, 0
    s_mul_i32 s47, s47, {MAG}
    s_lshr_b32 s47, s47, 16
    s_sub_u32 s48, s48, s47
    s_add_u32 s49, s49, s48
    s_mul_i32 s48, s48, s46
    s_mul_i32 s46, s49, s46""")
```

```python
import sys, math, struct
from asmlib import Asm

NAME = "sequential_preLN__sliding_block__glu_gated_glu__prompt"
S, D, F = 2048, 640, 1728
MB = 0
M_S0, M_S1, M_S2, M_S3, M_S4, M_CS4, M_S1V, M_S4B = range(8)
MEAN1 = 0x10000
RSTD1 = 0x12000
CS1 = 0x14000
CS4 = 0x1C000
ST2 = 0x30000
TS = 0x90000
QKV = 0x100000
OO = 0x900000
HH = 0xC00000
HP = 0x1000000
WS_END = 0x1700000
LDS_BYTES = 163840
OOB = 0x7ffffff0
LOG2E = math.log2(math.e)

sWAVE = 3
SRD_WS, SRD_X, SRD_WQKV, SRD_WO, SRD_WG, SRD_WU, SRD_WD, SRD_OUT, SRD_DBG = [4 + 4 * i for i in range(9)]
def srd(b): return f"s[{b}:{b+3}]"
WS = srd(SRD_WS)
sBOUND = 96
sHW = 97
def vr(b, n=4): return f"v[{b}:{b+n-1}]"
def f32hex(x): return "0x%08x" % struct.unpack('<I', struct.pack('<f', x))[0]

OPT = dict(a.split('=') for a in sys.argv[1:] if '=' in a)
def opt(k, d): return type(d)(OPT.get(k, d))

INITWG = opt('initwg', 230 if opt('p1n', 0) else 5)
KALIGN = 12 if opt('iw', 0) else 8

class VM:
    def __init__(self): self.ops = []
    def add(self, tag): self.ops.append(tag)
    def count_after(self, tag):
        idx = max(i for i, t in enumerate(self.ops) if t == tag)
        return len(self.ops) - 1 - idx
    def clear(self): self.ops = []

class LG:
    def __init__(self, a): self.a = a; self.n = 0; self.pos = {}; self.done = 0
    def op(self, text, tag=None):
        self.a(text); self.n += 1
        if tag is not None: self.pos[tag] = self.n
    def need(self, *tags):
        p = max(self.pos[t] for t in tags)
        if p > self.done:
            c = min(self.n - p, 15)
            self.a(f"s_waitcnt lgkmcnt({c})")
            self.done = self.n - c
    def drain(self):
        if self.done < self.n:
            self.a("s_waitcnt lgkmcnt(0)"); self.done = self.n

class Gen:
    def __init__(self, upto=5, stamps=False):
        self.a = Asm()
        self.vm = VM()
        self.upto = upto
        self.stamps = stamps
        self.tail = []
        self.stamp_names = []
        self.nbar = 0
        self.spend = []
        self.sbase = 80

    def vmem(self, text, tag):
        self.a(text); self.vm.add(tag)
    def wait_vm(self, tag):
        n = self.vm.count_after(tag)
        assert n <= 63, n
        self.a(f"s_waitcnt vmcnt({n})")
    def bar(self):
        self.a("s_barrier"); self.nbar += 1
    def build_srd(self, b, ptr, nbytes):
        self.a(f"s_mov_b32 s{b}, s{ptr}\ns_mov_b32 s{b+1}, s{ptr+1}\ns_mov_b32 s{b+2}, {nbytes}\ns_mov_b32 s{b+3}, 0x20000")
    def stamp(self, name, wave=0):
        if opt('dly', '') == name:
            self.a("s_waitcnt lgkmcnt(0)\ns_memrealtime s[100:101]\ns_waitcnt lgkmcnt(0)\ns_mov_b32 s1, s100")
        if opt('dly', '') and name == 'end':
            if opt('dlyx', -1) >= 0: self.a(f"s_and_b32 s100, s2, 7\ns_cmp_lg_u32 s100, {opt('dlyx', -1)}\ns_cbranch_scc1 L_end")
            self.a("L_dly:\ns_memrealtime s[100:101]\ns_waitcnt lgkmcnt(0)\ns_sub_u32 s100, s100, s1\ns_cmp_lt_u32 s100, 4000\ns_cbranch_scc1 L_dly")
        if not self.stamps: return
        a = self.a
        if name in self.stamp_names: i = self.stamp_names.index(name)
        else:
            i = len(self.stamp_names); self.stamp_names.append(name)
        assert i < 64
        L = a.newlabel('Lst')
        a(f"""s_cmp_lg_u32 s{sWAVE}, {wave}
        s_cbranch_scc1 {L}
        s_memrealtime s[100:101]
        v_mov_b32 v255, s2
        v_lshlrev_b32 v255, 9, v255
        v_add_u32 v255, {TS + 8*i}, v255
        s_waitcnt lgkmcnt(0)
        v_mov_b32 v252, s100
        s_memtime s[100:101]
        s_waitcnt lgkmcnt(0)
        v_mov_b32 v253, s100
        s_mov_b64 exec, 1
        buffer_store_dwordx2 v[252:253], v255, {WS}, 0 offen
        s_mov_b64 exec, -1
        {L}:""")

    def sstamp(self, name):
        if not self.stamps: return
        k = len(self.spend); assert k < 16
        self.spend.append(name)
        self.a(f"s_memtime s[100:101]\ns_waitcnt lgkmcnt(0)\ns_mov_b32 s{self.sbase+k}, s100")
    def sdump(self, wave):
        if not self.stamps: return
        a = self.a
        L = a.newlabel('Lsd')
        a(f"""s_cmp_lg_u32 s{sWAVE}, {wave}
        s_cbranch_scc1 {L}
        v_mov_b32 v255, s2
        v_lshlrev_b32 v255, 9, v255
        v_add_u32 v255, {TS}, v255
        v_mov_b32 v252, 0
        s_mov_b64 exec, 1""")
        for k, name in enumerate(self.spend):
            i = len(self.stamp_names); self.stamp_names.append(name); assert i < 64
            a(f"v_mov_b32 v253, s{self.sbase+k}\nbuffer_store_dwordx2 v[252:253], v255, {WS}, 0 offen offset:{8*i}")
        a(f"s_mov_b64 exec, -1\n{L}:")
        self.spend = []

    def wave_sum(self, vs, sdsts):
        for mod in ("quad_perm:[1,0,3,2] row_mask:0xf", "quad_perm:[2,3,0,1] row_mask:0xf", "row_half_mirror row_mask:0xf",
                    "row_mirror row_mask:0xf", "row_bcast:15 row_mask:0xa", "row_bcast:31 row_mask:0xc"):
            for v in vs:
                self.a(f"v_add_f32_dpp v{v}, v{v}, v{v} {mod} bank_mask:0xf")
        for v, s in zip(vs, sdsts):
            self.a(f"v_readlane_b32 s{s}, v{v}, 63")

    def poll(self, soff, expect, va, vt, srdb=SRD_WS):
        a = self.a
        L = a.newlabel('Lpoll'); Ld = L + 'd'
        a(f"""v_mov_b32 v{va}, 0
        {L}:
        buffer_load_dword v{vt}, v{va}, {srd(srdb)}, {soff} offen sc1
        s_waitcnt vmcnt(0)
        v_cmp_ne_u32 vcc, {expect}, v{vt}
        s_cbranch_vccz {Ld}
        s_sleep 1
        s_sub_u32 s{sBOUND}, s{sBOUND}, 1
        s_cbranch_scc0 {L}
        s_mov_b32 s{sBOUND}, 0
        {Ld}:""")
        self.vm.clear()

    def pollw(self, soff, expect, va, vt, depth=1):
        a = self.a
        L = a.newlabel('Lpoll'); Ld = L + 'd'
        a(f"v_mov_b32 v{va}, 0\ns_mov_b64 exec, 1")
        pl = lambda k: a(f"v_mov_b32 v{vt+k}, 0\nbuffer_atomic_add v{vt+k}, v{va}, {WS}, {soff} offen sc0 sc1")
        for k in range(depth - 1):
            pl(k); a("s_sleep 3")
        a(f"{L}:")
        for k in range(depth):
            pl((k + depth - 1) % depth)
            a(f"s_waitcnt vmcnt({depth-1})\nv_cmp_ne_u32 vcc, {expect}, v{vt+k}\ns_cbranch_vccz {Ld}")
        a(f"""s_sub_u32 s{sBOUND}, s{sBOUND}, 1
        s_cbranch_scc0 {L}
        s_mov_b32 s{sBOUND}, 0
        {Ld}:
        s_mov_b64 exec, -1""")

    def poll1(self, wave, soff, expect, va, vt):
        a = self.a
        L = a.newlabel('Lp1')
        a(f"s_cmp_lg_u32 s{sWAVE}, {wave}\ns_cbranch_scc1 {L}")
        self.pollw(soff, expect, va, 248, depth=opt('pd', 3))
        a(f"{L}:")
        self.bar()

    def signal(self, vline, dword, vt, mask='vcc'):
        self.a(f"""v_lshlrev_b32 v{vline}, 7, v{vline}
        v_mov_b32 v{vt}, 1
        s_mov_b64 exec, {mask}
        buffer_atomic_add v{vt}, v{vline}, {WS}, 0 offen offset:{4*dword} sc1
        s_mov_b64 exec, -1""")

    def w128_dma_voff(self, pitch, vE, vt, vt2):
        self.a(f"""v_lshrrev_b32 v{vt}, 3, v1
        v_mul_u32_u24 v{vE}, {pitch}, v{vt}
        v_and_b32 v{vt}, 2, v{vt}
        v_and_b32 v{vt2}, 7, v1
        v_xor_b32 v{vt}, v{vt}, v{vt2}
        v_lshl_add_u32 v{vE}, v{vt}, 4, v{vE}""")

    def colsum_issue(self, srdb, pitch, s_goff, s_lds, vE, vO, vt, n=20, step=8):
        a = self.a
        self.w128_dma_voff(pitch, vE, vt, vO)
        a(f"v_xor_b32 v{vO}, 64, v{vE}")
        for i in range(n):
            a(f"s_add_u32 m0, s{s_lds}, {1024*i}")
            self.vmem(f"buffer_load_dwordx4 v{vO if i & 1 else vE}, {srdb}, s{s_goff} offen lds", 'cs')
            if i < n - 1: a(f"s_add_u32 s{s_goff}, s{s_goff}, {step*pitch}")

    def w128_read_addr(self, vb, vt):
        self.a(f"""v_lshrrev_b32 v{vt}, 4, v1
        v_lshlrev_b32 v{vb}, 10, v{vt}
        v_bfe_u32 v{vt}, v1, 2, 2
        v_lshl_add_u32 v{vb}, v{vt}, 7, v{vb}
        v_and_b32 v{vt}, 3, v1
        v_lshl_add_u32 v{vb}, v{vt}, 3, v{vb}
        v_bfe_u32 v{vt}, v1, 3, 2
        v_lshl_add_u32 v{vb}, v{vt}, 5, v{vb}""")

    def colsum_finish(self, s_lds, s_out, vbase, ks=5):
        a = self.a
        vb = vbase; vones = vbase + 4; vacc = vbase + 8; vf = vbase + 24
        self.w128_read_addr(vb, vones)
        a(f"v_add_u32 v{vb}, s{s_lds}, v{vb}")
        for nu in range(1, 4): a(f"v_xor_b32 v{vb+nu}, {32*nu}, v{vb}")
        for i in range(4): a(f"v_mov_b32 v{vones+i}, 0x3f803f80")
        for s in range(ks):
            fb = vf + 16 * (s & 1)
            for nu in range(4):
                for t in range(2):
                    a(f"ds_read_b64_tr_b16 {vr(fb+4*nu+2*t, 2)}, v{vb+nu} offset:{(32*s+4*t)*128}")
            a("s_waitcnt lgkmcnt(0)")
            for nu in range(4):
                c = "0" if s == 0 else vr(vacc + 4 * nu)
                a(f"v_mfma_f32_16x16x32_bf16 {vr(vacc+4*nu)}, {vr(vones)}, {vr(fb+4*nu)}, {c}")
        a(f"""v_cmp_lt_u32 vcc, 15, v1
        v_cndmask_b32 v{vacc}, v{vacc}, v{vacc+4}, vcc
        v_cmp_lt_u32 vcc, 31, v1
        v_cndmask_b32 v{vacc}, v{vacc}, v{vacc+8}, vcc
        v_cmp_lt_u32 vcc, 47, v1
        v_cndmask_b32 v{vacc}, v{vacc}, v{vacc+12}, vcc
        v_lshlrev_b32 v{vb}, 2, v1""")
        self.vmem(f"buffer_store_dword v{vacc}, v{vb}, {WS}, s{s_out} offen sc1", 'csst')

    def row_stats(self, nrows):
        a = self.a
        a(f"""v_lshlrev_b32 v8, 4, v1
        v_lshlrev_b32 v9, 2, v1
        s_mul_i32 s45, s44, 1280""")
        for r in range(nrows):
            self.vmem(f"buffer_load_dwordx4 {vr(12+8*r)}, v8, {srd(SRD_X)}, s45 offen offset:{1280*r} {opt('xpol', '')}", 'stat')
            self.vmem(f"buffer_load_dword v{16+8*r}, v9, {srd(SRD_X)}, s45 offen offset:{1280*r+1024} {opt('xpol', '')}", 'stat')

    def row_stats_finish(self, nrows):
        a = self.a
        self.wait_vm('stat')
        E = lambda r, i: 32 + 12 * r + i
        for r in range(nrows):
            for i in range(5):
                a(f"v_lshlrev_b32 v{E(r,2*i)}, 16, v{12+8*r+i}\nv_and_b32 v{E(r,2*i+1)}, 0xffff0000, v{12+8*r+i}")
        acc = [12 + 8 * r for r in range(nrows)]
        for r in range(nrows): a(f"v_add_f32 v{acc[r]}, v{E(r,0)}, v{E(r,1)}")
        for i in range(2, 10):
            for r in range(nrows): a(f"v_add_f32 v{acc[r]}, v{acc[r]}, v{E(r,i)}")
        ss = [46 + r for r in range(nrows)]
        self.wave_sum(acc, ss)
        a(f"v_mov_b32 v10, {f32hex(1.0/D)}")
        for r in range(nrows): a(f"v_mul_f32 v{acc[r]+1}, s{ss[r]}, v10")
        for i in range(10):
            for r in range(nrows): a(f"v_sub_f32 v{E(r,i)}, v{E(r,i)}, v{acc[r]+1}")
        for r in range(nrows): a(f"v_mul_f32 v{acc[r]}, v{E(r,0)}, v{E(r,0)}")
        for i in range(1, 10):
            for r in range(nrows): a(f"v_fmac_f32 v{acc[r]}, v{E(r,i)}, v{E(r,i)}")
        self.wave_sum(acc, ss)
        for r in range(nrows):
            a(f"v_mov_b32 v{acc[r]+2}, {f32hex(1e-5)}\nv_fmac_f32 v{acc[r]+2}, s{ss[r]}, v10\nv_rsq_f32 v{acc[r]+2}, v{acc[r]+2}")
        a(f"""s_lshl_b32 s45, s44, 2
        s_add_u32 s45, s45, {MEAN1}
        s_add_u32 s46, s45, {RSTD1-MEAN1}
        v_mov_b32 v10, 0
        s_mov_b64 exec, 1""")
        for r in range(nrows):
            self.vmem(f"buffer_store_dword v{acc[r]+1}, v10, {WS}, s45 offen offset:{4*r} sc1", 'statst')
            self.vmem(f"buffer_store_dword v{acc[r]+2}, v10, {WS}, s46 offen offset:{4*r} sc1", 'statst')
        a("s_mov_b64 exec, -1")

    def sig_rowstats(self):
        a = self.a
        a("""s_lshr_b32 s53, s55, 4
        s_mul_i32 s53, s53, 15
        v_add_u32 v10, s53, v1
        v_cmp_gt_u32 vcc, 15, v1""")
        self.signal(10, M_S0, 11)

    def p0(self):
        a = self.a
        a(f"""s_cmp_ge_u32 s2, 256
        s_cbranch_scc1 L_end
        s_load_dwordx16 s[64:79], s[0:1], 0
        s_load_dwordx4 s[80:83], s[0:1], 64
        s_cmp_ge_u32 s2, 16
        s_cbranch_scc1 L_nocode
        s_cmp_eq_u32 s2, {INITWG}
        s_cbranch_scc1 L_nocode
        s_getpc_b64 s[40:41]
        L_pc:
        s_sub_u32 s40, s40, L_pc-{NAME}_kernel
        s_subb_u32 s41, s41, 0
        s_and_b32 s42, s2, 8
        s_lshl_b32 s42, s42, 5
        v_and_b32 v2, 256, v0
        v_cmp_ne_u32 vcc, s42, v2
        s_cmp_eq_u32 s2, {INITWG + 8}
        s_cselect_b64 vcc, -1, vcc
        s_cbranch_vccz L_nocode
        v_lshlrev_b32 v2, 7, v0
        v_min_u32 v2, L_code_end-{NAME}_kernel-4, v2
        global_load_dword v250, v2, s[40:41]
        L_nocode:
        v_and_b32 v1, 63, v0
        v_lshrrev_b32 v2, 6, v0
        v_readfirstlane_b32 s{sWAVE}, v2
        v_mov_b32 v247, 0
        v_mov_b32 v78, 0
        s_mov_b32 s98, 0
        s_mov_b32 s{sBOUND}, 0x100000""")
        a(f"""s_lshr_b32 s40, s2, 3
        s_sub_u32 s40, s40, 2
        s_and_b32 s41, s2, 1
        s_mul_i32 s41, s41, 30
        s_add_u32 s40, s40, s41
        s_lshr_b32 s41, s40, 2
        s_and_b32 s40, s40, 3
        s_add_u32 s43, s40, s41
        s_mul_i32 s42, s41, 21846
        s_lshr_b32 s42, s42, 16
        s_mul_i32 s41, s41, 5
        s_mul_i32 s44, s42, 14
        s_sub_u32 s41, s41, s44
        s_and_b32 s42, s2, 6
        s_lshl_b32 s42, s42, 1
        s_add_u32 s40, s40, s42
        s_and_b32 s{sHW}, s{sWAVE}, 3""")
        if opt('map1', 0):
            a("""s_lshr_b32 s41, s2, 3
            s_sub_u32 s41, s41, 2
            s_and_b32 s40, s2, 7
            s_lshl_b32 s40, s40, 1
            s_and_b32 s42, s41, 1
            s_add_u32 s40, s40, s42
            s_lshr_b32 s41, s41, 1
            s_add_u32 s43, s40, s41""")
        if opt('stloc', 0): a("s_and_b32 s55, s2, 7\ns_lshl_b32 s55, s55, 5\ns_lshr_b32 s42, s2, 3\ns_add_u32 s55, s55, s42")
        else: a("s_mov_b32 s55, s2")
        a("""v_lshrrev_b32 v10, 3, v1
        v_mul_u32_u24 v2, 1280, v10
        v_lshrrev_b32 v10, 4, v1
        v_and_b32 v11, 7, v1
        v_xor_b32 v11, v11, v10
        v_lshl_add_u32 v2, v11, 4, v2
        v_xor_b32 v3, 64, v2
        v_add_u32 v3, 9216, v3
        v_add_u32 v4, 18432, v2
        v_add_u32 v5, 18432, v3
        v_mul_u32_u24 v6, 3840, v10
        v_lshlrev_b32 v10, 1, v10
        v_and_b32 v11, 15, v1
        v_xor_b32 v11, v11, v10
        v_lshl_add_u32 v6, v11, 4, v6
        v_add_u32 v7, 14336, v6
        v_xor_b32 v8, 128, v6
        v_add_u32 v8, 28672, v8
        v_add_u32 v9, 14336, v8""")
        a(f"""s_lshl_b32 s44, s40, 2
        s_add_u32 s44, s44, s{sHW}
        s_mul_i32 s44, s44, {32*1280}
        s_mul_i32 s45, s{sHW}, {16*3840}
        s_lshl_b32 s46, s41, 8
        s_add_u32 s45, s45, s46
        s_and_b32 s46, s43, 3
        {self.rot1}
        s_lshl_b32 s47, s{sHW}, 12""")
        a("s_waitcnt lgkmcnt(0)")
        self.build_srd(SRD_X, 64, S * D * 2)
        self.build_srd(SRD_WQKV, 66, D * 3 * D * 2)
        if self.stamps or opt('dly', ''):
            self.build_srd(SRD_WS, 82, WS_END)
            self.stamp('start')
        a(f"s_cmp_eq_u32 s2, {INITWG}\ns_cbranch_scc1 L_init\nL_init_back:")
        a(f"s_cmp_ge_u32 s{sWAVE}, 4\ns_cbranch_scc1 L_w47")
        a(f"s_lshl_b32 s44, s55, 2\ns_add_u32 s44, s44, s{sWAVE}\ns_lshl_b32 s44, s44, 1")
        if not opt('searly', 1): a("s_cmp_ge_u32 s2, 16\ns_cbranch_scc1 L_p1_c")
        self.row_stats(2)
        a(f"""s_cmp_lt_u32 s2, 16
        s_cbranch_scc1 L_spare
        s_branch L_p1_c
        L_w47:
        s_cmp_lt_u32 s2, 16
        s_cbranch_scc1 L_spare""")

    def more_srds(self):
        self.build_srd(SRD_WS, 82, WS_END)
        self.build_srd(SRD_DBG, 80, 256)
        self.build_srd(SRD_WO, 68, D * D * 2)
        self.build_srd(SRD_WG, 72, D * F * 2)
        self.build_srd(SRD_WU, 74, D * F * 2)
        self.build_srd(SRD_WD, 76, F * D * 2)
        self.build_srd(SRD_OUT, 78, S * D * 2)
        self.a('s_mov_b32 s0, 0')

    def code_touch(self, tag, sidx, n):
        a = self.a
        a(f"""s_getpc_b64 s[42:43]
        L_pc{tag}:
        s_sub_u32 s42, s42, L_pc{tag}-{NAME}_kernel
        s_subb_u32 s43, s43, 0
        s_lshl_b32 s{sidx}, s{sidx}, 13
        v_lshl_add_u32 v16, v1, 7, s{sidx}""")
        for i in range(n):
            a(f"v_min_u32 v17, L_code_end-{NAME}_kernel-4, v16\nglobal_load_dword v251, v17, s[42:43]\nv_add_u32 v16, 8192, v16")

    def touch(self, srdb, voff, soff, n):
        self.a(f"buffer_load_dword v{248 + n % 4}, v{voff}, {srdb}, {soff} offen")

    def spare_code(self):
        a = self.a
        self.vm = VM()
        a("L_spare:")
        for i in range(4): self.vm.add('stat')
        a(f"""v_lshlrev_b32 v2, 7, v1
        s_lshl_b32 s50, s{sWAVE}, 4
        s_add_u32 s50, s50, s2
        s_lshl_b32 s50, s50, 13
        s_add_u32 s51, s50, {256*3840}""")
        self.more_srds()
        CT = opt('cstail', 0)
        if CT:
            a(f"""s_cmp_gt_u32 s2, {INITWG}
            s_subb_u32 s52, s2, 0
            s_lshl_b32 s53, s52, 1
            s_and_b32 s54, s{sWAVE}, 1
            s_add_u32 s53, s53, s54
            s_lshr_b32 s54, s{sWAVE}, 1
            s_mul_i32 s58, s54, {8*3840}
            s_lshl_b32 s56, s53, 7
            s_add_u32 s58, s58, s56
            s_add_u32 s58, s58, {0 if CT == 2 else 256*3840}
            s_cmp_eq_u32 s2, {INITWG}
            s_cselect_b32 s58, {OOB//2}, s58
            s_mul_i32 s56, s{sWAVE}, 20480""")
            self.colsum_issue(srd(SRD_WQKV), 3840, 58, 56, 3, 4, 5, n=(20 if CT == 2 else 12), step=32)
        elif opt('wtail', 1):
            for n in range(2):
                self.touch(srd(SRD_WQKV), 2, "s51", n); self.vm.add('t')
                if n < 1: a(f"s_add_u32 s51, s51, {128*8192}")
        a(f"s_cmp_ge_u32 s{sWAVE}, 4\ns_cbranch_scc1 L_spare3")
        self.row_stats_finish(2)
        a("L_spare3:")
        if CT:
            a(f"""s_mul_i32 s58, s54, {1920*4}
            s_lshl_b32 s57, s53, 8
            s_add_u32 s58, s58, s57
            s_add_u32 s58, s58, {CS1}
            s_cmp_eq_u32 s2, {INITWG}
            s_cselect_b32 s58, {OOB//2}, s58
            s_waitcnt vmcnt(0)""")
            self.colsum_finish(56, 58, 64, ks=(5 if CT == 2 else 3))
        self.poll(0, 1, 10, 11, SRD_DBG)
        a(f"""s_barrier
        s_cmp_lg_u32 s{sWAVE}, 0
        s_cbranch_scc1 L_spare4""")
        self.sig_rowstats()
        if CT:
            a(f"""s_cmp_eq_u32 s2, {INITWG}
            s_cbranch_scc1 L_spare4
            v_mul_u32_u24 v10, 15, v1
            v_add_u32 v10, s52, v10""")
            self.signal(10, M_S0, 11, mask='0xffff')
        a("L_spare4:")
        if opt('wgw', 1):
            a(f"s_and_b32 s51, s50, {64*8192-1}\ns_cmp_ge_u32 s{sWAVE}, 4\ns_cbranch_scc1 L_spare5")
            self.touch(srd(SRD_WG), 2, "s51", 1)
            a("s_branch L_spare6\nL_spare5:")
            self.touch(srd(SRD_WU), 2, "s51", 1)
            a("L_spare6:")
        if opt('ct1', 0):
            a(f"s_waitcnt vmcnt(0)\ns_mov_b32 s41, s{sWAVE}")
            self.code_touch('a', 41, 1)
        a("s_mov_b64 s[62:63], 0")
        self.stamp('spdone')
        a("s_branch L_p1_join")
        a("L_init:")
        self.build_srd(SRD_WS, 82, WS_END)
        self.build_srd(SRD_DBG, 80, 256)
        a(f"""v_mov_b32 v4, 0
        v_mov_b32 v5, 0
        v_mov_b32 v6, 0
        v_mov_b32 v7, 0
        v_lshlrev_b32 v8, 4, v1
        s_lshl_b32 s40, s{sWAVE}, 12""")
        for i in range(4):
            a(f"buffer_store_dwordx4 v[4:7], v8, {WS}, s40 offen offset:{1024*i} sc1")
        a(f"""s_waitcnt vmcnt(0)
        s_barrier
        s_cmp_lg_u32 s{sWAVE}, 0
        s_cbranch_scc1 L_init_back
        v_mov_b32 v5, 1
        s_mov_b64 exec, 1
        buffer_store_dword v5, v4, {srd(SRD_DBG)}, 0 offen sc1
        s_mov_b64 exec, -1
        s_branch L_init_back""")

    def finish(self, dword, name, mid=None):
        a = self.a
        a("s_waitcnt vmcnt(0)")
        if mid: a(mid + ":")
        self.bar()
        self.stamp(name)
        L = a.newlabel('Lfin')
        a(f"""s_cmp_eq_u64 s[62:63], 0
        s_cbranch_scc1 {L}
        v_mov_b32 v246, 1
        s_mov_b64 exec, s[62:63]
        buffer_atomic_add v246, v247, {WS}, 0 offen offset:{4*dword} sc1
        s_mov_b64 exec, -1
        {L}:""")
        self.vm.clear()

    def sigprep(self, wave):
        self.a(f"""v_lshlrev_b32 v247, 7, v247
        s_cmp_eq_u32 s{sWAVE}, {wave}
        s_cselect_b64 s[62:63], vcc, 0""")

    P1_R, P1_LA, P1_BLK = 4, opt('la1', 3), 4
    rot1 = '' if opt('rot1', 0) else 's_mov_b32 s46, 0'
    P1_TAB = 131072
    CS4_LDS = 131072 + 2048

    def p1(self):
        a = self.a
        R, LA = self.P1_R, self.P1_LA
        T = self.P1_TAB
        def waddr(dst, sblk, vt):
            a(f"""v_lshrrev_b32 v{vt}, 4, v1
            v_lshlrev_b32 v{dst}, 11, v{vt}
            v_bfe_u32 v{vt}, v1, 2, 2
            v_lshl_add_u32 v{dst}, v{vt}, 8, v{dst}
            v_and_b32 v{vt}, 3, v1
            v_lshl_add_u32 v{dst}, v{vt}, 3, v{dst}
            v_bfe_u32 v{vt}, v1, 2, 3
            v_xor_b32 v{vt}, s{sblk}, v{vt}
            v_lshl_add_u32 v{dst}, v{vt}, 5, v{dst}
            v_add_u32 v{dst}, 16384, v{dst}""")
        self.vm = VM(); self.nbar = 0
        def dma(st):
            slot = st % R
            a(f"""s_lshl_b32 s48, s46, 7
            s_add_u32 s48, s48, s44
            s_mul_i32 s49, s46, {64*3840}
            s_add_u32 s49, s49, s45
            s_add_u32 m0, s47, {slot*32768}""")
            for i in range(4):
                self.vmem(f"buffer_load_dwordx4 v{2+i}, {srd(SRD_X)}, s48 offen offset:{1024*i} {opt('xpol', '')} lds", ('p1', st))
            a(f"s_add_u32 m0, s47, {slot*32768+16384}")
            for i in range(4):
                self.vmem(f"buffer_load_dwordx4 v{6+i}, {srd(SRD_WQKV)}, s49 offen offset:{1024*i} lds", ('p1', st))
            B = self.P1_BLK
            if st + 1 < B: a(f"s_add_u32 s46, s46, 1\ns_and_b32 s46, s46, {B-1}")
            elif opt('rot1b', 0) and st + 1 < 8: a(f"s_add_u32 s46, s46, 1\ns_and_b32 s46, s46, 3\ns_or_b32 s46, s46, 4")
            elif opt('rot1b', 0) and st < 9: a(f"s_add_u32 s46, s46, 1\ns_and_b32 s46, s46, 1\ns_or_b32 s46, s46, 8")
            elif st < 9: a(f"s_mov_b32 s46, {st+1}")
        dma(0)
        self.more_srds()
        dma(1)
        a(f"""s_mul_i32 s52, s40, 15
        s_add_u32 s52, s52, s41
        s_lshl_b32 s52, s52, 7
        v_mov_b32 v12, 0""")
        for st in range(10):
            self.wait_vm(('p1', st))
            if st == 8:
                self.wait_vm('mb')
                EX = 17 if opt('cstail', 0) else 16
                a(f"v_cmp_ne_u32 vcc, {EX}, v14\ns_cbranch_vccz L_p1_s0ok")
                keep = list(self.vm.ops)
                self.poll("s52", EX, 10, 11)
                self.vm.ops = keep + ['t'] * 4
                a("L_p1_s0ok:")
                a(f"""v_lshlrev_b32 v10, 2, v1
                s_and_b32 s48, s{sHW}, 1
                s_cmp_ge_u32 s{sHW}, 2
                s_cselect_b32 s49, s41, s40
                s_mov_b32 s50, {MEAN1}
                s_cselect_b32 s50, {CS1}, s50
                s_mov_b32 s51, {RSTD1-MEAN1}
                s_cselect_b32 s51, {1920*4}, s51
                s_lshl_b32 s49, s49, 1
                s_add_u32 s49, s49, s48
                s_lshl_b32 s49, s49, 8
                s_add_u32 s49, s49, s50""")
                for q in range(4):
                    a(f"buffer_load_dword v{16+q}, v10, {WS}, s49 offen sc1\ns_add_u32 s49, s49, s51")
            self.bar()
            if st % 3 == 0: self.sstamp(f'hb{st}')
            if st == opt('hw1', 8):
                a(f"""v_lshlrev_b32 v15, 7, v1
                s_cmp_eq_u32 s{sHW}, 0
                s_cselect_b32 s56, s{SRD_WG}, s{SRD_WO}
                s_cselect_b32 s57, s{SRD_WG+1}, s{SRD_WO+1}
                s_cselect_b32 s58, s{SRD_WG+2}, s{SRD_WO+2}
                s_cselect_b32 s53, 48, -156
                s_mov_b32 s59, 0x20000
                s_add_u32 s53, s2, s53
                s_and_b32 s53, s53, 511
                s_lshl_b32 s53, s53, 13
                s_cmp_ge_u32 s{sHW}, 2
                s_cselect_b32 s53, {OOB//2}, s53""")
                self.touch("s[56:59]", 15, "s53", 3)
                self.vm.add('touch')
            if st == 1:
                self.vmem(f"buffer_load_dword v13, v12, {srd(SRD_DBG)}, 0 offen sc1", 'rdy')
            if st == 3:
                L = a.newlabel('Ls0')
                self.wait_vm('rdy')
                a(f"v_cmp_ne_u32 vcc, 1, v13\ns_cbranch_vccz {L}r")
                keep = list(self.vm.ops)
                self.poll(0, 1, 10, 11, SRD_DBG)
                self.vm.ops = keep
                a(f"{L}r:")
                a(f"""s_lshr_b32 s53, s55, 4
                s_mul_i32 s53, s53, 15
                s_lshl_b32 s54, s{sHW}, 2
                s_add_u32 s53, s53, s54
                v_add_u32 v10, s53, v1
                s_cmp_eq_u32 s{sHW}, 3
                s_cselect_b64 vcc, 7, 15""")
                self.signal(10, M_S0, 11)
                self.vm.add('sig')
            if st == 6:
                self.vmem(f"buffer_load_dword v14, v12, {WS}, s52 offen sc1", 'mb')
            if LA == 3 and st == opt('la1s', 1): dma(st + 2)
            if LA == 3 and st < opt('la1s', 1): dma(st + 2)
            elif st + LA < 10: dma(st + LA)
        c = (20 ** -0.5) * LOG2E
        a(f"""s_cmp_lt_u32 s41, 5
        s_cselect_b32 s49, {f32hex(c)}, 1.0
        s_lshl_b32 s50, s48, 9
        s_add_u32 s50, s50, {T}
        v_lshl_add_u32 v11, v1, 3, s50
        s_lshl_b32 s50, s48, 8
        s_add_u32 s50, s50, {T+1536}
        v_add_u32 v10, s50, v10
        s_waitcnt vmcnt({self.vm.count_after('t')})
        s_cmp_ge_u32 s{sHW}, 2
        s_cbranch_scc1 L_p1_tcs
        v_mul_f32 v17, s49, v17
        ds_write_b64 v11, v[16:17]
        s_branch L_p1_tdone
        L_p1_tcs:
        v_add_f32 v16, v16, v17
        v_add_f32 v18, v18, v19
        v_add_f32 v16, v16, v18
        ds_write_b32 v10, v16
        L_p1_tdone:
        s_waitcnt lgkmcnt(0)""")
        self.bar()
        self.sdump(5)
        if opt('iw', 0):
            a(f"""s_mov_b64 exec, 0
            s_cmp_eq_u32 s{sHW}, 0
            s_cbranch_scc1 L_iw_0
            s_cmp_eq_u32 s{sHW}, 1
            s_cbranch_scc1 L_iw_1
            s_cmp_eq_u32 s{sHW}, 2
            s_cbranch_scc1 L_iw_2
            s_branch L_iw_3
            L_iw_end:
            s_mov_b64 exec, -1""")
        if opt('vpoll', 0): a("s_cmp_ge_u32 s41, 10\ns_cselect_b32 s0, 2, 0")
        a("s_mov_b64 s[62:63], 0\ns_branch L_p1_join")
        nb_h = self.nbar
        self.vm = VM(); self.nbar = 0
        a('L_p1_c:')
        if opt('searly', 1):
            for i in range(4): self.vm.add('stat')
        else: self.row_stats(2)
        self.more_srds()
        XA, WA = 64, 68
        FR = 80
        ACC = 144
        a(f"""s_and_b32 s48, s{sWAVE}, 1
        s_lshr_b32 s49, s{sWAVE}, 1
        v_and_b32 v2, 15, v1
        v_lshrrev_b32 v3, 4, v1
        v_lshlrev_b32 v4, 7, v2
        v_bfe_u32 v5, v1, 1, 3
        v_xor_b32 v5, v5, v3
        v_lshl_add_u32 v4, v5, 4, v4
        s_lshl_b32 s50, s48, 13
        v_add_u32 v{XA}, s50, v4
        v_xor_b32 v{XA+1}, 64, v{XA}
        s_lshl_b32 s50, s49, 1
        s_add_u32 s50, s50, s48
        s_lshl_b32 s50, s50, 1""")
        waddr(WA, 50, 5)
        for nu in range(1, 4): a(f"v_xor_b32 v{WA+nu}, {32*nu}, v{WA}")
        a(f"""s_lshl_b32 s50, s48, 9
        s_add_u32 s50, s50, {T}
        v_lshl_add_u32 v76, v2, 3, s50
        s_lshl_b32 s50, s{sWAVE}, 7
        s_add_u32 s50, s50, {T+1024}
        v_lshl_add_u32 v77, v3, 4, s50
        v_xor_b32 v79, 128, v77
        v_lshrrev_b32 v78, 5, v1
        v_lshlrev_b32 v78, 15, v78
        v_and_b32 v7, 31, v1
        v_lshl_add_u32 v78, v7, 4, v78""")
        a(f"""s_cmp_ge_u32 s41, 10
        s_cselect_b32 s50, 10, 5
        s_cmp_ge_u32 s41, 5
        s_cselect_b32 s50, s50, 0
        s_sub_u32 s51, s41, s50
        s_lshl_b32 s51, s51, 4
        v_mul_u32_u24 v4, 5, v7
        v_lshrrev_b32 v4, 1, v4
        v_add_u32 v4, 2, v4
        v_subrev_u32 v4, s51, v4
        v_cmp_gt_u32 vcc, 18, v4
        s_lshr_b32 s52, s40, 1
        s_cmp_eq_u32 s52, 7
        s_cselect_b32 s50, 0, s50
        s_cmp_eq_u32 s50, 0
        s_cselect_b32 vcc_hi, 0, vcc_hi
        s_lshl_b32 s52, s52, 5
        v_add_u32 v247, s52, v1""")
        self.sigprep(0)
        if opt('vdef', 1):
            a(f"""s_cmp_ge_u32 s41, 10
            s_cselect_b32 s50, {4*(M_S1V-M_S1)}, 0
            v_add_u32 v247, s50, v247
            s_cselect_b32 s50, {OOB//2}, 0
            v_add_u32 v66, s50, v78""")
        else: a("v_mov_b32 v66, v78")
        a(f"""s_lshl_b32 s50, s41, 1
        s_add_u32 s50, s50, s49
        s_lshl_b32 s50, s50, 18
        s_lshl_b32 s51, s40, 1
        s_add_u32 s51, s51, s48
        s_lshl_b32 s51, s51, 10
        s_add_u32 s50, s50, s51
        s_lshl_b32 s51, s48, 17
        s_add_u32 s50, s50, s51
        s_add_u32 s50, s50, {QKV}
        s_lshl_b32 s52, s48, 18
        s_sub_u32 s52, 65536, s52
        s_cmp_ge_u32 s41, {10 if opt('vdef', 1) else 99}
        s_cselect_b32 s98, s50, 0
        s_cselect_b32 s0, 0, {opt('qkfirst', 1)}
        s_mov_b32 s99, s52""")
        CSR = 208; ONES = 72
        for i in range(72): a(f"v_mov_b32 v{ACC+i}, 0")
        for i in range(4): a(f"v_mov_b32 v{ONES+i}, 0x3f803f80")
        self.row_stats_finish(2)
        lg = LG(a)
        def reads(g):
            j = g & 1
            off = ((g >> 1) & 1) * 32768
            fb = FR + 32 * (g & 1)
            W = lambda i: [(f"ds_read_b64_tr_b16 {vr(fb+16+4*i, 2)}, v{WA+i} offset:{off+32*j*256}", None),
                           (f"ds_read_b64_tr_b16 {vr(fb+18+4*i, 2)}, v{WA+i} offset:{off+(32*j+4)*256}", ('W', g & 3, i))]
            X = lambda i: [(f"ds_read_b128 {vr(fb+4*i)}, v{XA+j} offset:{off+2048*i}", ('X', g & 3, i))]
            return W(0) + X(0) + W(1) + W(2) + W(3) + X(1) + X(2) + X(3)
        self.stamp('preb0')
        self.bar()
        self.stamp('b0')
        for r in reads(0): lg.op(*r)
        MR = 80
        csm = lambda fb, e: a(f"v_mfma_f32_16x16x32_bf16 {vr(CSR+4*e)}, {vr(fb+16+4*e)}, {vr(ONES)}, {vr(CSR+4*e)}")
        CT = opt('cstail', 0)
        for sec, (cnt, cs_on) in enumerate([(4, False), (1, False)] if CT == 2 else [(2, True), (2, False), (1, False)] if CT else [(4, True), (1, True)]):
            last = cnt == 1
            if not last: a(f"s_mov_b32 s51, {cnt}\n.p2align 3\nL_p1_loop{sec}:")
            lg.done = lg.n - 12
            for g in range(4):
                fb = FR + 32 * (g & 1)
                fin = last and g == 3
                nxt = [] if g & 1 else reads(g + 1)
                k = 0
                for n in range(16):
                    mu, nu = (n & 3, n >> 2) if fin else (n >> 2, n & 3)
                    if (g & 1) and n == (2 if LA == 2 else 4) and not fin:
                        if LA == 3: lg.drain()
                        if g == 3: a("s_waitcnt vmcnt(0)")
                        a("s_barrier")
                        nxt = reads(g + 1)
                    if fin and n == 0:
                        lg.drain()
                        if cs_on: csm(fb, 0); csm(fb, 1)
                    if fin and n == (1 if CT else 4):
                        a("s_mov_b32 exec_lo, 0x00010001\ns_mov_b32 exec_hi, 0x00010001")
                        for e in range(2): lg.op(f"ds_write_b128 v77, {vr(CSR+4*e)} offset:{64*e}")
                        a("s_mov_b64 exec, -1")
                    if fin and n == (6 if CT else 8):
                        lg.drain(); a("s_barrier")
                        nxt = [(f"ds_read_b64 {vr(MR+2*q, 2)}, v76 offset:{128*q}", None) for q in range(4)]
                        nxt += [(f"ds_read_b128 {vr(CSR+8+4*e)}, v79 offset:{64*e}", None) for e in range(2)]
                        if CT: nxt += [(f"ds_read_b128 {vr(88+4*e)}, v{79 if e >> 1 else 77} offset:{512+64*(e&1)}", None) for e in range(4)]
                    ac = ACC + 16 * mu + 4 * nu
                    if n == 0: lg.need(('W', g, 3))
                    if n == 4: lg.need(('X', g, 3))
                    a(f"v_mfma_f32_16x16x32_bf16 {vr(ac)}, {vr(fb+16+4*nu)}, {vr(fb+4*mu)}, {vr(ac)}")
                    if k < len(nxt): lg.op(*nxt[k]); k += 1
                    elif g == 2 and n >= 12 and not last:
                        for r in ([XA, XA+1], [WA, WA+1], [WA+2], [WA+3])[n - 12]: a(f"v_xor_b32 v{r}, 65536, v{r}")
                    if n in (13, 15) and not fin and cs_on: csm(fb, (n - 13) >> 1)
                    if g == 3 and n == 14 and not last: a("s_sub_u32 s51, s51, 1\ns_cmp_lg_u32 s51, 0")
                assert k == len(nxt)
            if not last: a(f"s_cbranch_scc1 L_p1_loop{sec}")
        self.nbar += 10
        lg.drain()
        self.stamp('p1loop')
        a(".p2align 3")
        if CT:
            for h in range(8): a(f"v_pk_add_f32 {vr(CSR+2*h,2)}, {vr(CSR+2*h,2)}, {vr(88+2*h,2)}")
        PK = 104
        n = 0
        for nu in range(4):
            for p in range(2):
                pk = PK + 4 * (n % 8); n += 1
                tiles = [(ACC + 16 * (2 * p + e) + 4 * nu, 2 * p + e) for e in range(2)]
                for ac, mu in tiles:
                    for h in range(2):
                        a(f"v_pk_fma_f32 {vr(ac+2*h,2)}, {vr(CSR+4*nu+2*h,2)}, {vr(MR+2*mu,2)}, {vr(ac+2*h,2)} op_sel_hi:[1,0,1] neg_lo:[0,1,0] neg_hi:[0,1,0]")
                for ac, mu in tiles:
                    for h in range(2):
                        a(f"v_pk_mul_f32 {vr(ac+2*h,2)}, {vr(ac+2*h,2)}, {vr(MR+2*mu,2)} op_sel:[0,1] op_sel_hi:[1,1]")
                for h in range(2):
                    for e, (ac, mu) in enumerate(tiles):
                        a(f"v_cvt_pk_bf16_f32 v{pk+2*e+h}, v{ac+2*h}, v{ac+2*h+1}")
                a(f"v_permlane16_swap_b32 v{pk}, v{pk+2}\ns_nop 0\nv_permlane16_swap_b32 v{pk+1}, v{pk+3}\ns_nop 0")
                a(f"buffer_store_dwordx4 {vr(pk)}, v66, {WS}, s50 offen offset:{512*p} sc1")
            if nu < 3: a("s_add_u32 s50, s50, s52\ns_nop 0" if nu == 1 else "s_add_u32 s50, s50, 65536")
        self.stamp('p1epi')
        assert self.nbar == nb_h, (self.nbar, nb_h)
        a("L_p1_join:")
        a.settle(3)

    def p1_vstores(self):
        a = self.a
        a("s_cmp_eq_u32 s98, 0\ns_cbranch_scc1 L_p1_nov")
        for nu in range(4):
            for p in range(2):
                a(f"buffer_store_dwordx4 {vr(104+8*nu+4*p)}, v78, {WS}, s98 offen offset:{512*p} sc1")
            if nu < 3: a("s_add_u32 s98, s98, s99" if nu == 1 else "s_add_u32 s98, s98, 65536")
        a("L_p1_nov:")

    def build(self):
        a = self.a
        a.raw(f"; @launch grid=(256,1,1) block=(512,1,1) lds={LDS_BYTES}")
        a.raw(f'.amdgcn_target "amdgcn-amd-amdhsa--gfx950"\n.text\n.globl {NAME}_kernel\n.p2align {KALIGN}\n.type {NAME}_kernel,@function\n{NAME}_kernel:')
        self.p0()
        self.p1()
        if self.upto >= 2: self.p2()
        else: self.p1_vstores(); self.finish(M_S1, 'p1st')
        if self.upto >= 3: self.tail345()
        a("L_end:\ns_endpgm")
        self.spare_code()
        i = 0
        while i < len(self.tail):
            self.tail[i](); i += 1
        a("L_code_end:")
        a.raw(f""".section .rodata,"a"
.p2align 6
.amdhsa_kernel {NAME}_kernel
  .amdhsa_next_free_vgpr 256
  .amdhsa_next_free_sgpr 102
  .amdhsa_accum_offset 256
  .amdhsa_group_segment_fixed_size 0
  .amdhsa_kernarg_size 80
  .amdhsa_user_sgpr_count 2
  .amdhsa_user_sgpr_kernarg_segment_ptr 1
  .amdhsa_system_sgpr_workgroup_id_x 1
.end_amdhsa_kernel""")
        return a.text()

def add_islands(text):
    import subprocess, re, tempfile, os
    lines = text.split('\n')
    tmp = re.sub(r'L_iw_\d+', 'L_iw_end', text)
    d = tempfile.mkdtemp()
    open(d + '/a.s', 'w').write(tmp)
    subprocess.run(['clang', '-x', 'assembler', '-target', 'amdgcn-amd-amdhsa', '-mcpu=gfx950', '-c', d + '/a.s', '-o', d + '/a.o'], check=True)
    dis = subprocess.run(['llvm-objdump', '-d', '--mcpu=gfx950', d + '/a.o'], capture_output=True, text=True).stdout
    ins = [(int(m.group(2), 16), m.group(1)) for m in re.finditer(r'^\t(\S+).*// ([0-9A-F]{12}):', dis, re.M)]
    out = []; k = 0; shift = 0; page = opt('iw0', 2); n = 0; stop = False
    for ln in lines:
        t = ln.strip()
        isins = ln.startswith('    ') and t and not t.startswith(('.', ';'))
        if t == 'L_end:': stop = True
        if isins:
            mn = re.sub(r'_(e32|e64)$', '', t.split()[0])
            while re.sub(r'_(e32|e64)$', '', ins[k][1]) != mn:
                assert ins[k][1] == 's_nop', (ins[k], t)
                k += 1
            addr = ins[k][0] + shift; k += 1
            if addr >= page * 4096 and not stop:
                assert addr < page * 4096 + 32
                out += [f'L_iw_{n}:', f'    s_cbranch_execz L_iw_{n+4}', '    s_nop 0']
                n += 1; shift += 8; page += 1
        out.append(ln)
    res = '\n'.join(out)
    for j in range(n, n + 4): res = res.replace(f's_cbranch_execz L_iw_{j}\n', 's_cbranch_execz L_iw_end\n')
    return res

from phases import install
install(Gen, globals())
if opt('p1n', 0):
    import p1new
    p1new.install(Gen, globals())

if __name__ == '__main__':
    upto = int(sys.argv[1]) if len(sys.argv) > 1 else 5
    out = sys.argv[2] if len(sys.argv) > 2 else 'k.s'
    g = Gen(upto=upto, stamps=('stamps' in sys.argv))
    txt = g.build()
    if opt('iw', 0): txt = add_islands(txt)
    open(out, 'w').write(txt)
    open(out + '.stamps', 'w').write('\n'.join(g.stamp_names))
    print("wrote", out, "pads", g.a.pad_count)
```

```python
import sys, math, struct
from asmlib import Asm

NAME = "sequential_preLN__sliding_block__glu_gated_glu__prompt"
S, D, F = 2048, 640, 1728
MB = 0
M_S0, M_S1, M_S2, M_S3, M_S4, M_CS4, M_S1V, M_S4B = range(8)
MEAN1 = 0x10000
RSTD1 = 0x12000
CS1 = 0x14000
CS4 = 0x1C000
ST2 = 0x30000
TS = 0x90000
QKV = 0x100000
OO = 0x900000
HH = 0xC00000
HP = 0x1000000
WS_END = 0x1700000
LDS_BYTES = 163840
OOB = 0x7ffffff0
LOG2E = math.log2(math.e)

sWAVE = 3
SRD_WS, SRD_X, SRD_WQKV, SRD_WO, SRD_WG, SRD_WU, SRD_WD, SRD_OUT, SRD_DBG = [4 + 4 * i for i in range(9)]
def srd(b): return f"s[{b}:{b+3}]"
WS = srd(SRD_WS)
sBOUND = 96
sHW = 97
def vr(b, n=4): return f"v[{b}:{b+n-1}]"
def f32hex(x): return "0x%08x" % struct.unpack('<I', struct.pack('<f', x))[0]

OPT = dict(a.split('=') for a in sys.argv[1:] if '=' in a)
def opt(k, d): return type(d)(OPT.get(k, d))

INITWG = opt('initwg', 230 if opt('p1n', 0) else 5)
KALIGN = 12 if opt('iw', 0) else 8

class VM:
    def __init__(self): self.ops = []
    def add(self, tag): self.ops.append(tag)
    def count_after(self, tag):
        idx = max(i for i, t in enumerate(self.ops) if t == tag)
        return len(self.ops) - 1 - idx
    def clear(self): self.ops = []

class LG:
    def __init__(self, a): self.a = a; self.n = 0; self.pos = {}; self.done = 0
    def op(self, text, tag=None):
        self.a(text); self.n += 1
        if tag is not None: self.pos[tag] = self.n
    def need(self, *tags):
        p = max(self.pos[t] for t in tags)
        if p > self.done:
            c = min(self.n - p, 15)
            self.a(f"s_waitcnt lgkmcnt({c})")
            self.done = self.n - c
    def drain(self):
        if self.done < self.n:
            self.a("s_waitcnt lgkmcnt(0)"); self.done = self.n

class Gen:
    def __init__(self, upto=5, stamps=False):
        self.a = Asm()
        self.vm = VM()
        self.upto = upto
        self.stamps = stamps
        self.tail = []
        self.stamp_names = []
        self.nbar = 0
        self.spend = []
        self.sbase = 80

    def vmem(self, text, tag):
        self.a(text); self.vm.add(tag)
    def wait_vm(self, tag):
        n = self.vm.count_after(tag)
        assert n <= 63, n
        self.a(f"s_waitcnt vmcnt({n})")
    def bar(self):
        self.a("s_barrier"); self.nbar += 1
    def build_srd(self, b, ptr, nbytes):
        self.a(f"s_mov_b32 s{b}, s{ptr}\ns_mov_b32 s{b+1}, s{ptr+1}\ns_mov_b32 s{b+2}, {nbytes}\ns_mov_b32 s{b+3}, 0x20000")
    def stamp(self, name, wave=0):
        if opt('dly', '') == name:
            self.a("s_waitcnt lgkmcnt(0)\ns_memrealtime s[100:101]\ns_waitcnt lgkmcnt(0)\ns_mov_b32 s1, s100")
        if opt('dly', '') and name == 'end':
            if opt('dlyx', -1) >= 0: self.a(f"s_and_b32 s100, s2, 7\ns_cmp_lg_u32 s100, {opt('dlyx', -1)}\ns_cbranch_scc1 L_end")
            self.a("L_dly:\ns_memrealtime s[100:101]\ns_waitcnt lgkmcnt(0)\ns_sub_u32 s100, s100, s1\ns_cmp_lt_u32 s100, 4000\ns_cbranch_scc1 L_dly")
        if not self.stamps or ('lite' in sys.argv and name not in opt('keep', 'start,end').split(',')): return
        a = self.a
        if name in self.stamp_names: i = self.stamp_names.index(name)
        else:
            i = len(self.stamp_names); self.stamp_names.append(name)
        assert i < 64
        L = a.newlabel('Lst')
        a(f"""s_cmp_lg_u32 s{sWAVE}, {wave}
        s_cbranch_scc1 {L}
        s_memrealtime s[100:101]
        v_mov_b32 v255, s2
        v_lshlrev_b32 v255, 9, v255
        v_add_u32 v255, {TS + 8*i}, v255
        s_waitcnt lgkmcnt(0)
        v_mov_b32 v252, s100
        s_memtime s[100:101]
        s_waitcnt lgkmcnt(0)
        v_mov_b32 v253, s100
        s_mov_b64 exec, 1
        buffer_store_dwordx2 v[252:253], v255, {WS}, 0 offen
        s_mov_b64 exec, -1
        {L}:""")

    def sstamp(self, name):
        if not self.stamps or 'lite' in sys.argv: return
        k = len(self.spend); assert k < 16
        self.spend.append(name)
        self.a(f"s_memtime s[100:101]\ns_waitcnt lgkmcnt(0)\ns_mov_b32 s{self.sbase+k}, s100")
    def sdump(self, wave):
        if not self.stamps: return
        a = self.a
        L = a.newlabel('Lsd')
        a(f"""s_cmp_lg_u32 s{sWAVE}, {wave}
        s_cbranch_scc1 {L}
        v_mov_b32 v255, s2
        v_lshlrev_b32 v255, 9, v255
        v_add_u32 v255, {TS}, v255
        v_mov_b32 v252, 0
        s_mov_b64 exec, 1""")
        for k, name in enumerate(self.spend):
            i = len(self.stamp_names); self.stamp_names.append(name); assert i < 64
            a(f"v_mov_b32 v253, s{self.sbase+k}\nbuffer_store_dwordx2 v[252:253], v255, {WS}, 0 offen offset:{8*i}")
        a(f"s_mov_b64 exec, -1\n{L}:")
        self.spend = []

    def wave_sum(self, vs, sdsts):
        for mod in ("quad_perm:[1,0,3,2] row_mask:0xf", "quad_perm:[2,3,0,1] row_mask:0xf", "row_half_mirror row_mask:0xf",
                    "row_mirror row_mask:0xf", "row_bcast:15 row_mask:0xa", "row_bcast:31 row_mask:0xc"):
            for v in vs:
                self.a(f"v_add_f32_dpp v{v}, v{v}, v{v} {mod} bank_mask:0xf")
        for v, s in zip(vs, sdsts):
            self.a(f"v_readlane_b32 s{s}, v{v}, 63")

    def poll(self, soff, expect, va, vt, srdb=SRD_WS):
        a = self.a
        L = a.newlabel('Lpoll'); Ld = L + 'd'
        a(f"""v_mov_b32 v{va}, 0
        {L}:
        buffer_load_dword v{vt}, v{va}, {srd(srdb)}, {soff} offen sc1
        s_waitcnt vmcnt(0)
        v_cmp_ne_u32 vcc, {expect}, v{vt}
        s_cbranch_vccz {Ld}
        s_sleep 1
        s_sub_u32 s{sBOUND}, s{sBOUND}, 1
        s_cbranch_scc0 {L}
        s_mov_b32 s{sBOUND}, 0
        {Ld}:""")
        self.vm.clear()

    def pollw(self, soff, expect, va, vt, depth=1):
        a = self.a
        L = a.newlabel('Lpoll'); Ld = L + 'd'
        a(f"v_mov_b32 v{va}, 0\ns_mov_b64 exec, 1")
        pl = lambda k: a(f"v_mov_b32 v{vt+k}, 0\nbuffer_atomic_add v{vt+k}, v{va}, {WS}, {soff} offen sc0 sc1")
        for k in range(depth - 1):
            pl(k); a("s_sleep 3")
        a(f"{L}:")
        for k in range(depth):
            pl((k + depth - 1) % depth)
            a(f"s_waitcnt vmcnt({depth-1})\nv_cmp_ne_u32 vcc, {expect}, v{vt+k}\ns_cbranch_vccz {Ld}")
        a(f"""s_sub_u32 s{sBOUND}, s{sBOUND}, 1
        s_cbranch_scc0 {L}
        s_mov_b32 s{sBOUND}, 0
        {Ld}:
        s_mov_b64 exec, -1""")

    def poll1(self, wave, soff, expect, va, vt):
        a = self.a
        L = a.newlabel('Lp1')
        a(f"s_cmp_lg_u32 s{sWAVE}, {wave}\ns_cbranch_scc1 {L}")
        self.pollw(soff, expect, va, 248, depth=opt('pd', 3))
        a(f"{L}:")
        self.bar()

    def signal(self, vline, dword, vt, mask='vcc'):
        self.a(f"""v_lshlrev_b32 v{vline}, 7, v{vline}
        v_mov_b32 v{vt}, 1
        s_mov_b64 exec, {mask}
        buffer_atomic_add v{vt}, v{vline}, {WS}, 0 offen offset:{4*dword} sc1
        s_mov_b64 exec, -1""")

    def w128_dma_voff(self, pitch, vE, vt, vt2):
        self.a(f"""v_lshrrev_b32 v{vt}, 3, v1
        v_mul_u32_u24 v{vE}, {pitch}, v{vt}
        v_and_b32 v{vt}, 2, v{vt}
        v_and_b32 v{vt2}, 7, v1
        v_xor_b32 v{vt}, v{vt}, v{vt2}
        v_lshl_add_u32 v{vE}, v{vt}, 4, v{vE}""")

    def colsum_issue(self, srdb, pitch, s_goff, s_lds, vE, vO, vt, n=20, step=8):
        a = self.a
        self.w128_dma_voff(pitch, vE, vt, vO)
        a(f"v_xor_b32 v{vO}, 64, v{vE}")
        for i in range(n):
            a(f"s_add_u32 m0, s{s_lds}, {1024*i}")
            self.vmem(f"buffer_load_dwordx4 v{vO if i & 1 else vE}, {srdb}, s{s_goff} offen lds", 'cs')
            if i < n - 1: a(f"s_add_u32 s{s_goff}, s{s_goff}, {step*pitch}")

    def w128_read_addr(self, vb, vt):
        self.a(f"""v_lshrrev_b32 v{vt}, 4, v1
        v_lshlrev_b32 v{vb}, 10, v{vt}
        v_bfe_u32 v{vt}, v1, 2, 2
        v_lshl_add_u32 v{vb}, v{vt}, 7, v{vb}
        v_and_b32 v{vt}, 3, v1
        v_lshl_add_u32 v{vb}, v{vt}, 3, v{vb}
        v_bfe_u32 v{vt}, v1, 3, 2
        v_lshl_add_u32 v{vb}, v{vt}, 5, v{vb}""")

    def colsum_finish(self, s_lds, s_out, vbase, ks=5):
        a = self.a
        vb = vbase; vones = vbase + 4; vacc = vbase + 8; vf = vbase + 24
        self.w128_read_addr(vb, vones)
        a(f"v_add_u32 v{vb}, s{s_lds}, v{vb}")
        for nu in range(1, 4): a(f"v_xor_b32 v{vb+nu}, {32*nu}, v{vb}")
        for i in range(4): a(f"v_mov_b32 v{vones+i}, 0x3f803f80")
        for s in range(ks):
            fb = vf + 16 * (s & 1)
            for nu in range(4):
                for t in range(2):
                    a(f"ds_read_b64_tr_b16 {vr(fb+4*nu+2*t, 2)}, v{vb+nu} offset:{(32*s+4*t)*128}")
            a("s_waitcnt lgkmcnt(0)")
            for nu in range(4):
                c = "0" if s == 0 else vr(vacc + 4 * nu)
                a(f"v_mfma_f32_16x16x32_bf16 {vr(vacc+4*nu)}, {vr(vones)}, {vr(fb+4*nu)}, {c}")
        a(f"""v_cmp_lt_u32 vcc, 15, v1
        v_cndmask_b32 v{vacc}, v{vacc}, v{vacc+4}, vcc
        v_cmp_lt_u32 vcc, 31, v1
        v_cndmask_b32 v{vacc}, v{vacc}, v{vacc+8}, vcc
        v_cmp_lt_u32 vcc, 47, v1
        v_cndmask_b32 v{vacc}, v{vacc}, v{vacc+12}, vcc
        v_lshlrev_b32 v{vb}, 2, v1""")
        self.vmem(f"buffer_store_dword v{vacc}, v{vb}, {WS}, s{s_out} offen sc1", 'csst')

    def row_stats(self, nrows):
        a = self.a
        a(f"""v_lshlrev_b32 v8, 4, v1
        v_lshlrev_b32 v9, 2, v1
        s_mul_i32 s45, s44, 1280""")
        for r in range(nrows):
            self.vmem(f"buffer_load_dwordx4 {vr(12+8*r)}, v8, {srd(SRD_X)}, s45 offen offset:{1280*r} {opt('xpol', '')}", 'stat')
            self.vmem(f"buffer_load_dword v{16+8*r}, v9, {srd(SRD_X)}, s45 offen offset:{1280*r+1024} {opt('xpol', '')}", 'stat')

    def row_stats_finish(self, nrows):
        a = self.a
        self.wait_vm('stat')
        E = lambda r, i: 32 + 12 * r + i
        for r in range(nrows):
            for i in range(5):
                a(f"v_lshlrev_b32 v{E(r,2*i)}, 16, v{12+8*r+i}\nv_and_b32 v{E(r,2*i+1)}, 0xffff0000, v{12+8*r+i}")
        acc = [12 + 8 * r for r in range(nrows)]
        for r in range(nrows): a(f"v_add_f32 v{acc[r]}, v{E(r,0)}, v{E(r,1)}")
        for i in range(2, 10):
            for r in range(nrows): a(f"v_add_f32 v{acc[r]}, v{acc[r]}, v{E(r,i)}")
        ss = [46 + r for r in range(nrows)]
        self.wave_sum(acc, ss)
        a(f"v_mov_b32 v10, {f32hex(1.0/D)}")
        for r in range(nrows): a(f"v_mul_f32 v{acc[r]+1}, s{ss[r]}, v10")
        for i in range(10):
            for r in range(nrows): a(f"v_sub_f32 v{E(r,i)}, v{E(r,i)}, v{acc[r]+1}")
        for r in range(nrows): a(f"v_mul_f32 v{acc[r]}, v{E(r,0)}, v{E(r,0)}")
        for i in range(1, 10):
            for r in range(nrows): a(f"v_fmac_f32 v{acc[r]}, v{E(r,i)}, v{E(r,i)}")
        self.wave_sum(acc, ss)
        for r in range(nrows):
            a(f"v_mov_b32 v{acc[r]+2}, {f32hex(1e-5)}\nv_fmac_f32 v{acc[r]+2}, s{ss[r]}, v10\nv_rsq_f32 v{acc[r]+2}, v{acc[r]+2}")
        a(f"""s_lshl_b32 s45, s44, 2
        s_add_u32 s45, s45, {MEAN1}
        s_add_u32 s46, s45, {RSTD1-MEAN1}
        v_mov_b32 v10, 0
        s_mov_b64 exec, 1""")
        for r in range(nrows):
            self.vmem(f"buffer_store_dword v{acc[r]+1}, v10, {WS}, s45 offen offset:{4*r} sc1", 'statst')
            self.vmem(f"buffer_store_dword v{acc[r]+2}, v10, {WS}, s46 offen offset:{4*r} sc1", 'statst')
        a("s_mov_b64 exec, -1")

    def sig_rowstats(self):
        a = self.a
        a("""s_lshr_b32 s53, s55, 4
        s_mul_i32 s53, s53, 15
        v_add_u32 v10, s53, v1
        v_cmp_gt_u32 vcc, 15, v1""")
        self.signal(10, M_S0, 11)

    def p0(self):
        a = self.a
        a(f"""s_cmp_ge_u32 s2, 256
        s_cbranch_scc1 L_end
        s_load_dwordx16 s[64:79], s[0:1], 0
        s_load_dwordx4 s[80:83], s[0:1], 64
        s_cmp_ge_u32 s2, 16
        s_cbranch_scc1 L_nocode
        s_cmp_eq_u32 s2, {INITWG}
        s_cbranch_scc1 L_nocode
        s_getpc_b64 s[40:41]
        L_pc:
        s_sub_u32 s40, s40, L_pc-{NAME}_kernel
        s_subb_u32 s41, s41, 0
        s_and_b32 s42, s2, 8
        s_lshl_b32 s42, s42, 5
        v_and_b32 v2, 256, v0
        v_cmp_ne_u32 vcc, s42, v2
        s_cmp_eq_u32 s2, {INITWG + 8}
        s_cselect_b64 vcc, -1, vcc
        s_cbranch_vccz L_nocode
        v_lshlrev_b32 v2, 7, v0
        v_min_u32 v2, L_code_end-{NAME}_kernel-4, v2
        global_load_dword v250, v2, s[40:41]
        L_nocode:
        v_and_b32 v1, 63, v0
        v_lshrrev_b32 v2, 6, v0
        v_readfirstlane_b32 s{sWAVE}, v2
        v_mov_b32 v247, 0
        v_mov_b32 v78, 0
        s_mov_b32 s98, 0
        s_mov_b32 s{sBOUND}, 0x100000""")
        a(f"""s_lshr_b32 s40, s2, 3
        s_sub_u32 s40, s40, 2
        s_and_b32 s41, s2, 1
        s_mul_i32 s41, s41, 30
        s_add_u32 s40, s40, s41
        s_lshr_b32 s41, s40, 2
        s_and_b32 s40, s40, 3
        s_add_u32 s43, s40, s41
        s_mul_i32 s42, s41, 21846
        s_lshr_b32 s42, s42, 16
        s_mul_i32 s41, s41, 5
        s_mul_i32 s44, s42, 14
        s_sub_u32 s41, s41, s44
        s_and_b32 s42, s2, 6
        s_lshl_b32 s42, s42, 1
        s_add_u32 s40, s40, s42
        s_and_b32 s{sHW}, s{sWAVE}, 3""")
        if opt('map1', 0):
            a("""s_lshr_b32 s41, s2, 3
            s_sub_u32 s41, s41, 2
            s_and_b32 s40, s2, 7
            s_lshl_b32 s40, s40, 1
            s_and_b32 s42, s41, 1
            s_add_u32 s40, s40, s42
            s_lshr_b32 s41, s41, 1
            s_add_u32 s43, s40, s41""")
        if opt('stloc', 0): a("s_and_b32 s55, s2, 7\ns_lshl_b32 s55, s55, 5\ns_lshr_b32 s42, s2, 3\ns_add_u32 s55, s55, s42")
        else: a("s_mov_b32 s55, s2")
        a("""v_lshrrev_b32 v10, 3, v1
        v_mul_u32_u24 v2, 1280, v10
        v_lshrrev_b32 v10, 4, v1
        v_and_b32 v11, 7, v1
        v_xor_b32 v11, v11, v10
        v_lshl_add_u32 v2, v11, 4, v2
        v_xor_b32 v3, 64, v2
        v_add_u32 v3, 9216, v3
        v_add_u32 v4, 18432, v2
        v_add_u32 v5, 18432, v3
        v_mul_u32_u24 v6, 3840, v10
        v_lshlrev_b32 v10, 1, v10
        v_and_b32 v11, 15, v1
        v_xor_b32 v11, v11, v10
        v_lshl_add_u32 v6, v11, 4, v6
        v_add_u32 v7, 14336, v6
        v_xor_b32 v8, 128, v6
        v_add_u32 v8, 28672, v8
        v_add_u32 v9, 14336, v8""")
        a(f"""s_lshl_b32 s44, s40, 2
        s_add_u32 s44, s44, s{sHW}
        s_mul_i32 s44, s44, {32*1280}
        s_mul_i32 s45, s{sHW}, {16*3840}
        s_lshl_b32 s46, s41, 8
        s_add_u32 s45, s45, s46
        s_and_b32 s46, s43, 3
        {self.rot1}
        s_lshl_b32 s47, s{sHW}, 12""")
        a("s_waitcnt lgkmcnt(0)")
        self.build_srd(SRD_X, 64, S * D * 2)
        self.build_srd(SRD_WQKV, 66, D * 3 * D * 2)
        if self.stamps or opt('dly', ''):
            self.build_srd(SRD_WS, 82, WS_END)
            self.stamp('start')
        a(f"s_cmp_eq_u32 s2, {INITWG}\ns_cbranch_scc1 L_init\nL_init_back:")
        def wtouch():
            a(f"""s_lshl_b32 s56, s2, 2
            s_add_u32 s56, s56, s{sWAVE}
            s_mul_i32 s56, s56, {17*128}
            s_add_u32 s56, s56, {64*3840}
            v_lshlrev_b32 v10, 7, v1
            s_mov_b64 exec, 0x1ffff""")
            self.touch(srd(SRD_WQKV), 10, "s56", 3)
            a("s_mov_b64 exec, -1")
        a(f"s_cmp_ge_u32 s{sWAVE}, 4\ns_cbranch_scc1 L_w47")
        a(f"s_lshl_b32 s44, s55, 2\ns_add_u32 s44, s44, s{sWAVE}\ns_lshl_b32 s44, s44, 1")
        if not opt('searly', 1): a("s_cmp_ge_u32 s2, 16\ns_cbranch_scc1 L_p1_c")
        if opt('wt0', 0) == 2: wtouch()
        self.row_stats(2)
        if opt('wt0', 0) == 1: wtouch()
        a(f"""s_cmp_lt_u32 s2, 16
        s_cbranch_scc1 L_spare
        s_branch L_p1_c
        L_w47:
        s_cmp_lt_u32 s2, 16
        s_cbranch_scc1 L_spare""")

    def more_srds(self):
        self.build_srd(SRD_WS, 82, WS_END)
        self.build_srd(SRD_DBG, 80, 256)
        self.build_srd(SRD_WO, 68, D * D * 2)
        self.build_srd(SRD_WG, 72, D * F * 2)
        self.build_srd(SRD_WU, 74, D * F * 2)
        self.build_srd(SRD_WD, 76, F * D * 2)
        self.build_srd(SRD_OUT, 78, S * D * 2)
        self.a('s_mov_b32 s0, 0')

    def code_touch(self, tag, sidx, n):
        a = self.a
        a(f"""s_getpc_b64 s[42:43]
        L_pc{tag}:
        s_sub_u32 s42, s42, L_pc{tag}-{NAME}_kernel
        s_subb_u32 s43, s43, 0
        s_lshl_b32 s{sidx}, s{sidx}, 13
        v_lshl_add_u32 v16, v1, 7, s{sidx}""")
        for i in range(n):
            a(f"v_min_u32 v17, L_code_end-{NAME}_kernel-4, v16\nglobal_load_dword v251, v17, s[42:43]\nv_add_u32 v16, 8192, v16")

    def touch(self, srdb, voff, soff, n):
        self.a(f"buffer_load_dword v{248 + n % 4}, v{voff}, {srdb}, {soff} offen")

    def spare_code(self):
        a = self.a
        self.vm = VM()
        a("L_spare:")
        for i in range(4): self.vm.add('stat')
        if opt('wt0', 0) == 1: self.vm.add('wt')
        a(f"""v_lshlrev_b32 v2, 7, v1
        s_lshl_b32 s50, s{sWAVE}, 4
        s_add_u32 s50, s50, s2
        s_lshl_b32 s50, s50, 13
        s_add_u32 s51, s50, {256*3840}""")
        self.more_srds()
        CT = opt('cstail', 0)
        if CT:
            a(f"""s_cmp_gt_u32 s2, {INITWG}
            s_subb_u32 s52, s2, 0
            s_lshl_b32 s53, s52, 1
            s_and_b32 s54, s{sWAVE}, 1
            s_add_u32 s53, s53, s54
            s_lshr_b32 s54, s{sWAVE}, 1
            s_mul_i32 s58, s54, {8*3840}
            s_lshl_b32 s56, s53, 7
            s_add_u32 s58, s58, s56
            s_add_u32 s58, s58, {0 if CT == 2 else 256*3840}
            s_cmp_eq_u32 s2, {INITWG}
            s_cselect_b32 s58, {OOB//2}, s58
            s_mul_i32 s56, s{sWAVE}, 20480""")
            self.colsum_issue(srd(SRD_WQKV), 3840, 58, 56, 3, 4, 5, n=(20 if CT == 2 else 12), step=32)
        elif opt('wtail', 1):
            for n in range(2):
                self.touch(srd(SRD_WQKV), 2, "s51", n); self.vm.add('t')
                if n < 1: a(f"s_add_u32 s51, s51, {128*8192}")
        a(f"s_cmp_ge_u32 s{sWAVE}, 4\ns_cbranch_scc1 L_spare3")
        self.row_stats_finish(2)
        a("L_spare3:")
        if CT:
            a(f"""s_mul_i32 s58, s54, {1920*4}
            s_lshl_b32 s57, s53, 8
            s_add_u32 s58, s58, s57
            s_add_u32 s58, s58, {CS1}
            s_cmp_eq_u32 s2, {INITWG}
            s_cselect_b32 s58, {OOB//2}, s58
            s_waitcnt vmcnt(0)""")
            self.colsum_finish(56, 58, 64, ks=(5 if CT == 2 else 3))
        self.poll(0, 1, 10, 11, SRD_DBG)
        a(f"""s_barrier
        s_cmp_lg_u32 s{sWAVE}, 0
        s_cbranch_scc1 L_spare4""")
        self.sig_rowstats()
        if CT:
            a(f"""s_cmp_eq_u32 s2, {INITWG}
            s_cbranch_scc1 L_spare4
            v_mul_u32_u24 v10, 15, v1
            v_add_u32 v10, s52, v10""")
            self.signal(10, M_S0, 11, mask='0xffff')
        a("L_spare4:")
        if opt('wgw', 1):
            a(f"s_and_b32 s51, s50, {64*8192-1}\ns_cmp_ge_u32 s{sWAVE}, 4\ns_cbranch_scc1 L_spare5")
            self.touch(srd(SRD_WG), 2, "s51", 1)
            a("s_branch L_spare6\nL_spare5:")
            self.touch(srd(SRD_WU), 2, "s51", 1)
            a("L_spare6:")
        if opt('ct1', 0):
            a(f"s_waitcnt vmcnt(0)\ns_mov_b32 s41, s{sWAVE}")
            self.code_touch('a', 41, 1)
        a("s_mov_b64 s[62:63], 0")
        self.stamp('spdone')
        a("s_branch L_p1_join")
        a("L_init:")
        self.build_srd(SRD_WS, 82, WS_END)
        self.build_srd(SRD_DBG, 80, 256)
        a(f"""v_mov_b32 v4, 0
        v_mov_b32 v5, 0
        v_mov_b32 v6, 0
        v_mov_b32 v7, 0
        v_lshlrev_b32 v8, 4, v1
        s_lshl_b32 s40, s{sWAVE}, 12""")
        for i in range(4):
            a(f"buffer_store_dwordx4 v[4:7], v8, {WS}, s40 offen offset:{1024*i} sc1")
        a(f"""s_waitcnt vmcnt(0)
        s_barrier
        s_cmp_lg_u32 s{sWAVE}, 0
        s_cbranch_scc1 L_init_back
        v_mov_b32 v5, 1
        s_mov_b64 exec, 1
        buffer_store_dword v5, v4, {srd(SRD_DBG)}, 0 offen sc1
        s_mov_b64 exec, -1
        s_branch L_init_back""")

    def finish(self, dword, name, mid=None):
        a = self.a
        a("s_waitcnt vmcnt(0)")
        if mid: a(mid + ":")
        self.bar()
        self.stamp(name)
        L = a.newlabel('Lfin')
        a(f"""s_cmp_eq_u64 s[62:63], 0
        s_cbranch_scc1 {L}
        v_mov_b32 v246, 1
        s_mov_b64 exec, s[62:63]
        buffer_atomic_add v246, v247, {WS}, 0 offen offset:{4*dword} sc1
        s_mov_b64 exec, -1
        {L}:""")
        self.vm.clear()

    def sigprep(self, wave):
        self.a(f"""v_lshlrev_b32 v247, 7, v247
        s_cmp_eq_u32 s{sWAVE}, {wave}
        s_cselect_b64 s[62:63], vcc, 0""")

    P1_R, P1_LA, P1_BLK = 4, opt('la1', 2), 4
    rot1 = '' if opt('rot1', 1) else 's_mov_b32 s46, 0'
    P1_TAB = 131072
    CS4_LDS = 131072 + 2048

    def p1(self):
        a = self.a
        R, LA = self.P1_R, self.P1_LA
        T = self.P1_TAB
        def waddr(dst, sblk, vt):
            a(f"""v_lshrrev_b32 v{vt}, 4, v1
            v_lshlrev_b32 v{dst}, 11, v{vt}
            v_bfe_u32 v{vt}, v1, 2, 2
            v_lshl_add_u32 v{dst}, v{vt}, 8, v{dst}
            v_and_b32 v{vt}, 3, v1
            v_lshl_add_u32 v{dst}, v{vt}, 3, v{dst}
            v_bfe_u32 v{vt}, v1, 2, 3
            v_xor_b32 v{vt}, s{sblk}, v{vt}
            v_lshl_add_u32 v{dst}, v{vt}, 5, v{dst}
            v_add_u32 v{dst}, 16384, v{dst}""")
        self.vm = VM(); self.nbar = 0
        DG = opt('diag', 0)
        if DG:
            tabs = []
            for k in range(4):
                o = sorted(range(10), key=lambda x: x - (DG + 0.5 if x % 4 == k else 0))
                tabs.append(sum(v << (4 * i) for i, v in enumerate(o)))
            a(f"s_and_b32 s46, s43, 3\ns_mov_b32 s60, {tabs[0] & 0xffffffff}\ns_mov_b32 s61, {tabs[0] >> 32}")
            for k in range(1, 4):
                a(f"s_cmp_eq_u32 s46, {k}\ns_cselect_b32 s60, {tabs[k] & 0xffffffff}, s60\ns_cselect_b32 s61, {tabs[k] >> 32}, s61")
        def dma(st):
            slot = st % R
            if DG: a(f"s_bfe_u32 s46, s{60 + (st >> 3)}, {(4 << 16) | (4 * (st & 7))}")
            a(f"""s_lshl_b32 s48, s46, 7
            s_add_u32 s48, s48, s44
            s_mul_i32 s49, s46, {64*3840}
            s_add_u32 s49, s49, s45
            s_add_u32 m0, s47, {slot*32768}""")
            for i in range(4):
                self.vmem(f"buffer_load_dwordx4 v{2+i}, {srd(SRD_X)}, s48 offen offset:{1024*i} {opt('xpol', '')} lds", ('p1', st))
            a(f"s_add_u32 m0, s47, {slot*32768+16384}")
            for i in range(4):
                self.vmem(f"buffer_load_dwordx4 v{6+i}, {srd(SRD_WQKV)}, s49 offen offset:{1024*i} lds", ('p1', st))
            B = self.P1_BLK
            if st + 1 < B: a(f"s_add_u32 s46, s46, 1\ns_and_b32 s46, s46, {B-1}")
            elif opt('rot1b', 0) and st + 1 < 8: a(f"s_add_u32 s46, s46, 1\ns_and_b32 s46, s46, 3\ns_or_b32 s46, s46, 4")
            elif opt('rot1b', 0) and st < 9: a(f"s_add_u32 s46, s46, 1\ns_and_b32 s46, s46, 1\ns_or_b32 s46, s46, 8")
            elif st < 9: a(f"s_mov_b32 s46, {st+1}")
        dma(0)
        self.more_srds()
        dma(1)
        a(f"""s_mul_i32 s52, s40, 15
        s_add_u32 s52, s52, s41
        s_lshl_b32 s52, s52, 7
        v_mov_b32 v12, 0""")
        for st in range(10):
            self.wait_vm(('p1', st))
            if st == 8:
                self.wait_vm('mb')
                EX = 17 if opt('cstail', 0) else 16
                a(f"v_cmp_ne_u32 vcc, {EX}, v14\ns_cbranch_vccz L_p1_s0ok")
                keep = list(self.vm.ops)
                self.poll("s52", EX, 10, 11)
                self.vm.ops = keep + ['t'] * 4
                a("L_p1_s0ok:")
                a(f"""v_lshlrev_b32 v10, 2, v1
                s_and_b32 s48, s{sHW}, 1
                s_cmp_ge_u32 s{sHW}, 2
                s_cselect_b32 s49, s41, s40
                s_mov_b32 s50, {MEAN1}
                s_cselect_b32 s50, {CS1}, s50
                s_mov_b32 s51, {RSTD1-MEAN1}
                s_cselect_b32 s51, {1920*4}, s51
                s_lshl_b32 s49, s49, 1
                s_add_u32 s49, s49, s48
                s_lshl_b32 s49, s49, 8
                s_add_u32 s49, s49, s50""")
                for q in range(4):
                    a(f"buffer_load_dword v{16+q}, v10, {WS}, s49 offen sc1\ns_add_u32 s49, s49, s51")
            self.bar()
            self.sstamp(f'hb{st}')
            if st == opt('hw1', 8):
                a(f"""v_lshlrev_b32 v15, 7, v1
                s_cmp_eq_u32 s{sHW}, 0
                s_cselect_b32 s56, s{SRD_WG}, s{SRD_WO}
                s_cselect_b32 s57, s{SRD_WG+1}, s{SRD_WO+1}
                s_cselect_b32 s58, s{SRD_WG+2}, s{SRD_WO+2}
                s_cselect_b32 s53, 48, -156
                s_mov_b32 s59, 0x20000
                s_add_u32 s53, s2, s53
                s_and_b32 s53, s53, 511
                s_lshl_b32 s53, s53, 13
                s_cmp_ge_u32 s{sHW}, 2
                s_cselect_b32 s53, {OOB//2}, s53""")
                self.touch("s[56:59]", 15, "s53", 3)
                self.vm.add('touch')
            if st == 1:
                self.vmem(f"buffer_load_dword v13, v12, {srd(SRD_DBG)}, 0 offen sc1", 'rdy')
            if st == max(3, opt('sw', 3)):
                L = a.newlabel('Ls0')
                self.wait_vm('rdy')
                a(f"v_cmp_ne_u32 vcc, 1, v13\ns_cbranch_vccz {L}r")
                keep = list(self.vm.ops)
                self.poll(0, 1, 10, 11, SRD_DBG)
                self.vm.ops = keep
                a(f"{L}r:")
                a(f"""s_lshr_b32 s53, s55, 4
                s_mul_i32 s53, s53, 15
                s_lshl_b32 s54, s{sHW}, 2
                s_add_u32 s53, s53, s54
                v_add_u32 v10, s53, v1
                s_cmp_eq_u32 s{sHW}, 3
                s_cselect_b64 vcc, 7, 15""")
                self.signal(10, M_S0, 11)
                self.vm.add('sig')
            if st == 6:
                self.vmem(f"buffer_load_dword v14, v12, {WS}, s52 offen sc1", 'mb')
            if LA == 3 and st == opt('la1s', 1): dma(st + 2)
            if LA == 3 and st < opt('la1s', 1): dma(st + 2)
            elif st + LA < 10: dma(st + LA)
        c = (20 ** -0.5) * LOG2E
        a(f"""s_cmp_lt_u32 s41, 5
        s_cselect_b32 s49, {f32hex(c)}, 1.0
        s_lshl_b32 s50, s48, 9
        s_add_u32 s50, s50, {T}
        v_lshl_add_u32 v11, v1, 3, s50
        s_lshl_b32 s50, s48, 8
        s_add_u32 s50, s50, {T+1536}
        v_add_u32 v10, s50, v10
        s_waitcnt vmcnt({self.vm.count_after('t')})
        s_cmp_ge_u32 s{sHW}, 2
        s_cbranch_scc1 L_p1_tcs
        v_mul_f32 v17, s49, v17
        ds_write_b64 v11, v[16:17]
        s_branch L_p1_tdone
        L_p1_tcs:
        v_add_f32 v16, v16, v17
        v_add_f32 v18, v18, v19
        v_add_f32 v16, v16, v18
        ds_write_b32 v10, v16
        L_p1_tdone:
        s_waitcnt lgkmcnt(0)""")
        self.bar()
        self.sdump(5)
        if opt('iw', 0):
            a(f"""s_mov_b64 exec, 0
            s_cmp_eq_u32 s{sHW}, 0
            s_cbranch_scc1 L_iw_0
            s_cmp_eq_u32 s{sHW}, 1
            s_cbranch_scc1 L_iw_1
            s_cmp_eq_u32 s{sHW}, 2
            s_cbranch_scc1 L_iw_2
            s_branch L_iw_3
            L_iw_end:
            s_mov_b64 exec, -1""")
        if opt('vpoll', 0): a("s_cmp_ge_u32 s41, 10\ns_cselect_b32 s0, 2, 0")
        a("s_mov_b64 s[62:63], 0\ns_branch L_p1_join")
        nb_h = self.nbar
        self.vm = VM(); self.nbar = 0
        a('L_p1_c:')
        if opt('searly', 1):
            for i in range(4): self.vm.add('stat')
            if opt('wt0', 0) == 1: self.vm.add('wt')
        else: self.row_stats(2)
        self.more_srds()
        XA, WA = 64, 68
        FR = 80
        ACC = 144
        a(f"""s_and_b32 s48, s{sWAVE}, 1
        s_lshr_b32 s49, s{sWAVE}, 1
        v_and_b32 v2, 15, v1
        v_lshrrev_b32 v3, 4, v1
        v_lshlrev_b32 v4, 7, v2
        v_bfe_u32 v5, v1, 1, 3
        v_xor_b32 v5, v5, v3
        v_lshl_add_u32 v4, v5, 4, v4
        s_lshl_b32 s50, s48, 13
        v_add_u32 v{XA}, s50, v4
        v_xor_b32 v{XA+1}, 64, v{XA}
        s_lshl_b32 s50, s49, 1
        s_add_u32 s50, s50, s48
        s_lshl_b32 s50, s50, 1""")
        waddr(WA, 50, 5)
        for nu in range(1, 4): a(f"v_xor_b32 v{WA+nu}, {32*nu}, v{WA}")
        a(f"""s_lshl_b32 s50, s48, 9
        s_add_u32 s50, s50, {T}
        v_lshl_add_u32 v76, v2, 3, s50
        s_lshl_b32 s50, s{sWAVE}, 7
        s_add_u32 s50, s50, {T+1024}
        v_lshl_add_u32 v77, v3, 4, s50
        v_xor_b32 v79, 128, v77
        v_lshrrev_b32 v78, 5, v1
        v_lshlrev_b32 v78, 15, v78
        v_and_b32 v7, 31, v1
        v_lshl_add_u32 v78, v7, 4, v78""")
        a(f"""s_cmp_ge_u32 s41, 10
        s_cselect_b32 s50, 10, 5
        s_cmp_ge_u32 s41, 5
        s_cselect_b32 s50, s50, 0
        s_sub_u32 s51, s41, s50
        s_lshl_b32 s51, s51, 4
        v_mul_u32_u24 v4, 5, v7
        v_lshrrev_b32 v4, 1, v4
        v_add_u32 v4, 2, v4
        v_subrev_u32 v4, s51, v4
        v_cmp_gt_u32 vcc, 18, v4
        s_lshr_b32 s52, s40, 1
        s_cmp_eq_u32 s52, 7
        s_cselect_b32 s50, 0, s50
        s_cmp_eq_u32 s50, 0
        s_cselect_b32 vcc_hi, 0, vcc_hi
        s_lshl_b32 s52, s52, 5
        v_add_u32 v247, s52, v1""")
        self.sigprep(0)
        if opt('vdef', 1):
            a(f"""s_cmp_ge_u32 s41, 10
            s_cselect_b32 s50, {4*(M_S1V-M_S1)}, 0
            v_add_u32 v247, s50, v247
            s_cselect_b32 s50, {OOB//2}, 0
            v_add_u32 v66, s50, v78""")
        else: a("v_mov_b32 v66, v78")
        a(f"""s_lshl_b32 s50, s41, 1
        s_add_u32 s50, s50, s49
        s_lshl_b32 s50, s50, 18
        s_lshl_b32 s51, s40, 1
        s_add_u32 s51, s51, s48
        s_lshl_b32 s51, s51, 10
        s_add_u32 s50, s50, s51
        s_lshl_b32 s51, s48, 17
        s_add_u32 s50, s50, s51
        s_add_u32 s50, s50, {QKV}
        s_lshl_b32 s52, s48, 18
        s_sub_u32 s52, 65536, s52
        s_cmp_ge_u32 s41, {10 if opt('vdef', 1) else 99}
        s_cselect_b32 s98, s50, 0
        s_cselect_b32 s0, 0, {opt('qkfirst', 1)}
        s_mov_b32 s99, s52""")
        CSR = 208; ONES = 72
        for i in range(72): a(f"v_mov_b32 v{ACC+i}, 0")
        for i in range(4): a(f"v_mov_b32 v{ONES+i}, 0x3f803f80")
        self.row_stats_finish(2)
        lg = LG(a)
        def reads(g):
            j = g & 1
            off = ((g >> 1) & 1) * 32768
            fb = FR + 32 * (g & 1)
            W = lambda i: [(f"ds_read_b64_tr_b16 {vr(fb+16+4*i, 2)}, v{WA+i} offset:{off+32*j*256}", None),
                           (f"ds_read_b64_tr_b16 {vr(fb+18+4*i, 2)}, v{WA+i} offset:{off+(32*j+4)*256}", ('W', g & 3, i))]
            X = lambda i: [(f"ds_read_b128 {vr(fb+4*i)}, v{XA+j} offset:{off+2048*i}", ('X', g & 3, i))]
            return W(0) + X(0) + W(1) + W(2) + W(3) + X(1) + X(2) + X(3)
        self.stamp('preb0')
        self.bar()
        self.stamp('b0')
        for r in reads(0): lg.op(*r)
        MR = 80
        csm = lambda fb, e: a(f"v_mfma_f32_16x16x32_bf16 {vr(CSR+4*e)}, {vr(fb+16+4*e)}, {vr(ONES)}, {vr(CSR+4*e)}")
        CT = opt('cstail', 0)
        for sec, (cnt, cs_on) in enumerate([(4, False), (1, False)] if CT == 2 else [(2, True), (2, False), (1, False)] if CT else [(4, True), (1, True)]):
            last = cnt == 1
            if not last: a(f"s_mov_b32 s51, {cnt}\n.p2align 3\nL_p1_loop{sec}:")
            lg.done = lg.n - 12
            for g in range(4):
                fb = FR + 32 * (g & 1)
                fin = last and g == 3
                nxt = [] if g & 1 else reads(g + 1)
                k = 0
                for n in range(16):
                    mu, nu = (n & 3, n >> 2) if fin else (n >> 2, n & 3)
                    if (g & 1) and n == (2 if LA == 2 else 4) and not fin:
                        if LA == 3: lg.drain()
                        SW = opt('sw', 3)
                        if SW == 2 and g == 3: a("s_waitcnt vmcnt(0)")
                        if SW > 2 and sec == 0 and g == (1 if SW == 3 else 3):
                            a(f"s_cmp_eq_u32 s51, {cnt}\ns_cbranch_scc1 L_p1_nw\ns_waitcnt vmcnt(0)\nL_p1_nw:\ns_nop 0")
                        a("s_barrier")
                        nxt = reads(g + 1)
                    if fin and n == 0:
                        lg.drain()
                        if cs_on: csm(fb, 0); csm(fb, 1)
                    if fin and n == (1 if CT else 4):
                        a("s_mov_b32 exec_lo, 0x00010001\ns_mov_b32 exec_hi, 0x00010001")
                        for e in range(2): lg.op(f"ds_write_b128 v77, {vr(CSR+4*e)} offset:{64*e}")
                        a("s_mov_b64 exec, -1")
                    if fin and n == (6 if CT else 8):
                        lg.drain(); a("s_barrier")
                        nxt = [(f"ds_read_b64 {vr(MR+2*q, 2)}, v76 offset:{128*q}", None) for q in range(4)]
                        nxt += [(f"ds_read_b128 {vr(CSR+8+4*e)}, v79 offset:{64*e}", None) for e in range(2)]
                        if CT: nxt += [(f"ds_read_b128 {vr(88+4*e)}, v{79 if e >> 1 else 77} offset:{512+64*(e&1)}", None) for e in range(4)]
                    ac = ACC + 16 * mu + 4 * nu
                    if n == 0: lg.need(('W', g, 3))
                    if n == 4: lg.need(('X', g, 3))
                    a(f"v_mfma_f32_16x16x32_bf16 {vr(ac)}, {vr(fb+16+4*nu)}, {vr(fb+4*mu)}, {vr(ac)}")
                    if k < len(nxt): lg.op(*nxt[k]); k += 1
                    elif g == 2 and n >= 12 and not last:
                        for r in ([XA, XA+1], [WA, WA+1], [WA+2], [WA+3])[n - 12]: a(f"v_xor_b32 v{r}, 65536, v{r}")
                    if n in (13, 15) and not fin and cs_on: csm(fb, (n - 13) >> 1)
                    if g == 3 and n == 14 and not last: a("s_sub_u32 s51, s51, 1\ns_cmp_lg_u32 s51, 0")
                assert k == len(nxt)
            if not last: a(f"s_cbranch_scc1 L_p1_loop{sec}")
        self.nbar += 10
        lg.drain()
        self.stamp('p1loop')
        a(".p2align 3")
        if CT:
            for h in range(8): a(f"v_pk_add_f32 {vr(CSR+2*h,2)}, {vr(CSR+2*h,2)}, {vr(88+2*h,2)}")
        PK = 104
        n = 0
        for nu in range(4):
            for p in range(2):
                pk = PK + 4 * (n % 8); n += 1
                tiles = [(ACC + 16 * (2 * p + e) + 4 * nu, 2 * p + e) for e in range(2)]
                for ac, mu in tiles:
                    for h in range(2):
                        a(f"v_pk_fma_f32 {vr(ac+2*h,2)}, {vr(CSR+4*nu+2*h,2)}, {vr(MR+2*mu,2)}, {vr(ac+2*h,2)} op_sel_hi:[1,0,1] neg_lo:[0,1,0] neg_hi:[0,1,0]")
                for ac, mu in tiles:
                    for h in range(2):
                        a(f"v_pk_mul_f32 {vr(ac+2*h,2)}, {vr(ac+2*h,2)}, {vr(MR+2*mu,2)} op_sel:[0,1] op_sel_hi:[1,1]")
                for h in range(2):
                    for e, (ac, mu) in enumerate(tiles):
                        a(f"v_cvt_pk_bf16_f32 v{pk+2*e+h}, v{ac+2*h}, v{ac+2*h+1}")
                a(f"v_permlane16_swap_b32 v{pk}, v{pk+2}\ns_nop 0\nv_permlane16_swap_b32 v{pk+1}, v{pk+3}\ns_nop 0")
                a(f"buffer_store_dwordx4 {vr(pk)}, v66, {WS}, s50 offen offset:{512*p} sc1")
            if nu < 3: a("s_add_u32 s50, s50, s52\ns_nop 0" if nu == 1 else "s_add_u32 s50, s50, 65536")
        self.stamp('p1epi')
        assert self.nbar == nb_h, (self.nbar, nb_h)
        a("L_p1_join:")
        a.settle(3)

    def p1_vstores(self):
        a = self.a
        a("s_cmp_eq_u32 s98, 0\ns_cbranch_scc1 L_p1_nov")
        for nu in range(4):
            for p in range(2):
                a(f"buffer_store_dwordx4 {vr(104+8*nu+4*p)}, v78, {WS}, s98 offen offset:{512*p} sc1")
            if nu < 3: a("s_add_u32 s98, s98, s99" if nu == 1 else "s_add_u32 s98, s98, 65536")
        a("L_p1_nov:")

    def build(self):
        a = self.a
        a.raw(f"; @launch grid=(256,1,1) block=(512,1,1) lds={LDS_BYTES}")
        a.raw(f'.amdgcn_target "amdgcn-amd-amdhsa--gfx950"\n.text\n.globl {NAME}_kernel\n.p2align {KALIGN}\n.type {NAME}_kernel,@function\n{NAME}_kernel:')
        self.p0()
        self.p1()
        if self.upto >= 2: self.p2()
        else: self.p1_vstores(); self.finish(M_S1, 'p1st')
        if self.upto >= 3: self.tail345()
        a("L_end:\ns_endpgm")
        self.spare_code()
        i = 0
        while i < len(self.tail):
            self.tail[i](); i += 1
        a("L_code_end:")
        a.raw(f""".section .rodata,"a"
.p2align 6
.amdhsa_kernel {NAME}_kernel
  .amdhsa_next_free_vgpr 256
  .amdhsa_next_free_sgpr 102
  .amdhsa_accum_offset 256
  .amdhsa_group_segment_fixed_size 0
  .amdhsa_kernarg_size 80
  .amdhsa_user_sgpr_count 2
  .amdhsa_user_sgpr_kernarg_segment_ptr 1
  .amdhsa_system_sgpr_workgroup_id_x 1
.end_amdhsa_kernel""")
        return a.text()

def add_islands(text):
    import subprocess, re, tempfile, os
    lines = text.split('\n')
    tmp = re.sub(r'L_iw_\d+', 'L_iw_end', text)
    d = tempfile.mkdtemp()
    open(d + '/a.s', 'w').write(tmp)
    subprocess.run(['clang', '-x', 'assembler', '-target', 'amdgcn-amd-amdhsa', '-mcpu=gfx950', '-c', d + '/a.s', '-o', d + '/a.o'], check=True)
    dis = subprocess.run(['llvm-objdump', '-d', '--mcpu=gfx950', d + '/a.o'], capture_output=True, text=True).stdout
    ins = [(int(m.group(2), 16), m.group(1)) for m in re.finditer(r'^\t(\S+).*// ([0-9A-F]{12}):', dis, re.M)]
    out = []; k = 0; shift = 0; page = opt('iw0', 2); n = 0; stop = False
    for ln in lines:
        t = ln.strip()
        isins = ln.startswith('    ') and t and not t.startswith(('.', ';'))
        if t == 'L_end:': stop = True
        if isins:
            mn = re.sub(r'_(e32|e64)$', '', t.split()[0])
            while re.sub(r'_(e32|e64)$', '', ins[k][1]) != mn:
                assert ins[k][1] == 's_nop', (ins[k], t)
                k += 1
            addr = ins[k][0] + shift; k += 1
            if addr >= page * 4096 and not stop:
                assert addr < page * 4096 + 32
                out += [f'L_iw_{n}:', f'    s_cbranch_execz L_iw_{n+4}', '    s_nop 0']
                n += 1; shift += 8; page += 1
        out.append(ln)
    res = '\n'.join(out)
    for j in range(n, n + 4): res = res.replace(f's_cbranch_execz L_iw_{j}\n', 's_cbranch_execz L_iw_end\n')
    return res

from phases import install
install(Gen, globals())
if opt('p1n', 0):
    import p1new
    p1new.install(Gen, globals())

if __name__ == '__main__':
    upto = int(sys.argv[1]) if len(sys.argv) > 1 else 5
    out = sys.argv[2] if len(sys.argv) > 2 else 'k.s'
    g = Gen(upto=upto, stamps=('stamps' in sys.argv))
    txt = g.build()
    if opt('iw', 0): txt = add_islands(txt)
    open(out, 'w').write(txt)
    open(out + '.stamps', 'w').write('\n'.join(g.stamp_names))
    print("wrote", out, "pads", g.a.pad_count)
```

```python
def install(Gen, G):
    globals().update({k: v for k, v in G.items() if not k.startswith('__')})
    for f in (p2, p3_prefetch, tail345):
        setattr(Gen, f.__name__, f)

KV0 = 102400
OCTP = 8256

def p2(self):
    a = self.a
    self.vm = VM(); self.nbar = 0
    a("s_cmp_eq_u32 s0, 1\ns_cbranch_scc1 L_p1_fin\nL_p2_pre:")
    a(f"""s_and_b32 s40, s2, 7
    s_lshl_b32 s40, s40, 2
    s_bfe_u32 s41, s2, 0x20003
    s_add_u32 s40, s40, s41
    s_lshr_b32 s41, s2, 5
    s_mul_i32 s42, s40, 5
    s_lshr_b32 s42, s42, 1
    s_and_b32 s43, s40, 1
    s_add_u32 s44, s42, s43
    s_xor_b32 s45, s43, 1
    s_lshl_b32 s45, s45, 1
    s_add_u32 s45, s45, s42""")
    a(f"""s_add_u32 s46, s42, 2
    s_lshr_b32 s46, s46, 4
    s_lshr_b32 s47, s42, 4
    s_sub_u32 s46, s46, s47
    s_add_u32 s46, s46, 1
    s_nop 0""")
    if opt('p1n', 0): self.s1_expect()
    else: a("""s_cmp_eq_u32 s41, 0
    s_cselect_b32 s47, 2, 4
    s_mul_i32 s48, s46, s47
    s_add_u32 s47, s47, 2
    s_mul_i32 s46, s46, s47""")
    a(f"""
    s_lshl_b32 s47, s41, 5
    s_add_u32 s47, s47, s40
    s_lshl_b32 s47, s47, 7
    s_add_u32 s47, s47, {4*M_S1}""")
    pf = self.p3_prefetch() if self.upto >= 3 else []
    a(f"""v_and_b32 v2, 31, v1
    v_lshrrev_b32 v3, 5, v1
    v_lshlrev_b32 v4, 4, v1""")
    a(f"""s_lshl_b32 s50, s41, 2
    s_add_u32 s50, s50, s{sWAVE}
    s_cmp_lt_u32 s50, 4
    s_mov_b32 s51, 0x3f803f80
    s_cselect_b32 s50, 0x3f80ff7f, s51
    v_mov_b32 v8, s50
    v_mov_b32 v9, 0x3f803f80
    v_mov_b32 v10, 0x3f803f80
    v_mov_b32 v11, 0x3f803f80
    s_lshl_b32 s49, s{sWAVE}, 10
    s_add_u32 s50, s49, {KV0+6*OCTP}
    v_add_u32 v5, s50, v4
    ds_write_b128 v5, v[8:11]
    s_cmp_eq_u32 s41, 0
    s_cselect_b32 s50, 0xbf803f80, 0
    v_mul_lo_u32 v15, s50, v3""")
    a("v_lshlrev_b32 v5, 2, v3\nv_sub_u32 v5, v2, v5")
    for r in range(16):
        a(f"v_cmp_le_i32 s[{64+2*r}:{65+2*r}], {8*(r>>2)+(r&3)}, v5")
    PM = 52
    a("v_mov_b32 v6, 0xffff\nv_mov_b32 v7, 0xffff0000")
    for i in range(8):
        a(f"v_cndmask_b32 v{PM+i}, 0, v6, s[{64+4*i}:{65+4*i}]\nv_cndmask_b32 v8, 0, v7, s[{66+4*i}:{67+4*i}]\nv_or_b32 v{PM+i}, v{PM+i}, v8")
    a(f"""s_lshl_b32 s50, s{sWAVE}, 9
    s_add_u32 s50, s50, {KV0}
    v_lshl_add_u32 v13, v2, 4, s50
    v_mul_u32_u24 v12, {OCTP}, v3
    v_lshl_add_u32 v5, v12, 2, v13
    v_add_u32 v12, v12, v13
    v_add_u32 v13, {2*OCTP}, v5""")
    a(f"""v_bfe_u32 v5, v1, 2, 2
    v_lshl_add_u32 v5, v3, 2, v5
    v_lshl_add_u32 v14, v5, 4, s50
    v_and_b32 v5, 1, v1
    v_bfe_u32 v6, v1, 1, 1
    v_mov_b32 v7, s43
    v_cmp_eq_u32 vcc, 1, v6
    v_cndmask_b32 v7, v7, v5, vcc
    v_add_u32 v8, 2, v6
    v_and_b32 v9, 16, v1
    v_cmp_eq_u32 vcc, 0, v9
    v_cndmask_b32 v8, v8, v5, vcc
    v_cndmask_b32 v7, v7, v6, vcc
    v_mul_u32_u24 v8, {OCTP}, v8
    v_lshl_add_u32 v8, v7, 3, v8
    v_add_u32 v14, v14, v8
    v_add_u32 v14, {3*OCTP}, v14""")
    a(f"""s_lshl_b32 s50, s41, 2
    s_add_u32 s50, s50, s{sWAVE}
    s_cmp_lt_u32 s50, 4
    s_cselect_b32 s51, 0, 4
    s_sub_u32 s50, s50, s51
    s_lshl_b32 s50, s50, 10
    s_add_u32 s50, s50, {QKV + 80*32768}
    s_lshl_b32 s51, s44, 15
    s_add_u32 s51, s51, s50
    s_lshl_b32 s52, s45, 15
    s_add_u32 s52, s52, s50
    s_add_u32 s49, s49, {KV0}""")
    a(f"""s_lshl_b32 s53, s41, 3
    s_add_u32 s53, s53, s{sWAVE}
    s_lshl_b32 s54, s53, 9
    s_add_u32 s54, s54, {QKV}
    s_lshl_b32 s55, s44, 15
    s_add_u32 s55, s55, s54
    s_lshl_b32 s56, s45, 15
    s_add_u32 s56, s56, s54
    v_lshlrev_b32 v5, 15, v3
    v_lshl_add_u32 v5, v2, 4, v5
    v_lshlrev_b32 v6, 4, v2
    v_mov_b32 v8, {OOB}
    v_add_u32 v9, s43, v3
    v_cmp_eq_u32 vcc, 0, v9
    v_cndmask_b32 v7, v8, v6, vcc
    v_cmp_gt_u32 vcc, s43, v3
    v_cndmask_b32 v6, v8, v6, vcc""")
    self.stamp('p2pre')
    a("s_cmp_eq_u32 s0, 1\ns_cbranch_scc1 L_p2_poll")
    self.p1_vstores()
    a(f"s_cmp_lg_u32 s0, 2\ns_cbranch_scc1 L_p1_fin\ns_cmp_lg_u32 s{sWAVE}, 5\ns_cbranch_scc1 L_p1_fin")
    self.pollw("s47", "s46", 8, 248, depth=3)
    a("s_branch L_p1_fin2\nL_p1_fin:")
    self.finish(M_S1, 'p1st', mid="L_p1_fin2")
    a("s_cmp_eq_u32 s0, 1\ns_cbranch_scc1 L_p2_pre\nL_p2_poll:")
    a(f"s_cmp_eq_u32 s0, 2\ns_cbranch_scc1 L_p2_polled\ns_cmp_lg_u32 s{sWAVE}, 5\ns_cbranch_scc1 L_p2_polled")
    self.pollw("s47", "s46", 8, 248, depth=3)
    a("L_p2_polled:")
    self.bar()
    self.stamp('p2poll')
    Q0, Q1 = 16, 20
    if 'p2twice' in sys.argv:
        a("s_mov_b32 s61, 2\nL_p2_again:\nv_mov_b32 v240, v5\nv_mov_b32 v241, v6\ns_mov_b32 s40, s55\ns_mov_b32 s42, s56")
        if 'nopf' in sys.argv: pf = []
    def dma(o, goff, add, tag):
        a(f"s_add_u32 m0, s49, {o*OCTP}")
        if add: a(f"s_add_u32 s57, s{goff}, {add}")
        self.vmem(f"buffer_load_dwordx4 v4, {WS}, s{57 if add else goff} offen sc1 lds", tag)
    dma(0, 51, 0, 'K'); dma(1, 51, 32768, 'K'); dma(2, 52, 0, 'K')
    self.vmem(f"buffer_load_dwordx4 {vr(Q0)}, v5, {WS}, s55 offen sc1", 'K')
    self.vmem(f"buffer_load_dwordx2 {vr(Q1,2)}, v7, {WS}, s56 offen sc1", 'K')
    self.vmem(f"buffer_load_dwordx2 {vr(Q1+2,2)}, v6, {WS}, s56 offen offset:8 sc1", 'K')
    VL = opt('vlate', 0)
    a(f"s_add_u32 s47, s47, {4*(M_S1V-M_S1)}")
    if not VL:
        a(f"s_cmp_lg_u32 s{sWAVE}, 1\ns_cbranch_scc1 L_p2_vok")
        self.pollw("s47", "s48", 8, 9)
        a("L_p2_vok:")
    self.wait_vm('K')
    a(f"v_or_b32 v{Q1}, v{Q1}, v15\ns_waitcnt lgkmcnt(0)")
    self.bar()
    self.stamp('p2k')
    SB = 64; OA = 208; KF = 24
    Sr = lambda t: SB + 16 * t
    order = [1, 8, 0, 2, 3, 4, 5, 6, 7]
    Pr = lambda t: Sr(8) + 8 if t == 8 else Sr(t)
    Vr = lambda t: Sr(8) if t == 8 else Sr(t) + 8
    M0, M1 = 60, 61
    VrF = {1: 226, 8: Sr(1)+8, 0: Sr(8), 2: Sr(0)+8, 3: Sr(2)+8, 4: Sr(3)+8, 5: Sr(4)+8, 6: Sr(5)+8, 7: Sr(6)+8}.__getitem__
    def mk(lg, first_pv, Vr=Vr):
        def kread(n):
            t = order[n]; kb = KF + 8 * (n % 3)
            lg.op(f"ds_read_b128 {vr(kb)}, v12 offset:{512*t}", ('K', n, 0))
            lg.op(f"ds_read_b128 {vr(kb+4)}, v13 offset:{512*t}", ('K', n, 1))
        def qk(n, h):
            t = order[n]; kb = KF + 8 * (n % 3)
            lg.need(('K', n, h))
            if h == 0: a(f"v_mfma_f32_32x32x16_bf16 {vr(Sr(t),16)}, {vr(kb)}, {vr(Q0)}, 0")
            else: a(f"v_mfma_f32_32x32x16_bf16 {vr(Sr(t),16)}, {vr(kb+4)}, {vr(Q1)}, {vr(Sr(t),16)}")
        def vread(t):
            for sp in range(2):
                for tt in range(2):
                    lg.op(f"ds_read_b64_tr_b16 {vr(Vr(t)+4*sp+2*tt,2)}, v14 offset:{(32*t+16*sp+8*tt)*16}", ('V', t, sp))
        def pv(t, sp):
            lg.need(('V', t, sp))
            c = "0" if (t == first_pv and sp == 0) else vr(OA, 16)
            a(f"v_mfma_f32_32x32x16_bf16 {vr(OA,16)}, {vr(Vr(t)+4*sp)}, {vr(Pr(t)+4*sp)}, {c}")
        def merge():
            for r in range(16):
                a(f"v_cndmask_b32 v{Sr(8)+r}, v{Sr(0)+r}, v{Sr(8)+r}, s[{64+2*r}:{65+2*r}]")
        def cvt(t):
            a(".p2align 3")
            for i in range(8): a(f"v_cvt_pk_bf16_f32 v{Sr(t)+i}, v{Sr(t)+2*i}, v{Sr(t)+2*i+1}")
            if t == 8:
                for i in range(8):
                    a(f"v_and_b32_e64 v{Sr(8)+8+i}, v{Sr(8)+i}, v{PM+i}\nv_bfi_b32 v{Sr(0)+i}, v{PM+i}, 0, v{Sr(8)+i}")
        return kread, qk, vread, pv, merge, cvt
    lg = LG(a)
    kread, qk, vread, pv, merge, cvt = mk(lg, 1, VrF)
    kread(0); kread(1); kread(2)
    def vdma(): dma(3, 51, 80*32768, 'V'); dma(4, 51, 81*32768, 'V'); dma(5, 52, 80*32768, 'V')
    if VL:
        a("v_mov_b32 v8, 0")
        self.vmem(f"buffer_load_dword v9, v8, {WS}, s47 offen sc1", 'vf')
    else: vdma()
    qk(0, 0); qk(0, 1); kread(3); qk(1, 0)
    def kr(n, h):
        t = order[n]; kb = KF + 8 * (n % 3)
        lg.op(f"ds_read_b128 {vr(kb+4*h)}, v{12+h} offset:{512*t}", ('K', n, h))
    def vr1(t, q):
        lg.op(f"ds_read_b64_tr_b16 {vr(VrF(t)+2*q,2)}, v14 offset:{(32*t+8*q)*16}", ('V', t, q >> 1))
    qs = []
    for n in range(1, 9):
        if n > 1: qs += [('w', lambda n=n: lg.need(('K', n, 1))), ('m', lambda n=n: qk(n, 0))]
        qs += [('m', lambda n=n: qk(n, 1), n)]
        if n + 3 < 9: qs += [('l', lambda n=n: kr(n + 3, 0)), ('l', lambda n=n: kr(n + 3, 1))]
    ls = []
    ps = []
    qdone = {order[0]}
    since = [0]
    slot = [0]; vat = {}
    def mf(urgent_q):
        if since[0] < opt('mgap', 32): return
        pok = ps and slot[0] - vat.get(ps[0][2], 1 << 30) >= 5
        if qs and qs[0][0] == 'm' and (urgent_q or not pok):
            it = qs.pop(0); it[1](); since[0] = 0
            if len(it) > 2: qdone.add(order[it[2]])
        elif pok:
            ps.pop(0)[1](); since[0] = 0
    def side():
        slot[0] += 1
        if qs and qs[0][0] != 'm': qs.pop(0)[1]()
        elif ls:
            it = ls.pop(0); it[1](); vat[it[2]] = slot[0] if it[3] == 3 else 1 << 30
        elif ps and ps[0][3] == 0 and slot[0] - vat.get(ps[0][2], 1 << 30) >= 4 and lg.pos[('V', ps[0][2], 1)] > lg.done:
            lg.need(('V', ps[0][2], 1))
        elif pf: pf.pop(0)()
    vok = False
    seq = (1, 8, 2, 3, 4, 5, 6, 7)
    vq = [1, 8, 0, 2, 3, 4, 5, 6, 7]
    vfree = {1}
    after = {1: [8], 8: [0, 2], 2: [3], 3: [4], 4: [5], 5: [6], 6: [7], 7: []}
    for idx, t in enumerate(seq):
        need = {8, 0} if t == 8 else {t}
        assert need <= qdone, (t, qdone)
        if t == 8: merge()
        nxt = set() if idx + 1 >= len(seq) else ({8, 0} if seq[idx + 1] == 8 else {seq[idx + 1]})
        for i in range(16):
            a(f"v_exp_f32 v{Sr(t)+i}, v{Sr(t)+i}")
            since[0] += 8
            mf(not nxt <= qdone)
            side()
        if t == 7:
            for it in ps: it[1]()
            ps = []
            break
        cvt(t)
        if VL and idx == 0:
            while len(pf) % 3: pf.pop(0)()
            self.wait_vm('vf')
            a("v_cmp_ne_u32 vcc, s48, v9\ns_cbranch_vccz L_p2_vok")
            self.pollw("s47", "s48", 8, 9)
            a("L_p2_vok:")
            vdma()
        since[0] += 32
        vfree |= set(after[t])
        for d in ([8, 0] if t == 8 else [t]):
            ps += [('m', lambda d=d: pv(d, 0), d, 0), ('m', lambda d=d: pv(d, 1), d, 1)]
        if t == opt('vbt', 2):
            self.wait_vm('V')
            self.bar()
            if opt('wdw', 1):
                a(f"v_lshlrev_b32 v225, 7, v1\ns_and_b32 s98, s{sWAVE}, 1\ns_lshl_b32 s98, s98, 8\ns_add_u32 s98, s98, s2\ns_lshl_b32 s98, s98, 13")
                for k, sr in enumerate([SRD_WD, SRD_WU]):
                    a(f"s_lshr_b32 s99, s{sWAVE}, 1\ns_cmp_lg_u32 s99, {3-k}\ns_cbranch_scc1 L_nowd{k}")
                    if k: a(f"s_add_u32 s98, s98, {64*8192}")
                    self.touch(srd(sr), 225, "s98", 0)
                    a(f"L_nowd{k}:")
                assert not pf
            vok = True
        while vok and vq and vq[0] in vfree:
            d = vq.pop(0)
            ls += [('l', lambda d=d, q=q: vr1(d, q), d, q) for q in range(4)]
    assert not qs and not ls and not vq and not pf
    a(".p2align 3")
    for sp in range(2):
        for i in range(4*sp, 4*sp+4): a(f"v_cvt_pk_bf16_f32 v{Sr(7)+i}, v{Sr(7)+2*i}, v{Sr(7)+2*i+1}")
        if sp == 1: pv(7, 0)
    pv(7, 1)
    pvq = []
    while pf: pf.pop(0)()
    a(f"""v_bfe_u32 v5, v1, 4, 1
    v_mul_u32_u24 v5, 20480, v5
    v_and_b32 v7, 15, v1
    v_lshl_add_u32 v6, v7, 3, v5
    v_lshl_add_u32 v5, v7, 4, v5
    v_mov_b32 v8, {OOB}
    v_cmp_eq_u32 vcc, 0, v3
    v_cndmask_b32 v6, v8, v6, vcc
    v_lshl_add_u32 v5, v3, 8, v5
    s_mul_i32 s54, s53, 40960
    s_add_u32 s54, s54, {OO}
    s_lshl_b32 s55, s40, 9
    s_add_u32 s55, s55, s54
    s_lshl_b32 s56, s40, 7
    s_add_u32 s56, s56, s54
    s_add_u32 s56, s56, 16384
    s_mov_b32 s57, {(127+64-(127-64))<<23}""")
    while pvq: pvq.pop(0)()
    a(f"""v_subrev_u32 v8, {(127-64)<<23}, v{OA+12}
    v_cmp_lt_u32 vcc, s57, v8
    s_cbranch_vccnz L_p2_slow
    L_p2_norm:
    v_rcp_f32 v8, v{OA+12}""")
    def slow():
        a("L_p2_slow:")
        a.settle()
        lg = LG(a)
        kread, qk, vread, pv, merge, cvt = mk(lg, 8)
        first = [True]
        def vmax(t):
            b = Sr(t)
            for i in range(0, 16, 4):
                if first[0]:
                    a(f"v_max_f32 v{M0}, v{b}, v{b+1}\nv_max_f32 v{M1}, v{b+2}, v{b+3}")
                    first[0] = False
                else:
                    a(f"v_max3_f32 v{M0}, v{M0}, v{b+i}, v{b+i+1}\nv_max3_f32 v{M1}, v{M1}, v{b+i+2}, v{b+i+3}")
        for n in range(9):
            kread(n); qk(n, 0); qk(n, 1)
        merge()
        for t in range(1, 9): vmax(t)
        a(f"""v_max_f32 v{M0}, v{M0}, v{M1}
        v_mov_b32 v{M1}, v{M0}
        v_permlane32_swap_b32 v{M0}, v{M1}
        v_max_f32 v{M0}, v{M0}, v{M1}""")
        for t in (8, 1, 2, 3, 4, 5, 6, 7):
            for i in range(16): a(f"v_sub_f32 v{Sr(t)+i}, v{Sr(t)+i}, v{M0}")
            for i in range(16): a(f"v_exp_f32 v{Sr(t)+i}, v{Sr(t)+i}")
            cvt(t)
            for d in ([8, 0] if t == 8 else [t]):
                vread(d); pv(d, 0); pv(d, 1)
        a.settle()
        a("s_branch L_p2_norm")
    self.tail.append(slow)
    for i in range(12): a(f"v_mul_f32 v{OA+i}, v{OA+i}, v8")
    for i in range(6): a(f"v_cvt_pk_bf16_f32 v{16+i}, v{OA+2*i}, v{OA+2*i+1}")
    a(f"buffer_store_dwordx4 v[16:19], v5, {WS}, s55 offen sc1")
    a(f"buffer_store_dwordx2 v[20:21], v6, {WS}, s56 offen sc1")
    self.stamp('p2cmp')
    self.stamp('p2cmp4', 4)
    if 'p2twice' in sys.argv:
        a("s_waitcnt vmcnt(0)\ns_barrier\nv_mov_b32 v5, v240\nv_mov_b32 v6, v241\ns_mov_b32 s55, s40\ns_mov_b32 s56, s42\ns_sub_u32 s59, s59, 4\ns_sub_u32 s61, s61, 1\ns_cmp_lg_u32 s61, 0\ns_cbranch_scc1 L_p2_again")
    sig96(self, 41, 4)
    if self.upto == 2: self.finish(M_S2, 'p2st')

def sig96(self, srb, wave):
    self.a(f"""s_lshl_b32 s52, s{srb}, 3
    s_mul_i32 s51, s52, 21846
    s_lshr_b32 s51, s51, 16
    s_add_u32 s52, s52, 7
    s_mul_i32 s52, s52, 21846
    s_lshr_b32 s52, s52, 16
    s_sub_u32 s52, s52, s51
    s_add_u32 s52, s52, 1
    s_mul_i32 s52, s52, 10
    s_mul_i32 s51, s51, 10
    v_add_u32 v247, s51, v1
    v_cmp_gt_u32 vcc, s52, v1""")
    self.sigprep(wave)

def p3_prefetch(self):
    a = self.a
    p5_coords(a, 58, 59, 60)
    self.w128_dma_voff(1280, 224, 5, 6)
    if opt('rot3', 0):
        a(f"s_mul_i32 s58, s61, {opt('rot3', 0)}\ns_lshr_b32 s58, s58, 1\ns_add_u32 s58, s58, 7\ns_and_b32 s58, s58, 7\ns_mul_i32 s58, s58, {80*1280}")
    a(f"""s_and_b32 s60, s{sWAVE}, 1
    s_lshl_b32 s60, s60, 6
    v_xor_b32 v224, s60, v224
    s_lshl_b32 s59, s59, 7
    s_lshr_b32 s60, s{sWAVE}, 2
    s_mul_i32 s60, s60, 5
    s_add_u32 s60, s60, s{sHW}
    s_lshr_b32 s61, s{sHW}, 1
    s_add_u32 s60, s60, s61
    s_mul_i32 s60, s60, {8*1280}
    s_add_u32 s60, s60, s59
    s_mul_i32 s61, s{sWAVE}, {40*1280}
    s_add_u32 s61, s61, s59
    s_lshl_b32 s59, s{sWAVE}, 10
    s_cmp_ge_u32 s2, 220
    s_cselect_b32 s60, {OOB//2}, s60
    s_cselect_b32 s61, {OOB//2}, s61""")
    out = []
    R3 = opt('rot3', 0)
    for n in range(10):
        if n < 8 and R3:
            g = f"s_add_u32 s58, s58, {80*1280}\ns_cmp_ge_u32 s58, {8*80*1280}\ns_cselect_b32 s58, 0, s58\ns_add_u32 s98, s60, s58"
        else: g = f"s_add_u32 s98, s60, {n*80*1280}" if n < 8 else f"s_add_u32 s98, s61, {(320*(n-8)+16)*1280}"
        out += [lambda n=n: a(f"s_add_u32 m0, s59, {8192*n}"), lambda g=g: a(g),
                lambda: self.vmem(f"buffer_load_dwordx4 v224, {srd(SRD_WO)}, s98 offen lds", 'wo')]
    return out

P3_A, P3_X, P3_ST = 81920, 143360, 155648
_o = dict(a.split('=') for a in __import__('sys').argv[1:] if '=' in a)
P4_SS = 45056
P4_TAB = 3 * P4_SS
RA, LA96 = 5, 3
W5PLAN = {int(x.split(':')[0]): int(x.split(':')[1]) for x in _o.get('w5plan', '7:2,8:5,9:4').split(',')}
P5_RW, P5_PRE = 20, sum(W5PLAN.values())
P5_SLOTS = [18, 19, 6, 7, 8, 9, 10, 11, 12, 13, 14, 15, 0, 1, 2, 3, 4, 5, 16, 17]
P5_EX = 11 * 8192
def p5_wslot(st): return 8192 * P5_SLOTS[st % P5_RW]

def p4_coords(a):
    a("""s_and_b32 s40, s2, 7
    s_min_u32 s41, s40, 3
    s_mul_i32 s40, s40, 30
    s_add_u32 s40, s40, s41
    s_lshr_b32 s41, s2, 3
    s_add_u32 s40, s40, s41
    s_mul_i32 s41, s40, 1041
    s_lshr_b32 s41, s41, 16
    s_mul_i32 s42, s41, 63
    s_sub_u32 s40, s40, s42
    s_cmp_eq_u32 s41, 3
    s_cselect_b32 s42, 6, 7
    s_mov_b32 s43, 9363
    s_cselect_b32 s43, 10923, s43
    s_mul_i32 s41, s41, 7
    s_add_u32 s41, s41, s40
    s_mul_i32 s40, s40, s43
    s_lshr_b32 s40, s40, 16
    s_mul_i32 s42, s42, s40
    s_sub_u32 s41, s41, s42""")

def n4_blocks(a, r, d, t):
    a(f"""s_mul_i32 s{d}, s{r}, {3*9363}
    s_add_u32 s{t}, s{d}, {2*9363}
    s_lshr_b32 s{d}, s{d}, 16
    s_lshr_b32 s{t}, s{t}, 16
    s_cmp_eq_u32 s{d}, s{t}
    s_cselect_b32 s{d}, 27, 54""")

def p5_coords(a, r, c, t):
    if opt('map5', 0):
        a(f"""s_and_b32 s{r}, s2, 7
        s_mul_i32 s{r}, s{r}, 27
        s_lshr_b32 s{c}, s2, 3
        s_add_u32 s{t}, s{r}, s{c}
        s_cmp_ge_u32 s2, 216
        s_cselect_b32 s{t}, s2, s{t}
        s_mul_i32 s{r}, s{t}, 6554
        s_lshr_b32 s{r}, s{r}, 16
        s_mul_i32 s{c}, s{r}, 10
        s_sub_u32 s{c}, s{t}, s{c}
        s_mov_b32 s{t+1}, s{c}""")
        return
    a(f"""s_bfe_u32 s{r}, s2, 0x20001
    s_add_u32 s{t+1}, s{r}, 108
    s_mul_i32 s{r}, s{r}, 27
    s_lshr_b32 s{c}, s2, 3
    s_add_u32 s{t}, s{r}, s{c}
    s_cmp_ge_u32 s2, 216
    s_cselect_b32 s{t}, s{t+1}, s{t}
    s_mul_i32 s{r}, s{t}, 13108
    s_lshr_b32 s{r}, s{r}, 16
    s_mul_i32 s{c}, s{r}, 5
    s_sub_u32 s{t+1}, s{t}, s{c}
    s_and_b32 s{c}, s2, 1
    s_mul_i32 s{c}, s{c}, 5
    s_add_u32 s{c}, s{c}, s{t+1}""")

def tail345(self):
    a = self.a
    self.tail.append(lambda: idle_code(self))
    a(f"s_cmp_ge_u32 s{sWAVE}, 4\ns_cbranch_scc1 L_h345")
    self.nbar = 0
    marks_c = []
    p3_c(self); marks_c.append(self.nbar)
    if self.upto >= 4: p4_c(self); marks_c.append(self.nbar)
    if self.upto >= 5: p5_c(self); marks_c.append(self.nbar)
    a("s_endpgm")
    a("L_h345:")
    self.nbar = 0
    marks_h = []
    p3_h(self); marks_h.append(self.nbar)
    if self.upto >= 4: p4_h(self); marks_h.append(self.nbar)
    if self.upto >= 5: p5_h(self); marks_h.append(self.nbar)
    assert marks_c == marks_h, (marks_c, marks_h)

G_FR, G_ACC = 16, 96
def g96_loop(self, nst, aread, wread, hook=None):
    a = self.a
    FR, ACC = G_FR, G_ACC
    lg = LG(a)
    def reads(st):
        fb = FR + 40 * (st & 1)
        out = []
        for j in range(2):
            W = lambda nu: [(wread(st, j, nu, t, fb + 20*j + 12 + 4*nu + 2*t), ('W', st, j, nu)) for t in range(2)]
            X = lambda i: [(r, ('X', st, j, i)) for r in aread(st, j, i, fb + 20*j + 4*i)]
            out += W(0) + X(0) + W(1) + X(1) + X(2)
        return out
    for r in reads(0): lg.op(*r)
    for st in range(nst):
        nxt = []
        fb = FR + 40 * (st & 1)
        k = 0; n = 0
        for j in range(2):
            for mu in range(3):
                for nu in range(2):
                    if n == 1 and st + 1 < nst:
                        self.bar()
                        nxt = reads(st + 1)
                    ac = ACC + 8 * mu + 4 * nu
                    c = "0" if (st == 0 and j == 0) else vr(ac)
                    if st > 0 and mu == 0 and nu == 0: lg.need(('X', st, j, 2))
                    lg.need(('W', st, j, nu), ('X', st, j, mu))
                    a(f"v_mfma_f32_16x16x32_bf16 {vr(ac)}, {vr(fb+20*j+12+4*nu)}, {vr(fb+20*j+4*mu)}, {c}")
                    left = len(nxt) - k
                    for _ in range(-(-left // (12 - n)) if nxt else 0):
                        lg.op(*nxt[k]); k += 1
                    n += 1
        assert k == len(nxt)
        if hook: hook(st, lg)
    return lg

def p3_c(self):
    a = self.a
    self.vm = VM()
    ACC = G_ACC
    p5_coords(a, 40, 41, 42)
    a(f"""s_and_b32 s48, s{sWAVE}, 1
    s_lshr_b32 s49, s{sWAVE}, 1
    v_and_b32 v2, 15, v1
    v_lshrrev_b32 v3, 4, v1""")
    self.w128_read_addr(14, 4)
    a(f"""s_lshl_b32 s50, s49, 6
    v_xor_b32 v14, s50, v14
    v_xor_b32 v11, 32, v14
    v_add_u32 v12, 40960, v14
    v_add_u32 v13, 40960, v11
    s_mul_i32 s50, s48, 6144
    s_add_u32 s50, s50, {P3_A}
    v_lshl_add_u32 v8, v1, 4, s50
    v_lshlrev_b32 v9, 8, v3
    v_lshl_add_u32 v9, v2, 3, v9
    v_add_u32 v9, s50, v9""")
    a(f"""v_lshrrev_b32 v7, 1, v3
    s_lshl_b32 s50, s49, 2
    v_add_u32 v4, s50, v7
    v_and_b32 v5, 7, v2
    v_xor_b32 v4, v4, v5
    v_lshlrev_b32 v4, 4, v4
    v_lshl_add_u32 v4, v2, 7, v4
    v_and_b32 v5, 1, v3
    v_lshl_add_u32 v4, v5, 3, v4
    s_mul_i32 s50, s48, 6144
    s_add_u32 s50, s50, {P3_X}
    v_add_u32 v4, s50, v4
    v_xor_b32 v10, 32, v4""")
    a(f"""v_lshlrev_b32 v6, 9, v5
    v_lshl_add_u32 v6, v7, 8, v6
    v_lshl_add_u32 v6, v2, 4, v6
    s_lshl_b32 s50, s40, 1
    s_add_u32 s50, s50, s48
    s_mul_i32 s50, s50, {3*20480}
    s_lshl_b32 s53, s41, 1
    s_add_u32 s53, s53, s49
    s_lshl_b32 s53, s53, 10
    s_add_u32 s53, s53, s50
    s_add_u32 s53, s53, {HH}""")
    a(f"""v_lshlrev_b32 v15, 3, v2
    v_lshl_add_u32 v15, v5, 2, v15
    s_mul_i32 s50, s{sWAVE}, 384
    s_add_u32 s50, s50, {P3_ST}
    v_add_u32 v15, s50, v15""")
    self.finish(M_S2, 'p2st')
    a("s_cmp_ge_u32 s2, 220\ns_cbranch_scc1 L_idle")
    a("s_mov_b64 s[62:63], 0")
    self.bar()
    self.bar()
    self.stamp('p3b0')
    XR = 120
    def aread(st, j, i, dst):
        off = (st % RA) * 12288 + 2048 * i + 1024 * j
        if st < 8: return [f"ds_read_b128 {vr(dst)}, v8 offset:{off}"]
        return [f"ds_read_b64 {vr(dst+2*e,2)}, v9 offset:{off+128*e}" for e in range(2)]
    def wread(st, j, nu, t, dst):
        b = (14, 11, 12, 13)[2 * (st >= 5) + nu]
        return f"ds_read_b64_tr_b16 {vr(dst,2)}, v{b} offset:{8192*(st%5)+4096*j+512*t}"
    def hook(st, lg):
        if st == (7 if opt('xlate', 0) else 4):
            for mu in range(3):
                for nu in range(2):
                    lg.op(f"ds_read_b64 {vr(XR+4*mu+2*nu,2)}, v{10 if nu else 4} offset:{2048*mu}", 'xr')
        if st == (8 if opt('xlate', 0) else 6):
            lg.need('xr')
            for i in range(12):
                a(f"v_lshlrev_b32 v{136+2*i}, 16, v{XR+i}\nv_and_b32 v{137+2*i}, 0xffff0000, v{XR+i}")
    g96_loop(self, 10, aread, wread, hook)
    self.stamp('p3loop')
    a(".p2align 3")
    for i in range(12): a(f"v_pk_add_f32 {vr(136+2*i,2)}, {vr(136+2*i,2)}, {vr(ACC+2*i,2)}")
    for i in range(12): a(f"v_cvt_pk_bf16_f32 v{160+i}, v{136+2*i}, v{137+2*i}")
    for mu in range(3):
        pk = 160 + 4 * mu
        a(f"v_permlane16_swap_b32 v{pk}, v{pk+2}\nv_permlane16_swap_b32 v{pk+1}, v{pk+3}")
        a(f"buffer_store_dwordx4 {vr(pk)}, v6, {WS}, s53 offen sc1")
        if mu < 2: a("s_add_u32 s53, s53, 20480")
    self.stamp('p3epi')
    self.finish(M_S3, 'p3st')
    for mu in range(3):
        b = 136 + 8 * mu
        a(f"v_pk_add_f32 {vr(176+4*mu,2)}, {vr(b,2)}, {vr(b+2,2)}\nv_pk_mul_f32 {vr(178+4*mu,2)}, {vr(b,2)}, {vr(b,2)}")
    for i in range(1, 4):
        for mu in range(3):
            b = 136 + 8 * mu + 2 * i
            if i > 1: a(f"v_pk_add_f32 {vr(176+4*mu,2)}, {vr(176+4*mu,2)}, {vr(b,2)}")
            a(f"v_pk_fma_f32 {vr(178+4*mu,2)}, {vr(b,2)}, {vr(b,2)}, {vr(178+4*mu,2)}")
    for mu in range(3): a(f"v_add_f32 v{176+4*mu}, v{176+4*mu}, v{177+4*mu}\nv_add_f32 v{177+4*mu}, v{178+4*mu}, v{179+4*mu}")
    for mu in range(3): a(f"v_permlane16_swap_b32 v{176+4*mu}, v{177+4*mu}")
    for mu in range(3): a(f"v_add_f32 v{176+4*mu}, v{176+4*mu}, v{177+4*mu}")
    for mu in range(3): a(f"v_mov_b32 v{177+4*mu}, v{176+4*mu}")
    for mu in range(3): a(f"v_permlane32_swap_b32 v{176+4*mu}, v{177+4*mu}")
    for mu in range(3): a(f"v_add_f32 v{176+4*mu}, v{176+4*mu}, v{177+4*mu}")
    for mu in range(3): a(f"ds_write_b32 v15, v{176+4*mu} offset:{128*mu}")
    a("L_p4_c_in:")
    if self.upto >= 4: p4_c_pre(self)
    a("s_waitcnt lgkmcnt(0)")
    if self.upto == 3: self.bar()

def g96_apieces(a, pitch, vb):
    a(f"s_mul_i32 s76, s{sHW}, 3")
    for i in range(3):
        a(f"""s_add_u32 s77, s76, {i}
        s_lshr_b32 s79, s77, 1
        s_mul_i32 s78, s79, {pitch}
        s_and_b32 s77, s77, 1
        s_lshl_b32 s77, s77, 10
        s_add_u32 s78, s78, s77
        s_add_u32 s78, s78, {4096 - 1024*i}
        s_mul_i32 s77, s64, 6
        s_add_u32 s77, s77, s79
        s_cmp_ge_u32 s77, 128
        s_cselect_b32 s78, {OOB//2}, s78
        v_lshl_add_u32 v{vb+i}, v1, 4, s78""")

def p3_h(self):
    a = self.a
    self.vm = VM()
    p5_h_pre(self)
    g96_apieces(a, 20480, 105)
    a(f"""v_lshrrev_b32 v10, 3, v1
    v_and_b32 v11, 7, v1
    v_xor_b32 v11, v11, v10
    v_mul_u32_u24 v108, 1280, v10
    v_lshl_add_u32 v108, v11, 4, v108
    s_lshl_b32 s44, s64, 2
    s_add_u32 s44, s44, s{sHW}
    s_mul_i32 s44, s44, {24*1280}
    s_lshl_b32 s45, s65, 7
    s_add_u32 s44, s44, s45
    s_mul_i32 s45, s64, {6*20480}
    s_add_u32 s45, s45, {OO - 4096}
    s_sub_u32 s46, s72, {4*(M_S4-M_S2)}
    s_mul_i32 s47, s64, 3
    s_add_u32 s48, s47, 2
    s_min_u32 s48, s48, 63
    s_lshr_b32 s47, s47, 3
    s_lshr_b32 s48, s48, 3
    s_cmp_eq_u32 s47, s48
    s_cselect_b32 s47, 32, 64""")
    self.finish(M_S2, 'p2st_h')
    a("s_cmp_ge_u32 s2, 220\ns_cbranch_scc1 L_idle")
    def xdma():
        for i in range(3):
            a(f"s_add_u32 m0, s70, {P3_X + 1024*i}")
            self.vmem(f"buffer_load_dwordx4 v108, {srd(SRD_X)}, s44 offen lds", 'x')
            if i < 2: a(f"s_add_u32 s44, s44, {8*1280}")
    if not opt('xlate', 0): xdma()
    a(f"""s_mul_i32 s50, s64, {3*9363}
    s_lshr_b32 s50, s50, 16
    s_mul_i32 s50, s50, 27
    v_add_u32 v247, s50, v1
    s_cmp_eq_u32 s64, 21
    s_cselect_b32 s50, 13, s73
    v_cmp_gt_u32 vcc, s50, v1
    s_lshl_b32 s60, 0x11111111, s{sHW}
    s_mov_b32 s61, s60
    s_and_b64 s[60:61], s[60:61], vcc""")
    self.sigprep(4)
    self.poll1(5, "s46", "s47", 8, 9)
    self.stamp('p3poll', 4)
    if opt('rot3', 0): a(f"s_mul_i32 s48, s67, {opt('rot3', 0)}\ns_lshr_b32 s48, s48, 1")
    def adma(st):
        if st < 8 and opt('rot3', 0): a(f"s_and_b32 s48, s48, 7\ns_lshl_b32 s49, s48, 11\ns_add_u32 s49, s49, s45\ns_add_u32 s48, s48, 1")
        else: a(f"s_add_u32 s49, s45, {2048*st}")
        a(f"s_add_u32 m0, s70, {P3_A + (st % RA)*12288}")
        for i in range(3):
            self.vmem(f"buffer_load_dwordx4 v{105+i}, {WS}, s49 offen offset:{1024*i} sc1 lds", ('p3', st))
    for st in range(4): adma(st)
    a(f"""s_lshl_b32 s50, s{sHW}, 8
    v_lshl_add_u32 v12, v1, 2, s50
    v_add_u32 v13, {P3_ST}, v12
    s_lshl_b32 s54, s65, 15
    s_mul_i32 s55, s64, 768
    s_add_u32 s54, s54, s55
    s_add_u32 s54, s54, {ST2}
    s_cmp_eq_u32 s{sHW}, 3
    s_cselect_b32 s54, {OOB//2}, s54""")
    for st in range(10):
        self.wait_vm(('p3', st))
        self.bar()
        if st == 5 and opt('xlate', 0): xdma()
        if st >= 1 and st + LA96 < 10: adma(st + LA96)
    if self.upto >= 4: p4_h_pre(self)
    self.finish(M_S3, 'p3st_h')
    if self.upto == 3:
        self.bar(); st2_store(self)

def st2_store(self):
    self.a("""ds_read_b32 v14, v13
    ds_read_b32 v15, v13 offset:768
    s_waitcnt lgkmcnt(0)
    v_add_f32 v14, v14, v15""")
    self.vmem(f"buffer_store_dword v14, v12, {WS}, s54 offen sc1", 'st2st')

def aux_signal(self):
    self.a(f"""v_mov_b32 v246, 1
    s_mov_b64 exec, s[60:61]""")
    self.vmem(f"buffer_atomic_add v246, v247, {WS}, 0 offen offset:{4*M_CS4} sc1", 'aux')
    self.a("s_mov_b64 exec, -1")

def p4_c_pre(self):
    a = self.a
    T = P4_TAB
    p4_coords(a)
    a(f"""s_mul_i32 s50, s48, 14336
    v_lshl_add_u32 v8, v1, 4, s50
    v_add_u32 v10, 28672, v14
    v_xor_b32 v11, 32, v10
    s_mul_i32 s50, s48, 1792
    s_add_u32 s50, s50, {T}
    v_lshl_add_u32 v4, v2, 4, s50
    s_lshl_b32 s50, s49, 7
    s_add_u32 s50, s50, {T+4096}
    v_lshl_add_u32 v5, v3, 4, s50""")
    a(f"""v_and_b32 v6, 1, v3
    v_lshlrev_b32 v6, 9, v6
    v_lshrrev_b32 v7, 1, v3
    v_lshl_add_u32 v6, v7, 8, v6
    v_lshl_add_u32 v6, v2, 4, v6
    s_lshl_b32 s50, s40, 1
    s_add_u32 s50, s50, s48
    s_mul_i32 s50, s50, {7*216*256}
    s_lshl_b32 s51, s41, 1
    s_add_u32 s51, s51, s49
    s_lshl_b32 s51, s51, 10
    s_add_u32 s50, s50, s51
    s_add_u32 s50, s50, {HP}""")

def glu_epilogue(a, units, PK, store, hook=None):
    NEG = "op_sel_hi:[1,0,1] neg_lo:[0,1,0] neg_hi:[0,1,0]"
    def A(u):
        b, cs, st = units[u]
        o = [f"v_pk_fma_f32 {vr(b+2*h,2)}, {vr(cs+2*h,2)}, {vr(st,2)}, {vr(b+2*h,2)} {NEG}" for h in range(4)]
        o += [f"v_pk_mul_f32 {vr(b+2*h,2)}, {vr(b+2*h,2)}, {vr(st,2)} op_sel:[0,1] op_sel_hi:[1,1]" for h in range(4)]
        o += [f"v_exp_f32 v{b+i}, v{b+i}" for i in range(8)]
        o += [f"v_pk_fma_f32 {vr(b+2*h,2)}, {vr(cs+2*h,2)}, {vr(st,2)}, {vr(b+2*h,2)} {NEG}" for h in range(4, 8)]
        o += [f"v_pk_fma_f32 {vr(b+2*h,2)}, {vr(b+2*h,2)}, {vr(st+2,2)}, {vr(st+2,2)} op_sel_hi:[1,0,0]" for h in range(4)]
        o += [f"v_rcp_f32 v{b+i}, v{b+i}" for i in range(8)]
        return o
    def B(u):
        b = units[u][0]; pk = PK + 4 * (u % 4)
        o = [f"v_pk_mul_f32 {vr(b+2*h,2)}, {vr(b+2*h,2)}, {vr(b+8+2*h,2)}" for h in range(4)]
        o += [f"v_cvt_pk_bf16_f32 v{pk+h}, v{b+2*h}, v{b+2*h+1}" for h in (0, 2, 1, 3)]
        return o
    def C(u):
        pk = PK + 4 * (u % 4)
        return [f"v_permlane16_swap_b32 v{pk}, v{pk+2}", f"v_permlane16_swap_b32 v{pk+1}, v{pk+3}"] + store(u, pk)
    n = len(units)
    for u in range(n + 1):
        cur = A(u) if u < n else []
        for i, t in enumerate(cur[:4] + (B(u - 1) if u else []) + cur[4:8] + (C(u - 1) if u else []) + cur[8:]):
            a(t)
            if hook: hook(u, i, t)

def p4_c(self):
    a = self.a
    WF, XF, ACC = 16, 80, 128
    a("""s_mul_i32 s51, s40, 152922
    s_lshr_b32 s51, s51, 16
    s_mul_i32 s51, s51, 10
    v_add_u32 v247, s51, v1
    v_cmp_gt_u32 vcc, 30, v1""")
    self.sigprep(0)
    lg = LG(a)
    def wr(S): return [(f"ds_read_b64_tr_b16 {vr(WF+32*(S&1)+8*nu+4*e+2*t,2)}, v{10+(nu&1)} offset:{8192*(nu>>1)+4096*e+512*t}", ('W', S, nu))
                       for nu in range(4) for e in range(2) for t in range(2)]
    def xr(q): return [(f"ds_read_b128 {vr(XF+8*(q%4)+4*e)}, v8 offset:{2048*(q%7)+1024*e}", ('X', q)) for e in range(2)]
    self.bar()
    self.bar()
    self.stamp('p4b0')
    w0 = wr(0)
    for r in w0[:4] + xr(0) + w0[4:] + xr(1) + xr(2): lg.op(*r)
    ST, CSR, PK = 16, 112, 48
    for S in range(10):
        wq = []
        for mu in range(7):
            q = 7 * S + mu
            if mu == 4:
                lg.drain()
                self.bar()
                if S < 9: wq = wr(S + 1)
                else:
                    wq = [(f"ds_read_b128 {vr(CSR+4*k)}, v5 offset:{256*(k>>1)+64*(k&1)}", None) for k in range(4)]
                    wq += [(f"ds_read_b128 {vr(ST+4*k)}, v4 offset:{256*k}", None) for k in range(7)]
            xq = xr(q + 3) if q + 3 < 70 else []
            if q == 0: xq = []
            if q == 1:
                self.bar()
                xq = xr(3) + xr(4)
            if S > 0 and mu == 0: lg.need(('W', S, 3))
            lg.need(('X', q))
            for n in range(8):
                nu, e = n >> 1, n & 1
                ac = ACC + 16 * mu + 4 * nu
                if S == 0 and mu == 0: lg.need(('W', 0, nu))
                c = "0" if (S == 0 and e == 0) else vr(ac)
                a(f"v_mfma_f32_16x16x32_bf16 {vr(ac)}, {vr(WF+32*(S&1)+8*nu+4*e)}, {vr(XF+8*(q%4)+4*e)}, {c}")
                if xq: lg.op(*xq.pop(0))
                elif wq: lg.op(*wq.pop(0))
                if mu == 3 and S < 9 and n in (3, 4, 5):
                    d = (P4_SS if S % 3 < 2 else -2 * P4_SS) & 0xffffffff
                    r = (8, 10, 11)[n - 3]; a(f"v_add_u32 v{r}, {d}, v{r}")
                if mu == 3 and n == 6: lg.drain()
        assert not wq
    lg.drain()
    self.stamp('p4loop')
    a(".p2align 3")
    hook = None
    glu_epilogue(a, [(ACC + 16 * mu, CSR, ST + 4 * mu) for mu in range(7)], PK,
                 lambda u, pk: [f"buffer_store_dwordx4 {vr(pk)}, v6, {WS}, s50 offen sc1", f"s_add_u32 s50, s50, {216*256}"], hook)
    if hook:
        assert not pre
        a("s_waitcnt lgkmcnt(0)")
    self.stamp('p4epi')
    a("L_p5_c_pre:")
    if self.upto >= 5: p5_c_pre(self)
    self.finish(M_S4, 'p4st')
    a("s_cmp_ge_u32 s2, 220\ns_cbranch_scc1 L_end")

def p4_h_pre(self):
    a = self.a
    p4_coords(a)
    self.w128_dma_voff(3456, 3, 10, 11)
    a(f"""v_xor_b32 v4, 64, v3
    v_add_u32 v4, {8*3456-1024}, v4
    v_lshlrev_b32 v2, 4, v1
    v_add_u32 v5, {20480-2048}, v2
    s_lshr_b32 s42, s{sHW}, 1
    s_and_b32 s43, s{sHW}, 1
    s_lshl_b32 s43, s43, 10
    s_lshl_b32 s44, s40, 1
    s_add_u32 s44, s44, s42
    s_mul_i32 s44, s44, {7*20480}
    s_add_u32 s44, s44, s43
    s_add_u32 s44, s44, {HH}
    s_mul_i32 s47, s42, 14336
    s_add_u32 s47, s47, s43
    s_mul_i32 s45, s{sHW}, {16*3456}
    s_lshl_b32 s46, s41, 7
    s_add_u32 s45, s45, s46
    s_lshl_b32 s46, s{sHW}, 11
    s_lshl_b32 s43, s{sHW}, 10
    s_mul_i32 s50, s40, 27
    s_add_u32 s50, s50, s41
    s_lshl_b32 s50, s50, 7
    s_add_u32 s51, s50, {4*M_S3}
    s_add_u32 s50, s50, {4*M_CS4}
    s_mov_b32 s56, 30""")

def p4_h(self):
    a = self.a
    T = P4_TAB
    LA = 2
    self.vm = VM()
    a("L_p4_h_in:")
    NWP = opt('w4p', 3)
    w5n = [0]
    def wdma(S):
        a(f"s_add_u32 s58, s45, {S*64*3456}")
        for k, sr in enumerate((SRD_WG, SRD_WU)):
            a(f"s_add_u32 m0, s46, {(S%3)*P4_SS + 28672 + 8192*k}")
            for i in range(2): self.vmem(f"buffer_load_dwordx4 v{3+i}, {srd(sr)}, s58 offen offset:{1024*i} lds", ('p4', S))
    def dma(S):
        for i in range(7):
            if i % 2 == 0: a(f"s_add_u32 m0, s47, {(S%3)*P4_SS + 2048*i}\ns_add_u32 s59, s44, {2048*S + 20480*i}")
            self.vmem(f"buffer_load_dwordx4 v{5 if i & 1 else 2}, {WS}, s59 offen offset:{2048*(i&1)} sc1 lds", ('p4a', S) if i < 3 else ('p4', S))
        if S >= NWP: wdma(S)
    for S in range(NWP): wdma(S)
    self.poll1(5, "s51", "s56", 8, 9)
    a("v_mov_b32 v8, 0")
    if opt('dbgw', 0):
        a(f"s_memrealtime s[100:101]\ns_waitcnt lgkmcnt(0)\ns_mov_b32 s99, s100\nL_dbgw:\ns_memrealtime s[100:101]\ns_waitcnt lgkmcnt(0)\ns_sub_u32 s100, s100, s99\ns_cmp_lt_u32 s100, {opt('dbgw', 0)}\ns_cbranch_scc1 L_dbgw")
    self.stamp('p4poll', 4)
    for st in range(LA): dma(st)
    a(f"""v_lshlrev_b32 v9, 2, v1
    s_mul_i32 s48, s40, 1792
    s_lshl_b32 s49, s{sHW}, 9
    s_add_u32 s48, s48, s49
    s_add_u32 s48, s48, {ST2}
    v_lshrrev_b32 v16, 5, v1
    v_and_b32 v17, 31, v1
    v_lshlrev_b32 v7, 15, v16
    v_lshl_add_u32 v7, v17, 4, v7
    v_lshl_add_u32 v18, v17, 1, v16
    v_lshrrev_b32 v16, 4, v1
    v_mul_u32_u24 v9, {3456*4}, v16
    v_and_b32 v19, 15, v1
    v_lshl_add_u32 v9, v19, 4, v9
    s_and_b32 s52, s{sHW}, 1
    s_mul_i32 s49, s52, {1728*4}
    s_lshl_b32 s53, s41, 8
    s_add_u32 s49, s49, s53
    s_add_u32 s49, s49, {CS4}
    s_add_u32 s56, s56, 8""")
    self.wait_vm(('p4a', 0))
    self.bar()
    for st in range(10):
        self.wait_vm(('p4', st))
        self.bar()
        self.sstamp(f'h4b{st}')
        if st == 0: st2_store(self)
        if st + LA < 10: dma(st + LA)
        if st == LA:
            aux_signal(self)
        if st == 4:
            self.vmem(f"buffer_load_dword v36, v8, {WS}, s50 offen sc1", 'mb')
        if st == 5:
            self.wait_vm('mb')
            a("v_cmp_ne_u32 vcc, s56, v36\ns_cbranch_vccz L_p4_csok")
            keep = list(self.vm.ops)
            self.poll("s50", "s56", 8, 36)
            self.vm.ops = keep
            a("L_p4_csok:")
        for q in {5: range(0, 3), 6: range(3, 6)}.get(st, []):
            if q < 5:
                self.vmem(f"buffer_load_dwordx4 {vr(40+4*q)}, v7, {WS}, s48 offen sc1", ('st2', q))
                a("s_add_u32 s48, s48, 65536")
            else: self.vmem(f"buffer_load_dwordx4 v[32:35], v9, {WS}, s49 offen sc1", ('st2', q))
        if st == 8:
            self.wait_vm(('st2', 5))
            for q in range(1, 5):
                for i in range(4): a(f"v_add_f32 v{40+i}, v{40+i}, v{40+4*q+i}")
            a(f"""v_permlane32_swap_b32 v40, v42
            v_permlane32_swap_b32 v41, v43
            v_permlane32_swap_b32 v32, v34
            v_permlane32_swap_b32 v33, v35
            v_add_f32 v16, v40, v42
            v_add_f32 v17, v41, v43
            v_add_f32 v32, v32, v34
            v_add_f32 v33, v33, v35
            v_mov_b32 v20, {f32hex(1.0/D)}
            v_mul_f32 v12, v16, v20
            v_permlane16_swap_b32 v32, v33
            v_mul_f32 v17, v17, v20
            v_fma_f32 v17, -v12, v12, v17
            v_max_f32 v17, 0, v17
            v_add_f32 v17, {f32hex(1e-5)}, v17
            v_rsq_f32 v13, v17
            v_sqrt_f32 v14, v17
            v_add_f32 v32, v32, v33
            v_mov_b32 v15, 0
            v_mul_f32 v13, {f32hex(-LOG2E)}, v13
            s_lshl_b32 s52, s52, 8
            s_add_u32 s52, s52, {T+4096}
            v_lshrrev_b32 v16, 4, v1
            v_lshl_add_u32 v10, v19, 2, v16
            v_lshl_add_u32 v10, v10, 2, s52
            s_add_u32 s52, s43, {T}
            v_lshl_add_u32 v11, v18, 4, s52""")
        if st == opt('tw', 9): a("ds_write_b32 v10, v32\nds_write_b128 v11, v[12:15]")
        if self.upto >= 5:
            for _ in range(W5PLAN.get(st, 0)):
                k = w5n[0]; w5n[0] += 1
                assert k < (2 if st < 8 else 7 if st == 8 else 12)
                p5_wdma(self, k)
    a("s_waitcnt lgkmcnt(0)")
    self.sdump(6)
    self.bar()
    a("L_p5_h_pre:")
    if self.upto >= 5:
        E = opt('w5e', 18)
        for st in range(P5_PRE, E):
            p5_wdma(self, st)
        self.wait_vm(('p5w', min(12, E - 1)))
    self.bar()
    a("s_cmp_ge_u32 s2, 220\ns_cbranch_scc1 L_end")

def idle_code(self):
    a = self.a
    self.vm = VM()
    a(f"""L_idle:
    s_mul_i32 s40, s{sWAVE}, 36
    s_add_u32 s40, s40, s2
    s_sub_u32 s40, s40, 220
    s_cmp_ge_u32 s40, 216
    s_cbranch_scc1 {'L_ct2' if opt('ct2', 1) else 'L_cs4_done'}
    s_mul_i32 s46, s40, 1214
    s_lshr_b32 s46, s46, 16
    s_mul_i32 s41, s46, 54
    s_sub_u32 s40, s40, s41
    s_cmp_ge_u32 s40, 27
    s_cselect_b32 s44, 27, 0
    s_cselect_b32 s56, s{SRD_WU}, s{SRD_WG}
    s_cselect_b32 s57, s{SRD_WU+1}, s{SRD_WG+1}
    s_mov_b32 s58, {D*F*2}
    s_mov_b32 s59, 0x20000
    s_sub_u32 s45, s40, s44
    s_lshl_b32 s47, s45, 7
    s_mul_i32 s41, s46, {160*3456}
    s_add_u32 s47, s47, s41
    s_mul_i32 s50, s{sWAVE}, 20480""")
    self.colsum_issue("s[56:59]", 3456, 47, 50, 16, 17, 18)
    a(f"""s_mul_i32 s47, s46, {3456*4}
    s_lshl_b32 s41, s40, 8
    s_add_u32 s47, s47, s41
    s_add_u32 s47, s47, {CS4}
    s_waitcnt vmcnt(0)""")
    self.colsum_finish(50, 47, 16)
    a(f"""v_mul_u32_u24 v16, 27, v1
    v_add_u32 v16, s45, v16
    v_cmp_gt_u32 vcc, 9, v1
    s_waitcnt vmcnt(0)""")
    self.signal(16, M_CS4, 17)
    if opt('ct2', 1):
        a(f"s_branch L_cs4_done\nL_ct2:\ns_sub_u32 s41, s{sWAVE}, 6\ns_mul_i32 s41, s41, 3")
        self.code_touch('b', 41, 3)
        a("s_waitcnt vmcnt(0)")
    a("L_cs4_done:")
    a.settle()
    self.stamp('csdone')
    a("s_barrier")
    if self.upto < 4:
        a("s_endpgm"); return
    a(f"""s_cmp_ge_u32 s2, 243
    s_cbranch_scc1 L_rem
    s_cmp_lt_u32 s{sWAVE}, 4
    s_cbranch_scc1 L_p4_c_in""")
    p4_h_pre(self)
    a(f"""s_mov_b32 s54, {OOB//2}
    v_mov_b32 v12, 0
    v_mov_b32 v13, 0
    v_mov_b32 v247, {OOB//2}
    s_mov_b64 s[60:61], 1
    s_branch L_p4_h_in""")
    p4_rem(self)

def p4_rem(self):
    a = self.a
    SL = 10240
    ACC, CS, RS, SQ, ONES, FR, FR2, ST, PK = 64, 128, 160, 168, 176, 16, 200, 180, 16
    base = {5: 1, 6: 3, 12: 5, 0: 7, 7: 9, 8: 11, 10: 13, 1: 15, 2: 17, 9: 19, 3: 21, 4: 23, 11: 25}
    tab = sum(((base[i] - 1) // 2) << (4 * i) for i in range(13))
    a(f"""L_rem:
    s_sub_u32 s41, s2, 243
    s_lshl_b32 s41, s41, 2
    s_mov_b32 s44, {tab & 0xffffffff}
    s_mov_b32 s45, {tab >> 32}
    s_lshr_b64 s[44:45], s[44:45], s41
    s_and_b32 s41, s44, 15
    s_cmp_eq_u32 s41, 0
    s_cselect_b32 s44, 3, 2
    s_cmp_ge_u32 s{sWAVE}, s44
    s_cbranch_scc1 L_end
    s_lshl_b32 s41, s41, 1
    s_add_u32 s41, s41, 2
    s_sub_u32 s41, s41, s{sWAVE}""")
    self.w128_dma_voff(3456, 4, 10, 11)
    self.w128_read_addr(10, 2)
    a(f"""v_xor_b32 v5, 64, v4
    v_add_u32 v5, {8*3456-1024}, v5
    v_add_u32 v6, {2*(8*3456-1024)}, v4
    v_add_u32 v7, {2*(8*3456-1024)}, v5
    v_lshlrev_b32 v8, 4, v1
    v_add_u32 v9, {20480-1024}, v8
    s_mul_i32 s42, s{sWAVE}, {5*SL}
    v_add_u32 v10, s42, v10
    v_xor_b32 v11, 32, v10
    v_xor_b32 v12, 64, v10
    v_xor_b32 v13, 96, v10
    v_add_u32 v14, s42, v8
    v_and_b32 v2, 15, v1
    v_lshrrev_b32 v3, 4, v1
    s_lshl_b32 s44, s41, 7
    s_mov_b32 s45, {HH + 126*20480}
    s_lshl_b32 s46, s2, 7
    s_add_u32 s46, s46, {4*M_S3}""")
    for i in range(ONES - ACC): a(f"v_mov_b32 v{ACC+i}, 0")
    for i in range(4): a(f"v_mov_b32 v{ONES+i}, 0x3f803f80")
    def wd(m0):
        o = []
        for k, sr in enumerate((SRD_WG, SRD_WU)):
            o.append(f"s_add_u32 m0, {m0}, {4096*k}")
            o += [f"buffer_load_dwordx4 v{4+i}, {srd(sr)}, s44 offen offset:{1024*i} lds" for i in range(4)]
        return o + [f"s_add_u32 s44, s44, {32*3456}"]
    def xd(m0):
        return [f"s_add_u32 m0, {m0}, 8192"] + [f"buffer_load_dwordx4 v{8+i}, {WS}, s45 offen offset:{1024*i} sc1 lds" for i in range(2)] + ["s_add_u32 s45, s45, 1024"]
    for i in range(5):
        a(f"s_add_u32 s47, s42, {SL*i}")
        for t in wd("s47"): a(t)
    self.pollw("s46", 10, 15, 248)
    for i in range(5):
        a(f"s_add_u32 s47, s42, {SL*i}")
        for t in xd("s47"): a(t)
    def rds(F):
        return [f"ds_read_b128 {vr(F+4*m)}, v14 offset:{8192+1024*m}" for m in range(2)] + \
               [f"ds_read_b64_tr_b16 {vr(F+8+4*n+2*t,2)}, v{10+(n&3)} offset:{4096*(n>>2)+512*t}" for n in range(8) for t in range(2)]
    a("s_mov_b32 s47, s42\ns_mov_b32 s48, 0\ns_mov_b32 s49, 0\ns_waitcnt vmcnt(0)")
    for t in rds(FR): a(t)
    a("L_rem_l:")
    pos = lambda n: 16 * ((n & 3) >> 1) + 8 * (n >> 2) + 4 * (n & 1)
    for F, G in ((FR, FR2), (FR2, FR)):
        a(f"""s_cmp_ge_u32 s48, 15
        s_cselect_b32 s45, {OOB//2}, s45
        s_add_u32 s48, s48, 1
        s_add_u32 s49, s49, 1
        s_cmp_eq_u32 s49, 5
        s_cselect_b32 s49, 0, s49
        s_mov_b32 s50, {SL}
        s_cselect_b32 s50, {(-4*SL) & 0xffffffff}, s50""")
        for r in range(10, 15): a(f"v_add_u32 v{r}, s50, v{r}")
        a("s_waitcnt vmcnt(30) lgkmcnt(0)")
        side = rds(G)
        side2 = wd("s47") + xd("s47") + ["s_add_u32 s47, s47, s50"]
        ms = []
        for m in range(2): ms += [(RS + 4 * m, ONES, F + 4 * m), (SQ + 4 * m, F + 4 * m, F + 4 * m)]
        for n in range(8): ms += [(ACC + pos(n), F + 8 + 4 * n, F), (ACC + 32 + pos(n), F + 8 + 4 * n, F + 4), (CS + pos(n), F + 8 + 4 * n, ONES)]
        for k, (d, A, B) in enumerate(ms):
            a(f"v_mfma_f32_16x16x32_bf16 {vr(d)}, {vr(A)}, {vr(B)}, {vr(d)}")
            if side: a(side.pop(0))
            if k >= 12 and side2: a(side2.pop(0))
        assert not side and not side2
    a("s_cmp_lt_u32 s48, 20\ns_cbranch_scc1 L_rem_l\ns_waitcnt lgkmcnt(0)")
    a.settle(10)
    a("v_and_b32 v4, 3, v2\nv_lshrrev_b32 v5, 2, v2\nv_cmp_eq_u32 s[50:51], v5, v3")
    for m in range(2):
        q = SQ + 4 * m
        for i in range(1, 4): a(f"v_cmp_eq_u32 vcc, {i}, v4\nv_cndmask_b32 v{q}, v{q}, v{q+i}, vcc")
        a(f"""v_cndmask_b32 v{q}, 0, v{q}, s[50:51]
        v_mov_b32 v{q+1}, v{q}
        v_permlane16_swap_b32 v{q}, v{q+1}
        v_add_f32 v{q}, v{q}, v{q+1}
        v_mov_b32 v{q+1}, v{q}
        v_permlane32_swap_b32 v{q}, v{q+1}
        v_add_f32 v{q}, v{q}, v{q+1}
        v_mul_f32 v{ST+4*m}, {f32hex(1.0/D)}, v{RS+4*m}
        v_mul_f32 v{q}, {f32hex(1.0/D)}, v{q}
        v_fma_f32 v{q}, -v{ST+4*m}, v{ST+4*m}, v{q}
        v_max_f32 v{q}, 0, v{q}
        v_add_f32 v{q}, {f32hex(1e-5)}, v{q}
        v_rsq_f32 v{ST+4*m+1}, v{q}
        v_sqrt_f32 v{ST+4*m+2}, v{q}
        v_mov_b32 v{ST+4*m+3}, 0
        v_mul_f32 v{ST+4*m+1}, {f32hex(-LOG2E)}, v{ST+4*m+1}""")
    a(f"""v_and_b32 v6, 1, v3
    v_lshlrev_b32 v6, 9, v6
    v_lshrrev_b32 v7, 1, v3
    v_lshl_add_u32 v6, v7, 8, v6
    v_lshl_add_u32 v6, v2, 4, v6
    s_lshl_b32 s50, s41, 11
    s_add_u32 s50, s50, {HP + 126*55296}
    s_add_u32 s51, s50, 55296""")
    glu_epilogue(a, [(ACC + 32 * m + 16 * p, CS + 16 * p, ST + 4 * m) for m in range(2) for p in range(2)], PK,
                 lambda u, pk: [f"buffer_store_dwordx4 {vr(pk)}, v6, {WS}, s{50 + (u >> 1)} offen offset:{1024*(u&1)} sc1"])
    a("v_add_u32 v16, 210, v1\ns_waitcnt vmcnt(0)")
    self.signal(16, M_S4, 17, mask='0x3ff')
    self.stamp('remdone')
    a("s_endpgm")

def p5_h_pre(self):
    a = self.a
    p5_coords(a, 64, 65, 66)
    self.w128_dma_voff(1280, 103, 10, 11)
    a(f"""v_xor_b32 v104, 64, v103
    v_add_u32 v104, {8*1280-1024}, v104""")
    a(f"""s_mul_i32 s68, s64, {6*55296}
    s_add_u32 s68, s68, {HP - 4096}
    s_mul_i32 s69, s{sHW}, {16*1280}
    s_lshl_b32 s70, s65, 7
    s_add_u32 s69, s69, s70
    s_mul_i32 s70, s{sHW}, 3072
    s_lshl_b32 s71, s{sHW}, 11
    s_mul_i32 s72, s64, 10
    s_add_u32 s72, s72, s65
    s_lshl_b32 s72, s72, 7
    s_add_u32 s72, s72, {4*M_S4}
    s_cmp_ge_u32 s2, 220
    s_cselect_b32 s69, {OOB//2}, s69""")
    n4_blocks(a, 64, 73, 74)

def p5_wdma(self, st):
    a = self.a
    a(f"s_add_u32 s76, s69, {st*64*1280}\ns_add_u32 m0, s71, {p5_wslot(st)}")
    for i in range(2):
        self.vmem(f"buffer_load_dwordx4 v{103+i}, {srd(SRD_WD)}, s76 offen offset:{1024*i} lds", ('p5w', st))

def p5_sched():
    E = opt('w5e', 18)
    return ([(E - 6, 12)] if E < 13 else []) + [(7, 19), (14, 26)]

def p5_h(self):
    a = self.a
    E = opt('w5e', 18)
    for st in range(E, 20): p5_wdma(self, st)
    if not opt('wpre', 0): self.bar()
    NR = opt('w5r', 7)
    for st in range(20, 20 + NR): p5_wdma(self, st)
    if opt('p5p1', 1): self.bar()
    for step, cover in p5_sched():
        if cover == 26:
            for st in range(20 + NR, 27): p5_wdma(self, st)
        self.wait_vm(('p5w', cover))
        self.bar()
    self.nbar += 1

def p5_waddr(self):
    self.a(f"""s_lshl_b32 s51, s49, 12
    s_add_u32 s51, s51, {P5_SLOTS[0]*8192}
    v_add_u32 v10, s51, v14
    v_xor_b32 v11, 32, v10
    v_xor_b32 v12, 64, v10
    v_xor_b32 v13, 96, v10""")

def p5_c_pre(self):
    a = self.a
    p5_coords(a, 40, 41, 42)
    if not opt('wpre', 0): p5_waddr(self)
    a(f"""    s_mul_i32 s50, s{sWAVE}, 6144
    s_add_u32 s50, s50, {P5_EX}
    v_lshl_add_u32 v8, v1, 4, s50
    s_xor_b32 s50, s{sWAVE}, 2
    s_mul_i32 s50, s50, 6144
    s_add_u32 s50, s50, {P5_EX}
    v_lshl_add_u32 v15, v1, 4, s50""")
    a(f"""v_lshrrev_b32 v7, 1, v3
    v_lshlrev_b32 v4, 8, v7
    v_lshl_add_u32 v4, v2, 4, v4
    v_and_b32 v5, 1, v3
    v_lshl_add_u32 v4, v5, 3, v4
    s_lshl_b32 s55, s40, 1
    s_add_u32 s55, s55, s48
    s_mul_i32 s55, s55, 3
    s_mul_i32 s50, s55, 20480
    s_lshl_b32 s52, s41, 1
    s_add_u32 s52, s52, s49
    s_lshl_b32 s53, s52, 10
    s_add_u32 s51, s50, s53
    s_add_u32 s51, s51, {HH}""")
    a(f"""v_mul_u32_u24 v9, 1280, v2
    v_lshl_add_u32 v9, v5, 5, v9
    v_lshl_add_u32 v9, v7, 4, v9
    s_lshl_b32 s54, s52, 6
    s_add_u32 s53, s50, s54
    v_add_u32 v9, s53, v9""")
    for mu in range(3):
        a(f"""s_add_u32 s56, s55, {mu}
        s_cmp_ge_u32 s56, 128
        s_cselect_b32 s56, {OOB//2}, {55296*mu if mu else 0}
        v_lshl_add_u32 v{5+mu}, v1, 4, s56""".replace(f"s_cselect_b32 s56, {OOB//2}, {55296*mu}", f"s_mov_b32 s57, {55296*mu}\n        s_cselect_b32 s56, {OOB//2}, s57"))
    a(f"""s_mul_i32 s56, s55, 55296
    s_lshl_b32 s57, s49, 10
    s_add_u32 s56, s56, s57
    s_add_u32 s56, s56, {HP}
    s_mul_i32 s57, s40, 10
    s_add_u32 s57, s57, s41
    s_lshl_b32 s57, s57, 7
    s_add_u32 s57, s57, {4*M_S4}
    s_nop 0""")
    n4_blocks(a, 40, 58, 59)

def p5_c(self):
    a = self.a
    self.vm = VM()
    ACC, WR, AR, HR = 16, 64, 176, 236
    NW, NA = 7, 5
    lg = LG(a)
    win = [P5_SLOTS[0]]
    def wreads(st):
        sl = P5_SLOTS[st % P5_RW]
        out = []
        if not (0 <= sl - win[0] <= 6):
            d = (sl - win[0]) * 8192
            out.append(("\n".join(f"v_add_u32 v{10+i}, {d & 0xffffffff}, v{10+i}" for i in range(4)), 'valu'))
            win[0] = sl
        wb = WR + 16 * (st % NW)
        out += [(f"ds_read_b64_tr_b16 {vr(wb+4*i+2*t,2)}, v{10+i} offset:{8192*(sl-win[0])+512*t}", ('W', st)) for i in range(4) for t in range(2)]
        return out
    def emit(op):
        if op[1] == 'valu': a(op[0])
        else: lg.op(*op)
    def aload(st, mu):
        self.vmem(f"buffer_load_dwordx4 {vr(AR+12*(st%NA)+4*mu)}, v{5+mu}, {WS}, s56 offen offset:{2048*(st&1)} sc1", ('A', st))
        if mu == 2 and st & 1: a("s_add_u32 s56, s56, 4096")
    for mu in range(3):
        for nu in range(2):
            a(f"buffer_load_dwordx2 {vr(HR+4*mu+2*nu,2)}, v4, {WS}, s51 offen offset:{512*nu} sc1")
        if mu < 2: a("s_add_u32 s51, s51, 20480")
    if opt('wpre', 0):
        for st in range(NW): lg.pos[('W', st)] = 0
    else:
        for st in range(NW):
            for op in wreads(st): emit(op)
            if st: lg.need(('W', st - 1))
        lg.drain()
        self.bar()
    if opt('p5p1', 1): self.poll1(1, "s57", "s58", 4, 0)
    else: self.pollw("s57", "s58", 4, AR)
    self.stamp('p5poll')
    NI = opt('ni', 5)
    for st in range(NI):
        for mu in range(3): aload(st, mu)
    for st in range(27):
        if st in [x[0] for x in p5_sched()]: self.bar()
        self.wait_vm(('A', st))
        if st == 0: self.stamp('p5b0')
        lg.need(('W', st))
        nxt = wreads(st - 1 + NW) if st >= 1 and st - 1 + NW < 27 else []
        k = 0; n = 0
        seq = [(mu, i) for mu in range(3) for i in range(4)]
        if st == 26: seq = [x for x in seq if x[1] >= 2] + [x for x in seq if x[1] < 2]
        for mu, i in seq:
                ac = ACC + 16 * mu + 4 * i
                c = "0" if st == 0 else vr(ac)
                a(f"v_mfma_f32_16x16x32_bf16 {vr(ac)}, {vr(WR+16*(st%NW)+4*i)}, {vr(AR+12*(st%NA)+4*mu)}, {c}")
                if st == 0 and n < 3 * (NA - NI): aload(NI + n // 3, n % 3)
                if n < 3 and st >= 1 and st - 1 + NA < 27: aload(st - 1 + NA, n)
                elif k < len(nxt): emit(nxt[k]); k += 1
                if st == 24:
                    a(f"v_lshlrev_b32 v{64+2*n}, 16, v{HR+n}\nv_and_b32 v{65+2*n}, 0xffff0000, v{HR+n}")
                if st == 26 and n >= 6:
                    q = n - 6
                    a(f"ds_write_b128 v8, {vr(ACC+16*(q>>1)+8+4*(q&1))} offset:{1024*q}")
                n += 1
        assert k == len(nxt)
        if st == 23 and opt('otr', 0):
            a(f"""s_mul_i32 s50, s{sWAVE}, 3072
            s_add_u32 s50, s50, 24576
            v_and_b32 v6, 1, v3
            v_lshlrev_b32 v6, 1, v6
            v_lshrrev_b32 v7, 1, v3
            v_add_u32 v6, v6, v7
            v_lshrrev_b32 v7, 2, v2
            v_xor_b32 v6, v6, v7
            v_lshlrev_b32 v6, 4, v6
            v_lshl_add_u32 v6, v2, 6, v6
            v_add_u32 v6, s50, v6
            v_lshl_add_u32 v7, v1, 4, s50
            v_lshrrev_b32 v5, 2, v1
            v_mul_u32_u24 v5, 1280, v5
            v_and_b32 v4, 3, v1
            v_xor_b32 v4, v4, v3
            v_lshl_add_u32 v5, v4, 4, v5
            v_add_u32 v5, s53, v5""")
        if st == 22:
            pass
    self.stamp('p5loop')
    a("s_waitcnt lgkmcnt(0)")
    self.bar()
    for q in range(6): a(f"ds_read_b128 {vr(96+4*q)}, v15 offset:{1024*q}")
    for mu in range(3):
        for h in range(4): a(f"v_pk_add_f32 {vr(64+8*mu+2*h,2)}, {vr(64+8*mu+2*h,2)}, {vr(ACC+16*mu+2*h,2)}")
    for mu in range(3):
        a(f"s_waitcnt lgkmcnt({4-2*mu})")
        for h in range(4): a(f"v_pk_add_f32 {vr(64+8*mu+2*h,2)}, {vr(64+8*mu+2*h,2)}, {vr(96+8*mu+2*h,2)}")
        pk = 128 + 4 * mu
        for h in (0, 2, 1, 3): a(f"v_cvt_pk_bf16_f32 v{pk+h}, v{64+8*mu+2*h}, v{65+8*mu+2*h}")
        a(f"v_permlane16_swap_b32 v{pk}, v{pk+2}\nv_permlane16_swap_b32 v{pk+1}, v{pk+3}")
        if opt('otr', 0): a(f"ds_write_b128 v6, {vr(pk)} offset:{1024*mu}")
        else:
            a(f"buffer_store_dwordx4 {vr(pk)}, v9, {srd(SRD_OUT)}, 0 offen {opt('opol', 'sc1')}")
            if mu < 2: a("v_add_u32 v9, 20480, v9")
    if opt('otr', 0):
        for mu in range(3): a(f"s_waitcnt lgkmcnt({2-mu})\nds_read_b128 {vr(144+4*mu)}, v7 offset:{1024*mu}".replace(f"lgkmcnt({2-mu})", f"lgkmcnt({2})"))
        for mu in range(3):
            a(f"s_waitcnt lgkmcnt({2-mu})")
            a(f"buffer_store_dwordx4 {vr(144+4*mu)}, v5, {srd(SRD_OUT)}, 0 offen {opt('opol', 'sc1')}")
            if mu < 2: a("v_add_u32 v5, 20480, v5")
    self.stamp('end')
```

```python
def install(Gen, G):
    globals().update({k: v for k, v in G.items() if not k.startswith('__')})
    for f in (p2, p3_prefetch, tail345):
        setattr(Gen, f.__name__, f)

KV0 = 94208
OCTP = 6208
P2_CNT = 163456

def p2(self):
    a = self.a
    self.vm = VM(); self.nbar = 0
    a("s_cmp_eq_u32 s0, 1\ns_cbranch_scc1 L_p1_fin\nL_p2_pre:")
    a(f"""s_and_b32 s40, s2, 7
    s_lshl_b32 s40, s40, 1
    s_bfe_u32 s41, s2, 0x10003
    s_add_u32 s40, s40, s41
    s_lshr_b32 s41, s2, 4
    s_mul_i32 s42, s40, 5
    s_lshr_b32 s43, s{sWAVE}, 2
    s_mul_i32 s44, s43, 3""")
    a(f"""s_add_u32 s46, s42, 4
    s_lshr_b32 s46, s46, 4
    s_lshr_b32 s47, s42, 4
    s_sub_u32 s46, s46, s47
    s_add_u32 s46, s46, 1
    s_min_u32 s47, s41, 2
    s_add_u32 s47, s47, 1
    s_mul_i32 s48, s46, s47
    s_add_u32 s46, s46, s48
    s_lshl_b32 s47, s41, 4
    s_add_u32 s47, s47, s40
    s_lshl_b32 s47, s47, 7
    s_add_u32 s47, s47, {4*M_S1}""")
    pf = self.p3_prefetch() if self.upto >= 3 else []
    a(f"""v_and_b32 v2, 31, v1
    v_lshrrev_b32 v3, 5, v1
    v_lshlrev_b32 v4, 4, v1""")
    a(f"""s_lshl_b32 s50, s41, 1
    s_add_u32 s50, s50, s{sWAVE}
    s_cmp_lt_u32 s50, 4
    s_mov_b32 s51, 0x3f803f80
    s_cselect_b32 s50, 0x3f80ff7f, s51
    s_cmp_eq_u32 s{sWAVE}, 7
    s_cselect_b32 s50, 0, s50
    s_cselect_b32 s51, 0, s51
    v_mov_b32 v8, s50
    v_mov_b32 v9, s51
    v_mov_b32 v10, s51
    v_mov_b32 v11, s51
    s_lshl_b32 s49, s{sWAVE}, 10
    s_add_u32 s50, s49, {KV0+10*OCTP}
    v_add_u32 v5, s50, v4
    v_min_u32 v5, {LDS_BYTES-16}, v5
    ds_write_b128 v5, v[8:11]
    s_cmp_lt_u32 s41, 2
    s_cselect_b32 s50, 0xbf803f80, 0
    v_mul_lo_u32 v15, s50, v3""")
    assert KV0 + 10 * OCTP + 7168 == P2_CNT
    a("v_lshlrev_b32 v5, 2, v3\nv_sub_u32 v5, v2, v5")
    for r in range(16):
        a(f"v_cmp_le_i32 s[{64+2*r}:{65+2*r}], {8*(r>>2)+(r&3)}, v5")
    PM = 52
    a("v_mov_b32 v6, 0xffff\nv_mov_b32 v7, 0xffff0000")
    for i in range(8):
        a(f"v_cndmask_b32 v{PM+i}, 0, v6, s[{64+4*i}:{65+4*i}]\nv_cndmask_b32 v8, 0, v7, s[{66+4*i}:{67+4*i}]\nv_or_b32 v{PM+i}, v{PM+i}, v8")
    a(f"""s_lshl_b32 s50, s{sHW}, 9
    s_add_u32 s50, s50, {KV0}
    v_lshl_add_u32 v13, v2, 4, s50
    v_mul_u32_u24 v12, {OCTP}, v3
    v_lshl_add_u32 v5, v12, 3, v13
    s_mul_i32 s51, s44, {OCTP}
    v_add3_u32 v12, v12, v13, s51
    v_add_u32 v13, {2*OCTP}, v5""")
    a(f"""v_bfe_u32 v5, v1, 2, 2
    v_lshl_add_u32 v5, v3, 2, v5
    v_lshl_add_u32 v14, v5, 4, s50
    v_and_b32 v5, 1, v1
    v_bfe_u32 v6, v1, 1, 1
    v_mov_b32 v7, s43
    v_cmp_eq_u32 vcc, 1, v6
    v_cndmask_b32 v7, v7, v5, vcc
    s_lshl_b32 s52, s43, 7
    s_sub_u32 s52, {5*OCTP+128}, s52
    v_mov_b32 v8, {2*OCTP}
    v_mov_b32 v9, s52
    v_cndmask_b32 v8, v8, v9, vcc
    v_mul_u32_u24 v10, {OCTP}, v5
    v_add_u32 v10, s51, v10
    v_and_b32 v9, 16, v1
    v_cmp_eq_u32 vcc, 0, v9
    v_cndmask_b32 v8, v8, v10, vcc
    v_cndmask_b32 v7, v7, v6, vcc
    v_lshl_add_u32 v8, v7, 3, v8
    v_add_u32 v14, v14, v8
    v_add_u32 v14, {5*OCTP}, v14""")
    a(f"""s_lshl_b32 s50, s41, 1
    s_add_u32 s50, s50, s{sWAVE}
    s_sub_u32 s50, s50, 4
    s_max_i32 s50, s50, 0
    s_lshl_b32 s50, s50, 10
    s_lshl_b32 s51, s42, 15
    s_add_u32 s51, s51, s50
    s_add_u32 s51, s51, {QKV + 80*32768}
    s_add_u32 s49, s49, {KV0}""")
    a(f"""s_lshl_b32 s53, s41, 2
    s_add_u32 s53, s53, s{sHW}
    s_lshl_b32 s54, s53, 9
    s_lshl_b32 s56, s42, 15
    s_add_u32 s54, s54, s56
    s_add_u32 s54, s54, {QKV}
    s_lshl_b32 s55, s44, 15
    s_add_u32 s55, s55, s54
    s_add_u32 s56, s54, 65536
    v_lshlrev_b32 v5, 15, v3
    v_lshl_add_u32 v5, v2, 4, v5
    v_lshlrev_b32 v6, 4, v2
    v_mov_b32 v8, {OOB}
    v_add_u32 v9, s43, v3
    v_cmp_eq_u32 vcc, 0, v9
    v_cndmask_b32 v7, v8, v6, vcc
    v_cmp_gt_u32 vcc, s43, v3
    v_cndmask_b32 v6, v8, v6, vcc""")
    self.stamp('p2pre')
    a("s_cmp_eq_u32 s0, 1\ns_cbranch_scc1 L_p2_poll")
    self.p1_vstores()
    a(f"s_cmp_lg_u32 s0, 2\ns_cbranch_scc1 L_p1_fin\ns_cmp_lg_u32 s{sWAVE}, 5\ns_cbranch_scc1 L_p1_fin")
    self.pollw("s47", "s46", 8, 248, depth=3)
    a("s_branch L_p1_fin2\nL_p1_fin:")
    self.finish(M_S1, 'p1st', mid="L_p1_fin2")
    a("s_cmp_eq_u32 s0, 1\ns_cbranch_scc1 L_p2_pre\nL_p2_poll:")
    a(f"s_cmp_eq_u32 s0, 2\ns_cbranch_scc1 L_p2_polled\ns_cmp_lg_u32 s{sWAVE}, 5\ns_cbranch_scc1 L_p2_polled")
    self.pollw("s47", "s46", 8, 248, depth=3)
    a("L_p2_polled:")
    self.bar()
    self.stamp('p2poll')
    Q0, Q1 = 16, 20
    def kv(sec, tag):
        L = a.newlabel('Lkv')
        a(f"s_cmp_ge_u32 s{sWAVE}, 6\ns_cbranch_scc1 {L}")
        for o in range(5):
            a(f"s_add_u32 m0, s49, {(5*sec+o)*OCTP}\ns_add_u32 s57, s51, {(80*sec+o)*32768}")
            self.vmem(f"buffer_load_dwordx4 v4, {WS}, s57 offen sc1 lds", tag)
        a(f"{L}:")
    kv(0, 'K')
    self.vmem(f"buffer_load_dwordx4 {vr(Q0)}, v5, {WS}, s55 offen sc1", 'K')
    self.vmem(f"buffer_load_dwordx2 {vr(Q1,2)}, v7, {WS}, s56 offen sc1", 'K')
    self.vmem(f"buffer_load_dwordx2 {vr(Q1+2,2)}, v6, {WS}, s56 offen offset:8 sc1", 'K')
    VL = opt('vlate', 0)
    a(f"s_add_u32 s47, s47, {4*(M_S1V-M_S1)}")
    if not VL:
        a(f"s_cmp_lg_u32 s{sWAVE}, 7\ns_cbranch_scc1 L_p2_vok")
        self.pollw("s47", "s48", 8, 9)
        a("L_p2_vok:")
    self.wait_vm('K')
    a(f"v_or_b32 v{Q1}, v{Q1}, v15\ns_waitcnt lgkmcnt(0)")
    self.bar()
    self.stamp('p2k')
    if opt('prio2', 1): a(f"s_cmp_ge_u32 s{sWAVE}, 4\ns_cbranch_scc1 L_p2_lo\ns_setprio 2\nL_p2_lo:")
    SB = 64; OA = 208; KF = 24
    Sr = lambda t: SB + 16 * t
    order = [1, 8, 0, 2, 3, 4, 5, 6, 7]
    Pr = lambda t: Sr(8) + 8 if t == 8 else Sr(t)
    Vr = lambda t: Sr(8) if t == 8 else Sr(t) + 8
    M0, M1 = 60, 61
    VrF = {1: 226, 8: Sr(1)+8, 0: Sr(8), 2: Sr(0)+8, 3: Sr(2)+8, 4: Sr(3)+8, 5: Sr(4)+8, 6: Sr(5)+8, 7: Sr(6)+8}.__getitem__
    def mk(lg, first_pv, Vr=Vr):
        def kread(n):
            t = order[n]; kb = KF + 8 * (n % 3)
            lg.op(f"ds_read_b128 {vr(kb)}, v12 offset:{512*t}", ('K', n, 0))
            lg.op(f"ds_read_b128 {vr(kb+4)}, v13 offset:{512*t}", ('K', n, 1))
        def qk(n, h):
            t = order[n]; kb = KF + 8 * (n % 3)
            lg.need(('K', n, h))
            if h == 0: a(f"v_mfma_f32_32x32x16_bf16 {vr(Sr(t),16)}, {vr(kb)}, {vr(Q0)}, 0")
            else: a(f"v_mfma_f32_32x32x16_bf16 {vr(Sr(t),16)}, {vr(kb+4)}, {vr(Q1)}, {vr(Sr(t),16)}")
        def vread(t):
            for sp in range(2):
                for tt in range(2):
                    lg.op(f"ds_read_b64_tr_b16 {vr(Vr(t)+4*sp+2*tt,2)}, v14 offset:{(32*t+16*sp+8*tt)*16}", ('V', t, sp))
        def pv(t, sp):
            lg.need(('V', t, sp))
            c = "0" if (t == first_pv and sp == 0) else vr(OA, 16)
            a(f"v_mfma_f32_32x32x16_bf16 {vr(OA,16)}, {vr(Vr(t)+4*sp)}, {vr(Pr(t)+4*sp)}, {c}")
        def merge():
            for r in range(16):
                a(f"v_cndmask_b32 v{Sr(8)+r}, v{Sr(0)+r}, v{Sr(8)+r}, s[{64+2*r}:{65+2*r}]")
        def cvt(t):
            a(".p2align 3")
            for i in range(8): a(f"v_cvt_pk_bf16_f32 v{Sr(t)+i}, v{Sr(t)+2*i}, v{Sr(t)+2*i+1}")
            if t == 8:
                for i in range(8):
                    a(f"v_and_b32_e64 v{Sr(8)+8+i}, v{Sr(8)+i}, v{PM+i}\nv_bfi_b32 v{Sr(0)+i}, v{PM+i}, 0, v{Sr(8)+i}")
        return kread, qk, vread, pv, merge, cvt
    lg = LG(a)
    kread, qk, vread, pv, merge, cvt = mk(lg, 1, VrF)
    kread(0); kread(1); kread(2)
    def vdma(): kv(1, 'V')
    if VL:
        a("v_mov_b32 v8, 0")
        self.vmem(f"buffer_load_dword v9, v8, {WS}, s47 offen sc1", 'vf')
    else: vdma()
    qk(0, 0); qk(0, 1); kread(3); qk(1, 0)
    def kr(n, h):
        t = order[n]; kb = KF + 8 * (n % 3)
        lg.op(f"ds_read_b128 {vr(kb+4*h)}, v{12+h} offset:{512*t}", ('K', n, h))
    def vr1(t, q):
        lg.op(f"ds_read_b64_tr_b16 {vr(VrF(t)+2*q,2)}, v14 offset:{(32*t+8*q)*16}", ('V', t, q >> 1))
    qs = []
    for n in range(1, 9):
        if n > 1: qs += [('w', lambda n=n: lg.need(('K', n, 1))), ('m', lambda n=n: qk(n, 0))]
        qs += [('m', lambda n=n: qk(n, 1), n)]
        if n + 3 < 9: qs += [('l', lambda n=n: kr(n + 3, 0)), ('l', lambda n=n: kr(n + 3, 1))]
    ls = []
    ps = []
    qdone = {order[0]}
    since = [0]
    slot = [0]; vat = {}
    def mf(urgent_q):
        if since[0] < opt('mgap', 32): return
        pok = ps and slot[0] - vat.get(ps[0][2], 1 << 30) >= 5
        if qs and qs[0][0] == 'm' and (urgent_q or not pok):
            it = qs.pop(0); it[1](); since[0] = 0
            if len(it) > 2: qdone.add(order[it[2]])
        elif pok:
            ps.pop(0)[1](); since[0] = 0
    def side():
        slot[0] += 1
        if qs and qs[0][0] != 'm': qs.pop(0)[1]()
        elif ls:
            it = ls.pop(0); it[1](); vat[it[2]] = slot[0] if it[3] == 3 else 1 << 30
        elif ps and ps[0][3] == 0 and slot[0] - vat.get(ps[0][2], 1 << 30) >= 4 and lg.pos[('V', ps[0][2], 1)] > lg.done:
            lg.need(('V', ps[0][2], 1))
        elif pf: pf.pop(0)()
    vok = False
    seq = (1, 8, 2, 3, 4, 5, 6, 7)
    vq = [1, 8, 0, 2, 3, 4, 5, 6, 7]
    vfree = {1}
    after = {1: [8], 8: [0, 2], 2: [3], 3: [4], 4: [5], 5: [6], 6: [7], 7: []}
    for idx, t in enumerate(seq):
        need = {8, 0} if t == 8 else {t}
        assert need <= qdone, (t, qdone)
        if t == 8: merge()
        nxt = set() if idx + 1 >= len(seq) else ({8, 0} if seq[idx + 1] == 8 else {seq[idx + 1]})
        for i in range(16):
            a(f"v_exp_f32 v{Sr(t)+i}, v{Sr(t)+i}")
            since[0] += 8
            mf(not nxt <= qdone)
            side()
        if t == 7:
            for it in ps: it[1]()
            ps = []
            break
        cvt(t)
        if VL and idx == 0:
            while len(pf) % 3: pf.pop(0)()
            self.wait_vm('vf')
            a("v_cmp_ne_u32 vcc, s48, v9\ns_cbranch_vccz L_p2_vok")
            self.pollw("s47", "s48", 8, 9)
            a("L_p2_vok:")
            vdma()
        since[0] += 32
        vfree |= set(after[t])
        for d in ([8, 0] if t == 8 else [t]):
            ps += [('m', lambda d=d: pv(d, 0), d, 0), ('m', lambda d=d: pv(d, 1), d, 1)]
        VB = opt('vbb', 1)
        if t == VB:
            a(f"s_cmp_lt_u32 s{sWAVE}, 4\ns_cbranch_scc1 L_p2_nb1")
            self.wait_vm('V')
            a("s_barrier")
            a(f"v_lshlrev_b32 v242, 7, v1\ns_and_b32 s57, s{sWAVE}, 1\ns_lshl_b32 s57, s57, 8\ns_add_u32 s57, s57, s2\ns_lshl_b32 s57, s57, 13")
            a(f"s_cmp_lt_u32 s{sWAVE}, 6\ns_cbranch_scc1 L_p2_tu")
            self.touch(srd(SRD_WD), 242, "s57", 0)
            a(f"s_branch L_p2_nb1\nL_p2_tu:\ns_add_u32 s57, s57, {64*8192}")
            self.touch(srd(SRD_WU), 242, "s57", 0)
            a("L_p2_nb1:")
        if t == opt('vbt', 2):
            a(f"s_cmp_ge_u32 s{sWAVE}, 4\ns_cbranch_scc1 L_p2_nb2")
            self.wait_vm('V')
            self.bar()
            a("L_p2_nb2:")
            vok = True
        while vok and vq and vq[0] in vfree:
            d = vq.pop(0)
            ls += [('l', lambda d=d, q=q: vr1(d, q), d, q) for q in range(4)]
    assert not qs and not ls and not vq and not pf
    a(".p2align 3")
    for sp in range(2):
        for i in range(4*sp, 4*sp+4): a(f"v_cvt_pk_bf16_f32 v{Sr(7)+i}, v{Sr(7)+2*i}, v{Sr(7)+2*i+1}")
        if sp == 1: pv(7, 0)
    pv(7, 1)
    pvq = []
    while pf: pf.pop(0)()
    a(f"""v_bfe_u32 v5, v1, 4, 1
    v_mul_u32_u24 v5, 20480, v5
    v_and_b32 v7, 15, v1
    v_lshl_add_u32 v6, v7, 3, v5
    v_lshl_add_u32 v5, v7, 4, v5
    v_mov_b32 v8, {OOB}
    v_cmp_eq_u32 vcc, 0, v3
    v_cndmask_b32 v6, v8, v6, vcc
    v_lshl_add_u32 v5, v3, 8, v5
    s_lshl_b32 s54, s53, 2
    s_add_u32 s54, s54, s43
    s_mul_i32 s54, s54, 10240
    s_add_u32 s54, s54, {OO}
    s_lshl_b32 s55, s40, 9
    s_add_u32 s55, s55, s54
    s_lshl_b32 s56, s40, 7
    s_add_u32 s56, s56, s54
    s_add_u32 s56, s56, 8192
    s_mov_b32 s57, {(127+64-(127-64))<<23}""")
    while pvq: pvq.pop(0)()
    a(f"""v_subrev_u32 v8, {(127-64)<<23}, v{OA+12}
    v_cmp_lt_u32 vcc, s57, v8
    s_cbranch_vccnz L_p2_slow
    L_p2_norm:
    v_rcp_f32 v8, v{OA+12}""")
    def slow():
        a("L_p2_slow:")
        a.settle()
        lg = LG(a)
        kread, qk, vread, pv, merge, cvt = mk(lg, 8)
        first = [True]
        def vmax(t):
            b = Sr(t)
            for i in range(0, 16, 4):
                if first[0]:
                    a(f"v_max_f32 v{M0}, v{b}, v{b+1}\nv_max_f32 v{M1}, v{b+2}, v{b+3}")
                    first[0] = False
                else:
                    a(f"v_max3_f32 v{M0}, v{M0}, v{b+i}, v{b+i+1}\nv_max3_f32 v{M1}, v{M1}, v{b+i+2}, v{b+i+3}")
        for n in range(9):
            kread(n); qk(n, 0); qk(n, 1)
        merge()
        for t in range(1, 9): vmax(t)
        a(f"""v_max_f32 v{M0}, v{M0}, v{M1}
        v_mov_b32 v{M1}, v{M0}
        v_permlane32_swap_b32 v{M0}, v{M1}
        v_max_f32 v{M0}, v{M0}, v{M1}""")
        for t in (8, 1, 2, 3, 4, 5, 6, 7):
            for i in range(16): a(f"v_sub_f32 v{Sr(t)+i}, v{Sr(t)+i}, v{M0}")
            for i in range(16): a(f"v_exp_f32 v{Sr(t)+i}, v{Sr(t)+i}")
            cvt(t)
            for d in ([8, 0] if t == 8 else [t]):
                vread(d); pv(d, 0); pv(d, 1)
        a.settle()
        a("s_branch L_p2_norm")
    self.tail.append(slow)
    for i in range(12): a(f"v_mul_f32 v{OA+i}, v{OA+i}, v8")
    for i in range(6): a(f"v_cvt_pk_bf16_f32 v{16+i}, v{OA+2*i}, v{OA+2*i+1}")
    a(f"buffer_store_dwordx4 v[16:19], v5, {WS}, s55 offen sc1")
    a(f"buffer_store_dwordx2 v[20:21], v6, {WS}, s56 offen sc1")
    self.stamp('p2cmp')
    self.stamp('p2cmp4', 4)
    a(f"""s_setprio 0
    s_mul_i32 s51, s41, {4*21846}
    s_lshr_b32 s51, s51, 16
    s_mul_i32 s51, s51, 10
    v_add_u32 v247, s51, v1
    v_lshlrev_b32 v247, 7, v247
    s_mul_i32 s51, s43, {4*(M_S2B-M_S2)}
    v_add_u32 v247, s51, v247
    s_lshl_b32 s51, s43, 2
    s_add_u32 s51, s51, {P2_CNT}
    v_mov_b32 v8, s51
    v_mov_b32 v246, 1
    s_mov_b64 exec, 1
    s_waitcnt vmcnt(0)
    ds_add_rtn_u32 v9, v8, v246
    s_waitcnt lgkmcnt(0)
    v_cmp_ne_u32 vcc, 3, v9
    s_cbranch_vccnz L_p2_nosig
    s_mov_b64 exec, 0xfffff
    buffer_atomic_add v246, v247, {WS}, 0 offen offset:{4*M_S2} sc1
    L_p2_nosig:
    s_mov_b64 exec, -1""")
    self.stamp('p2st')
    self.stamp('p2st4', 4)

def p3_prefetch(self):
    a = self.a
    p5_coords(a, 58, 59, 60)
    self.w128_dma_voff(1280, 224, 5, 6)
    a(f"""s_and_b32 s60, s{sWAVE}, 1
    s_lshl_b32 s61, s60, 6
    v_xor_b32 v224, s61, v224
    v_lshrrev_b32 v5, 5, v1
    v_mul_u32_u24 v5, {36*1280}, v5
    v_add_u32 v225, v224, v5
    s_lshl_b32 s59, s59, 7
    s_lshr_b32 s61, s{sWAVE}, 1
    s_mul_i32 s61, s61, 5
    s_add_u32 s60, s60, s61
    s_mul_i32 s60, s60, {8*1280}
    s_add_u32 s60, s60, s59
    s_mul_i32 s61, s{sWAVE}, {80*1280}
    s_add_u32 s61, s61, s59
    s_lshl_b32 s59, s{sWAVE}, 10
    s_cmp_ge_u32 s2, 220
    s_cselect_b32 s60, {OOB//2}, s60
    s_cselect_b32 s61, {OOB//2}, s61""")
    out = []
    for n in range(10):
        h, q = n // 5, n % 5
        g = f"s_add_u32 s98, s60, {(160*q+24*h)*1280}" if q < 4 else f"s_add_u32 s98, s61, {(16+4*h)*1280}"
        out += [lambda n=n: a(f"s_add_u32 m0, s59, {8192*n}"), lambda g=g: a(g),
                lambda q=q: self.vmem(f"buffer_load_dwordx4 v{224 if q < 4 else 225}, {srd(SRD_WO)}, s98 offen lds", 'wo')]
    return out

P3_EX, P3_X, P3_ST = 106496, 81920, 155648
_o = dict(a.split('=') for a in __import__('sys').argv[1:] if '=' in a)
P4_SS = 45056
P4_TAB = 3 * P4_SS
RA, LA96 = 5, 3
W5PLAN = {int(x.split(':')[0]): int(x.split(':')[1]) for x in _o.get('w5plan', '7:2,8:5,9:4').split(',')}
P5_RW, P5_PRE = 20, sum(W5PLAN.values())
P5_SLOTS = [18, 19, 6, 7, 8, 9, 10, 11, 12, 13, 14, 15, 0, 1, 2, 3, 4, 5, 16, 17]
P5_EX = 11 * 8192
def p5_wslot(st): return 8192 * P5_SLOTS[st % P5_RW]

def p4_coords(a):
    a("""s_and_b32 s40, s2, 7
    s_min_u32 s41, s40, 3
    s_mul_i32 s40, s40, 30
    s_add_u32 s40, s40, s41
    s_lshr_b32 s41, s2, 3
    s_add_u32 s40, s40, s41
    s_mul_i32 s41, s40, 1041
    s_lshr_b32 s41, s41, 16
    s_mul_i32 s42, s41, 63
    s_sub_u32 s40, s40, s42
    s_cmp_eq_u32 s41, 3
    s_cselect_b32 s42, 6, 7
    s_mov_b32 s43, 9363
    s_cselect_b32 s43, 10923, s43
    s_mul_i32 s41, s41, 7
    s_add_u32 s41, s41, s40
    s_mul_i32 s40, s40, s43
    s_lshr_b32 s40, s40, 16
    s_mul_i32 s42, s42, s40
    s_sub_u32 s41, s41, s42""")

def n4_blocks(a, r, d, t):
    a(f"""s_mul_i32 s{d}, s{r}, {3*9363}
    s_add_u32 s{t}, s{d}, {2*9363}
    s_lshr_b32 s{d}, s{d}, 16
    s_lshr_b32 s{t}, s{t}, 16
    s_cmp_eq_u32 s{d}, s{t}
    s_cselect_b32 s{d}, 27, 54""")

def p5_coords(a, r, c, t):
    if opt('map5', 0):
        a(f"""s_and_b32 s{r}, s2, 7
        s_mul_i32 s{r}, s{r}, 27
        s_lshr_b32 s{c}, s2, 3
        s_add_u32 s{t}, s{r}, s{c}
        s_cmp_ge_u32 s2, 216
        s_cselect_b32 s{t}, s2, s{t}
        s_mul_i32 s{r}, s{t}, 6554
        s_lshr_b32 s{r}, s{r}, 16
        s_mul_i32 s{c}, s{r}, 10
        s_sub_u32 s{c}, s{t}, s{c}
        s_mov_b32 s{t+1}, s{c}""")
        return
    a(f"""s_bfe_u32 s{r}, s2, 0x20001
    s_add_u32 s{t+1}, s{r}, 108
    s_mul_i32 s{r}, s{r}, 27
    s_lshr_b32 s{c}, s2, 3
    s_add_u32 s{t}, s{r}, s{c}
    s_cmp_ge_u32 s2, 216
    s_cselect_b32 s{t}, s{t+1}, s{t}
    s_mul_i32 s{r}, s{t}, 13108
    s_lshr_b32 s{r}, s{r}, 16
    s_mul_i32 s{c}, s{r}, 5
    s_sub_u32 s{t+1}, s{t}, s{c}
    s_and_b32 s{c}, s2, 1
    s_mul_i32 s{c}, s{c}, 5
    s_add_u32 s{c}, s{c}, s{t+1}""")

def tail345(self):
    a = self.a
    self.tail.append(lambda: idle_code(self))
    a(f"s_cmp_ge_u32 s{sWAVE}, 4\ns_cbranch_scc1 L_h345")
    self.nbar = 0
    marks_c = []
    p3_c(self); marks_c.append(self.nbar)
    if self.upto >= 4: p4_c(self); marks_c.append(self.nbar)
    if self.upto >= 5: p5_c(self); marks_c.append(self.nbar)
    a("s_endpgm")
    a("L_h345:")
    self.nbar = 0
    marks_h = []
    p3_h(self); marks_h.append(self.nbar)
    if self.upto >= 4: p4_h(self); marks_h.append(self.nbar)
    if self.upto >= 5: p5_h(self); marks_h.append(self.nbar)
    assert marks_c == marks_h, (marks_c, marks_h)

def ksplit_tail(self, ACC, RES, XW, XR_):
    a = self.a
    a("s_waitcnt lgkmcnt(0)")
    self.bar()
    for q in range(6): a(f"ds_read_b128 {vr(XR_+4*q)}, v15 offset:{1024*q}")
    for mu in range(3):
        for h in range(4): a(f"v_pk_add_f32 {vr(RES+8*mu+2*h,2)}, {vr(RES+8*mu+2*h,2)}, {vr(ACC+16*mu+2*h,2)}")

def p3_c(self):
    a = self.a
    self.vm = VM()
    p5_coords(a, 40, 41, 42)
    a(f"""s_and_b32 s48, s{sWAVE}, 1
    s_lshr_b32 s49, s{sWAVE}, 1
    v_and_b32 v2, 15, v1
    v_lshrrev_b32 v3, 4, v1""")
    self.w128_read_addr(14, 4)
    a(f"""s_lshl_b32 s50, s49, 6
    v_xor_b32 v14, s50, v14
    s_lshl_b32 s50, s49, 12
    v_add_u32 v10, s50, v14
    v_xor_b32 v11, 32, v10
    v_xor_b32 v12, 64, v10
    v_xor_b32 v13, 96, v10
    s_mul_i32 s50, s{sWAVE}, 6144
    s_add_u32 s50, s50, {P3_EX}
    v_lshl_add_u32 v8, v1, 4, s50
    s_xor_b32 s50, s{sWAVE}, 2
    s_mul_i32 s50, s50, 6144
    s_add_u32 s50, s50, {P3_EX}
    v_lshl_add_u32 v15, v1, 4, s50
    s_lshl_b32 s55, s40, 1
    s_add_u32 s55, s55, s48
    s_mul_i32 s55, s55, 3
    v_lshlrev_b32 v9, 8, v3
    v_lshl_add_u32 v9, v2, 3, v9""")
    for mu in range(3):
        a(f"""s_add_u32 s56, s55, {mu}
        s_cmp_ge_u32 s56, 128
        s_mov_b32 s57, {20480*mu}
        s_cselect_b32 s56, {OOB//2}, s57
        v_lshl_add_u32 v{236+mu}, v1, 4, s56
        v_add_u32 v{239+mu}, s56, v9""")
    a(f"""s_mul_i32 s50, s55, 20480
    s_lshl_b32 s56, s49, 10
    s_add_u32 s56, s56, s50
    s_add_u32 s56, s56, {OO}
    s_mul_i32 s57, s40, 10
    s_add_u32 s57, s57, s41
    s_lshl_b32 s57, s57, 7
    s_add_u32 s57, s57, {4*M_S2}""")
    s2_expect(a, 40, 58, 59)
    ACC, WR, AR, RES, XR = 16, 64, 112, 64, 96
    def aops(st):
        o = [lambda: a(f"s_add_u32 s59, s56, {2048*st}")]
        for mu in range(3):
            d = AR + 12 * st + 4 * mu
            if st % 5 < 4: o.append(lambda d=d, mu=mu: self.vmem(f"buffer_load_dwordx4 {vr(d)}, v{236+mu}, {WS}, s59 offen sc1", ('A', st)))
            else: o += [lambda d=d, mu=mu, e=e: self.vmem(f"buffer_load_dwordx2 {vr(d+2*e,2)}, v{239+mu}, {WS}, s59 offen offset:{128*e} sc1", ('A', st)) for e in range(2)]
        return o
    a(f"""v_lshrrev_b32 v7, 1, v3
    s_lshl_b32 s51, s49, 2
    v_add_u32 v4, s51, v7
    v_and_b32 v5, 7, v2
    v_xor_b32 v4, v4, v5
    v_lshlrev_b32 v4, 4, v4
    v_lshl_add_u32 v4, v2, 7, v4
    v_and_b32 v5, 1, v3
    v_lshl_add_u32 v4, v5, 3, v4
    s_mul_i32 s51, s48, 6144
    s_add_u32 s51, s51, {P3_X}
    v_add_u32 v4, s51, v4
    v_xor_b32 v9, 32, v4""")
    a(f"""v_lshlrev_b32 v6, 9, v5
    v_lshl_add_u32 v6, v7, 8, v6
    v_lshl_add_u32 v6, v2, 4, v6
    s_lshl_b32 s53, s41, 1
    s_add_u32 s53, s53, s49
    s_lshl_b32 s53, s53, 10
    s_add_u32 s53, s53, s50
    s_add_u32 s53, s53, {HH}
    v_lshlrev_b32 v7, 3, v2
    v_lshl_add_u32 v7, v5, 2, v7
    s_mul_i32 s51, s{sWAVE}, 384
    s_add_u32 s51, s51, {P3_ST}
    v_add_u32 v7, s51, v7
    s_mov_b64 s[62:63], 0""")
    a("s_cmp_ge_u32 s2, 220\ns_cbranch_scc1 L_p3_skip")
    a(f"""v_lshrrev_b32 v16, 3, v1
    v_and_b32 v17, 7, v1
    v_xor_b32 v17, v17, v16
    v_mul_u32_u24 v16, 1280, v16
    v_lshl_add_u32 v16, v17, 4, v16
    s_lshl_b32 s44, s40, 2
    s_add_u32 s44, s44, s{sWAVE}
    s_mul_i32 s44, s44, {24*1280}
    s_lshl_b32 s45, s41, 7
    s_add_u32 s44, s44, s45
    s_mul_i32 s45, s{sWAVE}, 3072""")
    for i in range(3):
        a(f"s_add_u32 m0, s45, {P3_X + 1024*i}\nbuffer_load_dwordx4 v16, {srd(SRD_X)}, s44 offen lds")
        if i < 2: a(f"s_add_u32 s44, s44, {8*1280}")
    self.pollw("s57", "s58", 234, 235, nap=1)
    self.stamp('p3polla')
    aq = sum([aops(st) for st in range(5)], [])
    for _ in range(16): aq.pop(0)()
    a(f"""v_mov_b32 v234, {P2_CNT}
    L_p3_w8:
    ds_read_b64 v[232:233], v234
    s_waitcnt lgkmcnt(0)
    v_add_u32 v232, v232, v233
    v_cmp_ne_u32 vcc, 8, v232
    s_cbranch_vccz L_p3_w8d
    s_sleep 1
    s_branch L_p3_w8
    L_p3_w8d:""")
    self.tail.append(lambda: a("L_p3_skip:\ns_barrier\ns_branch L_idle"))
    lg = LG(a)
    NW = 3
    def wreads(st):
        out = []
        if st == 7: out.append(("\n".join(f"v_add_u32 v{10+i}, {7*8192}, v{10+i}" for i in range(4)), 'valu'))
        wb = WR + 16 * (st % NW)
        return out + [(f"ds_read_b64_tr_b16 {vr(wb+4*i+2*t,2)}, v{10+i} offset:{8192*(st%7)+512*t}", ('W', st)) for i in range(4) for t in range(2)]
    def emit(op):
        if op[1] == 'valu': a(op[0])
        else: lg.op(*op)
    korder = [0, 1, 2, 3, 5, 6, 7, 8, 4, 9]
    for st in range(2):
        for op in wreads(st): emit(op)
    for st in range(10):
        if st == opt('pbs', 4):
            while aq: aq.pop(0)()
            self.bar()
            self.stamp('p3pollb')
            aq = sum([aops(s2) for s2 in range(5, 10)], [])
            for _ in range(16): aq.pop(0)()
        self.wait_vm(('A', st))
        lg.need(('W', st))
        nxt = wreads(st + 2) if st + 2 < 10 else []
        if st == 8:
            nxt = [(f"ds_read_b64 {vr(AR+4*mu+2*nu,2)}, v{9 if nu else 4} offset:{2048*mu}", 'xr') for mu in range(3) for nu in range(2)]
        k = 0
        seq = [(mu, i) for mu in range(3) for i in range(4)]
        if st == 9: seq = [x for x in seq if x[1] >= 2] + [x for x in seq if x[1] < 2]
        for n, (mu, i) in enumerate(seq):
            ac = ACC + 16 * mu + 4 * i
            c = "0" if st == 0 else vr(ac)
            a(f"v_mfma_f32_16x16x32_bf16 {vr(ac)}, {vr(WR+16*(st%NW)+4*i)}, {vr(AR+12*st+4*mu)}, {c}")
            if k < len(nxt): emit(nxt[k]); k += 1
            if aq and n % 2 == 1: aq.pop(0)()
            if st == 9:
                if n == 0: lg.need('xr')
                a(f"v_lshlrev_b32 v{136+2*n}, 16, v{AR+n}\nv_and_b32 v{137+2*n}, 0xffff0000, v{AR+n}")
                if n >= 6:
                    q = n - 6
                    a(f"ds_write_b128 v8, {vr(ACC+16*(q>>1)+8+4*(q&1))} offset:{1024*q}")
        assert k == len(nxt)
    self.stamp('p3loop')
    ksplit_tail(self, ACC, 136, 8, 188)
    for mu in range(3):
        a(f"s_waitcnt lgkmcnt({4-2*mu})")
        for h in range(4): a(f"v_pk_add_f32 {vr(136+8*mu+2*h,2)}, {vr(136+8*mu+2*h,2)}, {vr(188+8*mu+2*h,2)}")
        pk = 160 + 4 * mu
        for h in (0, 2, 1, 3): a(f"v_cvt_pk_bf16_f32 v{pk+h}, v{136+8*mu+2*h}, v{137+8*mu+2*h}")
        a(f"v_permlane16_swap_b32 v{pk}, v{pk+2}\nv_permlane16_swap_b32 v{pk+1}, v{pk+3}")
        a(f"buffer_store_dwordx4 {vr(pk)}, v6, {WS}, s53 offen sc1")
        if mu < 2: a("s_add_u32 s53, s53, 20480")
    self.stamp('p3epi')
    self.finish(M_S3, 'p3st')
    for mu in range(3):
        b = 136 + 8 * mu
        a(f"v_pk_add_f32 {vr(176+4*mu,2)}, {vr(b,2)}, {vr(b+2,2)}\nv_pk_mul_f32 {vr(178+4*mu,2)}, {vr(b,2)}, {vr(b,2)}")
    for i in range(1, 4):
        for mu in range(3):
            b = 136 + 8 * mu + 2 * i
            if i > 1: a(f"v_pk_add_f32 {vr(176+4*mu,2)}, {vr(176+4*mu,2)}, {vr(b,2)}")
            a(f"v_pk_fma_f32 {vr(178+4*mu,2)}, {vr(b,2)}, {vr(b,2)}, {vr(178+4*mu,2)}")
    for mu in range(3): a(f"v_add_f32 v{176+4*mu}, v{176+4*mu}, v{177+4*mu}\nv_add_f32 v{177+4*mu}, v{178+4*mu}, v{179+4*mu}")
    for mu in range(3): a(f"v_permlane16_swap_b32 v{176+4*mu}, v{177+4*mu}")
    for mu in range(3): a(f"v_add_f32 v{176+4*mu}, v{176+4*mu}, v{177+4*mu}")
    for mu in range(3): a(f"v_mov_b32 v{177+4*mu}, v{176+4*mu}")
    for mu in range(3): a(f"v_permlane32_swap_b32 v{176+4*mu}, v{177+4*mu}")
    for mu in range(3): a(f"v_add_f32 v{176+4*mu}, v{176+4*mu}, v{177+4*mu}")
    for mu in range(3): a(f"ds_write_b32 v7, v{176+4*mu} offset:{128*mu}")
    a("L_p4_c_in:")
    if self.upto >= 4: p4_c_pre(self)
    a("s_waitcnt lgkmcnt(0)")
    if self.upto == 3: self.bar()

def s2_expect(a, r, d, t):
    a(f"""s_mul_i32 s{d}, s{r}, 3
    s_add_u32 s{t}, s{d}, 2
    s_min_u32 s{t}, s{t}, 63
    s_lshr_b32 s{d}, s{d}, 2
    s_lshr_b32 s{t}, s{t}, 2
    s_cmp_eq_u32 s{d}, s{t}
    s_cselect_b32 s{d}, 16, 32""")

def p3_h(self):
    a = self.a
    self.vm = VM()
    p5_coords(a, 64, 65, 66)
    a(f"""s_mul_i32 s46, s64, 10
    s_add_u32 s46, s46, s65
    s_lshl_b32 s46, s46, 7
    s_add_u32 s46, s46, {4*M_S2B}""")
    s2_expect(a, 64, 47, 48)
    a(f"s_cmp_ge_u32 s2, 220\ns_cbranch_scc1 L_p3_hskip\ns_cmp_lg_u32 s{sWAVE}, 5\ns_cbranch_scc1 L_p3_hskip")
    self.pollw("s46", "s47", 8, 248, depth=3)
    a("L_p3_hskip:")
    self.bar()
    p5_h_pre(self)
    a("s_cmp_ge_u32 s2, 220\ns_cbranch_scc1 L_idle")
    a(f"""s_mul_i32 s50, s64, {3*9363}
    s_lshr_b32 s50, s50, 16
    s_mul_i32 s50, s50, 27
    v_add_u32 v247, s50, v1
    s_cmp_eq_u32 s64, 21
    s_cselect_b32 s50, 13, s73
    v_cmp_gt_u32 vcc, s50, v1
    s_lshl_b32 s60, 0x11111111, s{sHW}
    s_mov_b32 s61, s60
    s_and_b64 s[60:61], s[60:61], vcc""")
    self.sigprep(4)
    a(f"""s_lshl_b32 s50, s{sHW}, 8
    v_lshl_add_u32 v12, v1, 2, s50
    v_add_u32 v13, {P3_ST}, v12
    s_lshl_b32 s54, s65, 15
    s_mul_i32 s55, s64, 768
    s_add_u32 s54, s54, s55
    s_add_u32 s54, s54, {ST2}
    s_cmp_eq_u32 s{sHW}, 3
    s_cselect_b32 s54, {OOB//2}, s54""")
    if self.upto >= 4: p4_h_pre(self)
    self.bar()
    self.finish(M_S3, 'p3st_h')
    if self.upto == 3:
        self.bar(); st2_store(self)

def st2_store(self):
    self.a("""ds_read_b32 v14, v13
    ds_read_b32 v15, v13 offset:768
    s_waitcnt lgkmcnt(0)
    v_add_f32 v14, v14, v15""")
    self.vmem(f"buffer_store_dword v14, v12, {WS}, s54 offen sc1", 'st2st')

def aux_signal(self):
    self.a(f"""v_mov_b32 v246, 1
    s_mov_b64 exec, s[60:61]""")
    self.vmem(f"buffer_atomic_add v246, v247, {WS}, 0 offen offset:{4*M_CS4} sc1", 'aux')
    self.a("s_mov_b64 exec, -1")

def p4_c_pre(self):
    a = self.a
    T = P4_TAB
    p4_coords(a)
    a(f"""s_mul_i32 s50, s48, 14336
    v_lshl_add_u32 v8, v1, 4, s50
    v_add_u32 v10, 28672, v14
    v_xor_b32 v11, 32, v10
    s_mul_i32 s50, s48, 1792
    s_add_u32 s50, s50, {T}
    v_lshl_add_u32 v4, v2, 4, s50
    s_lshl_b32 s50, s49, 7
    s_add_u32 s50, s50, {T+4096}
    v_lshl_add_u32 v5, v3, 4, s50""")
    a(f"""v_and_b32 v6, 1, v3
    v_lshlrev_b32 v6, 9, v6
    v_lshrrev_b32 v7, 1, v3
    v_lshl_add_u32 v6, v7, 8, v6
    v_lshl_add_u32 v6, v2, 4, v6
    s_lshl_b32 s50, s40, 1
    s_add_u32 s50, s50, s48
    s_mul_i32 s50, s50, {7*216*256}
    s_lshl_b32 s51, s41, 1
    s_add_u32 s51, s51, s49
    s_lshl_b32 s51, s51, 10
    s_add_u32 s50, s50, s51
    s_add_u32 s50, s50, {HP}""")

def glu_epilogue(a, units, PK, store, hook=None):
    NEG = "op_sel_hi:[1,0,1] neg_lo:[0,1,0] neg_hi:[0,1,0]"
    def A(u):
        b, cs, st = units[u]
        o = [f"v_pk_fma_f32 {vr(b+2*h,2)}, {vr(cs+2*h,2)}, {vr(st,2)}, {vr(b+2*h,2)} {NEG}" for h in range(4)]
        o += [f"v_pk_mul_f32 {vr(b+2*h,2)}, {vr(b+2*h,2)}, {vr(st,2)} op_sel:[0,1] op_sel_hi:[1,1]" for h in range(4)]
        o += [f"v_exp_f32 v{b+i}, v{b+i}" for i in range(8)]
        o += [f"v_pk_fma_f32 {vr(b+2*h,2)}, {vr(cs+2*h,2)}, {vr(st,2)}, {vr(b+2*h,2)} {NEG}" for h in range(4, 8)]
        o += [f"v_pk_fma_f32 {vr(b+2*h,2)}, {vr(b+2*h,2)}, {vr(st+2,2)}, {vr(st+2,2)} op_sel_hi:[1,0,0]" for h in range(4)]
        o += [f"v_rcp_f32 v{b+i}, v{b+i}" for i in range(8)]
        return o
    def B(u):
        b = units[u][0]; pk = PK + 4 * (u % 4)
        o = [f"v_pk_mul_f32 {vr(b+2*h,2)}, {vr(b+2*h,2)}, {vr(b+8+2*h,2)}" for h in range(4)]
        o += [f"v_cvt_pk_bf16_f32 v{pk+h}, v{b+2*h}, v{b+2*h+1}" for h in (0, 2, 1, 3)]
        return o
    def C(u):
        pk = PK + 4 * (u % 4)
        return [f"v_permlane16_swap_b32 v{pk}, v{pk+2}", f"v_permlane16_swap_b32 v{pk+1}, v{pk+3}"] + store(u, pk)
    n = len(units)
    for u in range(n + 1):
        cur = A(u) if u < n else []
        for i, t in enumerate(cur[:4] + (B(u - 1) if u else []) + cur[4:8] + (C(u - 1) if u else []) + cur[8:]):
            a(t)
            if hook: hook(u, i, t)

def p4_c(self):
    a = self.a
    WF, XF, ACC = 16, 80, 128
    a("""s_mul_i32 s51, s40, 152922
    s_lshr_b32 s51, s51, 16
    s_mul_i32 s51, s51, 10
    v_add_u32 v247, s51, v1
    v_cmp_gt_u32 vcc, 30, v1""")
    self.sigprep(0)
    lg = LG(a)
    def wr(S): return [(f"ds_read_b64_tr_b16 {vr(WF+32*(S&1)+8*nu+4*e+2*t,2)}, v{10+(nu&1)} offset:{8192*(nu>>1)+4096*e+512*t}", ('W', S, nu))
                       for nu in range(4) for e in range(2) for t in range(2)]
    def xr(q): return [(f"ds_read_b128 {vr(XF+8*(q%4)+4*e)}, v8 offset:{2048*(q%7)+1024*e}", ('X', q)) for e in range(2)]
    self.bar()
    self.bar()
    self.stamp('p4b0')
    w0 = wr(0)
    for r in w0[:4] + xr(0) + w0[4:] + xr(1) + xr(2): lg.op(*r)
    ST, CSR, PK = 16, 112, 48
    for S in range(10):
        wq = []
        for mu in range(7):
            q = 7 * S + mu
            if mu == 4:
                lg.drain()
                self.bar()
                if S < 9: wq = wr(S + 1)
                else:
                    wq = [(f"ds_read_b128 {vr(CSR+4*k)}, v5 offset:{256*(k>>1)+64*(k&1)}", None) for k in range(4)]
                    wq += [(f"ds_read_b128 {vr(ST+4*k)}, v4 offset:{256*k}", None) for k in range(7)]
            xq = xr(q + 3) if q + 3 < 70 else []
            if q == 0: xq = []
            if q == 1:
                self.bar()
                xq = xr(3) + xr(4)
            if S > 0 and mu == 0: lg.need(('W', S, 3))
            lg.need(('X', q))
            for n in range(8):
                nu, e = n >> 1, n & 1
                ac = ACC + 16 * mu + 4 * nu
                if S == 0 and mu == 0: lg.need(('W', 0, nu))
                c = "0" if (S == 0 and e == 0) else vr(ac)
                a(f"v_mfma_f32_16x16x32_bf16 {vr(ac)}, {vr(WF+32*(S&1)+8*nu+4*e)}, {vr(XF+8*(q%4)+4*e)}, {c}")
                if xq: lg.op(*xq.pop(0))
                elif wq: lg.op(*wq.pop(0))
                if mu == 3 and S < 9 and n in (3, 4, 5):
                    d = (P4_SS if S % 3 < 2 else -2 * P4_SS) & 0xffffffff
                    r = (8, 10, 11)[n - 3]; a(f"v_add_u32 v{r}, {d}, v{r}")
                if mu == 3 and n == 6: lg.drain()
        assert not wq
    lg.drain()
    self.stamp('p4loop')
    a(".p2align 3")
    hook = None
    glu_epilogue(a, [(ACC + 16 * mu, CSR, ST + 4 * mu) for mu in range(7)], PK,
                 lambda u, pk: [f"buffer_store_dwordx4 {vr(pk)}, v6, {WS}, s50 offen sc1", f"s_add_u32 s50, s50, {216*256}"], hook)
    if hook:
        assert not pre
        a("s_waitcnt lgkmcnt(0)")
    self.stamp('p4epi')
    a("L_p5_c_pre:")
    if self.upto >= 5: p5_c_pre(self)
    self.finish(M_S4, 'p4st')
    a("s_cmp_ge_u32 s2, 220\ns_cbranch_scc1 L_end")

def p4_h_pre(self):
    a = self.a
    p4_coords(a)
    self.w128_dma_voff(3456, 3, 10, 11)
    a(f"""v_xor_b32 v4, 64, v3
    v_add_u32 v4, {8*3456-1024}, v4
    v_lshlrev_b32 v2, 4, v1
    v_add_u32 v5, {20480-2048}, v2
    s_lshr_b32 s42, s{sHW}, 1
    s_and_b32 s43, s{sHW}, 1
    s_lshl_b32 s43, s43, 10
    s_lshl_b32 s44, s40, 1
    s_add_u32 s44, s44, s42
    s_mul_i32 s44, s44, {7*20480}
    s_add_u32 s44, s44, s43
    s_add_u32 s44, s44, {HH}
    s_mul_i32 s47, s42, 14336
    s_add_u32 s47, s47, s43
    s_mul_i32 s45, s{sHW}, {16*3456}
    s_lshl_b32 s46, s41, 7
    s_add_u32 s45, s45, s46
    s_lshl_b32 s46, s{sHW}, 11
    s_lshl_b32 s43, s{sHW}, 10
    s_mul_i32 s50, s40, 27
    s_add_u32 s50, s50, s41
    s_lshl_b32 s50, s50, 7
    s_add_u32 s51, s50, {4*M_S3}
    s_add_u32 s50, s50, {4*M_CS4}
    s_mov_b32 s56, 30""")

def p4_h(self):
    a = self.a
    T = P4_TAB
    LA = 2
    self.vm = VM()
    a("L_p4_h_in:")
    NWP = opt('w4p', 3)
    w5n = [0]
    def wdma(S):
        a(f"s_add_u32 s58, s45, {S*64*3456}")
        for k, sr in enumerate((SRD_WG, SRD_WU)):
            a(f"s_add_u32 m0, s46, {(S%3)*P4_SS + 28672 + 8192*k}")
            for i in range(2): self.vmem(f"buffer_load_dwordx4 v{3+i}, {srd(sr)}, s58 offen offset:{1024*i} lds", ('p4', S))
    def dma(S):
        for i in range(7):
            if i % 2 == 0: a(f"s_add_u32 m0, s47, {(S%3)*P4_SS + 2048*i}\ns_add_u32 s59, s44, {2048*S + 20480*i}")
            self.vmem(f"buffer_load_dwordx4 v{5 if i & 1 else 2}, {WS}, s59 offen offset:{2048*(i&1)} sc1 lds", ('p4a', S) if i < 3 else ('p4', S))
        if S >= NWP: wdma(S)
    for S in range(NWP): wdma(S)
    self.poll1(5, "s51", "s56", 8, 9)
    a("v_mov_b32 v8, 0")
    if opt('dbgw', 0):
        a(f"s_memrealtime s[100:101]\ns_waitcnt lgkmcnt(0)\ns_mov_b32 s99, s100\nL_dbgw:\ns_memrealtime s[100:101]\ns_waitcnt lgkmcnt(0)\ns_sub_u32 s100, s100, s99\ns_cmp_lt_u32 s100, {opt('dbgw', 0)}\ns_cbranch_scc1 L_dbgw")
    self.stamp('p4poll', 4)
    for st in range(LA): dma(st)
    a(f"""v_lshlrev_b32 v9, 2, v1
    s_mul_i32 s48, s40, 1792
    s_lshl_b32 s49, s{sHW}, 9
    s_add_u32 s48, s48, s49
    s_add_u32 s48, s48, {ST2}
    v_lshrrev_b32 v16, 5, v1
    v_and_b32 v17, 31, v1
    v_lshlrev_b32 v7, 15, v16
    v_lshl_add_u32 v7, v17, 4, v7
    v_lshl_add_u32 v18, v17, 1, v16
    v_lshrrev_b32 v16, 4, v1
    v_mul_u32_u24 v9, {3456*4}, v16
    v_and_b32 v19, 15, v1
    v_lshl_add_u32 v9, v19, 4, v9
    s_and_b32 s52, s{sHW}, 1
    s_mul_i32 s49, s52, {1728*4}
    s_lshl_b32 s53, s41, 8
    s_add_u32 s49, s49, s53
    s_add_u32 s49, s49, {CS4}
    s_add_u32 s56, s56, 8""")
    self.wait_vm(('p4a', 0))
    self.bar()
    for st in range(10):
        self.wait_vm(('p4', st))
        self.bar()
        self.sstamp(f'h4b{st}')
        if st == 0: st2_store(self)
        if st + LA < 10: dma(st + LA)
        if st == LA:
            aux_signal(self)
        if st == 4:
            self.vmem(f"buffer_load_dword v36, v8, {WS}, s50 offen sc1", 'mb')
        if st == 5:
            self.wait_vm('mb')
            a("v_cmp_ne_u32 vcc, s56, v36\ns_cbranch_vccz L_p4_csok")
            keep = list(self.vm.ops)
            self.poll("s50", "s56", 8, 36)
            self.vm.ops = keep
            a("L_p4_csok:")
        for q in {5: range(0, 3), 6: range(3, 6)}.get(st, []):
            if q < 5:
                self.vmem(f"buffer_load_dwordx4 {vr(40+4*q)}, v7, {WS}, s48 offen sc1", ('st2', q))
                a("s_add_u32 s48, s48, 65536")
            else: self.vmem(f"buffer_load_dwordx4 v[32:35], v9, {WS}, s49 offen sc1", ('st2', q))
        if st == 8:
            self.wait_vm(('st2', 5))
            for q in range(1, 5):
                for i in range(4): a(f"v_add_f32 v{40+i}, v{40+i}, v{40+4*q+i}")
            a(f"""v_permlane32_swap_b32 v40, v42
            v_permlane32_swap_b32 v41, v43
            v_permlane32_swap_b32 v32, v34
            v_permlane32_swap_b32 v33, v35
            v_add_f32 v16, v40, v42
            v_add_f32 v17, v41, v43
            v_add_f32 v32, v32, v34
            v_add_f32 v33, v33, v35
            v_mov_b32 v20, {f32hex(1.0/D)}
            v_mul_f32 v12, v16, v20
            v_permlane16_swap_b32 v32, v33
            v_mul_f32 v17, v17, v20
            v_fma_f32 v17, -v12, v12, v17
            v_max_f32 v17, 0, v17
            v_add_f32 v17, {f32hex(1e-5)}, v17
            v_rsq_f32 v13, v17
            v_sqrt_f32 v14, v17
            v_add_f32 v32, v32, v33
            v_mov_b32 v15, 0
            v_mul_f32 v13, {f32hex(-LOG2E)}, v13
            s_lshl_b32 s52, s52, 8
            s_add_u32 s52, s52, {T+4096}
            v_lshrrev_b32 v16, 4, v1
            v_lshl_add_u32 v10, v19, 2, v16
            v_lshl_add_u32 v10, v10, 2, s52
            s_add_u32 s52, s43, {T}
            v_lshl_add_u32 v11, v18, 4, s52""")
        if st == opt('tw', 9): a("ds_write_b32 v10, v32\nds_write_b128 v11, v[12:15]")
        if self.upto >= 5:
            for _ in range(W5PLAN.get(st, 0)):
                k = w5n[0]; w5n[0] += 1
                assert k < (2 if st < 8 else 7 if st == 8 else 12)
                p5_wdma(self, k)
    a("s_waitcnt lgkmcnt(0)")
    self.sdump(6)
    self.bar()
    a("L_p5_h_pre:")
    if self.upto >= 5:
        E = opt('w5e', 18)
        for st in range(P5_PRE, E):
            p5_wdma(self, st)
        self.wait_vm(('p5w', min(12, E - 1)))
    self.bar()
    a("s_cmp_ge_u32 s2, 220\ns_cbranch_scc1 L_end")

def idle_code(self):
    a = self.a
    self.vm = VM()
    a(f"""L_idle:
    s_mul_i32 s40, s{sWAVE}, 36
    s_add_u32 s40, s40, s2
    s_sub_u32 s40, s40, 220
    s_cmp_ge_u32 s40, 216
    s_cbranch_scc1 {'L_ct2' if opt('ct2', 1) else 'L_cs4_done'}
    s_mul_i32 s46, s40, 1214
    s_lshr_b32 s46, s46, 16
    s_mul_i32 s41, s46, 54
    s_sub_u32 s40, s40, s41
    s_cmp_ge_u32 s40, 27
    s_cselect_b32 s44, 27, 0
    s_cselect_b32 s56, s{SRD_WU}, s{SRD_WG}
    s_cselect_b32 s57, s{SRD_WU+1}, s{SRD_WG+1}
    s_mov_b32 s58, {D*F*2}
    s_mov_b32 s59, 0x20000
    s_sub_u32 s45, s40, s44
    s_lshl_b32 s47, s45, 7
    s_mul_i32 s41, s46, {160*3456}
    s_add_u32 s47, s47, s41
    s_mul_i32 s50, s{sWAVE}, 20480""")
    self.colsum_issue("s[56:59]", 3456, 47, 50, 16, 17, 18)
    a(f"""s_mul_i32 s47, s46, {3456*4}
    s_lshl_b32 s41, s40, 8
    s_add_u32 s47, s47, s41
    s_add_u32 s47, s47, {CS4}
    s_waitcnt vmcnt(0)""")
    self.colsum_finish(50, 47, 16)
    a(f"""v_mul_u32_u24 v16, 27, v1
    v_add_u32 v16, s45, v16
    v_cmp_gt_u32 vcc, 9, v1
    s_waitcnt vmcnt(0)""")
    self.signal(16, M_CS4, 17)
    if opt('ct2', 1):
        a(f"s_branch L_cs4_done\nL_ct2:\ns_sub_u32 s41, s{sWAVE}, 6\ns_mul_i32 s41, s41, 3")
        self.code_touch('b', 41, 3)
        a("s_waitcnt vmcnt(0)")
    a("L_cs4_done:")
    a.settle()
    self.stamp('csdone')
    a("s_barrier")
    if self.upto < 4:
        a("s_endpgm"); return
    a(f"""s_cmp_ge_u32 s2, 243
    s_cbranch_scc1 L_rem
    s_cmp_lt_u32 s{sWAVE}, 4
    s_cbranch_scc1 L_p4_c_in""")
    p4_h_pre(self)
    a(f"""s_mov_b32 s54, {OOB//2}
    v_mov_b32 v12, 0
    v_mov_b32 v13, 0
    v_mov_b32 v247, {OOB//2}
    s_mov_b64 s[60:61], 1
    s_branch L_p4_h_in""")
    p4_rem(self)

def p4_rem(self):
    a = self.a
    SL = 10240
    ACC, CS, RS, SQ, ONES, FR, FR2, ST, PK = 64, 128, 160, 168, 176, 16, 200, 180, 16
    base = {5: 1, 6: 3, 12: 5, 0: 7, 7: 9, 8: 11, 10: 13, 1: 15, 2: 17, 9: 19, 3: 21, 4: 23, 11: 25}
    tab = sum(((base[i] - 1) // 2) << (4 * i) for i in range(13))
    a(f"""L_rem:
    s_sub_u32 s41, s2, 243
    s_lshl_b32 s41, s41, 2
    s_mov_b32 s44, {tab & 0xffffffff}
    s_mov_b32 s45, {tab >> 32}
    s_lshr_b64 s[44:45], s[44:45], s41
    s_and_b32 s41, s44, 15
    s_cmp_eq_u32 s41, 0
    s_cselect_b32 s44, 3, 2
    s_cmp_ge_u32 s{sWAVE}, s44
    s_cbranch_scc1 L_end
    s_lshl_b32 s41, s41, 1
    s_add_u32 s41, s41, 2
    s_sub_u32 s41, s41, s{sWAVE}""")
    self.w128_dma_voff(3456, 4, 10, 11)
    self.w128_read_addr(10, 2)
    a(f"""v_xor_b32 v5, 64, v4
    v_add_u32 v5, {8*3456-1024}, v5
    v_add_u32 v6, {2*(8*3456-1024)}, v4
    v_add_u32 v7, {2*(8*3456-1024)}, v5
    v_lshlrev_b32 v8, 4, v1
    v_add_u32 v9, {20480-1024}, v8
    s_mul_i32 s42, s{sWAVE}, {5*SL}
    v_add_u32 v10, s42, v10
    v_xor_b32 v11, 32, v10
    v_xor_b32 v12, 64, v10
    v_xor_b32 v13, 96, v10
    v_add_u32 v14, s42, v8
    v_and_b32 v2, 15, v1
    v_lshrrev_b32 v3, 4, v1
    s_lshl_b32 s44, s41, 7
    s_mov_b32 s45, {HH + 126*20480}
    s_lshl_b32 s46, s2, 7
    s_add_u32 s46, s46, {4*M_S3}""")
    for i in range(ONES - ACC): a(f"v_mov_b32 v{ACC+i}, 0")
    for i in range(4): a(f"v_mov_b32 v{ONES+i}, 0x3f803f80")
    def wd(m0):
        o = []
        for k, sr in enumerate((SRD_WG, SRD_WU)):
            o.append(f"s_add_u32 m0, {m0}, {4096*k}")
            o += [f"buffer_load_dwordx4 v{4+i}, {srd(sr)}, s44 offen offset:{1024*i} lds" for i in range(4)]
        return o + [f"s_add_u32 s44, s44, {32*3456}"]
    def xd(m0):
        return [f"s_add_u32 m0, {m0}, 8192"] + [f"buffer_load_dwordx4 v{8+i}, {WS}, s45 offen offset:{1024*i} sc1 lds" for i in range(2)] + ["s_add_u32 s45, s45, 1024"]
    for i in range(5):
        a(f"s_add_u32 s47, s42, {SL*i}")
        for t in wd("s47"): a(t)
    self.pollw("s46", 10, 15, 248)
    for i in range(5):
        a(f"s_add_u32 s47, s42, {SL*i}")
        for t in xd("s47"): a(t)
    def rds(F):
        return [f"ds_read_b128 {vr(F+4*m)}, v14 offset:{8192+1024*m}" for m in range(2)] + \
               [f"ds_read_b64_tr_b16 {vr(F+8+4*n+2*t,2)}, v{10+(n&3)} offset:{4096*(n>>2)+512*t}" for n in range(8) for t in range(2)]
    a("s_mov_b32 s47, s42\ns_mov_b32 s48, 0\ns_mov_b32 s49, 0\ns_waitcnt vmcnt(0)")
    for t in rds(FR): a(t)
    a("L_rem_l:")
    pos = lambda n: 16 * ((n & 3) >> 1) + 8 * (n >> 2) + 4 * (n & 1)
    for F, G in ((FR, FR2), (FR2, FR)):
        a(f"""s_cmp_ge_u32 s48, 15
        s_cselect_b32 s45, {OOB//2}, s45
        s_add_u32 s48, s48, 1
        s_add_u32 s49, s49, 1
        s_cmp_eq_u32 s49, 5
        s_cselect_b32 s49, 0, s49
        s_mov_b32 s50, {SL}
        s_cselect_b32 s50, {(-4*SL) & 0xffffffff}, s50""")
        for r in range(10, 15): a(f"v_add_u32 v{r}, s50, v{r}")
        a("s_waitcnt vmcnt(30) lgkmcnt(0)")
        side = rds(G)
        side2 = wd("s47") + xd("s47") + ["s_add_u32 s47, s47, s50"]
        ms = []
        for m in range(2): ms += [(RS + 4 * m, ONES, F + 4 * m), (SQ + 4 * m, F + 4 * m, F + 4 * m)]
        for n in range(8): ms += [(ACC + pos(n), F + 8 + 4 * n, F), (ACC + 32 + pos(n), F + 8 + 4 * n, F + 4), (CS + pos(n), F + 8 + 4 * n, ONES)]
        for k, (d, A, B) in enumerate(ms):
            a(f"v_mfma_f32_16x16x32_bf16 {vr(d)}, {vr(A)}, {vr(B)}, {vr(d)}")
            if side: a(side.pop(0))
            if k >= 12 and side2: a(side2.pop(0))
        assert not side and not side2
    a("s_cmp_lt_u32 s48, 20\ns_cbranch_scc1 L_rem_l\ns_waitcnt lgkmcnt(0)")
    a.settle(10)
    a("v_and_b32 v4, 3, v2\nv_lshrrev_b32 v5, 2, v2\nv_cmp_eq_u32 s[50:51], v5, v3")
    for m in range(2):
        q = SQ + 4 * m
        for i in range(1, 4): a(f"v_cmp_eq_u32 vcc, {i}, v4\nv_cndmask_b32 v{q}, v{q}, v{q+i}, vcc")
        a(f"""v_cndmask_b32 v{q}, 0, v{q}, s[50:51]
        v_mov_b32 v{q+1}, v{q}
        v_permlane16_swap_b32 v{q}, v{q+1}
        v_add_f32 v{q}, v{q}, v{q+1}
        v_mov_b32 v{q+1}, v{q}
        v_permlane32_swap_b32 v{q}, v{q+1}
        v_add_f32 v{q}, v{q}, v{q+1}
        v_mul_f32 v{ST+4*m}, {f32hex(1.0/D)}, v{RS+4*m}
        v_mul_f32 v{q}, {f32hex(1.0/D)}, v{q}
        v_fma_f32 v{q}, -v{ST+4*m}, v{ST+4*m}, v{q}
        v_max_f32 v{q}, 0, v{q}
        v_add_f32 v{q}, {f32hex(1e-5)}, v{q}
        v_rsq_f32 v{ST+4*m+1}, v{q}
        v_sqrt_f32 v{ST+4*m+2}, v{q}
        v_mov_b32 v{ST+4*m+3}, 0
        v_mul_f32 v{ST+4*m+1}, {f32hex(-LOG2E)}, v{ST+4*m+1}""")
    a(f"""v_and_b32 v6, 1, v3
    v_lshlrev_b32 v6, 9, v6
    v_lshrrev_b32 v7, 1, v3
    v_lshl_add_u32 v6, v7, 8, v6
    v_lshl_add_u32 v6, v2, 4, v6
    s_lshl_b32 s50, s41, 11
    s_add_u32 s50, s50, {HP + 126*55296}
    s_add_u32 s51, s50, 55296""")
    glu_epilogue(a, [(ACC + 32 * m + 16 * p, CS + 16 * p, ST + 4 * m) for m in range(2) for p in range(2)], PK,
                 lambda u, pk: [f"buffer_store_dwordx4 {vr(pk)}, v6, {WS}, s{50 + (u >> 1)} offen offset:{1024*(u&1)} sc1"])
    a("v_add_u32 v16, 210, v1\ns_waitcnt vmcnt(0)")
    self.signal(16, M_S4, 17, mask='0x3ff')
    self.stamp('remdone')
    a("s_endpgm")

def p5_h_pre(self):
    a = self.a
    p5_coords(a, 64, 65, 66)
    self.w128_dma_voff(1280, 103, 10, 11)
    a(f"""v_xor_b32 v104, 64, v103
    v_add_u32 v104, {8*1280-1024}, v104""")
    a(f"""s_mul_i32 s68, s64, {6*55296}
    s_add_u32 s68, s68, {HP - 4096}
    s_mul_i32 s69, s{sHW}, {16*1280}
    s_lshl_b32 s70, s65, 7
    s_add_u32 s69, s69, s70
    s_mul_i32 s70, s{sHW}, 3072
    s_lshl_b32 s71, s{sHW}, 11
    s_mul_i32 s72, s64, 10
    s_add_u32 s72, s72, s65
    s_lshl_b32 s72, s72, 7
    s_add_u32 s72, s72, {4*M_S4}
    s_cmp_ge_u32 s2, 220
    s_cselect_b32 s69, {OOB//2}, s69""")
    n4_blocks(a, 64, 73, 74)

def p5_wdma(self, st):
    a = self.a
    a(f"s_add_u32 s76, s69, {st*64*1280}\ns_add_u32 m0, s71, {p5_wslot(st)}")
    for i in range(2):
        self.vmem(f"buffer_load_dwordx4 v{103+i}, {srd(SRD_WD)}, s76 offen offset:{1024*i} lds", ('p5w', st))

def p5_sched():
    E = opt('w5e', 18)
    return ([(E - 6, 12)] if E < 13 else []) + [(7, 19), (14, 26)]

def p5_h(self):
    a = self.a
    E = opt('w5e', 18)
    for st in range(E, 20): p5_wdma(self, st)
    if not opt('wpre', 0): self.bar()
    NR = opt('w5r', 7)
    for st in range(20, 20 + NR): p5_wdma(self, st)
    if opt('p5p1', 1): self.bar()
    for step, cover in p5_sched():
        if cover == 26:
            for st in range(20 + NR, 27): p5_wdma(self, st)
        self.wait_vm(('p5w', cover))
        self.bar()
    self.nbar += 1

def p5_waddr(self):
    self.a(f"""s_lshl_b32 s51, s49, 12
    s_add_u32 s51, s51, {P5_SLOTS[0]*8192}
    v_add_u32 v10, s51, v14
    v_xor_b32 v11, 32, v10
    v_xor_b32 v12, 64, v10
    v_xor_b32 v13, 96, v10""")

def p5_c_pre(self):
    a = self.a
    p5_coords(a, 40, 41, 42)
    if not opt('wpre', 0): p5_waddr(self)
    a(f"""    s_mul_i32 s50, s{sWAVE}, 6144
    s_add_u32 s50, s50, {P5_EX}
    v_lshl_add_u32 v8, v1, 4, s50
    s_xor_b32 s50, s{sWAVE}, 2
    s_mul_i32 s50, s50, 6144
    s_add_u32 s50, s50, {P5_EX}
    v_lshl_add_u32 v15, v1, 4, s50""")
    a(f"""v_lshrrev_b32 v7, 1, v3
    v_lshlrev_b32 v4, 8, v7
    v_lshl_add_u32 v4, v2, 4, v4
    v_and_b32 v5, 1, v3
    v_lshl_add_u32 v4, v5, 3, v4
    s_lshl_b32 s55, s40, 1
    s_add_u32 s55, s55, s48
    s_mul_i32 s55, s55, 3
    s_mul_i32 s50, s55, 20480
    s_lshl_b32 s52, s41, 1
    s_add_u32 s52, s52, s49
    s_lshl_b32 s53, s52, 10
    s_add_u32 s51, s50, s53
    s_add_u32 s51, s51, {HH}""")
    a(f"""v_mul_u32_u24 v9, 1280, v2
    v_lshl_add_u32 v9, v5, 5, v9
    v_lshl_add_u32 v9, v7, 4, v9
    s_lshl_b32 s54, s52, 6
    s_add_u32 s53, s50, s54
    v_add_u32 v9, s53, v9""")
    for mu in range(3):
        a(f"""s_add_u32 s56, s55, {mu}
        s_cmp_ge_u32 s56, 128
        s_cselect_b32 s56, {OOB//2}, {55296*mu if mu else 0}
        v_lshl_add_u32 v{5+mu}, v1, 4, s56""".replace(f"s_cselect_b32 s56, {OOB//2}, {55296*mu}", f"s_mov_b32 s57, {55296*mu}\n        s_cselect_b32 s56, {OOB//2}, s57"))
    a(f"""s_mul_i32 s56, s55, 55296
    s_lshl_b32 s57, s49, 10
    s_add_u32 s56, s56, s57
    s_add_u32 s56, s56, {HP}
    s_mul_i32 s57, s40, 10
    s_add_u32 s57, s57, s41
    s_lshl_b32 s57, s57, 7
    s_add_u32 s57, s57, {4*M_S4}
    s_nop 0""")
    n4_blocks(a, 40, 58, 59)

def p5_c(self):
    a = self.a
    self.vm = VM()
    ACC, WR, AR, HR = 16, 64, 176, 236
    NW, NA = 7, 5
    lg = LG(a)
    win = [P5_SLOTS[0]]
    def wreads(st):
        sl = P5_SLOTS[st % P5_RW]
        out = []
        if not (0 <= sl - win[0] <= 6):
            d = (sl - win[0]) * 8192
            out.append(("\n".join(f"v_add_u32 v{10+i}, {d & 0xffffffff}, v{10+i}" for i in range(4)), 'valu'))
            win[0] = sl
        wb = WR + 16 * (st % NW)
        out += [(f"ds_read_b64_tr_b16 {vr(wb+4*i+2*t,2)}, v{10+i} offset:{8192*(sl-win[0])+512*t}", ('W', st)) for i in range(4) for t in range(2)]
        return out
    def emit(op):
        if op[1] == 'valu': a(op[0])
        else: lg.op(*op)
    def aload(st, mu):
        self.vmem(f"buffer_load_dwordx4 {vr(AR+12*(st%NA)+4*mu)}, v{5+mu}, {WS}, s56 offen offset:{2048*(st&1)} sc1", ('A', st))
        if mu == 2 and st & 1: a("s_add_u32 s56, s56, 4096")
    for mu in range(3):
        for nu in range(2):
            a(f"buffer_load_dwordx2 {vr(HR+4*mu+2*nu,2)}, v4, {WS}, s51 offen offset:{512*nu} sc1")
        if mu < 2: a("s_add_u32 s51, s51, 20480")
    if opt('wpre', 0):
        for st in range(NW): lg.pos[('W', st)] = 0
    else:
        for st in range(NW):
            for op in wreads(st): emit(op)
            if st: lg.need(('W', st - 1))
        lg.drain()
        self.bar()
    if opt('p5p1', 1): self.poll1(1, "s57", "s58", 4, 0)
    else: self.pollw("s57", "s58", 4, AR)
    self.stamp('p5poll')
    NI = opt('ni', 5)
    for st in range(NI):
        for mu in range(3): aload(st, mu)
    for st in range(27):
        if st in [x[0] for x in p5_sched()]: self.bar()
        self.wait_vm(('A', st))
        if st == 0: self.stamp('p5b0')
        lg.need(('W', st))
        nxt = wreads(st - 1 + NW) if st >= 1 and st - 1 + NW < 27 else []
        k = 0; n = 0
        seq = [(mu, i) for mu in range(3) for i in range(4)]
        if st == 26: seq = [x for x in seq if x[1] >= 2] + [x for x in seq if x[1] < 2]
        for mu, i in seq:
                ac = ACC + 16 * mu + 4 * i
                c = "0" if st == 0 else vr(ac)
                a(f"v_mfma_f32_16x16x32_bf16 {vr(ac)}, {vr(WR+16*(st%NW)+4*i)}, {vr(AR+12*(st%NA)+4*mu)}, {c}")
                if st == 0 and n < 3 * (NA - NI): aload(NI + n // 3, n % 3)
                if n < 3 and st >= 1 and st - 1 + NA < 27: aload(st - 1 + NA, n)
                elif k < len(nxt): emit(nxt[k]); k += 1
                if st == 24:
                    a(f"v_lshlrev_b32 v{64+2*n}, 16, v{HR+n}\nv_and_b32 v{65+2*n}, 0xffff0000, v{HR+n}")
                if st == 26 and n >= 6:
                    q = n - 6
                    a(f"ds_write_b128 v8, {vr(ACC+16*(q>>1)+8+4*(q&1))} offset:{1024*q}")
                n += 1
        assert k == len(nxt)
        if st == 23 and opt('otr', 0):
            a(f"""s_mul_i32 s50, s{sWAVE}, 3072
            s_add_u32 s50, s50, 24576
            v_and_b32 v6, 1, v3
            v_lshlrev_b32 v6, 1, v6
            v_lshrrev_b32 v7, 1, v3
            v_add_u32 v6, v6, v7
            v_lshrrev_b32 v7, 2, v2
            v_xor_b32 v6, v6, v7
            v_lshlrev_b32 v6, 4, v6
            v_lshl_add_u32 v6, v2, 6, v6
            v_add_u32 v6, s50, v6
            v_lshl_add_u32 v7, v1, 4, s50
            v_lshrrev_b32 v5, 2, v1
            v_mul_u32_u24 v5, 1280, v5
            v_and_b32 v4, 3, v1
            v_xor_b32 v4, v4, v3
            v_lshl_add_u32 v5, v4, 4, v5
            v_add_u32 v5, s53, v5""")
        if st == 22:
            pass
    self.stamp('p5loop')
    a("s_waitcnt lgkmcnt(0)")
    self.bar()
    for q in range(6): a(f"ds_read_b128 {vr(96+4*q)}, v15 offset:{1024*q}")
    for mu in range(3):
        for h in range(4): a(f"v_pk_add_f32 {vr(64+8*mu+2*h,2)}, {vr(64+8*mu+2*h,2)}, {vr(ACC+16*mu+2*h,2)}")
    for mu in range(3):
        a(f"s_waitcnt lgkmcnt({4-2*mu})")
        for h in range(4): a(f"v_pk_add_f32 {vr(64+8*mu+2*h,2)}, {vr(64+8*mu+2*h,2)}, {vr(96+8*mu+2*h,2)}")
        pk = 128 + 4 * mu
        for h in (0, 2, 1, 3): a(f"v_cvt_pk_bf16_f32 v{pk+h}, v{64+8*mu+2*h}, v{65+8*mu+2*h}")
        a(f"v_permlane16_swap_b32 v{pk}, v{pk+2}\nv_permlane16_swap_b32 v{pk+1}, v{pk+3}")
        if opt('otr', 0): a(f"ds_write_b128 v6, {vr(pk)} offset:{1024*mu}")
        else:
            a(f"buffer_store_dwordx4 {vr(pk)}, v9, {srd(SRD_OUT)}, 0 offen {opt('opol', 'sc1')}")
            if mu < 2: a("v_add_u32 v9, 20480, v9")
    if opt('otr', 0):
        for mu in range(3): a(f"s_waitcnt lgkmcnt({2-mu})\nds_read_b128 {vr(144+4*mu)}, v7 offset:{1024*mu}".replace(f"lgkmcnt({2-mu})", f"lgkmcnt({2})"))
        for mu in range(3):
            a(f"s_waitcnt lgkmcnt({2-mu})")
            a(f"buffer_store_dwordx4 {vr(144+4*mu)}, v5, {srd(SRD_OUT)}, 0 offen {opt('opol', 'sc1')}")
            if mu < 2: a("v_add_u32 v5, 20480, v5")
    self.stamp('end')
```

```python
import sys, math, struct
from asmlib import Asm

NAME = "sequential_preLN__sliding_block__glu_gated_glu__prompt"
S, D, F = 2048, 640, 1728
MB = 0
M_S0, M_S1, M_S2, M_S3, M_S4, M_CS4, M_S1V, M_S2B = range(8)
MEAN1 = 0x10000
RSTD1 = 0x12000
CS1 = 0x14000
CS4 = 0x1C000
ST2 = 0x30000
TS = 0x90000
QKV = 0x100000
OO = 0x900000
HH = 0xC00000
HP = 0x1000000
WS_END = 0x1700000
LDS_BYTES = 163840
OOB = 0x7ffffff0
LOG2E = math.log2(math.e)

sWAVE = 3
SRD_WS, SRD_X, SRD_WQKV, SRD_WO, SRD_WG, SRD_WU, SRD_WD, SRD_OUT, SRD_DBG = [4 + 4 * i for i in range(9)]
def srd(b): return f"s[{b}:{b+3}]"
WS = srd(SRD_WS)
sBOUND = 96
sHW = 97
def vr(b, n=4): return f"v[{b}:{b+n-1}]"
def f32hex(x): return "0x%08x" % struct.unpack('<I', struct.pack('<f', x))[0]

OPT = dict(a.split('=') for a in sys.argv[1:] if '=' in a)
def opt(k, d): return type(d)(OPT.get(k, d))

INITWG = opt('initwg', 230 if opt('p1n', 0) else 5)
KALIGN = 12 if opt('iw', 0) else 8

class VM:
    def __init__(self): self.ops = []
    def add(self, tag): self.ops.append(tag)
    def count_after(self, tag):
        idx = max(i for i, t in enumerate(self.ops) if t == tag)
        return len(self.ops) - 1 - idx
    def clear(self): self.ops = []

class LG:
    def __init__(self, a): self.a = a; self.n = 0; self.pos = {}; self.done = 0
    def op(self, text, tag=None):
        self.a(text); self.n += 1
        if tag is not None: self.pos[tag] = self.n
    def need(self, *tags):
        p = max(self.pos[t] for t in tags)
        if p > self.done:
            c = min(self.n - p, 15)
            self.a(f"s_waitcnt lgkmcnt({c})")
            self.done = self.n - c
    def drain(self):
        if self.done < self.n:
            self.a("s_waitcnt lgkmcnt(0)"); self.done = self.n

class Gen:
    def __init__(self, upto=5, stamps=False):
        self.a = Asm()
        self.vm = VM()
        self.upto = upto
        self.stamps = stamps
        self.tail = []
        self.stamp_names = []
        self.nbar = 0
        self.spend = []
        self.sbase = 80

    def vmem(self, text, tag):
        self.a(text); self.vm.add(tag)
    def wait_vm(self, tag):
        n = self.vm.count_after(tag)
        assert n <= 63, n
        self.a(f"s_waitcnt vmcnt({n})")
    def bar(self):
        self.a("s_barrier"); self.nbar += 1
    def build_srd(self, b, ptr, nbytes):
        self.a(f"s_mov_b32 s{b}, s{ptr}\ns_mov_b32 s{b+1}, s{ptr+1}\ns_mov_b32 s{b+2}, {nbytes}\ns_mov_b32 s{b+3}, 0x20000")
    def stamp(self, name, wave=0):
        if opt('dly', '') == name:
            self.a("s_waitcnt lgkmcnt(0)\ns_memrealtime s[100:101]\ns_waitcnt lgkmcnt(0)\ns_mov_b32 s1, s100")
        if opt('dly', '') and name == 'end':
            if opt('dlyx', -1) >= 0: self.a(f"s_and_b32 s100, s2, 7\ns_cmp_lg_u32 s100, {opt('dlyx', -1)}\ns_cbranch_scc1 L_end")
            self.a("L_dly:\ns_memrealtime s[100:101]\ns_waitcnt lgkmcnt(0)\ns_sub_u32 s100, s100, s1\ns_cmp_lt_u32 s100, 4000\ns_cbranch_scc1 L_dly")
        if not self.stamps or ('lite' in sys.argv and name not in opt('keep', 'start,end').split(',')): return
        a = self.a
        if name in self.stamp_names: i = self.stamp_names.index(name)
        else:
            i = len(self.stamp_names); self.stamp_names.append(name)
        assert i < 64
        L = a.newlabel('Lst')
        a(f"""s_cmp_lg_u32 s{sWAVE}, {wave}
        s_cbranch_scc1 {L}
        s_memrealtime s[100:101]
        v_mov_b32 v255, s2
        v_lshlrev_b32 v255, 9, v255
        v_add_u32 v255, {TS + 8*i}, v255
        s_waitcnt lgkmcnt(0)
        v_mov_b32 v252, s100
        s_memtime s[100:101]
        s_waitcnt lgkmcnt(0)
        v_mov_b32 v253, s100
        s_mov_b64 exec, 1
        buffer_store_dwordx2 v[252:253], v255, {WS}, 0 offen
        s_mov_b64 exec, -1
        {L}:""")

    def sstamp(self, name):
        if not self.stamps or 'lite' in sys.argv: return
        k = len(self.spend); assert k < 16
        self.spend.append(name)
        self.a(f"s_memtime s[100:101]\ns_waitcnt lgkmcnt(0)\ns_mov_b32 s{self.sbase+k}, s100")
    def sdump(self, wave):
        if not self.stamps: return
        a = self.a
        L = a.newlabel('Lsd')
        a(f"""s_cmp_lg_u32 s{sWAVE}, {wave}
        s_cbranch_scc1 {L}
        v_mov_b32 v255, s2
        v_lshlrev_b32 v255, 9, v255
        v_add_u32 v255, {TS}, v255
        v_mov_b32 v252, 0
        s_mov_b64 exec, 1""")
        for k, name in enumerate(self.spend):
            i = len(self.stamp_names); self.stamp_names.append(name); assert i < 64
            a(f"v_mov_b32 v253, s{self.sbase+k}\nbuffer_store_dwordx2 v[252:253], v255, {WS}, 0 offen offset:{8*i}")
        a(f"s_mov_b64 exec, -1\n{L}:")
        self.spend = []

    def wave_sum(self, vs, sdsts):
        for mod in ("quad_perm:[1,0,3,2] row_mask:0xf", "quad_perm:[2,3,0,1] row_mask:0xf", "row_half_mirror row_mask:0xf",
                    "row_mirror row_mask:0xf", "row_bcast:15 row_mask:0xa", "row_bcast:31 row_mask:0xc"):
            for v in vs:
                self.a(f"v_add_f32_dpp v{v}, v{v}, v{v} {mod} bank_mask:0xf")
        for v, s in zip(vs, sdsts):
            self.a(f"v_readlane_b32 s{s}, v{v}, 63")

    def poll(self, soff, expect, va, vt, srdb=SRD_WS):
        a = self.a
        L = a.newlabel('Lpoll'); Ld = L + 'd'
        a(f"""v_mov_b32 v{va}, 0
        {L}:
        buffer_load_dword v{vt}, v{va}, {srd(srdb)}, {soff} offen sc1
        s_waitcnt vmcnt(0)
        v_cmp_ne_u32 vcc, {expect}, v{vt}
        s_cbranch_vccz {Ld}
        s_sleep 1
        s_sub_u32 s{sBOUND}, s{sBOUND}, 1
        s_cbranch_scc0 {L}
        s_mov_b32 s{sBOUND}, 0
        {Ld}:""")
        self.vm.clear()

    def pollw(self, soff, expect, va, vt, depth=1, nap=0):
        a = self.a
        L = a.newlabel('Lpoll'); Ld = L + 'd'
        a(f"v_mov_b32 v{va}, 0\ns_mov_b64 exec, 1")
        pl = lambda k: a(f"v_mov_b32 v{vt+k}, 0\nbuffer_atomic_add v{vt+k}, v{va}, {WS}, {soff} offen sc0 sc1")
        for k in range(depth - 1):
            pl(k); a("s_sleep 3")
        a(f"{L}:")
        for k in range(depth):
            pl((k + depth - 1) % depth)
            a(f"s_waitcnt vmcnt({depth-1})\nv_cmp_ne_u32 vcc, {expect}, v{vt+k}\ns_cbranch_vccz {Ld}")
        if nap: a(f"s_sleep {nap}")
        a(f"""s_sub_u32 s{sBOUND}, s{sBOUND}, 1
        s_cbranch_scc0 {L}
        s_mov_b32 s{sBOUND}, 0
        {Ld}:
        s_mov_b64 exec, -1""")

    def poll1(self, wave, soff, expect, va, vt):
        a = self.a
        L = a.newlabel('Lp1')
        a(f"s_cmp_lg_u32 s{sWAVE}, {wave}\ns_cbranch_scc1 {L}")
        self.pollw(soff, expect, va, 248, depth=opt('pd', 3))
        a(f"{L}:")
        self.bar()

    def signal(self, vline, dword, vt, mask='vcc'):
        self.a(f"""v_lshlrev_b32 v{vline}, 7, v{vline}
        v_mov_b32 v{vt}, 1
        s_mov_b64 exec, {mask}
        buffer_atomic_add v{vt}, v{vline}, {WS}, 0 offen offset:{4*dword} sc1
        s_mov_b64 exec, -1""")

    def w128_dma_voff(self, pitch, vE, vt, vt2):
        self.a(f"""v_lshrrev_b32 v{vt}, 3, v1
        v_mul_u32_u24 v{vE}, {pitch}, v{vt}
        v_and_b32 v{vt}, 2, v{vt}
        v_and_b32 v{vt2}, 7, v1
        v_xor_b32 v{vt}, v{vt}, v{vt2}
        v_lshl_add_u32 v{vE}, v{vt}, 4, v{vE}""")

    def colsum_issue(self, srdb, pitch, s_goff, s_lds, vE, vO, vt, n=20, step=8):
        a = self.a
        self.w128_dma_voff(pitch, vE, vt, vO)
        a(f"v_xor_b32 v{vO}, 64, v{vE}")
        for i in range(n):
            a(f"s_add_u32 m0, s{s_lds}, {1024*i}")
            self.vmem(f"buffer_load_dwordx4 v{vO if i & 1 else vE}, {srdb}, s{s_goff} offen lds", 'cs')
            if i < n - 1: a(f"s_add_u32 s{s_goff}, s{s_goff}, {step*pitch}")

    def w128_read_addr(self, vb, vt):
        self.a(f"""v_lshrrev_b32 v{vt}, 4, v1
        v_lshlrev_b32 v{vb}, 10, v{vt}
        v_bfe_u32 v{vt}, v1, 2, 2
        v_lshl_add_u32 v{vb}, v{vt}, 7, v{vb}
        v_and_b32 v{vt}, 3, v1
        v_lshl_add_u32 v{vb}, v{vt}, 3, v{vb}
        v_bfe_u32 v{vt}, v1, 3, 2
        v_lshl_add_u32 v{vb}, v{vt}, 5, v{vb}""")

    def colsum_finish(self, s_lds, s_out, vbase, ks=5):
        a = self.a
        vb = vbase; vones = vbase + 4; vacc = vbase + 8; vf = vbase + 24
        self.w128_read_addr(vb, vones)
        a(f"v_add_u32 v{vb}, s{s_lds}, v{vb}")
        for nu in range(1, 4): a(f"v_xor_b32 v{vb+nu}, {32*nu}, v{vb}")
        for i in range(4): a(f"v_mov_b32 v{vones+i}, 0x3f803f80")
        for s in range(ks):
            fb = vf + 16 * (s & 1)
            for nu in range(4):
                for t in range(2):
                    a(f"ds_read_b64_tr_b16 {vr(fb+4*nu+2*t, 2)}, v{vb+nu} offset:{(32*s+4*t)*128}")
            a("s_waitcnt lgkmcnt(0)")
            for nu in range(4):
                c = "0" if s == 0 else vr(vacc + 4 * nu)
                a(f"v_mfma_f32_16x16x32_bf16 {vr(vacc+4*nu)}, {vr(vones)}, {vr(fb+4*nu)}, {c}")
        a(f"""v_cmp_lt_u32 vcc, 15, v1
        v_cndmask_b32 v{vacc}, v{vacc}, v{vacc+4}, vcc
        v_cmp_lt_u32 vcc, 31, v1
        v_cndmask_b32 v{vacc}, v{vacc}, v{vacc+8}, vcc
        v_cmp_lt_u32 vcc, 47, v1
        v_cndmask_b32 v{vacc}, v{vacc}, v{vacc+12}, vcc
        v_lshlrev_b32 v{vb}, 2, v1""")
        self.vmem(f"buffer_store_dword v{vacc}, v{vb}, {WS}, s{s_out} offen sc1", 'csst')

    def row_stats(self, nrows):
        a = self.a
        a(f"""v_lshlrev_b32 v8, 4, v1
        v_lshlrev_b32 v9, 2, v1
        s_mul_i32 s45, s44, 1280""")
        for r in range(nrows):
            self.vmem(f"buffer_load_dwordx4 {vr(12+8*r)}, v8, {srd(SRD_X)}, s45 offen offset:{1280*r} {opt('xpol', '')}", 'stat')
            self.vmem(f"buffer_load_dword v{16+8*r}, v9, {srd(SRD_X)}, s45 offen offset:{1280*r+1024} {opt('xpol', '')}", 'stat')

    def row_stats_finish(self, nrows):
        a = self.a
        self.wait_vm('stat')
        E = lambda r, i: 32 + 12 * r + i
        for r in range(nrows):
            for i in range(5):
                a(f"v_lshlrev_b32 v{E(r,2*i)}, 16, v{12+8*r+i}\nv_and_b32 v{E(r,2*i+1)}, 0xffff0000, v{12+8*r+i}")
        acc = [12 + 8 * r for r in range(nrows)]
        for r in range(nrows): a(f"v_add_f32 v{acc[r]}, v{E(r,0)}, v{E(r,1)}")
        for i in range(2, 10):
            for r in range(nrows): a(f"v_add_f32 v{acc[r]}, v{acc[r]}, v{E(r,i)}")
        ss = [46 + r for r in range(nrows)]
        self.wave_sum(acc, ss)
        a(f"v_mov_b32 v10, {f32hex(1.0/D)}")
        for r in range(nrows): a(f"v_mul_f32 v{acc[r]+1}, s{ss[r]}, v10")
        for i in range(10):
            for r in range(nrows): a(f"v_sub_f32 v{E(r,i)}, v{E(r,i)}, v{acc[r]+1}")
        for r in range(nrows): a(f"v_mul_f32 v{acc[r]}, v{E(r,0)}, v{E(r,0)}")
        for i in range(1, 10):
            for r in range(nrows): a(f"v_fmac_f32 v{acc[r]}, v{E(r,i)}, v{E(r,i)}")
        self.wave_sum(acc, ss)
        for r in range(nrows):
            a(f"v_mov_b32 v{acc[r]+2}, {f32hex(1e-5)}\nv_fmac_f32 v{acc[r]+2}, s{ss[r]}, v10\nv_rsq_f32 v{acc[r]+2}, v{acc[r]+2}")
        a(f"""s_lshl_b32 s45, s44, 2
        s_add_u32 s45, s45, {MEAN1}
        s_add_u32 s46, s45, {RSTD1-MEAN1}
        v_mov_b32 v10, 0
        s_mov_b64 exec, 1""")
        for r in range(nrows):
            self.vmem(f"buffer_store_dword v{acc[r]+1}, v10, {WS}, s45 offen offset:{4*r} sc1", 'statst')
            self.vmem(f"buffer_store_dword v{acc[r]+2}, v10, {WS}, s46 offen offset:{4*r} sc1", 'statst')
        a("s_mov_b64 exec, -1")

    def sig_rowstats(self):
        a = self.a
        a("""s_lshr_b32 s53, s55, 4
        s_mul_i32 s53, s53, 15
        v_add_u32 v10, s53, v1
        v_cmp_gt_u32 vcc, 15, v1""")
        self.signal(10, M_S0, 11)

    def p0(self):
        a = self.a
        a(f"""s_cmp_ge_u32 s2, 256
        s_cbranch_scc1 L_end
        s_load_dwordx16 s[64:79], s[0:1], 0
        s_load_dwordx4 s[80:83], s[0:1], 64
        s_cmp_ge_u32 s2, 16
        s_cbranch_scc1 L_nocode
        s_cmp_eq_u32 s2, {INITWG}
        s_cbranch_scc1 L_nocode
        s_getpc_b64 s[40:41]
        L_pc:
        s_sub_u32 s40, s40, L_pc-{NAME}_kernel
        s_subb_u32 s41, s41, 0
        s_and_b32 s42, s2, 8
        s_lshl_b32 s42, s42, 5
        v_and_b32 v2, 256, v0
        v_cmp_ne_u32 vcc, s42, v2
        s_cmp_eq_u32 s2, {INITWG + 8}
        s_cselect_b64 vcc, -1, vcc
        s_cbranch_vccz L_nocode
        v_lshlrev_b32 v2, 7, v0
        v_min_u32 v2, L_code_end-{NAME}_kernel-4, v2
        global_load_dword v250, v2, s[40:41]
        L_nocode:
        v_and_b32 v1, 63, v0
        v_lshrrev_b32 v2, 6, v0
        v_readfirstlane_b32 s{sWAVE}, v2
        v_mov_b32 v247, 0
        v_mov_b32 v78, 0
        s_mov_b32 s98, 0
        s_mov_b32 s{sBOUND}, 0x100000""")
        a(f"""s_lshr_b32 s40, s2, 3
        s_sub_u32 s40, s40, 2
        s_and_b32 s41, s2, 1
        s_mul_i32 s41, s41, 30
        s_add_u32 s40, s40, s41
        s_lshr_b32 s41, s40, 2
        s_and_b32 s40, s40, 3
        s_add_u32 s43, s40, s41
        s_mul_i32 s42, s41, 21846
        s_lshr_b32 s42, s42, 16
        s_mul_i32 s41, s41, 5
        s_mul_i32 s44, s42, 14
        s_sub_u32 s41, s41, s44
        s_and_b32 s42, s2, 6
        s_lshl_b32 s42, s42, 1
        s_add_u32 s40, s40, s42
        s_and_b32 s{sHW}, s{sWAVE}, 3""")
        if opt('map1', 0):
            a("""s_lshr_b32 s41, s2, 3
            s_sub_u32 s41, s41, 2
            s_and_b32 s40, s2, 7
            s_lshl_b32 s40, s40, 1
            s_and_b32 s42, s41, 1
            s_add_u32 s40, s40, s42
            s_lshr_b32 s41, s41, 1
            s_add_u32 s43, s40, s41""")
        if opt('stloc', 0): a("s_and_b32 s55, s2, 7\ns_lshl_b32 s55, s55, 5\ns_lshr_b32 s42, s2, 3\ns_add_u32 s55, s55, s42")
        else: a("s_mov_b32 s55, s2")
        a("""v_lshrrev_b32 v10, 3, v1
        v_mul_u32_u24 v2, 1280, v10
        v_lshrrev_b32 v10, 4, v1
        v_and_b32 v11, 7, v1
        v_xor_b32 v11, v11, v10
        v_lshl_add_u32 v2, v11, 4, v2
        v_xor_b32 v3, 64, v2
        v_add_u32 v3, 9216, v3
        v_add_u32 v4, 18432, v2
        v_add_u32 v5, 18432, v3
        v_mul_u32_u24 v6, 3840, v10
        v_lshlrev_b32 v10, 1, v10
        v_and_b32 v11, 15, v1
        v_xor_b32 v11, v11, v10
        v_lshl_add_u32 v6, v11, 4, v6
        v_add_u32 v7, 14336, v6
        v_xor_b32 v8, 128, v6
        v_add_u32 v8, 28672, v8
        v_add_u32 v9, 14336, v8""")
        a(f"""s_lshl_b32 s44, s40, 2
        s_add_u32 s44, s44, s{sHW}
        s_mul_i32 s44, s44, {32*1280}
        s_mul_i32 s45, s{sHW}, {16*3840}
        s_lshl_b32 s46, s41, 8
        s_add_u32 s45, s45, s46
        s_and_b32 s46, s43, 3
        {self.rot1}
        s_lshl_b32 s47, s{sHW}, 12""")
        a("s_waitcnt lgkmcnt(0)")
        self.build_srd(SRD_X, 64, S * D * 2)
        self.build_srd(SRD_WQKV, 66, D * 3 * D * 2)
        if self.stamps or opt('dly', ''):
            self.build_srd(SRD_WS, 82, WS_END)
            self.stamp('start')
        a(f"s_cmp_eq_u32 s2, {INITWG}\ns_cbranch_scc1 L_init\nL_init_back:")
        def wtouch():
            a(f"""s_lshl_b32 s56, s2, 2
            s_add_u32 s56, s56, s{sWAVE}
            s_mul_i32 s56, s56, {17*128}
            s_add_u32 s56, s56, {64*3840}
            v_lshlrev_b32 v10, 7, v1
            s_mov_b64 exec, 0x1ffff""")
            self.touch(srd(SRD_WQKV), 10, "s56", 3)
            a("s_mov_b64 exec, -1")
        a(f"s_cmp_ge_u32 s{sWAVE}, 4\ns_cbranch_scc1 L_w47")
        a(f"s_lshl_b32 s44, s55, 2\ns_add_u32 s44, s44, s{sWAVE}\ns_lshl_b32 s44, s44, 1")
        if not opt('searly', 1): a("s_cmp_ge_u32 s2, 16\ns_cbranch_scc1 L_p1_c")
        if opt('wt0', 0) == 2: wtouch()
        self.row_stats(2)
        if opt('wt0', 0) == 1: wtouch()
        a(f"""s_cmp_lt_u32 s2, 16
        s_cbranch_scc1 L_spare
        s_branch L_p1_c
        L_w47:
        s_cmp_lt_u32 s2, 16
        s_cbranch_scc1 L_spare""")

    def more_srds(self):
        self.build_srd(SRD_WS, 82, WS_END)
        self.build_srd(SRD_DBG, 80, 256)
        self.build_srd(SRD_WO, 68, D * D * 2)
        self.build_srd(SRD_WG, 72, D * F * 2)
        self.build_srd(SRD_WU, 74, D * F * 2)
        self.build_srd(SRD_WD, 76, F * D * 2)
        self.build_srd(SRD_OUT, 78, S * D * 2)
        self.a('s_mov_b32 s0, 0')

    def code_touch(self, tag, sidx, n):
        a = self.a
        a(f"""s_getpc_b64 s[42:43]
        L_pc{tag}:
        s_sub_u32 s42, s42, L_pc{tag}-{NAME}_kernel
        s_subb_u32 s43, s43, 0
        s_lshl_b32 s{sidx}, s{sidx}, 13
        v_lshl_add_u32 v16, v1, 7, s{sidx}""")
        for i in range(n):
            a(f"v_min_u32 v17, L_code_end-{NAME}_kernel-4, v16\nglobal_load_dword v251, v17, s[42:43]\nv_add_u32 v16, 8192, v16")

    def touch(self, srdb, voff, soff, n):
        self.a(f"buffer_load_dword v{248 + n % 4}, v{voff}, {srdb}, {soff} offen")

    def spare_code(self):
        a = self.a
        self.vm = VM()
        a("L_spare:")
        for i in range(4): self.vm.add('stat')
        if opt('wt0', 0) == 1: self.vm.add('wt')
        a(f"""v_lshlrev_b32 v2, 7, v1
        s_lshl_b32 s50, s{sWAVE}, 4
        s_add_u32 s50, s50, s2
        s_lshl_b32 s50, s50, 13
        s_add_u32 s51, s50, {256*3840}""")
        self.more_srds()
        CT = opt('cstail', 0)
        if CT:
            a(f"""s_cmp_gt_u32 s2, {INITWG}
            s_subb_u32 s52, s2, 0
            s_lshl_b32 s53, s52, 1
            s_and_b32 s54, s{sWAVE}, 1
            s_add_u32 s53, s53, s54
            s_lshr_b32 s54, s{sWAVE}, 1
            s_mul_i32 s58, s54, {8*3840}
            s_lshl_b32 s56, s53, 7
            s_add_u32 s58, s58, s56
            s_add_u32 s58, s58, {0 if CT == 2 else 256*3840}
            s_cmp_eq_u32 s2, {INITWG}
            s_cselect_b32 s58, {OOB//2}, s58
            s_mul_i32 s56, s{sWAVE}, 20480""")
            self.colsum_issue(srd(SRD_WQKV), 3840, 58, 56, 3, 4, 5, n=(20 if CT == 2 else 12), step=32)
        elif opt('wtail', 1):
            for n in range(2):
                self.touch(srd(SRD_WQKV), 2, "s51", n); self.vm.add('t')
                if n < 1: a(f"s_add_u32 s51, s51, {128*8192}")
        a(f"s_cmp_ge_u32 s{sWAVE}, 4\ns_cbranch_scc1 L_spare3")
        self.row_stats_finish(2)
        a("L_spare3:")
        if CT:
            a(f"""s_mul_i32 s58, s54, {1920*4}
            s_lshl_b32 s57, s53, 8
            s_add_u32 s58, s58, s57
            s_add_u32 s58, s58, {CS1}
            s_cmp_eq_u32 s2, {INITWG}
            s_cselect_b32 s58, {OOB//2}, s58
            s_waitcnt vmcnt(0)""")
            self.colsum_finish(56, 58, 64, ks=(5 if CT == 2 else 3))
        self.poll(0, 1, 10, 11, SRD_DBG)
        a(f"""s_barrier
        s_cmp_lg_u32 s{sWAVE}, 0
        s_cbranch_scc1 L_spare4""")
        self.sig_rowstats()
        if CT:
            a(f"""s_cmp_eq_u32 s2, {INITWG}
            s_cbranch_scc1 L_spare4
            v_mul_u32_u24 v10, 15, v1
            v_add_u32 v10, s52, v10""")
            self.signal(10, M_S0, 11, mask='0xffff')
        a("L_spare4:")
        if opt('wgw', 1):
            a(f"s_and_b32 s51, s50, {64*8192-1}\ns_cmp_ge_u32 s{sWAVE}, 4\ns_cbranch_scc1 L_spare5")
            self.touch(srd(SRD_WG), 2, "s51", 1)
            a("s_branch L_spare6\nL_spare5:")
            self.touch(srd(SRD_WU), 2, "s51", 1)
            a("L_spare6:")
        if opt('ct1', 0):
            a(f"s_waitcnt vmcnt(0)\ns_mov_b32 s41, s{sWAVE}")
            self.code_touch('a', 41, 1)
        a("s_mov_b64 s[62:63], 0")
        self.stamp('spdone')
        a("s_branch L_p1_join")
        a("L_init:")
        self.build_srd(SRD_WS, 82, WS_END)
        self.build_srd(SRD_DBG, 80, 256)
        a(f"""v_mov_b32 v4, 0
        v_mov_b32 v5, 0
        v_mov_b32 v6, 0
        v_mov_b32 v7, 0
        v_lshlrev_b32 v8, 4, v1
        s_lshl_b32 s40, s{sWAVE}, 12""")
        for i in range(4):
            a(f"buffer_store_dwordx4 v[4:7], v8, {WS}, s40 offen offset:{1024*i} sc1")
        a(f"""s_waitcnt vmcnt(0)
        s_barrier
        s_cmp_lg_u32 s{sWAVE}, 0
        s_cbranch_scc1 L_init_back
        v_mov_b32 v5, 1
        s_mov_b64 exec, 1
        buffer_store_dword v5, v4, {srd(SRD_DBG)}, 0 offen sc1
        s_mov_b64 exec, -1
        s_branch L_init_back""")

    def finish(self, dword, name, mid=None):
        a = self.a
        a("s_waitcnt vmcnt(0)")
        if mid: a(mid + ":")
        self.bar()
        self.stamp(name)
        L = a.newlabel('Lfin')
        a(f"""s_cmp_eq_u64 s[62:63], 0
        s_cbranch_scc1 {L}
        v_mov_b32 v246, 1
        s_mov_b64 exec, s[62:63]
        buffer_atomic_add v246, v247, {WS}, 0 offen offset:{4*dword} sc1
        s_mov_b64 exec, -1
        {L}:""")
        self.vm.clear()

    def sigprep(self, wave):
        self.a(f"""v_lshlrev_b32 v247, 7, v247
        s_cmp_eq_u32 s{sWAVE}, {wave}
        s_cselect_b64 s[62:63], vcc, 0""")

    P1_R, P1_LA, P1_BLK = 4, opt('la1', 2), 4
    rot1 = '' if opt('rot1', 1) else 's_mov_b32 s46, 0'
    P1_TAB = 131072
    CS4_LDS = 131072 + 2048

    def p1(self):
        a = self.a
        R, LA = self.P1_R, self.P1_LA
        T = self.P1_TAB
        def waddr(dst, sblk, vt):
            a(f"""v_lshrrev_b32 v{vt}, 4, v1
            v_lshlrev_b32 v{dst}, 11, v{vt}
            v_bfe_u32 v{vt}, v1, 2, 2
            v_lshl_add_u32 v{dst}, v{vt}, 8, v{dst}
            v_and_b32 v{vt}, 3, v1
            v_lshl_add_u32 v{dst}, v{vt}, 3, v{dst}
            v_bfe_u32 v{vt}, v1, 2, 3
            v_xor_b32 v{vt}, s{sblk}, v{vt}
            v_lshl_add_u32 v{dst}, v{vt}, 5, v{dst}
            v_add_u32 v{dst}, 16384, v{dst}""")
        self.vm = VM(); self.nbar = 0
        DG = opt('diag', 0)
        if DG:
            tabs = []
            for k in range(4):
                o = sorted(range(10), key=lambda x: x - (DG + 0.5 if x % 4 == k else 0))
                tabs.append(sum(v << (4 * i) for i, v in enumerate(o)))
            a(f"s_and_b32 s46, s43, 3\ns_mov_b32 s60, {tabs[0] & 0xffffffff}\ns_mov_b32 s61, {tabs[0] >> 32}")
            for k in range(1, 4):
                a(f"s_cmp_eq_u32 s46, {k}\ns_cselect_b32 s60, {tabs[k] & 0xffffffff}, s60\ns_cselect_b32 s61, {tabs[k] >> 32}, s61")
        def dma(st):
            slot = st % R
            if DG: a(f"s_bfe_u32 s46, s{60 + (st >> 3)}, {(4 << 16) | (4 * (st & 7))}")
            a(f"""s_lshl_b32 s48, s46, 7
            s_add_u32 s48, s48, s44
            s_mul_i32 s49, s46, {64*3840}
            s_add_u32 s49, s49, s45
            s_add_u32 m0, s47, {slot*32768}""")
            for i in range(4):
                self.vmem(f"buffer_load_dwordx4 v{2+i}, {srd(SRD_X)}, s48 offen offset:{1024*i} {opt('xpol', '')} lds", ('p1', st))
            a(f"s_add_u32 m0, s47, {slot*32768+16384}")
            for i in range(4):
                self.vmem(f"buffer_load_dwordx4 v{6+i}, {srd(SRD_WQKV)}, s49 offen offset:{1024*i} lds", ('p1', st))
            B = self.P1_BLK
            if st + 1 < B: a(f"s_add_u32 s46, s46, 1\ns_and_b32 s46, s46, {B-1}")
            elif opt('rot1b', 0) and st + 1 < 8: a(f"s_add_u32 s46, s46, 1\ns_and_b32 s46, s46, 3\ns_or_b32 s46, s46, 4")
            elif opt('rot1b', 0) and st < 9: a(f"s_add_u32 s46, s46, 1\ns_and_b32 s46, s46, 1\ns_or_b32 s46, s46, 8")
            elif st < 9: a(f"s_mov_b32 s46, {st+1}")
        dma(0)
        self.more_srds()
        dma(1)
        a(f"""s_mul_i32 s52, s40, 15
        s_add_u32 s52, s52, s41
        s_lshl_b32 s52, s52, 7
        v_mov_b32 v12, 0""")
        for st in range(10):
            self.wait_vm(('p1', st))
            if st == 8:
                self.wait_vm('mb')
                EX = 17 if opt('cstail', 0) else 16
                a(f"v_cmp_ne_u32 vcc, {EX}, v14\ns_cbranch_vccz L_p1_s0ok")
                keep = list(self.vm.ops)
                self.poll("s52", EX, 10, 11)
                self.vm.ops = keep + ['t'] * 4
                a("L_p1_s0ok:")
                a(f"""v_lshlrev_b32 v10, 2, v1
                s_and_b32 s48, s{sHW}, 1
                s_cmp_ge_u32 s{sHW}, 2
                s_cselect_b32 s49, s41, s40
                s_mov_b32 s50, {MEAN1}
                s_cselect_b32 s50, {CS1}, s50
                s_mov_b32 s51, {RSTD1-MEAN1}
                s_cselect_b32 s51, {1920*4}, s51
                s_lshl_b32 s49, s49, 1
                s_add_u32 s49, s49, s48
                s_lshl_b32 s49, s49, 8
                s_add_u32 s49, s49, s50""")
                for q in range(4):
                    a(f"buffer_load_dword v{16+q}, v10, {WS}, s49 offen sc1\ns_add_u32 s49, s49, s51")
            self.bar()
            self.sstamp(f'hb{st}')
            if st == opt('hw1', 8):
                a(f"""v_lshlrev_b32 v15, 7, v1
                s_cmp_eq_u32 s{sHW}, 0
                s_cselect_b32 s56, s{SRD_WG}, s{SRD_WO}
                s_cselect_b32 s57, s{SRD_WG+1}, s{SRD_WO+1}
                s_cselect_b32 s58, s{SRD_WG+2}, s{SRD_WO+2}
                s_cselect_b32 s53, 48, -156
                s_mov_b32 s59, 0x20000
                s_add_u32 s53, s2, s53
                s_and_b32 s53, s53, 511
                s_lshl_b32 s53, s53, 13
                s_cmp_ge_u32 s{sHW}, 2
                s_cselect_b32 s53, {OOB//2}, s53""")
                self.touch("s[56:59]", 15, "s53", 3)
                self.vm.add('touch')
            if st == 1:
                self.vmem(f"buffer_load_dword v13, v12, {srd(SRD_DBG)}, 0 offen sc1", 'rdy')
            if st == max(3, opt('sw', 3)):
                L = a.newlabel('Ls0')
                self.wait_vm('rdy')
                a(f"v_cmp_ne_u32 vcc, 1, v13\ns_cbranch_vccz {L}r")
                keep = list(self.vm.ops)
                self.poll(0, 1, 10, 11, SRD_DBG)
                self.vm.ops = keep
                a(f"{L}r:")
                a(f"""s_lshr_b32 s53, s55, 4
                s_mul_i32 s53, s53, 15
                s_lshl_b32 s54, s{sHW}, 2
                s_add_u32 s53, s53, s54
                v_add_u32 v10, s53, v1
                s_cmp_eq_u32 s{sHW}, 3
                s_cselect_b64 vcc, 7, 15""")
                self.signal(10, M_S0, 11)
                self.vm.add('sig')
            if st == 6:
                self.vmem(f"buffer_load_dword v14, v12, {WS}, s52 offen sc1", 'mb')
            if LA == 3 and st == opt('la1s', 1): dma(st + 2)
            if LA == 3 and st < opt('la1s', 1): dma(st + 2)
            elif st + LA < 10: dma(st + LA)
        c = (20 ** -0.5) * LOG2E
        a(f"""s_cmp_lt_u32 s41, 5
        s_cselect_b32 s49, {f32hex(c)}, 1.0
        s_lshl_b32 s50, s48, 9
        s_add_u32 s50, s50, {T}
        v_lshl_add_u32 v11, v1, 3, s50
        s_lshl_b32 s50, s48, 8
        s_add_u32 s50, s50, {T+1536}
        v_add_u32 v10, s50, v10
        s_waitcnt vmcnt({self.vm.count_after('t')})
        s_cmp_ge_u32 s{sHW}, 2
        s_cbranch_scc1 L_p1_tcs
        v_mul_f32 v17, s49, v17
        ds_write_b64 v11, v[16:17]
        s_branch L_p1_tdone
        L_p1_tcs:
        v_add_f32 v16, v16, v17
        v_add_f32 v18, v18, v19
        v_add_f32 v16, v16, v18
        ds_write_b32 v10, v16
        L_p1_tdone:
        s_waitcnt lgkmcnt(0)""")
        self.bar()
        self.sdump(5)
        if opt('iw', 0):
            a(f"""s_mov_b64 exec, 0
            s_cmp_eq_u32 s{sHW}, 0
            s_cbranch_scc1 L_iw_0
            s_cmp_eq_u32 s{sHW}, 1
            s_cbranch_scc1 L_iw_1
            s_cmp_eq_u32 s{sHW}, 2
            s_cbranch_scc1 L_iw_2
            s_branch L_iw_3
            L_iw_end:
            s_mov_b64 exec, -1""")
        if opt('vpoll', 0): a("s_cmp_ge_u32 s41, 10\ns_cselect_b32 s0, 2, 0")
        a("s_mov_b64 s[62:63], 0\ns_branch L_p1_join")
        nb_h = self.nbar
        self.vm = VM(); self.nbar = 0
        a('L_p1_c:')
        if opt('searly', 1):
            for i in range(4): self.vm.add('stat')
            if opt('wt0', 0) == 1: self.vm.add('wt')
        else: self.row_stats(2)
        self.more_srds()
        XA, WA = 64, 68
        FR = 80
        ACC = 144
        a(f"""s_and_b32 s48, s{sWAVE}, 1
        s_lshr_b32 s49, s{sWAVE}, 1
        v_and_b32 v2, 15, v1
        v_lshrrev_b32 v3, 4, v1
        v_lshlrev_b32 v4, 7, v2
        v_bfe_u32 v5, v1, 1, 3
        v_xor_b32 v5, v5, v3
        v_lshl_add_u32 v4, v5, 4, v4
        s_lshl_b32 s50, s48, 13
        v_add_u32 v{XA}, s50, v4
        v_xor_b32 v{XA+1}, 64, v{XA}
        s_lshl_b32 s50, s49, 1
        s_add_u32 s50, s50, s48
        s_lshl_b32 s50, s50, 1""")
        waddr(WA, 50, 5)
        for nu in range(1, 4): a(f"v_xor_b32 v{WA+nu}, {32*nu}, v{WA}")
        a(f"""s_lshl_b32 s50, s48, 9
        s_add_u32 s50, s50, {T}
        v_lshl_add_u32 v76, v2, 3, s50
        s_lshl_b32 s50, s{sWAVE}, 7
        s_add_u32 s50, s50, {T+1024}
        v_lshl_add_u32 v77, v3, 4, s50
        v_xor_b32 v79, 128, v77
        v_lshrrev_b32 v78, 5, v1
        v_lshlrev_b32 v78, 15, v78
        v_and_b32 v7, 31, v1
        v_lshl_add_u32 v78, v7, 4, v78""")
        a(f"""s_cmp_ge_u32 s41, 10
        s_cselect_b32 s50, 10, 5
        s_cmp_ge_u32 s41, 5
        s_cselect_b32 s50, s50, 0
        s_sub_u32 s51, s41, s50
        s_lshl_b32 s51, s51, 4
        v_mul_u32_u24 v4, 5, v2
        v_add_u32 v4, 4, v4
        v_subrev_u32 v4, s51, v4
        s_sub_u32 s52, 16, s40
        s_min_u32 s52, s52, 3
        s_cmp_eq_u32 s50, 0
        s_cselect_b32 s52, 1, s52
        v_cmp_gt_u32 vcc, 20, v4
        v_cmp_gt_u32 s[50:51], s52, v3
        s_and_b64 vcc, vcc, s[50:51]
        s_lshl_b32 s52, s40, 4
        v_add_u32 v247, s52, v1""")
        self.sigprep(0)
        if opt('vdef', 1):
            a(f"""s_cmp_ge_u32 s41, 10
            s_cselect_b32 s50, {4*(M_S1V-M_S1)}, 0
            v_add_u32 v247, s50, v247
            s_cselect_b32 s50, {OOB//2}, 0
            v_add_u32 v66, s50, v78""")
        else: a("v_mov_b32 v66, v78")
        a(f"""s_lshl_b32 s50, s41, 1
        s_add_u32 s50, s50, s49
        s_lshl_b32 s50, s50, 18
        s_lshl_b32 s51, s40, 1
        s_add_u32 s51, s51, s48
        s_lshl_b32 s51, s51, 10
        s_add_u32 s50, s50, s51
        s_lshl_b32 s51, s48, 17
        s_add_u32 s50, s50, s51
        s_add_u32 s50, s50, {QKV}
        s_lshl_b32 s52, s48, 18
        s_sub_u32 s52, 65536, s52
        s_cmp_ge_u32 s41, {10 if opt('vdef', 1) else 99}
        s_cselect_b32 s98, s50, 0
        s_cselect_b32 s0, 0, {opt('qkfirst', 1)}
        s_mov_b32 s99, s52""")
        CSR = 208; ONES = 72
        for i in range(72): a(f"v_mov_b32 v{ACC+i}, 0")
        for i in range(4): a(f"v_mov_b32 v{ONES+i}, 0x3f803f80")
        self.row_stats_finish(2)
        lg = LG(a)
        def reads(g):
            j = g & 1
            off = ((g >> 1) & 1) * 32768
            fb = FR + 32 * (g & 1)
            W = lambda i: [(f"ds_read_b64_tr_b16 {vr(fb+16+4*i, 2)}, v{WA+i} offset:{off+32*j*256}", None),
                           (f"ds_read_b64_tr_b16 {vr(fb+18+4*i, 2)}, v{WA+i} offset:{off+(32*j+4)*256}", ('W', g & 3, i))]
            X = lambda i: [(f"ds_read_b128 {vr(fb+4*i)}, v{XA+j} offset:{off+2048*i}", ('X', g & 3, i))]
            return W(0) + X(0) + W(1) + W(2) + W(3) + X(1) + X(2) + X(3)
        self.stamp('preb0')
        self.bar()
        self.stamp('b0')
        for r in reads(0): lg.op(*r)
        MR = 80
        csm = lambda fb, e: a(f"v_mfma_f32_16x16x32_bf16 {vr(CSR+4*e)}, {vr(fb+16+4*e)}, {vr(ONES)}, {vr(CSR+4*e)}")
        CT = opt('cstail', 0)
        for sec, (cnt, cs_on) in enumerate([(4, False), (1, False)] if CT == 2 else [(2, True), (2, False), (1, False)] if CT else [(4, True), (1, True)]):
            last = cnt == 1
            if not last: a(f"s_mov_b32 s51, {cnt}\n.p2align 3\nL_p1_loop{sec}:")
            lg.done = lg.n - 12
            for g in range(4):
                fb = FR + 32 * (g & 1)
                fin = last and g == 3
                nxt = [] if g & 1 else reads(g + 1)
                k = 0
                for n in range(16):
                    mu, nu = (n & 3, n >> 2) if fin else (n >> 2, n & 3)
                    if (g & 1) and n == (2 if LA == 2 else 4) and not fin:
                        if LA == 3: lg.drain()
                        SW = opt('sw', 3)
                        if SW == 2 and g == 3: a("s_waitcnt vmcnt(0)")
                        if SW > 2 and sec == 0 and g == (1 if SW == 3 else 3):
                            a(f"s_cmp_eq_u32 s51, {cnt}\ns_cbranch_scc1 L_p1_nw\ns_waitcnt vmcnt(0)\nL_p1_nw:\ns_nop 0")
                        a("s_barrier")
                        nxt = reads(g + 1)
                    if fin and n == 0:
                        lg.drain()
                        if cs_on: csm(fb, 0); csm(fb, 1)
                    if fin and n == (1 if CT else 4):
                        a("s_mov_b32 exec_lo, 0x00010001\ns_mov_b32 exec_hi, 0x00010001")
                        for e in range(2): lg.op(f"ds_write_b128 v77, {vr(CSR+4*e)} offset:{64*e}")
                        a("s_mov_b64 exec, -1")
                    if fin and n == (6 if CT else 8):
                        lg.drain(); a("s_barrier")
                        nxt = [(f"ds_read_b64 {vr(MR+2*q, 2)}, v76 offset:{128*q}", None) for q in range(4)]
                        nxt += [(f"ds_read_b128 {vr(CSR+8+4*e)}, v79 offset:{64*e}", None) for e in range(2)]
                        if CT: nxt += [(f"ds_read_b128 {vr(88+4*e)}, v{79 if e >> 1 else 77} offset:{512+64*(e&1)}", None) for e in range(4)]
                    ac = ACC + 16 * mu + 4 * nu
                    if n == 0: lg.need(('W', g, 3))
                    if n == 4: lg.need(('X', g, 3))
                    a(f"v_mfma_f32_16x16x32_bf16 {vr(ac)}, {vr(fb+16+4*nu)}, {vr(fb+4*mu)}, {vr(ac)}")
                    if k < len(nxt): lg.op(*nxt[k]); k += 1
                    elif g == 2 and n >= 12 and not last:
                        for r in ([XA, XA+1], [WA, WA+1], [WA+2], [WA+3])[n - 12]: a(f"v_xor_b32 v{r}, 65536, v{r}")
                    if n in (13, 15) and not fin and cs_on: csm(fb, (n - 13) >> 1)
                    if g == 3 and n == 14 and not last: a("s_sub_u32 s51, s51, 1\ns_cmp_lg_u32 s51, 0")
                assert k == len(nxt)
            if not last: a(f"s_cbranch_scc1 L_p1_loop{sec}")
        self.nbar += 10
        lg.drain()
        self.stamp('p1loop')
        a(".p2align 3")
        if CT:
            for h in range(8): a(f"v_pk_add_f32 {vr(CSR+2*h,2)}, {vr(CSR+2*h,2)}, {vr(88+2*h,2)}")
        PK = 104
        n = 0
        for nu in range(4):
            for p in range(2):
                pk = PK + 4 * (n % 8); n += 1
                tiles = [(ACC + 16 * (2 * p + e) + 4 * nu, 2 * p + e) for e in range(2)]
                for ac, mu in tiles:
                    for h in range(2):
                        a(f"v_pk_fma_f32 {vr(ac+2*h,2)}, {vr(CSR+4*nu+2*h,2)}, {vr(MR+2*mu,2)}, {vr(ac+2*h,2)} op_sel_hi:[1,0,1] neg_lo:[0,1,0] neg_hi:[0,1,0]")
                for ac, mu in tiles:
                    for h in range(2):
                        a(f"v_pk_mul_f32 {vr(ac+2*h,2)}, {vr(ac+2*h,2)}, {vr(MR+2*mu,2)} op_sel:[0,1] op_sel_hi:[1,1]")
                for h in range(2):
                    for e, (ac, mu) in enumerate(tiles):
                        a(f"v_cvt_pk_bf16_f32 v{pk+2*e+h}, v{ac+2*h}, v{ac+2*h+1}")
                a(f"v_permlane16_swap_b32 v{pk}, v{pk+2}\ns_nop 0\nv_permlane16_swap_b32 v{pk+1}, v{pk+3}\ns_nop 0")
                a(f"buffer_store_dwordx4 {vr(pk)}, v66, {WS}, s50 offen offset:{512*p} sc1")
            if nu < 3: a("s_add_u32 s50, s50, s52\ns_nop 0" if nu == 1 else "s_add_u32 s50, s50, 65536")
        self.stamp('p1epi')
        assert self.nbar == nb_h, (self.nbar, nb_h)
        a("L_p1_join:")
        a.settle(3)

    def p1_vstores(self):
        a = self.a
        a("s_cmp_eq_u32 s98, 0\ns_cbranch_scc1 L_p1_nov")
        for nu in range(4):
            for p in range(2):
                a(f"buffer_store_dwordx4 {vr(104+8*nu+4*p)}, v78, {WS}, s98 offen offset:{512*p} sc1")
            if nu < 3: a("s_add_u32 s98, s98, s99" if nu == 1 else "s_add_u32 s98, s98, 65536")
        a("L_p1_nov:")

    def build(self):
        a = self.a
        a.raw(f"; @launch grid=(256,1,1) block=(512,1,1) lds={LDS_BYTES}")
        a.raw(f'.amdgcn_target "amdgcn-amd-amdhsa--gfx950"\n.text\n.globl {NAME}_kernel\n.p2align {KALIGN}\n.type {NAME}_kernel,@function\n{NAME}_kernel:')
        self.p0()
        self.p1()
        if self.upto >= 2: self.p2()
        else: self.p1_vstores(); self.finish(M_S1, 'p1st')
        if self.upto >= 3: self.tail345()
        a("L_end:\ns_endpgm")
        self.spare_code()
        i = 0
        while i < len(self.tail):
            self.tail[i](); i += 1
        a("L_code_end:")
        a.raw(f""".section .rodata,"a"
.p2align 6
.amdhsa_kernel {NAME}_kernel
  .amdhsa_next_free_vgpr 256
  .amdhsa_next_free_sgpr 102
  .amdhsa_accum_offset 256
  .amdhsa_group_segment_fixed_size 0
  .amdhsa_kernarg_size 80
  .amdhsa_user_sgpr_count 2
  .amdhsa_user_sgpr_kernarg_segment_ptr 1
  .amdhsa_system_sgpr_workgroup_id_x 1
.end_amdhsa_kernel""")
        return a.text()

def add_islands(text):
    import subprocess, re, tempfile, os
    lines = text.split('\n')
    tmp = re.sub(r'L_iw_\d+', 'L_iw_end', text)
    d = tempfile.mkdtemp()
    open(d + '/a.s', 'w').write(tmp)
    subprocess.run(['clang', '-x', 'assembler', '-target', 'amdgcn-amd-amdhsa', '-mcpu=gfx950', '-c', d + '/a.s', '-o', d + '/a.o'], check=True)
    dis = subprocess.run(['llvm-objdump', '-d', '--mcpu=gfx950', d + '/a.o'], capture_output=True, text=True).stdout
    ins = [(int(m.group(2), 16), m.group(1)) for m in re.finditer(r'^\t(\S+).*// ([0-9A-F]{12}):', dis, re.M)]
    out = []; k = 0; shift = 0; page = opt('iw0', 2); n = 0; stop = False
    for ln in lines:
        t = ln.strip()
        isins = ln.startswith('    ') and t and not t.startswith(('.', ';'))
        if t == 'L_end:': stop = True
        if isins:
            mn = re.sub(r'_(e32|e64)$', '', t.split()[0])
            while re.sub(r'_(e32|e64)$', '', ins[k][1]) != mn:
                assert ins[k][1] == 's_nop', (ins[k], t)
                k += 1
            addr = ins[k][0] + shift; k += 1
            if addr >= page * 4096 and not stop:
                assert addr < page * 4096 + 32
                out += [f'L_iw_{n}:', f'    s_cbranch_execz L_iw_{n+4}', '    s_nop 0']
                n += 1; shift += 8; page += 1
        out.append(ln)
    res = '\n'.join(out)
    for j in range(n, n + 4): res = res.replace(f's_cbranch_execz L_iw_{j}\n', 's_cbranch_execz L_iw_end\n')
    return res

from phases import install
install(Gen, globals())
if opt('p1n', 0):
    import p1new
    p1new.install(Gen, globals())

if __name__ == '__main__':
    upto = int(sys.argv[1]) if len(sys.argv) > 1 else 5
    out = sys.argv[2] if len(sys.argv) > 2 else 'k.s'
    g = Gen(upto=upto, stamps=('stamps' in sys.argv))
    txt = g.build()
    if opt('iw', 0): txt = add_islands(txt)
    open(out, 'w').write(txt)
    open(out + '.stamps', 'w').write('\n'.join(g.stamp_names))
    print("wrote", out, "pads", g.a.pad_count)
```

```python
def install(Gen, G):
    globals().update({k: v for k, v in G.items() if not k.startswith('__')})
    for f in (p2, p3_prefetch, tail345):
        setattr(Gen, f.__name__, f)

KV0 = 94208
OCTP = 6208
P2_CNT = 163456

def p2(self):
    a = self.a
    self.vm = VM(); self.nbar = 0
    a("s_cmp_eq_u32 s0, 1\ns_cbranch_scc1 L_p1_fin\nL_p2_pre:")
    a(f"""s_and_b32 s40, s2, 7
    s_lshl_b32 s40, s40, 1
    s_bfe_u32 s41, s2, 0x10003
    s_add_u32 s40, s40, s41
    s_lshr_b32 s41, s2, 4
    s_mul_i32 s42, s40, 5
    s_lshr_b32 s43, s{sWAVE}, 2
    s_mul_i32 s44, s43, 3""")
    a(f"""s_add_u32 s46, s42, 4
    s_lshr_b32 s46, s46, 4
    s_lshr_b32 s47, s42, 4
    s_sub_u32 s46, s46, s47
    s_add_u32 s46, s46, 1
    s_min_u32 s47, s41, 2
    s_add_u32 s47, s47, 1
    s_mul_i32 s48, s46, s47
    s_add_u32 s46, s46, s48
    s_lshl_b32 s47, s41, 4
    s_add_u32 s47, s47, s40
    s_lshl_b32 s47, s47, 7
    s_add_u32 s47, s47, {4*M_S1}""")
    pf = self.p3_prefetch() if self.upto >= 3 else []
    a(f"""v_and_b32 v2, 31, v1
    v_lshrrev_b32 v3, 5, v1
    v_lshlrev_b32 v4, 4, v1""")
    a(f"""s_lshl_b32 s50, s41, 1
    s_add_u32 s50, s50, s{sWAVE}
    s_cmp_lt_u32 s50, 4
    s_mov_b32 s51, 0x3f803f80
    s_cselect_b32 s50, 0x3f80ff7f, s51
    s_cmp_eq_u32 s{sWAVE}, 7
    s_cselect_b32 s50, 0, s50
    s_cselect_b32 s51, 0, s51
    v_mov_b32 v8, s50
    v_mov_b32 v9, s51
    v_mov_b32 v10, s51
    v_mov_b32 v11, s51
    s_lshl_b32 s49, s{sWAVE}, 10
    s_add_u32 s50, s49, {KV0+10*OCTP}
    v_add_u32 v5, s50, v4
    v_min_u32 v5, {LDS_BYTES-16}, v5
    ds_write_b128 v5, v[8:11]
    s_cmp_lt_u32 s41, 2
    s_cselect_b32 s50, 0xbf803f80, 0
    v_mul_lo_u32 v15, s50, v3""")
    assert KV0 + 10 * OCTP + 7168 == P2_CNT
    a("v_lshlrev_b32 v5, 2, v3\nv_sub_u32 v5, v2, v5")
    for r in range(16):
        a(f"v_cmp_le_i32 s[{64+2*r}:{65+2*r}], {8*(r>>2)+(r&3)}, v5")
    PM = 52
    a("v_mov_b32 v6, 0xffff\nv_mov_b32 v7, 0xffff0000")
    for i in range(8):
        a(f"v_cndmask_b32 v{PM+i}, 0, v6, s[{64+4*i}:{65+4*i}]\nv_cndmask_b32 v8, 0, v7, s[{66+4*i}:{67+4*i}]\nv_or_b32 v{PM+i}, v{PM+i}, v8")
    a(f"""s_lshl_b32 s50, s{sHW}, 9
    s_add_u32 s50, s50, {KV0}
    v_lshl_add_u32 v13, v2, 4, s50
    v_mul_u32_u24 v12, {OCTP}, v3
    v_lshl_add_u32 v5, v12, 3, v13
    s_mul_i32 s51, s44, {OCTP}
    v_add3_u32 v12, v12, v13, s51
    v_add_u32 v13, {2*OCTP}, v5""")
    a(f"""v_bfe_u32 v5, v1, 2, 2
    v_lshl_add_u32 v5, v3, 2, v5
    v_lshl_add_u32 v14, v5, 4, s50
    v_and_b32 v5, 1, v1
    v_bfe_u32 v6, v1, 1, 1
    v_mov_b32 v7, s43
    v_cmp_eq_u32 vcc, 1, v6
    v_cndmask_b32 v7, v7, v5, vcc
    s_lshl_b32 s52, s43, 7
    s_sub_u32 s52, {5*OCTP+128}, s52
    v_mov_b32 v8, {2*OCTP}
    v_mov_b32 v9, s52
    v_cndmask_b32 v8, v8, v9, vcc
    v_mul_u32_u24 v10, {OCTP}, v5
    v_add_u32 v10, s51, v10
    v_and_b32 v9, 16, v1
    v_cmp_eq_u32 vcc, 0, v9
    v_cndmask_b32 v8, v8, v10, vcc
    v_cndmask_b32 v7, v7, v6, vcc
    v_lshl_add_u32 v8, v7, 3, v8
    v_add_u32 v14, v14, v8
    v_add_u32 v14, {5*OCTP}, v14""")
    a(f"""s_lshl_b32 s50, s41, 1
    s_add_u32 s50, s50, s{sWAVE}
    s_sub_u32 s50, s50, 4
    s_max_i32 s50, s50, 0
    s_lshl_b32 s50, s50, 10
    s_lshl_b32 s51, s42, 15
    s_add_u32 s51, s51, s50
    s_add_u32 s51, s51, {QKV + 80*32768}
    s_add_u32 s49, s49, {KV0}""")
    a(f"""s_lshl_b32 s53, s41, 2
    s_add_u32 s53, s53, s{sHW}
    s_lshl_b32 s54, s53, 9
    s_lshl_b32 s56, s42, 15
    s_add_u32 s54, s54, s56
    s_add_u32 s54, s54, {QKV}
    s_lshl_b32 s55, s44, 15
    s_add_u32 s55, s55, s54
    s_add_u32 s56, s54, 65536
    v_lshlrev_b32 v5, 15, v3
    v_lshl_add_u32 v5, v2, 4, v5
    v_lshlrev_b32 v6, 4, v2
    v_mov_b32 v8, {OOB}
    v_add_u32 v9, s43, v3
    v_cmp_eq_u32 vcc, 0, v9
    v_cndmask_b32 v7, v8, v6, vcc
    v_cmp_gt_u32 vcc, s43, v3
    v_cndmask_b32 v6, v8, v6, vcc""")
    self.stamp('p2pre')
    a("s_cmp_eq_u32 s0, 1\ns_cbranch_scc1 L_p2_poll")
    self.p1_vstores()
    a(f"s_cmp_lg_u32 s0, 2\ns_cbranch_scc1 L_p1_fin\ns_cmp_lg_u32 s{sWAVE}, 5\ns_cbranch_scc1 L_p1_fin")
    self.pollw("s47", "s46", 8, 248, depth=3)
    a("s_branch L_p1_fin2\nL_p1_fin:")
    self.finish(M_S1, 'p1st', mid="L_p1_fin2")
    a("s_cmp_eq_u32 s0, 1\ns_cbranch_scc1 L_p2_pre\nL_p2_poll:")
    a(f"s_cmp_eq_u32 s0, 2\ns_cbranch_scc1 L_p2_polled\ns_cmp_lg_u32 s{sWAVE}, 5\ns_cbranch_scc1 L_p2_polled")
    self.pollw("s47", "s46", 8, 248, depth=3)
    a("L_p2_polled:")
    self.bar()
    self.stamp('p2poll')
    Q0, Q1 = 16, 20
    def kv(sec, tag, octs=range(5)):
        L = a.newlabel('Lkv')
        a(f"s_cmp_ge_u32 s{sWAVE}, 6\ns_cbranch_scc1 {L}")
        for o in octs:
            a(f"s_add_u32 m0, s49, {(5*sec+o)*OCTP}\ns_add_u32 s57, s51, {(80*sec+o)*32768}")
            self.vmem(f"buffer_load_dwordx4 v4, {WS}, s57 offen sc1 lds", tag)
        a(f"{L}:")
    def qld():
        a(f"""buffer_load_dwordx4 {vr(Q0)}, v5, {WS}, s55 offen sc1
        buffer_load_dwordx2 {vr(Q1,2)}, v7, {WS}, s56 offen sc1
        buffer_load_dwordx2 {vr(Q1+2,2)}, v6, {WS}, s56 offen offset:8 sc1""")
    VL = 0
    KS = opt('ks', 0)
    def vcheck():
        a(f"s_add_u32 s47, s47, {4*(M_S1V-M_S1)}\ns_cmp_lg_u32 s{sWAVE}, 7\ns_cbranch_scc1 L_p2_vok")
        self.pollw("s47", "s48", 8, 9)
        a("L_p2_vok:")
    if KS:
        kv(0, 'K', range(3))
        a(f"s_cmp_ge_u32 s{sWAVE}, 4\ns_cbranch_scc1 L_p2_odd")
        qld()
        kv(0, 'K', range(3, 5))
        a(f"s_waitcnt vmcnt(2) lgkmcnt(0)\ns_branch L_p2_k1\nL_p2_odd:")
        kv(0, 'K', range(3, 5))
        qld()
        a("s_waitcnt vmcnt(5) lgkmcnt(0)\ns_barrier")
        vcheck()
        a("s_waitcnt vmcnt(0)\nL_p2_k1:")
        self.vm.clear(); self.vm.add('K2')
    else:
        kv(0, 'K'); qld(); vcheck()
        a("s_waitcnt vmcnt(0) lgkmcnt(0)")
        self.vm.clear()
    a(f"v_or_b32 v{Q1}, v{Q1}, v15")
    self.bar()
    self.stamp('p2k')
    if opt('prio2', 1): a(f"s_cmp_ge_u32 s{sWAVE}, 4\ns_cbranch_scc1 L_p2_lo\ns_setprio 2\nL_p2_lo:")
    SB = 64; OA = 208; KF = 24
    Sr = lambda t: SB + 16 * t
    order = [1, 8, 0, 2, 3, 4, 5, 6, 7]
    Pr = lambda t: Sr(8) + 8 if t == 8 else Sr(t)
    Vr = lambda t: Sr(8) if t == 8 else Sr(t) + 8
    M0, M1 = 60, 61
    VrF = {1: 226, 8: Sr(1)+8, 0: Sr(8), 2: Sr(0)+8, 3: Sr(2)+8, 4: Sr(3)+8, 5: Sr(4)+8, 6: Sr(5)+8, 7: Sr(6)+8}.__getitem__
    def mk(lg, first_pv, Vr=Vr):
        def kread(n):
            t = order[n]; kb = KF + 8 * (n % 3)
            lg.op(f"ds_read_b128 {vr(kb)}, v12 offset:{512*t}", ('K', n, 0))
            lg.op(f"ds_read_b128 {vr(kb+4)}, v13 offset:{512*t}", ('K', n, 1))
        def qk(n, h):
            t = order[n]; kb = KF + 8 * (n % 3)
            lg.need(('K', n, h))
            if h == 0: a(f"v_mfma_f32_32x32x16_bf16 {vr(Sr(t),16)}, {vr(kb)}, {vr(Q0)}, 0")
            else: a(f"v_mfma_f32_32x32x16_bf16 {vr(Sr(t),16)}, {vr(kb+4)}, {vr(Q1)}, {vr(Sr(t),16)}")
        def vread(t):
            for sp in range(2):
                for tt in range(2):
                    lg.op(f"ds_read_b64_tr_b16 {vr(Vr(t)+4*sp+2*tt,2)}, v14 offset:{(32*t+16*sp+8*tt)*16}", ('V', t, sp))
        def pv(t, sp):
            lg.need(('V', t, sp))
            c = "0" if (t == first_pv and sp == 0) else vr(OA, 16)
            a(f"v_mfma_f32_32x32x16_bf16 {vr(OA,16)}, {vr(Vr(t)+4*sp)}, {vr(Pr(t)+4*sp)}, {c}")
        def merge():
            for r in range(16):
                a(f"v_cndmask_b32 v{Sr(8)+r}, v{Sr(0)+r}, v{Sr(8)+r}, s[{64+2*r}:{65+2*r}]")
        def cvt(t):
            a(".p2align 3")
            for i in range(8): a(f"v_cvt_pk_bf16_f32 v{Sr(t)+i}, v{Sr(t)+2*i}, v{Sr(t)+2*i+1}")
            if t == 8:
                for i in range(8):
                    a(f"v_and_b32_e64 v{Sr(8)+8+i}, v{Sr(8)+i}, v{PM+i}\nv_bfi_b32 v{Sr(0)+i}, v{PM+i}, 0, v{Sr(8)+i}")
        return kread, qk, vread, pv, merge, cvt
    lg = LG(a)
    kread, qk, vread, pv, merge, cvt = mk(lg, 1, VrF)
    kread(0); kread(1); kread(2)
    def vdma(): kv(1, 'V')
    if KS:
        a(f"s_cmp_lt_u32 s{sWAVE}, 4\ns_cbranch_scc1 L_p2_nv1")
        keep = list(self.vm.ops); vdma(); self.vm.ops = keep
        a("L_p2_nv1:")
    else: vdma()
    qk(0, 0); qk(0, 1); kread(3); qk(1, 0)
    def kr(n, h):
        t = order[n]; kb = KF + 8 * (n % 3)
        lg.op(f"ds_read_b128 {vr(kb+4*h)}, v{12+h} offset:{512*t}", ('K', n, h))
    def vr1(t, q):
        lg.op(f"ds_read_b64_tr_b16 {vr(VrF(t)+2*q,2)}, v14 offset:{(32*t+8*q)*16}", ('V', t, q >> 1))
    qs = []
    for n in range(1, 9):
        if n > 1: qs += [('w', lambda n=n: lg.need(('K', n, 1))), ('m', lambda n=n: qk(n, 0))]
        qs += [('m', lambda n=n: qk(n, 1), n)]
        if n + 3 < 9: qs += [('l', lambda n=n: kr(n + 3, 0)), ('l', lambda n=n: kr(n + 3, 1))]
    ls = []
    ps = []
    qdone = {order[0]}
    since = [0]
    slot = [0]; vat = {}
    def mf(urgent_q):
        if since[0] < opt('mgap', 32): return
        pok = ps and slot[0] - vat.get(ps[0][2], 1 << 30) >= 5
        if qs and qs[0][0] == 'm' and (urgent_q or not pok):
            it = qs.pop(0); it[1](); since[0] = 0
            if len(it) > 2: qdone.add(order[it[2]])
        elif pok:
            ps.pop(0)[1](); since[0] = 0
    def side():
        slot[0] += 1
        if qs and qs[0][0] != 'm': qs.pop(0)[1]()
        elif ls:
            it = ls.pop(0); it[1](); vat[it[2]] = slot[0] if it[3] == 3 else 1 << 30
        elif ps and ps[0][3] == 0 and slot[0] - vat.get(ps[0][2], 1 << 30) >= 4 and lg.pos[('V', ps[0][2], 1)] > lg.done:
            lg.need(('V', ps[0][2], 1))
        elif pf: pf.pop(0)()
    vok = False
    seq = (1, 8, 2, 3, 4, 5, 6, 7)
    vq = [1, 8, 0, 2, 3, 4, 5, 6, 7]
    vfree = {1}
    after = {1: [8], 8: [0, 2], 2: [3], 3: [4], 4: [5], 5: [6], 6: [7], 7: []}
    for idx, t in enumerate(seq):
        need = {8, 0} if t == 8 else {t}
        assert need <= qdone, (t, qdone)
        if t == 8: merge()
        nxt = set() if idx + 1 >= len(seq) else ({8, 0} if seq[idx + 1] == 8 else {seq[idx + 1]})
        for i in range(16):
            a(f"v_exp_f32 v{Sr(t)+i}, v{Sr(t)+i}")
            since[0] += 8
            mf(not nxt <= qdone)
            side()
        if t == 7:
            for it in ps: it[1]()
            ps = []
            break
        cvt(t)
        if KS and idx == 0:
            while len(pf) % 3: pf.pop(0)()
            a(f"s_cmp_ge_u32 s{sWAVE}, 4\ns_cbranch_scc1 L_p2_nv2")
            self.wait_vm('K2')
            a("s_barrier")
            vdma()
            a("L_p2_nv2:")
        since[0] += 32
        vfree |= set(after[t])
        for d in ([8, 0] if t == 8 else [t]):
            ps += [('m', lambda d=d: pv(d, 0), d, 0), ('m', lambda d=d: pv(d, 1), d, 1)]
        VB = opt('vbb', 8)
        if t == VB:
            a(f"s_cmp_lt_u32 s{sWAVE}, 4\ns_cbranch_scc1 L_p2_nb1")
            self.wait_vm('V')
            a("s_barrier")
            a(f"v_lshlrev_b32 v242, 7, v1\ns_and_b32 s57, s{sWAVE}, 1\ns_lshl_b32 s57, s57, 8\ns_add_u32 s57, s57, s2\ns_lshl_b32 s57, s57, 13")
            a(f"s_cmp_lt_u32 s{sWAVE}, 6\ns_cbranch_scc1 L_p2_tu")
            self.touch(srd(SRD_WD), 242, "s57", 0)
            a(f"s_branch L_p2_nb1\nL_p2_tu:\ns_add_u32 s57, s57, {64*8192}")
            self.touch(srd(SRD_WU), 242, "s57", 0)
            a("L_p2_nb1:")
        if t == opt('vbt', 2):
            a(f"s_cmp_ge_u32 s{sWAVE}, 4\ns_cbranch_scc1 L_p2_nb2")
            self.wait_vm('V')
            self.bar()
            a("L_p2_nb2:")
            vok = True
        while vok and vq and vq[0] in vfree:
            d = vq.pop(0)
            ls += [('l', lambda d=d, q=q: vr1(d, q), d, q) for q in range(4)]
    assert not qs and not ls and not vq and not pf
    a(".p2align 3")
    for sp in range(2):
        for i in range(4*sp, 4*sp+4): a(f"v_cvt_pk_bf16_f32 v{Sr(7)+i}, v{Sr(7)+2*i}, v{Sr(7)+2*i+1}")
        if sp == 1: pv(7, 0)
    pv(7, 1)
    pvq = []
    while pf: pf.pop(0)()
    a(f"""v_bfe_u32 v5, v1, 4, 1
    v_mul_u32_u24 v5, 20480, v5
    v_and_b32 v7, 15, v1
    v_lshl_add_u32 v6, v7, 3, v5
    v_lshl_add_u32 v5, v7, 4, v5
    v_mov_b32 v8, {OOB}
    v_cmp_eq_u32 vcc, 0, v3
    v_cndmask_b32 v6, v8, v6, vcc
    v_lshl_add_u32 v5, v3, 8, v5
    s_lshl_b32 s54, s53, 2
    s_add_u32 s54, s54, s43
    s_mul_i32 s54, s54, 10240
    s_add_u32 s54, s54, {OO}
    s_lshl_b32 s55, s40, 9
    s_add_u32 s55, s55, s54
    s_lshl_b32 s56, s40, 7
    s_add_u32 s56, s56, s54
    s_add_u32 s56, s56, 8192
    s_mov_b32 s57, {(127+64-(127-64))<<23}""")
    while pvq: pvq.pop(0)()
    a(f"""v_subrev_u32 v8, {(127-64)<<23}, v{OA+12}
    v_cmp_lt_u32 vcc, s57, v8
    s_cbranch_vccnz L_p2_slow
    L_p2_norm:
    v_rcp_f32 v8, v{OA+12}""")
    def slow():
        a("L_p2_slow:")
        a.settle()
        lg = LG(a)
        kread, qk, vread, pv, merge, cvt = mk(lg, 8)
        first = [True]
        def vmax(t):
            b = Sr(t)
            for i in range(0, 16, 4):
                if first[0]:
                    a(f"v_max_f32 v{M0}, v{b}, v{b+1}\nv_max_f32 v{M1}, v{b+2}, v{b+3}")
                    first[0] = False
                else:
                    a(f"v_max3_f32 v{M0}, v{M0}, v{b+i}, v{b+i+1}\nv_max3_f32 v{M1}, v{M1}, v{b+i+2}, v{b+i+3}")
        for n in range(9):
            kread(n); qk(n, 0); qk(n, 1)
        merge()
        for t in range(1, 9): vmax(t)
        a(f"""v_max_f32 v{M0}, v{M0}, v{M1}
        v_mov_b32 v{M1}, v{M0}
        v_permlane32_swap_b32 v{M0}, v{M1}
        v_max_f32 v{M0}, v{M0}, v{M1}""")
        for t in (8, 1, 2, 3, 4, 5, 6, 7):
            for i in range(16): a(f"v_sub_f32 v{Sr(t)+i}, v{Sr(t)+i}, v{M0}")
            for i in range(16): a(f"v_exp_f32 v{Sr(t)+i}, v{Sr(t)+i}")
            cvt(t)
            for d in ([8, 0] if t == 8 else [t]):
                vread(d); pv(d, 0); pv(d, 1)
        a.settle()
        a("s_branch L_p2_norm")
    self.tail.append(slow)
    for i in range(12): a(f"v_mul_f32 v{OA+i}, v{OA+i}, v8")
    for i in range(6): a(f"v_cvt_pk_bf16_f32 v{16+i}, v{OA+2*i}, v{OA+2*i+1}")
    a(f"buffer_store_dwordx4 v[16:19], v5, {WS}, s55 offen sc1")
    a(f"buffer_store_dwordx2 v[20:21], v6, {WS}, s56 offen sc1")
    self.stamp('p2cmp')
    self.stamp('p2cmp4', 4)
    a(f"""s_setprio 0
    s_mul_i32 s51, s41, {4*21846}
    s_lshr_b32 s51, s51, 16
    s_mul_i32 s51, s51, 10
    v_add_u32 v247, s51, v1
    v_lshlrev_b32 v247, 7, v247
    s_mul_i32 s51, s43, {4*(M_S2B-M_S2)}
    v_add_u32 v247, s51, v247
    s_lshl_b32 s51, s43, 2
    s_add_u32 s51, s51, {P2_CNT}
    v_mov_b32 v8, s51
    v_mov_b32 v246, 1
    s_mov_b64 exec, 1
    s_waitcnt vmcnt(0)
    ds_add_rtn_u32 v9, v8, v246
    s_waitcnt lgkmcnt(0)
    v_cmp_ne_u32 vcc, 3, v9
    s_cbranch_vccnz L_p2_nosig
    s_mov_b64 exec, 0xfffff
    buffer_atomic_add v246, v247, {WS}, 0 offen offset:{4*M_S2} sc1
    L_p2_nosig:
    s_mov_b64 exec, -1""")
    self.stamp('p2st')
    self.stamp('p2st4', 4)

def p3_prefetch(self):
    a = self.a
    p5_coords(a, 58, 59, 60)
    self.w128_dma_voff(1280, 224, 5, 6)
    a(f"""s_and_b32 s60, s{sWAVE}, 1
    s_lshl_b32 s61, s60, 6
    v_xor_b32 v224, s61, v224
    v_lshrrev_b32 v5, 5, v1
    v_mul_u32_u24 v5, {36*1280}, v5
    v_add_u32 v225, v224, v5
    s_lshl_b32 s59, s59, 7
    s_lshr_b32 s61, s{sWAVE}, 1
    s_mul_i32 s61, s61, 5
    s_add_u32 s60, s60, s61
    s_mul_i32 s60, s60, {8*1280}
    s_add_u32 s60, s60, s59
    s_mul_i32 s61, s{sWAVE}, {80*1280}
    s_add_u32 s61, s61, s59
    s_lshl_b32 s59, s{sWAVE}, 10
    s_cmp_ge_i32 s1, 0
    s_cselect_b32 s60, {OOB//2}, s60
    s_cselect_b32 s61, {OOB//2}, s61""")
    out = []
    for n in range(10):
        h, q = n // 5, n % 5
        g = f"s_add_u32 s98, s60, {(160*q+24*h)*1280}" if q < 4 else f"s_add_u32 s98, s61, {(16+4*h)*1280}"
        out += [lambda n=n: a(f"s_add_u32 m0, s59, {8192*n}"), lambda g=g: a(g),
                lambda q=q: self.vmem(f"buffer_load_dwordx4 v{224 if q < 4 else 225}, {srd(SRD_WO)}, s98 offen lds", 'wo')]
    return out

P3_EX, P3_X, P3_ST = 106496, 81920, 155648
_o = dict(a.split('=') for a in __import__('sys').argv[1:] if '=' in a)
P4_SS = 45056
P4_TAB = 3 * P4_SS
RA, LA96 = 5, 3
W5PLAN = {int(x.split(':')[0]): int(x.split(':')[1]) for x in _o.get('w5plan', '7:2,8:5,9:4').split(',')}
P5_RW, P5_PRE = 20, sum(W5PLAN.values())
P5_SLOTS = [18, 19, 6, 7, 8, 9, 10, 11, 12, 13, 14, 15, 0, 1, 2, 3, 4, 5, 16, 17]
P5_EX = 11 * 8192
def p5_wslot(st): return 8192 * P5_SLOTS[st % P5_RW]

def p4_coords(a):
    if opt('al4', 0):
        a("""s_bfe_u32 s41, s2, 0x20001
        s_cmp_eq_u32 s41, 3
        s_cselect_b32 s42, 6, 7
        s_cselect_b32 s40, 27, 32
        s_mov_b32 s43, 9363
        s_cselect_b32 s43, 10923, s43
        s_bitcmp1_b32 s2, 0
        s_cselect_b32 s40, s40, 0
        s_lshr_b32 s44, s2, 3
        s_add_u32 s40, s40, s44
        s_mul_i32 s41, s41, 7
        s_add_u32 s41, s41, s40
        s_mul_i32 s40, s40, s43
        s_lshr_b32 s40, s40, 16
        s_mul_i32 s42, s42, s40
        s_sub_u32 s41, s41, s42""")
        return
    a("""s_and_b32 s40, s2, 7
    s_min_u32 s41, s40, 3
    s_mul_i32 s40, s40, 30
    s_add_u32 s40, s40, s41
    s_lshr_b32 s41, s2, 3
    s_add_u32 s40, s40, s41
    s_mul_i32 s41, s40, 1041
    s_lshr_b32 s41, s41, 16
    s_mul_i32 s42, s41, 63
    s_sub_u32 s40, s40, s42
    s_cmp_eq_u32 s41, 3
    s_cselect_b32 s42, 6, 7
    s_mov_b32 s43, 9363
    s_cselect_b32 s43, 10923, s43
    s_mul_i32 s41, s41, 7
    s_add_u32 s41, s41, s40
    s_mul_i32 s40, s40, s43
    s_lshr_b32 s40, s40, 16
    s_mul_i32 s42, s42, s40
    s_sub_u32 s41, s41, s42""")

def n4_blocks(a, r, d, t):
    a(f"""s_mul_i32 s{d}, s{r}, {3*9363}
    s_add_u32 s{t}, s{d}, {2*9363}
    s_lshr_b32 s{d}, s{d}, 16
    s_lshr_b32 s{t}, s{t}, 16
    s_cmp_eq_u32 s{d}, s{t}
    s_cselect_b32 s{d}, 27, 54""")

def p5_coords(a, r, c, t):
    if opt('al5', 0):
        a(f"""s_lshr_b32 s{c}, s2, 3
        s_mul_i32 s{r}, s{c}, 13108
        s_lshr_b32 s{r}, s{r}, 16
        s_mul_i32 s{t}, s{r}, 5
        s_sub_u32 s{t+1}, s{c}, s{t}
        s_bfe_u32 s{t}, s2, 0x20001
        s_mul_i32 s{t}, s{t}, 11
        s_add_u32 s{t}, s{t}, 1
        s_lshr_b32 s{t}, s{t}, 1
        s_add_u32 s{r}, s{r}, s{t}
        s_and_b32 s{c}, s2, 1
        s_mul_i32 s{c}, s{c}, 5
        s_add_u32 s{c}, s{c}, s{t+1}""")
        return
    if opt('map5', 0):
        a(f"""s_and_b32 s{r}, s2, 7
        s_mul_i32 s{r}, s{r}, 27
        s_lshr_b32 s{c}, s2, 3
        s_add_u32 s{t}, s{r}, s{c}
        s_cmp_ge_u32 s2, 216
        s_cselect_b32 s{t}, s2, s{t}
        s_mul_i32 s{r}, s{t}, 6554
        s_lshr_b32 s{r}, s{r}, 16
        s_mul_i32 s{c}, s{r}, 10
        s_sub_u32 s{c}, s{t}, s{c}
        s_mov_b32 s{t+1}, s{c}""")
        return
    a(f"""s_bfe_u32 s{r}, s2, 0x20001
    s_add_u32 s{t+1}, s{r}, 108
    s_mul_i32 s{r}, s{r}, 27
    s_lshr_b32 s{c}, s2, 3
    s_add_u32 s{t}, s{r}, s{c}
    s_cmp_ge_u32 s2, 216
    s_cselect_b32 s{t}, s{t+1}, s{t}
    s_mul_i32 s{r}, s{t}, 13108
    s_lshr_b32 s{r}, s{r}, 16
    s_mul_i32 s{c}, s{r}, 5
    s_sub_u32 s{t+1}, s{t}, s{c}
    s_and_b32 s{c}, s2, 1
    s_mul_i32 s{c}, s{c}, 5
    s_add_u32 s{c}, s{c}, s{t+1}""")

def tail345(self):
    a = self.a
    self.tail.append(lambda: idle_code(self))
    a(f"s_cmp_ge_u32 s{sWAVE}, 4\ns_cbranch_scc1 L_h345")
    self.nbar = 0
    marks_c = []
    p3_c(self); marks_c.append(self.nbar)
    if self.upto >= 4: p4_c(self); marks_c.append(self.nbar)
    if self.upto >= 5: p5_c(self); marks_c.append(self.nbar)
    a("s_endpgm")
    a("L_h345:")
    self.nbar = 0
    marks_h = []
    p3_h(self); marks_h.append(self.nbar)
    if self.upto >= 4: p4_h(self); marks_h.append(self.nbar)
    if self.upto >= 5: p5_h(self); marks_h.append(self.nbar)
    assert marks_c == marks_h, (marks_c, marks_h)

def ksplit_tail(self, ACC, RES, XW, XR_):
    a = self.a
    a("s_waitcnt lgkmcnt(0)")
    self.bar()
    for q in range(6): a(f"ds_read_b128 {vr(XR_+4*q)}, v15 offset:{1024*q}")
    for mu in range(3):
        for h in range(4): a(f"v_pk_add_f32 {vr(RES+8*mu+2*h,2)}, {vr(RES+8*mu+2*h,2)}, {vr(ACC+16*mu+2*h,2)}")

def p3_c(self):
    a = self.a
    self.vm = VM()
    p5_coords(a, 40, 41, 42)
    a(f"""s_and_b32 s48, s{sWAVE}, 1
    s_lshr_b32 s49, s{sWAVE}, 1
    v_and_b32 v2, 15, v1
    v_lshrrev_b32 v3, 4, v1""")
    self.w128_read_addr(14, 4)
    a(f"""s_lshl_b32 s50, s49, 6
    v_xor_b32 v14, s50, v14
    s_lshl_b32 s50, s49, 12
    v_add_u32 v10, s50, v14
    v_xor_b32 v11, 32, v10
    v_xor_b32 v12, 64, v10
    v_xor_b32 v13, 96, v10
    s_mul_i32 s50, s{sWAVE}, 6144
    s_add_u32 s50, s50, {P3_EX}
    v_lshl_add_u32 v8, v1, 4, s50
    s_xor_b32 s50, s{sWAVE}, 2
    s_mul_i32 s50, s50, 6144
    s_add_u32 s50, s50, {P3_EX}
    v_lshl_add_u32 v15, v1, 4, s50
    s_lshl_b32 s55, s40, 1
    s_add_u32 s55, s55, s48
    s_mul_i32 s55, s55, 3
    v_lshlrev_b32 v9, 8, v3
    v_lshl_add_u32 v9, v2, 3, v9""")
    for mu in range(3):
        a(f"""s_add_u32 s56, s55, {mu}
        s_cmp_ge_u32 s56, 128
        s_mov_b32 s57, {20480*mu}
        s_cselect_b32 s56, {OOB//2}, s57
        v_lshl_add_u32 v{236+mu}, v1, 4, s56
        v_add_u32 v{239+mu}, s56, v9""")
    a(f"""s_mul_i32 s50, s55, 20480
    s_lshl_b32 s56, s49, 10
    s_add_u32 s56, s56, s50
    s_add_u32 s56, s56, {OO}
    s_mul_i32 s57, s40, 10
    s_add_u32 s57, s57, s41
    s_lshl_b32 s57, s57, 7
    s_add_u32 s57, s57, {4*M_S2}""")
    s2_expect(a, 40, 58, 59)
    ACC, WR, AR, RES, XR = 16, 64, 112, 64, 96
    def aops(st):
        o = [lambda: a(f"s_add_u32 s59, s56, {2048*st}")]
        for mu in range(3):
            d = AR + 12 * st + 4 * mu
            if st % 5 < 4: o.append(lambda d=d, mu=mu: self.vmem(f"buffer_load_dwordx4 {vr(d)}, v{236+mu}, {WS}, s59 offen sc1", ('A', st)))
            else: o += [lambda d=d, mu=mu, e=e: self.vmem(f"buffer_load_dwordx2 {vr(d+2*e,2)}, v{239+mu}, {WS}, s59 offen offset:{128*e} sc1", ('A', st)) for e in range(2)]
        return o
    a(f"""v_lshrrev_b32 v7, 1, v3
    s_lshl_b32 s51, s49, 2
    v_add_u32 v4, s51, v7
    v_and_b32 v5, 7, v2
    v_xor_b32 v4, v4, v5
    v_lshlrev_b32 v4, 4, v4
    v_lshl_add_u32 v4, v2, 7, v4
    v_and_b32 v5, 1, v3
    v_lshl_add_u32 v4, v5, 3, v4
    s_mul_i32 s51, s48, 6144
    s_add_u32 s51, s51, {P3_X}
    v_add_u32 v4, s51, v4
    v_xor_b32 v9, 32, v4""")
    a(f"""v_lshlrev_b32 v6, 9, v5
    v_lshl_add_u32 v6, v7, 8, v6
    v_lshl_add_u32 v6, v2, 4, v6
    s_lshl_b32 s53, s41, 1
    s_add_u32 s53, s53, s49
    s_lshl_b32 s53, s53, 10
    s_add_u32 s53, s53, s50
    s_add_u32 s53, s53, {HH}
    v_lshlrev_b32 v7, 3, v2
    v_lshl_add_u32 v7, v5, 2, v7
    s_mul_i32 s51, s{sWAVE}, 384
    s_add_u32 s51, s51, {P3_ST}
    v_add_u32 v7, s51, v7
    s_mov_b64 s[62:63], 0""")
    a("s_cmp_ge_i32 s1, 0\ns_cbranch_scc1 L_p3_skip")
    a(f"""v_lshrrev_b32 v16, 3, v1
    v_and_b32 v17, 7, v1
    v_xor_b32 v17, v17, v16
    v_mul_u32_u24 v16, 1280, v16
    v_lshl_add_u32 v16, v17, 4, v16
    s_lshl_b32 s44, s40, 2
    s_add_u32 s44, s44, s{sWAVE}
    s_mul_i32 s44, s44, {24*1280}
    s_lshl_b32 s45, s41, 7
    s_add_u32 s44, s44, s45
    s_mul_i32 s45, s{sWAVE}, 3072""")
    for i in range(3):
        a(f"s_add_u32 m0, s45, {P3_X + 1024*i}\nbuffer_load_dwordx4 v16, {srd(SRD_X)}, s44 offen lds")
        if i < 2: a(f"s_add_u32 s44, s44, {8*1280}")
    self.pollw("s57", "s58", 234, 235, nap=1)
    self.stamp('p3polla')
    aq = sum([aops(st) for st in range(5)], [])
    for _ in range(16): aq.pop(0)()
    a(f"""v_mov_b32 v234, {P2_CNT}
    L_p3_w8:
    ds_read_b64 v[232:233], v234
    s_waitcnt lgkmcnt(0)
    v_add_u32 v232, v232, v233
    v_cmp_ne_u32 vcc, 8, v232
    s_cbranch_vccz L_p3_w8d
    s_sleep 1
    s_sub_u32 s{sBOUND}, s{sBOUND}, 1
    s_cbranch_scc0 L_p3_w8
    s_mov_b32 s{sBOUND}, 0
    L_p3_w8d:""")
    self.tail.append(lambda: a("L_p3_skip:\ns_barrier\ns_branch L_idle"))
    lg = LG(a)
    NW = 3
    def wreads(st):
        out = []
        if st == 7: out.append(("\n".join(f"v_add_u32 v{10+i}, {7*8192}, v{10+i}" for i in range(4)), 'valu'))
        wb = WR + 16 * (st % NW)
        return out + [(f"ds_read_b64_tr_b16 {vr(wb+4*i+2*t,2)}, v{10+i} offset:{8192*(st%7)+512*t}", ('W', st)) for i in range(4) for t in range(2)]
    def emit(op):
        if op[1] == 'valu': a(op[0])
        else: lg.op(*op)
    korder = [0, 1, 2, 3, 5, 6, 7, 8, 4, 9]
    for st in range(2):
        for op in wreads(st): emit(op)
    for st in range(10):
        if st == opt('pbs', 3):
            while aq: aq.pop(0)()
            self.bar()
            self.stamp('p3pollb')
            aq = sum([aops(s2) for s2 in range(5, 10)], [])
            for _ in range(opt('p3n', 16)): aq.pop(0)()
        self.wait_vm(('A', st))
        lg.need(('W', st))
        nxt = wreads(st + 2) if st + 2 < 10 else []
        if st == 8:
            nxt = [(f"ds_read_b64 {vr(AR+4*mu+2*nu,2)}, v{9 if nu else 4} offset:{2048*mu}", 'xr') for mu in range(3) for nu in range(2)]
        k = 0
        seq = [(mu, i) for mu in range(3) for i in range(4)]
        if st == 9: seq = [x for x in seq if x[1] >= 2] + [x for x in seq if x[1] < 2]
        for n, (mu, i) in enumerate(seq):
            ac = ACC + 16 * mu + 4 * i
            c = "0" if st == 0 else vr(ac)
            a(f"v_mfma_f32_16x16x32_bf16 {vr(ac)}, {vr(WR+16*(st%NW)+4*i)}, {vr(AR+12*st+4*mu)}, {c}")
            if k < len(nxt): emit(nxt[k]); k += 1
            if aq and n % opt('p3p', 2) == opt('p3p', 2) - 1: aq.pop(0)()
            if st == 9:
                if n == 0: lg.need('xr')
                a(f"v_lshlrev_b32 v{136+2*n}, 16, v{AR+n}\nv_and_b32 v{137+2*n}, 0xffff0000, v{AR+n}")
                if n >= 6:
                    q = n - 6
                    a(f"ds_write_b128 v8, {vr(ACC+16*(q>>1)+8+4*(q&1))} offset:{1024*q}")
        assert k == len(nxt)
    self.stamp('p3loop')
    ksplit_tail(self, ACC, 136, 8, 188)
    for mu in range(3):
        a(f"s_waitcnt lgkmcnt({4-2*mu})")
        for h in range(4): a(f"v_pk_add_f32 {vr(136+8*mu+2*h,2)}, {vr(136+8*mu+2*h,2)}, {vr(188+8*mu+2*h,2)}")
        pk = 160 + 4 * mu
        for h in (0, 2, 1, 3): a(f"v_cvt_pk_bf16_f32 v{pk+h}, v{136+8*mu+2*h}, v{137+8*mu+2*h}")
        a(f"v_permlane16_swap_b32 v{pk}, v{pk+2}\nv_permlane16_swap_b32 v{pk+1}, v{pk+3}")
        a(f"buffer_store_dwordx4 {vr(pk)}, v6, {WS}, s53 offen sc1")
        if mu < 2: a("s_add_u32 s53, s53, 20480")
    self.stamp('p3epi')
    self.finish(M_S3, 'p3st')
    for mu in range(3):
        b = 136 + 8 * mu
        a(f"v_pk_add_f32 {vr(176+4*mu,2)}, {vr(b,2)}, {vr(b+2,2)}\nv_pk_mul_f32 {vr(178+4*mu,2)}, {vr(b,2)}, {vr(b,2)}")
    for i in range(1, 4):
        for mu in range(3):
            b = 136 + 8 * mu + 2 * i
            if i > 1: a(f"v_pk_add_f32 {vr(176+4*mu,2)}, {vr(176+4*mu,2)}, {vr(b,2)}")
            a(f"v_pk_fma_f32 {vr(178+4*mu,2)}, {vr(b,2)}, {vr(b,2)}, {vr(178+4*mu,2)}")
    for mu in range(3): a(f"v_add_f32 v{176+4*mu}, v{176+4*mu}, v{177+4*mu}\nv_add_f32 v{177+4*mu}, v{178+4*mu}, v{179+4*mu}")
    for mu in range(3): a(f"v_permlane16_swap_b32 v{176+4*mu}, v{177+4*mu}")
    for mu in range(3): a(f"v_add_f32 v{176+4*mu}, v{176+4*mu}, v{177+4*mu}")
    for mu in range(3): a(f"v_mov_b32 v{177+4*mu}, v{176+4*mu}")
    for mu in range(3): a(f"v_permlane32_swap_b32 v{176+4*mu}, v{177+4*mu}")
    for mu in range(3): a(f"v_add_f32 v{176+4*mu}, v{176+4*mu}, v{177+4*mu}")
    for mu in range(3): a(f"ds_write_b32 v7, v{176+4*mu} offset:{128*mu}")
    a("L_p4_c_in:")
    if self.upto >= 4: p4_c_pre(self)
    a("s_waitcnt lgkmcnt(0)")
    if self.upto == 3: self.bar()

def s2_expect(a, r, d, t):
    a(f"""s_mul_i32 s{d}, s{r}, 3
    s_add_u32 s{t}, s{d}, 2
    s_min_u32 s{t}, s{t}, 63
    s_lshr_b32 s{d}, s{d}, 2
    s_lshr_b32 s{t}, s{t}, 2
    s_cmp_eq_u32 s{d}, s{t}
    s_cselect_b32 s{d}, 16, 32""")

def p3_h(self):
    a = self.a
    self.vm = VM()
    p5_coords(a, 64, 65, 66)
    a(f"""s_mul_i32 s46, s64, 10
    s_add_u32 s46, s46, s65
    s_lshl_b32 s46, s46, 7
    s_add_u32 s46, s46, {4*M_S2B}""")
    s2_expect(a, 64, 47, 48)
    a(f"s_cmp_ge_i32 s1, 0\ns_cbranch_scc1 L_p3_hskip\ns_cmp_lg_u32 s{sWAVE}, 5\ns_cbranch_scc1 L_p3_hskip")
    self.pollw("s46", "s47", 8, 248, depth=3)
    a("L_p3_hskip:")
    self.bar()
    p5_h_pre(self)
    a("s_cmp_ge_i32 s1, 0\ns_cbranch_scc1 L_idle")
    a(f"""s_mul_i32 s50, s64, {3*9363}
    s_lshr_b32 s50, s50, 16
    s_mul_i32 s50, s50, 27
    v_add_u32 v247, s50, v1
    s_cmp_eq_u32 s64, 21
    s_cselect_b32 s50, 13, s73
    v_cmp_gt_u32 vcc, s50, v1
    s_lshl_b32 s60, 0x11111111, s{sHW}
    s_mov_b32 s61, s60
    s_and_b64 s[60:61], s[60:61], vcc""")
    self.sigprep(4)
    a(f"""s_lshl_b32 s50, s{sHW}, 8
    v_lshl_add_u32 v12, v1, 2, s50
    v_add_u32 v13, {P3_ST}, v12
    s_lshl_b32 s54, s65, 15
    s_mul_i32 s55, s64, 768
    s_add_u32 s54, s54, s55
    s_add_u32 s54, s54, {ST2}
    s_cmp_eq_u32 s{sHW}, 3
    s_cselect_b32 s54, {OOB//2}, s54""")
    if self.upto >= 4: p4_h_pre(self)
    self.bar()
    self.finish(M_S3, 'p3st_h')
    if self.upto == 3:
        self.bar(); st2_store(self)

def st2_store(self):
    self.a("""ds_read_b32 v14, v13
    ds_read_b32 v15, v13 offset:768
    s_waitcnt lgkmcnt(0)
    v_add_f32 v14, v14, v15""")
    self.vmem(f"buffer_store_dword v14, v12, {WS}, s54 offen sc1", 'st2st')

def aux_signal(self):
    self.a(f"""v_mov_b32 v246, 1
    s_mov_b64 exec, s[60:61]""")
    self.vmem(f"buffer_atomic_add v246, v247, {WS}, 0 offen offset:{4*M_CS4} sc1", 'aux')
    self.a("s_mov_b64 exec, -1")

def p4_c_pre(self):
    a = self.a
    T = P4_TAB
    p4_coords(a)
    a(f"""s_mul_i32 s50, s48, 14336
    v_lshl_add_u32 v8, v1, 4, s50
    v_add_u32 v10, 28672, v14
    v_xor_b32 v11, 32, v10
    s_mul_i32 s50, s48, 1792
    s_add_u32 s50, s50, {T}
    v_lshl_add_u32 v4, v2, 4, s50
    s_lshl_b32 s50, s49, 7
    s_add_u32 s50, s50, {T+4096}
    v_lshl_add_u32 v5, v3, 4, s50""")
    a(f"""v_and_b32 v6, 1, v3
    v_lshlrev_b32 v6, 9, v6
    v_lshrrev_b32 v7, 1, v3
    v_lshl_add_u32 v6, v7, 8, v6
    v_lshl_add_u32 v6, v2, 4, v6
    s_lshl_b32 s50, s40, 1
    s_add_u32 s50, s50, s48
    s_mul_i32 s50, s50, {7*216*256}
    s_lshl_b32 s51, s41, 1
    s_add_u32 s51, s51, s49
    s_lshl_b32 s51, s51, 10
    s_add_u32 s50, s50, s51
    s_add_u32 s50, s50, {HP}""")

def glu_epilogue(a, units, PK, store, hook=None):
    NEG = "op_sel_hi:[1,0,1] neg_lo:[0,1,0] neg_hi:[0,1,0]"
    def A(u):
        b, cs, st = units[u]
        o = [f"v_pk_fma_f32 {vr(b+2*h,2)}, {vr(cs+2*h,2)}, {vr(st,2)}, {vr(b+2*h,2)} {NEG}" for h in range(4)]
        o += [f"v_pk_mul_f32 {vr(b+2*h,2)}, {vr(b+2*h,2)}, {vr(st,2)} op_sel:[0,1] op_sel_hi:[1,1]" for h in range(4)]
        o += [f"v_exp_f32 v{b+i}, v{b+i}" for i in range(8)]
        o += [f"v_pk_fma_f32 {vr(b+2*h,2)}, {vr(cs+2*h,2)}, {vr(st,2)}, {vr(b+2*h,2)} {NEG}" for h in range(4, 8)]
        o += [f"v_pk_fma_f32 {vr(b+2*h,2)}, {vr(b+2*h,2)}, {vr(st+2,2)}, {vr(st+2,2)} op_sel_hi:[1,0,0]" for h in range(4)]
        o += [f"v_rcp_f32 v{b+i}, v{b+i}" for i in range(8)]
        return o
    def B(u):
        b = units[u][0]; pk = PK + 4 * (u % 4)
        o = [f"v_pk_mul_f32 {vr(b+2*h,2)}, {vr(b+2*h,2)}, {vr(b+8+2*h,2)}" for h in range(4)]
        o += [f"v_cvt_pk_bf16_f32 v{pk+h}, v{b+2*h}, v{b+2*h+1}" for h in (0, 2, 1, 3)]
        return o
    def C(u):
        pk = PK + 4 * (u % 4)
        return [f"v_permlane16_swap_b32 v{pk}, v{pk+2}", f"v_permlane16_swap_b32 v{pk+1}, v{pk+3}"] + store(u, pk)
    n = len(units)
    for u in range(n + 1):
        cur = A(u) if u < n else []
        for i, t in enumerate(cur[:4] + (B(u - 1) if u else []) + cur[4:8] + (C(u - 1) if u else []) + cur[8:]):
            a(t)
            if hook: hook(u, i, t)

def p4_c(self):
    a = self.a
    WF, XF, ACC = 16, 80, 128
    a("""s_mul_i32 s51, s40, 152922
    s_lshr_b32 s51, s51, 16
    s_mul_i32 s51, s51, 10
    v_add_u32 v247, s51, v1
    v_cmp_gt_u32 vcc, 30, v1""")
    self.sigprep(0)
    lg = LG(a)
    def wr(S): return [(f"ds_read_b64_tr_b16 {vr(WF+32*(S&1)+8*nu+4*e+2*t,2)}, v{10+(nu&1)} offset:{8192*(nu>>1)+4096*e+512*t}", ('W', S, nu))
                       for nu in range(4) for e in range(2) for t in range(2)]
    def xr(q): return [(f"ds_read_b128 {vr(XF+8*(q%4)+4*e)}, v8 offset:{2048*(q%7)+1024*e}", ('X', q)) for e in range(2)]
    self.bar()
    self.bar()
    self.stamp('p4b0')
    w0 = wr(0)
    for r in w0[:4] + xr(0) + w0[4:] + xr(1) + xr(2): lg.op(*r)
    ST, CSR, PK = 16, 112, 48
    for S in range(10):
        wq = []
        for mu in range(7):
            q = 7 * S + mu
            if mu == 4:
                lg.drain()
                self.bar()
                if S < 9: wq = wr(S + 1)
                else:
                    wq = [(f"ds_read_b128 {vr(CSR+4*k)}, v5 offset:{256*(k>>1)+64*(k&1)}", None) for k in range(4)]
                    wq += [(f"ds_read_b128 {vr(ST+4*k)}, v4 offset:{256*k}", None) for k in range(7)]
            xq = xr(q + 3) if q + 3 < 70 else []
            if q == 0: xq = []
            if q == 1:
                self.bar()
                xq = xr(3) + xr(4)
            if S > 0 and mu == 0: lg.need(('W', S, 3))
            lg.need(('X', q))
            for n in range(8):
                nu, e = n >> 1, n & 1
                ac = ACC + 16 * mu + 4 * nu
                if S == 0 and mu == 0: lg.need(('W', 0, nu))
                c = "0" if (S == 0 and e == 0) else vr(ac)
                a(f"v_mfma_f32_16x16x32_bf16 {vr(ac)}, {vr(WF+32*(S&1)+8*nu+4*e)}, {vr(XF+8*(q%4)+4*e)}, {c}")
                if xq: lg.op(*xq.pop(0))
                elif wq: lg.op(*wq.pop(0))
                if mu == 3 and S < 9 and n in (3, 4, 5):
                    d = (P4_SS if S % 3 < 2 else -2 * P4_SS) & 0xffffffff
                    r = (8, 10, 11)[n - 3]; a(f"v_add_u32 v{r}, {d}, v{r}")
                if mu == 3 and n == 6: lg.drain()
        assert not wq
    lg.drain()
    self.stamp('p4loop')
    a(".p2align 3")
    hook = None
    glu_epilogue(a, [(ACC + 16 * mu, CSR, ST + 4 * mu) for mu in range(7)], PK,
                 lambda u, pk: [f"buffer_store_dwordx4 {vr(pk)}, v6, {WS}, s50 offen sc1", f"s_add_u32 s50, s50, {216*256}"], hook)
    if hook:
        assert not pre
        a("s_waitcnt lgkmcnt(0)")
    self.stamp('p4epi')
    a("L_p5_c_pre:")
    if self.upto >= 5: p5_c_pre(self)
    self.finish(M_S4, 'p4st')
    a("s_cmp_ge_i32 s1, 0\ns_cbranch_scc1 L_end")

def p4_h_pre(self):
    a = self.a
    p4_coords(a)
    self.w128_dma_voff(3456, 3, 10, 11)
    a(f"""v_xor_b32 v4, 64, v3
    v_add_u32 v4, {8*3456-1024}, v4
    v_lshlrev_b32 v2, 4, v1
    v_add_u32 v5, {20480-2048}, v2
    s_lshr_b32 s42, s{sHW}, 1
    s_and_b32 s43, s{sHW}, 1
    s_lshl_b32 s43, s43, 10
    s_lshl_b32 s44, s40, 1
    s_add_u32 s44, s44, s42
    s_mul_i32 s44, s44, {7*20480}
    s_add_u32 s44, s44, s43
    s_add_u32 s44, s44, {HH}
    s_mul_i32 s47, s42, 14336
    s_add_u32 s47, s47, s43
    s_mul_i32 s45, s{sHW}, {16*3456}
    s_lshl_b32 s46, s41, 7
    s_add_u32 s45, s45, s46
    s_lshl_b32 s46, s{sHW}, 11
    s_lshl_b32 s43, s{sHW}, 10
    s_mul_i32 s50, s40, 27
    s_add_u32 s50, s50, s41
    s_lshl_b32 s50, s50, 7
    s_add_u32 s51, s50, {4*M_S3}
    s_add_u32 s50, s50, {4*M_CS4}
    s_mov_b32 s56, 30""")

def p4_h(self):
    a = self.a
    T = P4_TAB
    LA = 2
    self.vm = VM()
    a("L_p4_h_in:")
    NWP = opt('w4p', 3)
    w5n = [0]
    def wdma(S):
        a(f"s_add_u32 s58, s45, {S*64*3456}")
        for k, sr in enumerate((SRD_WG, SRD_WU)):
            a(f"s_add_u32 m0, s46, {(S%3)*P4_SS + 28672 + 8192*k}")
            for i in range(2): self.vmem(f"buffer_load_dwordx4 v{3+i}, {srd(sr)}, s58 offen offset:{1024*i} lds", ('p4', S))
    def dma(S):
        for i in range(7):
            if i % 2 == 0: a(f"s_add_u32 m0, s47, {(S%3)*P4_SS + 2048*i}\ns_add_u32 s59, s44, {2048*S + 20480*i}")
            self.vmem(f"buffer_load_dwordx4 v{5 if i & 1 else 2}, {WS}, s59 offen offset:{2048*(i&1)} sc1 lds", ('p4a', S) if i < 3 else ('p4', S))
        if S >= NWP: wdma(S)
    for S in range(NWP): wdma(S)
    self.poll1(5, "s51", "s56", 8, 9)
    a("v_mov_b32 v8, 0")
    if opt('dbgw', 0):
        a(f"s_memrealtime s[100:101]\ns_waitcnt lgkmcnt(0)\ns_mov_b32 s99, s100\nL_dbgw:\ns_memrealtime s[100:101]\ns_waitcnt lgkmcnt(0)\ns_sub_u32 s100, s100, s99\ns_cmp_lt_u32 s100, {opt('dbgw', 0)}\ns_cbranch_scc1 L_dbgw")
    self.stamp('p4poll', 4)
    for st in range(LA): dma(st)
    a(f"""v_lshlrev_b32 v9, 2, v1
    s_mul_i32 s48, s40, 1792
    s_lshl_b32 s49, s{sHW}, 9
    s_add_u32 s48, s48, s49
    s_add_u32 s48, s48, {ST2}
    v_lshrrev_b32 v16, 5, v1
    v_and_b32 v17, 31, v1
    v_lshlrev_b32 v7, 15, v16
    v_lshl_add_u32 v7, v17, 4, v7
    v_lshl_add_u32 v18, v17, 1, v16
    v_lshrrev_b32 v16, 4, v1
    v_mul_u32_u24 v9, {3456*4}, v16
    v_and_b32 v19, 15, v1
    v_lshl_add_u32 v9, v19, 4, v9
    s_and_b32 s52, s{sHW}, 1
    s_mul_i32 s49, s52, {1728*4}
    s_lshl_b32 s53, s41, 8
    s_add_u32 s49, s49, s53
    s_add_u32 s49, s49, {CS4}
    s_add_u32 s56, s56, 8""")
    self.wait_vm(('p4a', 0))
    self.bar()
    for st in range(10):
        self.wait_vm(('p4', st))
        self.bar()
        self.sstamp(f'h4b{st}')
        if st == 0: st2_store(self)
        if st + LA < 10: dma(st + LA)
        if st == LA:
            aux_signal(self)
        if st == 4:
            self.vmem(f"buffer_load_dword v36, v8, {WS}, s50 offen sc1", 'mb')
        if st == 5:
            self.wait_vm('mb')
            a("v_cmp_ne_u32 vcc, s56, v36\ns_cbranch_vccz L_p4_csok")
            keep = list(self.vm.ops)
            self.poll("s50", "s56", 8, 36)
            self.vm.ops = keep
            a("L_p4_csok:")
        for q in {5: range(0, 3), 6: range(3, 6)}.get(st, []):
            if q < 5:
                self.vmem(f"buffer_load_dwordx4 {vr(40+4*q)}, v7, {WS}, s48 offen sc1", ('st2', q))
                a("s_add_u32 s48, s48, 65536")
            else: self.vmem(f"buffer_load_dwordx4 v[32:35], v9, {WS}, s49 offen sc1", ('st2', q))
        if st == 8:
            self.wait_vm(('st2', 5))
            for q in range(1, 5):
                for i in range(4): a(f"v_add_f32 v{40+i}, v{40+i}, v{40+4*q+i}")
            a(f"""v_permlane32_swap_b32 v40, v42
            v_permlane32_swap_b32 v41, v43
            v_permlane32_swap_b32 v32, v34
            v_permlane32_swap_b32 v33, v35
            v_add_f32 v16, v40, v42
            v_add_f32 v17, v41, v43
            v_add_f32 v32, v32, v34
            v_add_f32 v33, v33, v35
            v_mov_b32 v20, {f32hex(1.0/D)}
            v_mul_f32 v12, v16, v20
            v_permlane16_swap_b32 v32, v33
            v_mul_f32 v17, v17, v20
            v_fma_f32 v17, -v12, v12, v17
            v_max_f32 v17, 0, v17
            v_add_f32 v17, {f32hex(1e-5)}, v17
            v_rsq_f32 v13, v17
            v_sqrt_f32 v14, v17
            v_add_f32 v32, v32, v33
            v_mov_b32 v15, 0
            v_mul_f32 v13, {f32hex(-LOG2E)}, v13
            s_lshl_b32 s52, s52, 8
            s_add_u32 s52, s52, {T+4096}
            v_lshrrev_b32 v16, 4, v1
            v_lshl_add_u32 v10, v19, 2, v16
            v_lshl_add_u32 v10, v10, 2, s52
            s_add_u32 s52, s43, {T}
            v_lshl_add_u32 v11, v18, 4, s52""")
        if st == opt('tw', 9): a("ds_write_b32 v10, v32\nds_write_b128 v11, v[12:15]")
        if self.upto >= 5:
            for _ in range(W5PLAN.get(st, 0)):
                k = w5n[0]; w5n[0] += 1
                assert k < (2 if st < 8 else 7 if st == 8 else 12)
                p5_wdma(self, k)
    a("s_waitcnt lgkmcnt(0)")
    self.sdump(6)
    self.bar()
    a("L_p5_h_pre:")
    if self.upto >= 5:
        E = opt('w5e', 18)
        for st in range(P5_PRE, E):
            p5_wdma(self, st)
        self.wait_vm(('p5w', min(12, E - 1)))
    self.bar()
    a("s_cmp_ge_i32 s1, 0\ns_cbranch_scc1 L_end")

IDX = None
def idle_code(self):
    global IDX
    IDX = """s_and_b32 s41, s2, 2
    s_add_u32 s41, s41, s1
    s_lshl_b32 s41, s41, 2
    s_add_u32 s40, s40, s41
    s_and_b32 s41, s2, 1
    s_add_u32 s40, s40, s41
    s_bfe_u32 s41, s2, 0x10002
    s_lshl_b32 s41, s41, 1
    s_add_u32 s40, s40, s41""" if opt('al5', 0) else "s_add_u32 s40, s40, s1"
    a = self.a
    self.vm = VM()
    a(f"""L_idle:
    s_mul_i32 s40, s{sWAVE}, 36
    {IDX}
    s_cmp_ge_u32 s40, 216
    s_cbranch_scc1 {'L_ct2' if opt('ct2', 1) else 'L_cs4_done'}
    s_mul_i32 s46, s40, 1214
    s_lshr_b32 s46, s46, 16
    s_mul_i32 s41, s46, 54
    s_sub_u32 s40, s40, s41
    s_cmp_ge_u32 s40, 27
    s_cselect_b32 s44, 27, 0
    s_cselect_b32 s56, s{SRD_WU}, s{SRD_WG}
    s_cselect_b32 s57, s{SRD_WU+1}, s{SRD_WG+1}
    s_mov_b32 s58, {D*F*2}
    s_mov_b32 s59, 0x20000
    s_sub_u32 s45, s40, s44
    s_lshl_b32 s47, s45, 7
    s_mul_i32 s41, s46, {160*3456}
    s_add_u32 s47, s47, s41
    s_mul_i32 s50, s{sWAVE}, 20480""")
    self.colsum_issue("s[56:59]", 3456, 47, 50, 16, 17, 18)
    a(f"""s_mul_i32 s47, s46, {3456*4}
    s_lshl_b32 s41, s40, 8
    s_add_u32 s47, s47, s41
    s_add_u32 s47, s47, {CS4}
    s_waitcnt vmcnt(0)""")
    self.colsum_finish(50, 47, 16)
    a(f"""v_mul_u32_u24 v16, 27, v1
    v_add_u32 v16, s45, v16
    v_cmp_gt_u32 vcc, 9, v1
    s_waitcnt vmcnt(0)""")
    self.signal(16, M_CS4, 17)
    if opt('ct2', 1):
        a(f"s_branch L_cs4_done\nL_ct2:\ns_sub_u32 s41, s{sWAVE}, 6\ns_mul_i32 s41, s41, 3")
        self.code_touch('b', 41, 3)
        a("s_waitcnt vmcnt(0)")
    a("L_cs4_done:")
    a.settle()
    self.stamp('csdone')
    a("s_barrier")
    if self.upto < 4:
        a("s_endpgm"); return
    if opt('al4', 0):
        a("""s_lshr_b32 s40, s2, 3
        s_sub_u32 s40, s40, 27
        s_lshl_b32 s40, s40, 1
        s_and_b32 s41, s2, 1
        s_add_u32 s40, s40, s41
        s_and_b32 s41, s2, 6
        s_cmp_eq_u32 s41, 6
        s_cselect_b32 s40, s40, -1
        s_sub_u32 s41, s2, 229
        s_lshr_b32 s41, s41, 1
        s_and_b32 s42, s2, 0xf9
        s_cmp_eq_u32 s42, 0xf9
        s_cselect_b32 s41, s41, -1
        s_cmp_lt_i32 s40, 0
        s_cselect_b32 s40, s41, s40""")
    else: a("s_sub_u32 s40, s2, 243")
    a(f"""s_cmp_ge_i32 s40, 0
    s_cbranch_scc1 L_rem
    s_cmp_lt_u32 s{sWAVE}, 4
    s_cbranch_scc1 L_p4_c_in""")
    p4_h_pre(self)
    a(f"""s_mov_b32 s54, {OOB//2}
    v_mov_b32 v12, 0
    v_mov_b32 v13, 0
    v_mov_b32 v247, {OOB//2}
    s_mov_b64 s[60:61], 1
    s_branch L_p4_h_in""")
    p4_rem(self)

def p4_rem(self):
    a = self.a
    SL = 10240
    ACC, CS, RS, SQ, ONES, FR, FR2, ST, PK = 64, 128, 160, 168, 176, 16, 200, 180, 16
    base = {5: 1, 6: 3, 12: 5, 0: 7, 7: 9, 8: 11, 10: 13, 1: 15, 2: 17, 9: 19, 3: 21, 4: 23, 11: 25}
    if opt('al4', 0): base = {10: 1, 11: 7, 12: 15, 0: 21, 1: 23, 2: 25, 3: 3, 4: 5, 5: 9, 6: 11, 7: 13, 8: 17, 9: 19}
    tab = sum(((base[i] - 1) // 2) << (4 * i) for i in range(13))
    a(f"""L_rem:
    s_lshl_b32 s41, s40, 2
    s_mov_b32 s44, {tab & 0xffffffff}
    s_mov_b32 s45, {tab >> 32}
    s_lshr_b64 s[44:45], s[44:45], s41
    s_and_b32 s41, s44, 15
    s_cmp_eq_u32 s41, 0
    s_cselect_b32 s44, 3, 2
    s_cmp_ge_u32 s{sWAVE}, s44
    s_cbranch_scc1 L_end
    s_lshl_b32 s41, s41, 1
    s_add_u32 s41, s41, 2
    s_sub_u32 s41, s41, s{sWAVE}""")
    self.w128_dma_voff(3456, 4, 10, 11)
    self.w128_read_addr(10, 2)
    a(f"""v_xor_b32 v5, 64, v4
    v_add_u32 v5, {8*3456-1024}, v5
    v_add_u32 v6, {2*(8*3456-1024)}, v4
    v_add_u32 v7, {2*(8*3456-1024)}, v5
    v_lshlrev_b32 v8, 4, v1
    v_add_u32 v9, {20480-1024}, v8
    s_mul_i32 s42, s{sWAVE}, {5*SL}
    v_add_u32 v10, s42, v10
    v_xor_b32 v11, 32, v10
    v_xor_b32 v12, 64, v10
    v_xor_b32 v13, 96, v10
    v_add_u32 v14, s42, v8
    v_and_b32 v2, 15, v1
    v_lshrrev_b32 v3, 4, v1
    s_lshl_b32 s44, s41, 7
    s_mov_b32 s45, {HH + 126*20480}
    s_lshl_b32 s46, s40, 7
    s_add_u32 s46, s46, {243*128 + 4*M_S3}""")
    for i in range(ONES - ACC): a(f"v_mov_b32 v{ACC+i}, 0")
    for i in range(4): a(f"v_mov_b32 v{ONES+i}, 0x3f803f80")
    def wd(m0):
        o = []
        for k, sr in enumerate((SRD_WG, SRD_WU)):
            o.append(f"s_add_u32 m0, {m0}, {4096*k}")
            o += [f"buffer_load_dwordx4 v{4+i}, {srd(sr)}, s44 offen offset:{1024*i} lds" for i in range(4)]
        return o + [f"s_add_u32 s44, s44, {32*3456}"]
    def xd(m0):
        return [f"s_add_u32 m0, {m0}, 8192"] + [f"buffer_load_dwordx4 v{8+i}, {WS}, s45 offen offset:{1024*i} sc1 lds" for i in range(2)] + ["s_add_u32 s45, s45, 1024"]
    for i in range(5):
        a(f"s_add_u32 s47, s42, {SL*i}")
        for t in wd("s47"): a(t)
    self.pollw("s46", 10, 15, 248)
    for i in range(5):
        a(f"s_add_u32 s47, s42, {SL*i}")
        for t in xd("s47"): a(t)
    def rds(F):
        return [f"ds_read_b128 {vr(F+4*m)}, v14 offset:{8192+1024*m}" for m in range(2)] + \
               [f"ds_read_b64_tr_b16 {vr(F+8+4*n+2*t,2)}, v{10+(n&3)} offset:{4096*(n>>2)+512*t}" for n in range(8) for t in range(2)]
    a("s_mov_b32 s47, s42\ns_mov_b32 s48, 0\ns_mov_b32 s49, 0\ns_waitcnt vmcnt(0)")
    for t in rds(FR): a(t)
    a("L_rem_l:")
    pos = lambda n: 16 * ((n & 3) >> 1) + 8 * (n >> 2) + 4 * (n & 1)
    for F, G in ((FR, FR2), (FR2, FR)):
        a(f"""s_cmp_ge_u32 s48, 15
        s_cselect_b32 s45, {OOB//2}, s45
        s_add_u32 s48, s48, 1
        s_add_u32 s49, s49, 1
        s_cmp_eq_u32 s49, 5
        s_cselect_b32 s49, 0, s49
        s_mov_b32 s50, {SL}
        s_cselect_b32 s50, {(-4*SL) & 0xffffffff}, s50""")
        for r in range(10, 15): a(f"v_add_u32 v{r}, s50, v{r}")
        a("s_waitcnt vmcnt(30) lgkmcnt(0)")
        side = rds(G)
        side2 = wd("s47") + xd("s47") + ["s_add_u32 s47, s47, s50"]
        ms = []
        for m in range(2): ms += [(RS + 4 * m, ONES, F + 4 * m), (SQ + 4 * m, F + 4 * m, F + 4 * m)]
        for n in range(8): ms += [(ACC + pos(n), F + 8 + 4 * n, F), (ACC + 32 + pos(n), F + 8 + 4 * n, F + 4), (CS + pos(n), F + 8 + 4 * n, ONES)]
        for k, (d, A, B) in enumerate(ms):
            a(f"v_mfma_f32_16x16x32_bf16 {vr(d)}, {vr(A)}, {vr(B)}, {vr(d)}")
            if side: a(side.pop(0))
            if k >= 12 and side2: a(side2.pop(0))
        assert not side and not side2
    a("s_cmp_lt_u32 s48, 20\ns_cbranch_scc1 L_rem_l\ns_waitcnt lgkmcnt(0)")
    a.settle(10)
    a("v_and_b32 v4, 3, v2\nv_lshrrev_b32 v5, 2, v2\nv_cmp_eq_u32 s[50:51], v5, v3")
    for m in range(2):
        q = SQ + 4 * m
        for i in range(1, 4): a(f"v_cmp_eq_u32 vcc, {i}, v4\nv_cndmask_b32 v{q}, v{q}, v{q+i}, vcc")
        a(f"""v_cndmask_b32 v{q}, 0, v{q}, s[50:51]
        v_mov_b32 v{q+1}, v{q}
        v_permlane16_swap_b32 v{q}, v{q+1}
        v_add_f32 v{q}, v{q}, v{q+1}
        v_mov_b32 v{q+1}, v{q}
        v_permlane32_swap_b32 v{q}, v{q+1}
        v_add_f32 v{q}, v{q}, v{q+1}
        v_mul_f32 v{ST+4*m}, {f32hex(1.0/D)}, v{RS+4*m}
        v_mul_f32 v{q}, {f32hex(1.0/D)}, v{q}
        v_fma_f32 v{q}, -v{ST+4*m}, v{ST+4*m}, v{q}
        v_max_f32 v{q}, 0, v{q}
        v_add_f32 v{q}, {f32hex(1e-5)}, v{q}
        v_rsq_f32 v{ST+4*m+1}, v{q}
        v_sqrt_f32 v{ST+4*m+2}, v{q}
        v_mov_b32 v{ST+4*m+3}, 0
        v_mul_f32 v{ST+4*m+1}, {f32hex(-LOG2E)}, v{ST+4*m+1}""")
    a(f"""v_and_b32 v6, 1, v3
    v_lshlrev_b32 v6, 9, v6
    v_lshrrev_b32 v7, 1, v3
    v_lshl_add_u32 v6, v7, 8, v6
    v_lshl_add_u32 v6, v2, 4, v6
    s_lshl_b32 s50, s41, 11
    s_add_u32 s50, s50, {HP + 126*55296}
    s_add_u32 s51, s50, 55296""")
    glu_epilogue(a, [(ACC + 32 * m + 16 * p, CS + 16 * p, ST + 4 * m) for m in range(2) for p in range(2)], PK,
                 lambda u, pk: [f"buffer_store_dwordx4 {vr(pk)}, v6, {WS}, s{50 + (u >> 1)} offen offset:{1024*(u&1)} sc1"])
    a("v_add_u32 v16, 210, v1\ns_waitcnt vmcnt(0)")
    self.signal(16, M_S4, 17, mask='0x3ff')
    self.stamp('remdone')
    a("s_endpgm")

def p5_h_pre(self):
    a = self.a
    p5_coords(a, 64, 65, 66)
    self.w128_dma_voff(1280, 103, 10, 11)
    a(f"""v_xor_b32 v104, 64, v103
    v_add_u32 v104, {8*1280-1024}, v104""")
    a(f"""s_mul_i32 s68, s64, {6*55296}
    s_add_u32 s68, s68, {HP - 4096}
    s_mul_i32 s69, s{sHW}, {16*1280}
    s_lshl_b32 s70, s65, 7
    s_add_u32 s69, s69, s70
    s_mul_i32 s70, s{sHW}, 3072
    s_lshl_b32 s71, s{sHW}, 11
    s_mul_i32 s72, s64, 10
    s_add_u32 s72, s72, s65
    s_lshl_b32 s72, s72, 7
    s_add_u32 s72, s72, {4*M_S4}
    s_cmp_ge_i32 s1, 0
    s_cselect_b32 s69, {OOB//2}, s69""")
    n4_blocks(a, 64, 73, 74)

def p5_wdma(self, st):
    a = self.a
    a(f"s_add_u32 s76, s69, {st*64*1280}\ns_add_u32 m0, s71, {p5_wslot(st)}")
    for i in range(2):
        self.vmem(f"buffer_load_dwordx4 v{103+i}, {srd(SRD_WD)}, s76 offen offset:{1024*i} lds", ('p5w', st))

def p5_sched():
    E = opt('w5e', 18)
    return ([(E - 6, 12)] if E < 13 else []) + [(7, 19), (14, 26)]

def p5_h(self):
    a = self.a
    E = opt('w5e', 18)
    for st in range(E, 20): p5_wdma(self, st)
    if not opt('wpre', 0): self.bar()
    NR = opt('w5r', 7)
    for st in range(20, 20 + NR): p5_wdma(self, st)
    if opt('p5p1', 1): self.bar()
    for step, cover in p5_sched():
        if cover == 26:
            for st in range(20 + NR, 27): p5_wdma(self, st)
        self.wait_vm(('p5w', cover))
        self.bar()
    self.nbar += 1

def p5_waddr(self):
    self.a(f"""s_lshl_b32 s51, s49, 12
    s_add_u32 s51, s51, {P5_SLOTS[0]*8192}
    v_add_u32 v10, s51, v14
    v_xor_b32 v11, 32, v10
    v_xor_b32 v12, 64, v10
    v_xor_b32 v13, 96, v10""")

def p5_c_pre(self):
    a = self.a
    p5_coords(a, 40, 41, 42)
    if not opt('wpre', 0): p5_waddr(self)
    a(f"""    s_mul_i32 s50, s{sWAVE}, 6144
    s_add_u32 s50, s50, {P5_EX}
    v_lshl_add_u32 v8, v1, 4, s50
    s_xor_b32 s50, s{sWAVE}, 2
    s_mul_i32 s50, s50, 6144
    s_add_u32 s50, s50, {P5_EX}
    v_lshl_add_u32 v15, v1, 4, s50""")
    a(f"""v_lshrrev_b32 v7, 1, v3
    v_lshlrev_b32 v4, 8, v7
    v_lshl_add_u32 v4, v2, 4, v4
    v_and_b32 v5, 1, v3
    v_lshl_add_u32 v4, v5, 3, v4
    s_lshl_b32 s55, s40, 1
    s_add_u32 s55, s55, s48
    s_mul_i32 s55, s55, 3
    s_mul_i32 s50, s55, 20480
    s_lshl_b32 s52, s41, 1
    s_add_u32 s52, s52, s49
    s_lshl_b32 s53, s52, 10
    s_add_u32 s51, s50, s53
    s_add_u32 s51, s51, {HH}""")
    a(f"""v_mul_u32_u24 v9, 1280, v2
    v_lshl_add_u32 v9, v5, 5, v9
    v_lshl_add_u32 v9, v7, 4, v9
    s_lshl_b32 s54, s52, 6
    s_add_u32 s53, s50, s54
    v_add_u32 v9, s53, v9""")
    for mu in range(3):
        a(f"""s_add_u32 s56, s55, {mu}
        s_cmp_ge_u32 s56, 128
        s_cselect_b32 s56, {OOB//2}, {55296*mu if mu else 0}
        v_lshl_add_u32 v{5+mu}, v1, 4, s56""".replace(f"s_cselect_b32 s56, {OOB//2}, {55296*mu}", f"s_mov_b32 s57, {55296*mu}\n        s_cselect_b32 s56, {OOB//2}, s57"))
    a(f"""s_mul_i32 s56, s55, 55296
    s_lshl_b32 s57, s49, 10
    s_add_u32 s56, s56, s57
    s_add_u32 s56, s56, {HP}
    s_mul_i32 s57, s40, 10
    s_add_u32 s57, s57, s41
    s_lshl_b32 s57, s57, 7
    s_add_u32 s57, s57, {4*M_S4}
    s_nop 0""")
    n4_blocks(a, 40, 58, 59)

def p5_c(self):
    a = self.a
    self.vm = VM()
    ACC, WR, AR, HR = 16, 64, 176, 236
    NW, NA = 7, 5
    lg = LG(a)
    win = [P5_SLOTS[0]]
    def wreads(st):
        sl = P5_SLOTS[st % P5_RW]
        out = []
        if not (0 <= sl - win[0] <= 6):
            d = (sl - win[0]) * 8192
            out.append(("\n".join(f"v_add_u32 v{10+i}, {d & 0xffffffff}, v{10+i}" for i in range(4)), 'valu'))
            win[0] = sl
        wb = WR + 16 * (st % NW)
        out += [(f"ds_read_b64_tr_b16 {vr(wb+4*i+2*t,2)}, v{10+i} offset:{8192*(sl-win[0])+512*t}", ('W', st)) for i in range(4) for t in range(2)]
        return out
    def emit(op):
        if op[1] == 'valu': a(op[0])
        else: lg.op(*op)
    def aload(st, mu):
        self.vmem(f"buffer_load_dwordx4 {vr(AR+12*(st%NA)+4*mu)}, v{5+mu}, {WS}, s56 offen offset:{2048*(st&1)} sc1", ('A', st))
        if mu == 2 and st & 1: a("s_add_u32 s56, s56, 4096")
    for mu in range(3):
        for nu in range(2):
            a(f"buffer_load_dwordx2 {vr(HR+4*mu+2*nu,2)}, v4, {WS}, s51 offen offset:{512*nu} sc1")
        if mu < 2: a("s_add_u32 s51, s51, 20480")
    if opt('wpre', 0):
        for st in range(NW): lg.pos[('W', st)] = 0
    else:
        for st in range(NW):
            for op in wreads(st): emit(op)
            if st: lg.need(('W', st - 1))
        lg.drain()
        self.bar()
    if opt('p5p1', 1): self.poll1(1, "s57", "s58", 4, 0)
    else: self.pollw("s57", "s58", 4, AR)
    self.stamp('p5poll')
    NI = opt('ni', 5)
    for st in range(NI):
        for mu in range(3): aload(st, mu)
    for st in range(27):
        if st in [x[0] for x in p5_sched()]: self.bar()
        self.wait_vm(('A', st))
        if st == 0: self.stamp('p5b0')
        lg.need(('W', st))
        nxt = wreads(st - 1 + NW) if st >= 1 and st - 1 + NW < 27 else []
        k = 0; n = 0
        seq = [(mu, i) for mu in range(3) for i in range(4)]
        if st == 26: seq = [x for x in seq if x[1] >= 2] + [x for x in seq if x[1] < 2]
        for mu, i in seq:
                ac = ACC + 16 * mu + 4 * i
                c = "0" if st == 0 else vr(ac)
                a(f"v_mfma_f32_16x16x32_bf16 {vr(ac)}, {vr(WR+16*(st%NW)+4*i)}, {vr(AR+12*(st%NA)+4*mu)}, {c}")
                if st == 0 and n < 3 * (NA - NI): aload(NI + n // 3, n % 3)
                if n < 3 and st >= 1 and st - 1 + NA < 27: aload(st - 1 + NA, n)
                elif k < len(nxt): emit(nxt[k]); k += 1
                if st == 24:
                    a(f"v_lshlrev_b32 v{64+2*n}, 16, v{HR+n}\nv_and_b32 v{65+2*n}, 0xffff0000, v{HR+n}")
                if st == 26 and n >= 6:
                    q = n - 6
                    a(f"ds_write_b128 v8, {vr(ACC+16*(q>>1)+8+4*(q&1))} offset:{1024*q}")
                n += 1
        assert k == len(nxt)
        if st == 23 and opt('otr', 0):
            a(f"""s_mul_i32 s50, s{sWAVE}, 3072
            s_add_u32 s50, s50, 24576
            v_and_b32 v6, 1, v3
            v_lshlrev_b32 v6, 1, v6
            v_lshrrev_b32 v7, 1, v3
            v_add_u32 v6, v6, v7
            v_lshrrev_b32 v7, 2, v2
            v_xor_b32 v6, v6, v7
            v_lshlrev_b32 v6, 4, v6
            v_lshl_add_u32 v6, v2, 6, v6
            v_add_u32 v6, s50, v6
            v_lshl_add_u32 v7, v1, 4, s50
            v_lshrrev_b32 v5, 2, v1
            v_mul_u32_u24 v5, 1280, v5
            v_and_b32 v4, 3, v1
            v_xor_b32 v4, v4, v3
            v_lshl_add_u32 v5, v4, 4, v5
            v_add_u32 v5, s53, v5""")
        if st == 22:
            pass
    self.stamp('p5loop')
    a("s_waitcnt lgkmcnt(0)")
    self.bar()
    for q in range(6): a(f"ds_read_b128 {vr(96+4*q)}, v15 offset:{1024*q}")
    for mu in range(3):
        for h in range(4): a(f"v_pk_add_f32 {vr(64+8*mu+2*h,2)}, {vr(64+8*mu+2*h,2)}, {vr(ACC+16*mu+2*h,2)}")
    for mu in range(3):
        a(f"s_waitcnt lgkmcnt({4-2*mu})")
        for h in range(4): a(f"v_pk_add_f32 {vr(64+8*mu+2*h,2)}, {vr(64+8*mu+2*h,2)}, {vr(96+8*mu+2*h,2)}")
        pk = 128 + 4 * mu
        for h in (0, 2, 1, 3): a(f"v_cvt_pk_bf16_f32 v{pk+h}, v{64+8*mu+2*h}, v{65+8*mu+2*h}")
        a(f"v_permlane16_swap_b32 v{pk}, v{pk+2}\nv_permlane16_swap_b32 v{pk+1}, v{pk+3}")
        if opt('otr', 0): a(f"ds_write_b128 v6, {vr(pk)} offset:{1024*mu}")
        else:
            a(f"buffer_store_dwordx4 {vr(pk)}, v9, {srd(SRD_OUT)}, 0 offen {opt('opol', 'sc1')}")
            if mu < 2: a("v_add_u32 v9, 20480, v9")
    if opt('otr', 0):
        for mu in range(3): a(f"s_waitcnt lgkmcnt({2-mu})\nds_read_b128 {vr(144+4*mu)}, v7 offset:{1024*mu}".replace(f"lgkmcnt({2-mu})", f"lgkmcnt({2})"))
        for mu in range(3):
            a(f"s_waitcnt lgkmcnt({2-mu})")
            a(f"buffer_store_dwordx4 {vr(144+4*mu)}, v5, {srd(SRD_OUT)}, 0 offen {opt('opol', 'sc1')}")
            if mu < 2: a("v_add_u32 v5, 20480, v5")
    self.stamp('end')
```

```python
import sys, math, struct
from asmlib import Asm

NAME = "sequential_preLN__sliding_block__glu_gated_glu__prompt"
S, D, F = 2048, 640, 1728
MB = 0
M_S0, M_S1, M_S2, M_S3, M_S4, M_CS4, M_S1V, M_S2B = range(8)
MEAN1 = 0x10000
RSTD1 = 0x12000
CS1 = 0x14000
CS4 = 0x1C000
ST2 = 0x30000
TS = 0x90000
QKV = 0x100000
OO = 0x900000
HH = 0xC00000
HP = 0x1000000
WS_END = 0x1700000
LDS_BYTES = 163840
OOB = 0x7ffffff0
LOG2E = math.log2(math.e)

sWAVE = 3
SRD_WS, SRD_X, SRD_WQKV, SRD_WO, SRD_WG, SRD_WU, SRD_WD, SRD_OUT, SRD_DBG = [4 + 4 * i for i in range(9)]
def srd(b): return f"s[{b}:{b+3}]"
WS = srd(SRD_WS)
sBOUND = 96
sHW = 97
def vr(b, n=4): return f"v[{b}:{b+n-1}]"
def f32hex(x): return "0x%08x" % struct.unpack('<I', struct.pack('<f', x))[0]

OPT = dict(a.split('=') for a in sys.argv[1:] if '=' in a)
def opt(k, d): return type(d)(OPT.get(k, d))

INITWG = opt('initwg', 230 if opt('p1n', 0) else 5)
KALIGN = 12 if opt('iw', 0) else 8

class VM:
    def __init__(self): self.ops = []
    def add(self, tag): self.ops.append(tag)
    def count_after(self, tag):
        idx = max(i for i, t in enumerate(self.ops) if t == tag)
        return len(self.ops) - 1 - idx
    def clear(self): self.ops = []

class LG:
    def __init__(self, a): self.a = a; self.n = 0; self.pos = {}; self.done = 0
    def op(self, text, tag=None):
        self.a(text); self.n += 1
        if tag is not None: self.pos[tag] = self.n
    def need(self, *tags):
        p = max(self.pos[t] for t in tags)
        if p > self.done:
            c = min(self.n - p, 15)
            self.a(f"s_waitcnt lgkmcnt({c})")
            self.done = self.n - c
    def drain(self):
        if self.done < self.n:
            self.a("s_waitcnt lgkmcnt(0)"); self.done = self.n

class Gen:
    def __init__(self, upto=5, stamps=False):
        self.a = Asm()
        self.vm = VM()
        self.upto = upto
        self.stamps = stamps
        self.tail = []
        self.stamp_names = []
        self.nbar = 0
        self.spend = []
        self.sbase = 80

    def vmem(self, text, tag):
        self.a(text); self.vm.add(tag)
    def wait_vm(self, tag):
        n = self.vm.count_after(tag)
        assert n <= 63, n
        self.a(f"s_waitcnt vmcnt({n})")
    def bar(self):
        self.a("s_barrier"); self.nbar += 1
    def build_srd(self, b, ptr, nbytes):
        self.a(f"s_mov_b32 s{b}, s{ptr}\ns_mov_b32 s{b+1}, s{ptr+1}\ns_mov_b32 s{b+2}, {nbytes}\ns_mov_b32 s{b+3}, 0x20000")
    def stamp(self, name, wave=0):
        if opt('dly', '') == name:
            self.a("s_waitcnt lgkmcnt(0)\ns_memrealtime s[100:101]\ns_waitcnt lgkmcnt(0)\ns_mov_b32 s1, s100")
        if opt('dly', '') and name == 'end':
            if opt('dlyx', -1) >= 0: self.a(f"s_and_b32 s100, s2, 7\ns_cmp_lg_u32 s100, {opt('dlyx', -1)}\ns_cbranch_scc1 L_end")
            self.a("L_dly:\ns_memrealtime s[100:101]\ns_waitcnt lgkmcnt(0)\ns_sub_u32 s100, s100, s1\ns_cmp_lt_u32 s100, 4000\ns_cbranch_scc1 L_dly")
        if not self.stamps or ('lite' in sys.argv and name not in opt('keep', 'start,end').split(',')): return
        a = self.a
        if name in self.stamp_names: i = self.stamp_names.index(name)
        else:
            i = len(self.stamp_names); self.stamp_names.append(name)
        assert i < 64
        L = a.newlabel('Lst')
        a(f"""s_cmp_lg_u32 s{sWAVE}, {wave}
        s_cbranch_scc1 {L}
        s_memrealtime s[100:101]
        v_mov_b32 v255, s2
        v_lshlrev_b32 v255, 9, v255
        v_add_u32 v255, {TS + 8*i}, v255
        s_waitcnt lgkmcnt(0)
        v_mov_b32 v252, s100
        s_memtime s[100:101]
        s_waitcnt lgkmcnt(0)
        v_mov_b32 v253, s100
        s_mov_b64 exec, 1
        buffer_store_dwordx2 v[252:253], v255, {WS}, 0 offen
        s_mov_b64 exec, -1
        {L}:""")

    def sstamp(self, name):
        if not self.stamps or 'lite' in sys.argv: return
        k = len(self.spend); assert k < 16
        self.spend.append(name)
        self.a(f"s_memtime s[100:101]\ns_waitcnt lgkmcnt(0)\ns_mov_b32 s{self.sbase+k}, s100")
    def sdump(self, wave):
        if not self.stamps: return
        a = self.a
        L = a.newlabel('Lsd')
        a(f"""s_cmp_lg_u32 s{sWAVE}, {wave}
        s_cbranch_scc1 {L}
        v_mov_b32 v255, s2
        v_lshlrev_b32 v255, 9, v255
        v_add_u32 v255, {TS}, v255
        v_mov_b32 v252, 0
        s_mov_b64 exec, 1""")
        for k, name in enumerate(self.spend):
            i = len(self.stamp_names); self.stamp_names.append(name); assert i < 64
            a(f"v_mov_b32 v253, s{self.sbase+k}\nbuffer_store_dwordx2 v[252:253], v255, {WS}, 0 offen offset:{8*i}")
        a(f"s_mov_b64 exec, -1\n{L}:")
        self.spend = []

    def wave_sum(self, vs, sdsts):
        for mod in ("quad_perm:[1,0,3,2] row_mask:0xf", "quad_perm:[2,3,0,1] row_mask:0xf", "row_half_mirror row_mask:0xf",
                    "row_mirror row_mask:0xf", "row_bcast:15 row_mask:0xa", "row_bcast:31 row_mask:0xc"):
            for v in vs:
                self.a(f"v_add_f32_dpp v{v}, v{v}, v{v} {mod} bank_mask:0xf")
        for v, s in zip(vs, sdsts):
            self.a(f"v_readlane_b32 s{s}, v{v}, 63")

    def poll(self, soff, expect, va, vt, srdb=SRD_WS):
        a = self.a
        L = a.newlabel('Lpoll'); Ld = L + 'd'
        a(f"""v_mov_b32 v{va}, 0
        {L}:
        buffer_load_dword v{vt}, v{va}, {srd(srdb)}, {soff} offen sc1
        s_waitcnt vmcnt(0)
        v_cmp_ne_u32 vcc, {expect}, v{vt}
        s_cbranch_vccz {Ld}
        s_sleep 1
        s_sub_u32 s{sBOUND}, s{sBOUND}, 1
        s_cbranch_scc0 {L}
        s_mov_b32 s{sBOUND}, 0
        {Ld}:""")
        self.vm.clear()

    def pollw(self, soff, expect, va, vt, depth=1, nap=0):
        a = self.a
        L = a.newlabel('Lpoll'); Ld = L + 'd'
        a(f"v_mov_b32 v{va}, 0\ns_mov_b64 exec, 1")
        pl = lambda k: a(f"v_mov_b32 v{vt+k}, 0\nbuffer_atomic_add v{vt+k}, v{va}, {WS}, {soff} offen sc0 sc1")
        for k in range(depth - 1):
            pl(k); a("s_sleep 3")
        a(f"{L}:")
        for k in range(depth):
            pl((k + depth - 1) % depth)
            a(f"s_waitcnt vmcnt({depth-1})\nv_cmp_ne_u32 vcc, {expect}, v{vt+k}\ns_cbranch_vccz {Ld}")
        if nap: a(f"s_sleep {nap}")
        a(f"""s_sub_u32 s{sBOUND}, s{sBOUND}, 1
        s_cbranch_scc0 {L}
        s_mov_b32 s{sBOUND}, 0
        {Ld}:
        s_mov_b64 exec, -1""")

    def poll1(self, wave, soff, expect, va, vt):
        a = self.a
        L = a.newlabel('Lp1')
        a(f"s_cmp_lg_u32 s{sWAVE}, {wave}\ns_cbranch_scc1 {L}")
        self.pollw(soff, expect, va, 248, depth=opt('pd', 3))
        a(f"{L}:")
        self.bar()

    def signal(self, vline, dword, vt, mask='vcc'):
        self.a(f"""v_lshlrev_b32 v{vline}, 7, v{vline}
        v_mov_b32 v{vt}, 1
        s_mov_b64 exec, {mask}
        buffer_atomic_add v{vt}, v{vline}, {WS}, 0 offen offset:{4*dword} sc1
        s_mov_b64 exec, -1""")

    def w128_dma_voff(self, pitch, vE, vt, vt2):
        self.a(f"""v_lshrrev_b32 v{vt}, 3, v1
        v_mul_u32_u24 v{vE}, {pitch}, v{vt}
        v_and_b32 v{vt}, 2, v{vt}
        v_and_b32 v{vt2}, 7, v1
        v_xor_b32 v{vt}, v{vt}, v{vt2}
        v_lshl_add_u32 v{vE}, v{vt}, 4, v{vE}""")

    def colsum_issue(self, srdb, pitch, s_goff, s_lds, vE, vO, vt, n=20, step=8):
        a = self.a
        self.w128_dma_voff(pitch, vE, vt, vO)
        a(f"v_xor_b32 v{vO}, 64, v{vE}")
        for i in range(n):
            a(f"s_add_u32 m0, s{s_lds}, {1024*i}")
            self.vmem(f"buffer_load_dwordx4 v{vO if i & 1 else vE}, {srdb}, s{s_goff} offen lds", 'cs')
            if i < n - 1: a(f"s_add_u32 s{s_goff}, s{s_goff}, {step*pitch}")

    def w128_read_addr(self, vb, vt):
        self.a(f"""v_lshrrev_b32 v{vt}, 4, v1
        v_lshlrev_b32 v{vb}, 10, v{vt}
        v_bfe_u32 v{vt}, v1, 2, 2
        v_lshl_add_u32 v{vb}, v{vt}, 7, v{vb}
        v_and_b32 v{vt}, 3, v1
        v_lshl_add_u32 v{vb}, v{vt}, 3, v{vb}
        v_bfe_u32 v{vt}, v1, 3, 2
        v_lshl_add_u32 v{vb}, v{vt}, 5, v{vb}""")

    def colsum_finish(self, s_lds, s_out, vbase, ks=5):
        a = self.a
        vb = vbase; vones = vbase + 4; vacc = vbase + 8; vf = vbase + 24
        self.w128_read_addr(vb, vones)
        a(f"v_add_u32 v{vb}, s{s_lds}, v{vb}")
        for nu in range(1, 4): a(f"v_xor_b32 v{vb+nu}, {32*nu}, v{vb}")
        for i in range(4): a(f"v_mov_b32 v{vones+i}, 0x3f803f80")
        for s in range(ks):
            fb = vf + 16 * (s & 1)
            for nu in range(4):
                for t in range(2):
                    a(f"ds_read_b64_tr_b16 {vr(fb+4*nu+2*t, 2)}, v{vb+nu} offset:{(32*s+4*t)*128}")
            a("s_waitcnt lgkmcnt(0)")
            for nu in range(4):
                c = "0" if s == 0 else vr(vacc + 4 * nu)
                a(f"v_mfma_f32_16x16x32_bf16 {vr(vacc+4*nu)}, {vr(vones)}, {vr(fb+4*nu)}, {c}")
        a(f"""v_cmp_lt_u32 vcc, 15, v1
        v_cndmask_b32 v{vacc}, v{vacc}, v{vacc+4}, vcc
        v_cmp_lt_u32 vcc, 31, v1
        v_cndmask_b32 v{vacc}, v{vacc}, v{vacc+8}, vcc
        v_cmp_lt_u32 vcc, 47, v1
        v_cndmask_b32 v{vacc}, v{vacc}, v{vacc+12}, vcc
        v_lshlrev_b32 v{vb}, 2, v1""")
        self.vmem(f"buffer_store_dword v{vacc}, v{vb}, {WS}, s{s_out} offen sc1", 'csst')

    def row_stats(self, nrows):
        a = self.a
        a(f"""v_lshlrev_b32 v8, 4, v1
        v_lshlrev_b32 v9, 2, v1
        s_mul_i32 s45, s44, 1280""")
        for r in range(nrows):
            self.vmem(f"buffer_load_dwordx4 {vr(12+8*r)}, v8, {srd(SRD_X)}, s45 offen offset:{1280*r} {opt('xpol', '')}", 'stat')
            self.vmem(f"buffer_load_dword v{16+8*r}, v9, {srd(SRD_X)}, s45 offen offset:{1280*r+1024} {opt('xpol', '')}", 'stat')

    def row_stats_finish(self, nrows):
        a = self.a
        self.wait_vm('stat')
        E = lambda r, i: 32 + 12 * r + i
        for r in range(nrows):
            for i in range(5):
                a(f"v_lshlrev_b32 v{E(r,2*i)}, 16, v{12+8*r+i}\nv_and_b32 v{E(r,2*i+1)}, 0xffff0000, v{12+8*r+i}")
        acc = [12 + 8 * r for r in range(nrows)]
        for r in range(nrows): a(f"v_add_f32 v{acc[r]}, v{E(r,0)}, v{E(r,1)}")
        for i in range(2, 10):
            for r in range(nrows): a(f"v_add_f32 v{acc[r]}, v{acc[r]}, v{E(r,i)}")
        ss = [46 + r for r in range(nrows)]
        self.wave_sum(acc, ss)
        a(f"v_mov_b32 v10, {f32hex(1.0/D)}")
        for r in range(nrows): a(f"v_mul_f32 v{acc[r]+1}, s{ss[r]}, v10")
        for i in range(10):
            for r in range(nrows): a(f"v_sub_f32 v{E(r,i)}, v{E(r,i)}, v{acc[r]+1}")
        for r in range(nrows): a(f"v_mul_f32 v{acc[r]}, v{E(r,0)}, v{E(r,0)}")
        for i in range(1, 10):
            for r in range(nrows): a(f"v_fmac_f32 v{acc[r]}, v{E(r,i)}, v{E(r,i)}")
        self.wave_sum(acc, ss)
        for r in range(nrows):
            a(f"v_mov_b32 v{acc[r]+2}, {f32hex(1e-5)}\nv_fmac_f32 v{acc[r]+2}, s{ss[r]}, v10\nv_rsq_f32 v{acc[r]+2}, v{acc[r]+2}")
        a(f"""s_lshl_b32 s45, s44, 2
        s_add_u32 s45, s45, {MEAN1}
        s_add_u32 s46, s45, {RSTD1-MEAN1}
        v_mov_b32 v10, 0
        s_mov_b64 exec, 1""")
        for r in range(nrows):
            self.vmem(f"buffer_store_dword v{acc[r]+1}, v10, {WS}, s45 offen offset:{4*r} sc1", 'statst')
            self.vmem(f"buffer_store_dword v{acc[r]+2}, v10, {WS}, s46 offen offset:{4*r} sc1", 'statst')
        a("s_mov_b64 exec, -1")

    def sig_rowstats(self):
        a = self.a
        a("""s_lshr_b32 s53, s55, 4
        s_mul_i32 s53, s53, 15
        v_add_u32 v10, s53, v1
        v_cmp_gt_u32 vcc, 15, v1""")
        self.signal(10, M_S0, 11)

    def p0(self):
        a = self.a
        a(f"""s_cmp_ge_u32 s2, 256
        s_cbranch_scc1 L_end
        s_load_dwordx16 s[64:79], s[0:1], 0
        s_load_dwordx4 s[80:83], s[0:1], 64
        s_cmp_ge_u32 s2, 16
        s_cbranch_scc1 L_nocode
        s_cmp_eq_u32 s2, {INITWG}
        s_cbranch_scc1 L_nocode
        s_getpc_b64 s[40:41]
        L_pc:
        s_sub_u32 s40, s40, L_pc-{NAME}_kernel
        s_subb_u32 s41, s41, 0
        s_and_b32 s42, s2, 8
        s_lshl_b32 s42, s42, 5
        v_and_b32 v2, 256, v0
        v_cmp_ne_u32 vcc, s42, v2
        s_cmp_eq_u32 s2, {INITWG + 8}
        s_cselect_b64 vcc, -1, vcc
        s_cbranch_vccz L_nocode
        v_lshlrev_b32 v2, 7, v0
        v_min_u32 v2, L_code_end-{NAME}_kernel-4, v2
        global_load_dword v250, v2, s[40:41]
        L_nocode:
        v_and_b32 v1, 63, v0
        v_lshrrev_b32 v2, 6, v0
        v_readfirstlane_b32 s{sWAVE}, v2
        v_mov_b32 v247, 0
        v_mov_b32 v78, 0
        s_mov_b32 s98, 0
        s_mov_b32 s{sBOUND}, 0x100000""")
        a(f"""s_lshr_b32 s40, s2, 3
        s_sub_u32 s40, s40, 2
        s_and_b32 s41, s2, 1
        s_mul_i32 s41, s41, 30
        s_add_u32 s40, s40, s41
        s_lshr_b32 s41, s40, 2
        s_and_b32 s40, s40, 3
        s_add_u32 s43, s40, s41
        s_mul_i32 s42, s41, 21846
        s_lshr_b32 s42, s42, 16
        s_mul_i32 s41, s41, 5
        s_mul_i32 s44, s42, 14
        s_sub_u32 s41, s41, s44
        s_and_b32 s42, s2, 6
        s_lshl_b32 s42, s42, 1
        s_add_u32 s40, s40, s42
        s_and_b32 s{sHW}, s{sWAVE}, 3""")
        if opt('map1', 0):
            a("""s_lshr_b32 s41, s2, 3
            s_sub_u32 s41, s41, 2
            s_and_b32 s40, s2, 7
            s_lshl_b32 s40, s40, 1
            s_and_b32 s42, s41, 1
            s_add_u32 s40, s40, s42
            s_lshr_b32 s41, s41, 1
            s_add_u32 s43, s40, s41""")
        if opt('stloc', 0): a("s_and_b32 s55, s2, 7\ns_lshl_b32 s55, s55, 5\ns_lshr_b32 s42, s2, 3\ns_add_u32 s55, s55, s42")
        else: a("s_mov_b32 s55, s2")
        a("""v_lshrrev_b32 v10, 3, v1
        v_mul_u32_u24 v2, 1280, v10
        v_lshrrev_b32 v10, 4, v1
        v_and_b32 v11, 7, v1
        v_xor_b32 v11, v11, v10
        v_lshl_add_u32 v2, v11, 4, v2
        v_xor_b32 v3, 64, v2
        v_add_u32 v3, 9216, v3
        v_add_u32 v4, 18432, v2
        v_add_u32 v5, 18432, v3
        v_mul_u32_u24 v6, 3840, v10
        v_lshlrev_b32 v10, 1, v10
        v_and_b32 v11, 15, v1
        v_xor_b32 v11, v11, v10
        v_lshl_add_u32 v6, v11, 4, v6
        v_add_u32 v7, 14336, v6
        v_xor_b32 v8, 128, v6
        v_add_u32 v8, 28672, v8
        v_add_u32 v9, 14336, v8""")
        a(f"""s_lshl_b32 s44, s40, 2
        s_add_u32 s44, s44, s{sHW}
        s_mul_i32 s44, s44, {32*1280}
        s_mul_i32 s45, s{sHW}, {16*3840}
        s_lshl_b32 s46, s41, 8
        s_add_u32 s45, s45, s46
        s_and_b32 s46, s43, 3
        {self.rot1}
        s_lshl_b32 s47, s{sHW}, 12""")
        a("s_waitcnt lgkmcnt(0)")
        self.build_srd(SRD_X, 64, S * D * 2)
        self.build_srd(SRD_WQKV, 66, D * 3 * D * 2)
        if self.stamps or opt('dly', ''):
            self.build_srd(SRD_WS, 82, WS_END)
            self.stamp('start')
        a(f"s_cmp_eq_u32 s2, {INITWG}\ns_cbranch_scc1 L_init\nL_init_back:")
        def wtouch():
            a(f"""s_lshl_b32 s56, s2, 2
            s_add_u32 s56, s56, s{sWAVE}
            s_mul_i32 s56, s56, {17*128}
            s_add_u32 s56, s56, {64*3840}
            v_lshlrev_b32 v10, 7, v1
            s_mov_b64 exec, 0x1ffff""")
            self.touch(srd(SRD_WQKV), 10, "s56", 3)
            a("s_mov_b64 exec, -1")
        a(f"s_cmp_ge_u32 s{sWAVE}, 4\ns_cbranch_scc1 L_w47")
        a(f"s_lshl_b32 s44, s55, 2\ns_add_u32 s44, s44, s{sWAVE}\ns_lshl_b32 s44, s44, 1")
        if not opt('searly', 1): a("s_cmp_ge_u32 s2, 16\ns_cbranch_scc1 L_p1_c")
        if opt('wt0', 0) == 2: wtouch()
        self.row_stats(2)
        if opt('wt0', 0) == 1: wtouch()
        a(f"""s_cmp_lt_u32 s2, 16
        s_cbranch_scc1 L_spare
        s_branch L_p1_c
        L_w47:
        s_cmp_lt_u32 s2, 16
        s_cbranch_scc1 L_spare""")

    def more_srds(self):
        self.build_srd(SRD_WS, 82, WS_END)
        self.build_srd(SRD_DBG, 80, 256)
        self.build_srd(SRD_WO, 68, D * D * 2)
        self.build_srd(SRD_WG, 72, D * F * 2)
        self.build_srd(SRD_WU, 74, D * F * 2)
        self.build_srd(SRD_WD, 76, F * D * 2)
        self.build_srd(SRD_OUT, 78, S * D * 2)
        self.a('s_mov_b32 s0, 0')
        if opt('al5', 0): self.a("s_bitcmp1_b32 s2, 1\ns_cselect_b32 s1, 25, 30\ns_lshr_b32 s84, s2, 3\ns_sub_u32 s1, s84, s1")
        else: self.a("s_sub_u32 s1, s2, 220")

    def code_touch(self, tag, sidx, n):
        a = self.a
        a(f"""s_getpc_b64 s[42:43]
        L_pc{tag}:
        s_sub_u32 s42, s42, L_pc{tag}-{NAME}_kernel
        s_subb_u32 s43, s43, 0
        s_lshl_b32 s{sidx}, s{sidx}, 13
        v_lshl_add_u32 v16, v1, 7, s{sidx}""")
        for i in range(n):
            a(f"v_min_u32 v17, L_code_end-{NAME}_kernel-4, v16\nglobal_load_dword v251, v17, s[42:43]\nv_add_u32 v16, 8192, v16")

    def touch(self, srdb, voff, soff, n):
        self.a(f"buffer_load_dword v{248 + n % 4}, v{voff}, {srdb}, {soff} offen")

    def spare_code(self):
        a = self.a
        self.vm = VM()
        a("L_spare:")
        for i in range(4): self.vm.add('stat')
        if opt('wt0', 0) == 1: self.vm.add('wt')
        a(f"""v_lshlrev_b32 v2, 7, v1
        s_lshl_b32 s50, s{sWAVE}, 4
        s_add_u32 s50, s50, s2
        s_lshl_b32 s50, s50, 13
        s_add_u32 s51, s50, {256*3840}""")
        self.more_srds()
        CT = opt('cstail', 0)
        if CT:
            a(f"""s_cmp_gt_u32 s2, {INITWG}
            s_subb_u32 s52, s2, 0
            s_lshl_b32 s53, s52, 1
            s_and_b32 s54, s{sWAVE}, 1
            s_add_u32 s53, s53, s54
            s_lshr_b32 s54, s{sWAVE}, 1
            s_mul_i32 s58, s54, {8*3840}
            s_lshl_b32 s56, s53, 7
            s_add_u32 s58, s58, s56
            s_add_u32 s58, s58, {0 if CT == 2 else 256*3840}
            s_cmp_eq_u32 s2, {INITWG}
            s_cselect_b32 s58, {OOB//2}, s58
            s_mul_i32 s56, s{sWAVE}, 20480""")
            self.colsum_issue(srd(SRD_WQKV), 3840, 58, 56, 3, 4, 5, n=(20 if CT == 2 else 12), step=32)
        elif opt('wtail', 1):
            for n in range(2):
                self.touch(srd(SRD_WQKV), 2, "s51", n); self.vm.add('t')
                if n < 1: a(f"s_add_u32 s51, s51, {128*8192}")
        a(f"s_cmp_ge_u32 s{sWAVE}, 4\ns_cbranch_scc1 L_spare3")
        self.row_stats_finish(2)
        a("L_spare3:")
        if CT:
            a(f"""s_mul_i32 s58, s54, {1920*4}
            s_lshl_b32 s57, s53, 8
            s_add_u32 s58, s58, s57
            s_add_u32 s58, s58, {CS1}
            s_cmp_eq_u32 s2, {INITWG}
            s_cselect_b32 s58, {OOB//2}, s58
            s_waitcnt vmcnt(0)""")
            self.colsum_finish(56, 58, 64, ks=(5 if CT == 2 else 3))
        self.poll(0, 1, 10, 11, SRD_DBG)
        a(f"""s_barrier
        s_cmp_lg_u32 s{sWAVE}, 0
        s_cbranch_scc1 L_spare4""")
        self.sig_rowstats()
        if CT:
            a(f"""s_cmp_eq_u32 s2, {INITWG}
            s_cbranch_scc1 L_spare4
            v_mul_u32_u24 v10, 15, v1
            v_add_u32 v10, s52, v10""")
            self.signal(10, M_S0, 11, mask='0xffff')
        a("L_spare4:")
        if opt('wgw', 1):
            a(f"s_and_b32 s51, s50, {64*8192-1}\ns_cmp_ge_u32 s{sWAVE}, 4\ns_cbranch_scc1 L_spare5")
            self.touch(srd(SRD_WG), 2, "s51", 1)
            a("s_branch L_spare6\nL_spare5:")
            self.touch(srd(SRD_WU), 2, "s51", 1)
            a("L_spare6:")
        if opt('ct1', 0):
            a(f"s_waitcnt vmcnt(0)\ns_mov_b32 s41, s{sWAVE}")
            self.code_touch('a', 41, 1)
        a("s_mov_b64 s[62:63], 0")
        self.stamp('spdone')
        a("s_branch L_p1_join")
        a("L_init:")
        self.build_srd(SRD_WS, 82, WS_END)
        self.build_srd(SRD_DBG, 80, 256)
        a(f"""v_mov_b32 v4, 0
        v_mov_b32 v5, 0
        v_mov_b32 v6, 0
        v_mov_b32 v7, 0
        v_lshlrev_b32 v8, 4, v1
        s_lshl_b32 s40, s{sWAVE}, 12""")
        for i in range(4):
            a(f"buffer_store_dwordx4 v[4:7], v8, {WS}, s40 offen offset:{1024*i} sc1")
        a(f"""s_waitcnt vmcnt(0)
        s_barrier
        s_cmp_lg_u32 s{sWAVE}, 0
        s_cbranch_scc1 L_init_back
        v_mov_b32 v5, 1
        s_mov_b64 exec, 1
        buffer_store_dword v5, v4, {srd(SRD_DBG)}, 0 offen sc1
        s_mov_b64 exec, -1
        s_branch L_init_back""")

    def finish(self, dword, name, mid=None):
        a = self.a
        a("s_waitcnt vmcnt(0)")
        if mid: a(mid + ":")
        self.bar()
        self.stamp(name)
        L = a.newlabel('Lfin')
        a(f"""s_cmp_eq_u64 s[62:63], 0
        s_cbranch_scc1 {L}
        v_mov_b32 v246, 1
        s_mov_b64 exec, s[62:63]
        buffer_atomic_add v246, v247, {WS}, 0 offen offset:{4*dword} sc1
        s_mov_b64 exec, -1
        {L}:""")
        self.vm.clear()

    def sigprep(self, wave):
        self.a(f"""v_lshlrev_b32 v247, 7, v247
        s_cmp_eq_u32 s{sWAVE}, {wave}
        s_cselect_b64 s[62:63], vcc, 0""")

    P1_R, P1_LA, P1_BLK = 4, opt('la1', 2), 4
    rot1 = '' if opt('rot1', 1) else 's_mov_b32 s46, 0'
    P1_TAB = 131072
    CS4_LDS = 131072 + 2048

    def p1(self):
        a = self.a
        R, LA = self.P1_R, self.P1_LA
        T = self.P1_TAB
        def waddr(dst, sblk, vt):
            a(f"""v_lshrrev_b32 v{vt}, 4, v1
            v_lshlrev_b32 v{dst}, 11, v{vt}
            v_bfe_u32 v{vt}, v1, 2, 2
            v_lshl_add_u32 v{dst}, v{vt}, 8, v{dst}
            v_and_b32 v{vt}, 3, v1
            v_lshl_add_u32 v{dst}, v{vt}, 3, v{dst}
            v_bfe_u32 v{vt}, v1, 2, 3
            v_xor_b32 v{vt}, s{sblk}, v{vt}
            v_lshl_add_u32 v{dst}, v{vt}, 5, v{dst}
            v_add_u32 v{dst}, 16384, v{dst}""")
        self.vm = VM(); self.nbar = 0
        DG = opt('diag', 0)
        if DG:
            tabs = []
            for k in range(4):
                o = sorted(range(10), key=lambda x: x - (DG + 0.5 if x % 4 == k else 0))
                tabs.append(sum(v << (4 * i) for i, v in enumerate(o)))
            a(f"s_and_b32 s46, s43, 3\ns_mov_b32 s60, {tabs[0] & 0xffffffff}\ns_mov_b32 s61, {tabs[0] >> 32}")
            for k in range(1, 4):
                a(f"s_cmp_eq_u32 s46, {k}\ns_cselect_b32 s60, {tabs[k] & 0xffffffff}, s60\ns_cselect_b32 s61, {tabs[k] >> 32}, s61")
        def dma(st):
            slot = st % R
            if DG: a(f"s_bfe_u32 s46, s{60 + (st >> 3)}, {(4 << 16) | (4 * (st & 7))}")
            a(f"""s_lshl_b32 s48, s46, 7
            s_add_u32 s48, s48, s44
            s_mul_i32 s49, s46, {64*3840}
            s_add_u32 s49, s49, s45
            s_add_u32 m0, s47, {slot*32768}""")
            for i in range(4):
                self.vmem(f"buffer_load_dwordx4 v{2+i}, {srd(SRD_X)}, s48 offen offset:{1024*i} {opt('xpol', '')} lds", ('p1', st))
            a(f"s_add_u32 m0, s47, {slot*32768+16384}")
            for i in range(4):
                self.vmem(f"buffer_load_dwordx4 v{6+i}, {srd(SRD_WQKV)}, s49 offen offset:{1024*i} lds", ('p1', st))
            B = self.P1_BLK
            if st + 1 < B: a(f"s_add_u32 s46, s46, 1\ns_and_b32 s46, s46, {B-1}")
            elif opt('rot1b', 0) and st + 1 < 8: a(f"s_add_u32 s46, s46, 1\ns_and_b32 s46, s46, 3\ns_or_b32 s46, s46, 4")
            elif opt('rot1b', 0) and st < 9: a(f"s_add_u32 s46, s46, 1\ns_and_b32 s46, s46, 1\ns_or_b32 s46, s46, 8")
            elif st < 9: a(f"s_mov_b32 s46, {st+1}")
        dma(0)
        self.more_srds()
        dma(1)
        a(f"""s_mul_i32 s52, s40, 15
        s_add_u32 s52, s52, s41
        s_lshl_b32 s52, s52, 7
        v_mov_b32 v12, 0""")
        for st in range(10):
            self.wait_vm(('p1', st))
            if st == 8:
                self.wait_vm('mb')
                EX = 17 if opt('cstail', 0) else 16
                a(f"v_cmp_ne_u32 vcc, {EX}, v14\ns_cbranch_vccz L_p1_s0ok")
                keep = list(self.vm.ops)
                self.poll("s52", EX, 10, 11)
                self.vm.ops = keep + ['t'] * 4
                a("L_p1_s0ok:")
                a(f"""v_lshlrev_b32 v10, 2, v1
                s_and_b32 s48, s{sHW}, 1
                s_cmp_ge_u32 s{sHW}, 2
                s_cselect_b32 s49, s41, s40
                s_mov_b32 s50, {MEAN1}
                s_cselect_b32 s50, {CS1}, s50
                s_mov_b32 s51, {RSTD1-MEAN1}
                s_cselect_b32 s51, {1920*4}, s51
                s_lshl_b32 s49, s49, 1
                s_add_u32 s49, s49, s48
                s_lshl_b32 s49, s49, 8
                s_add_u32 s49, s49, s50""")
                for q in range(4):
                    a(f"buffer_load_dword v{16+q}, v10, {WS}, s49 offen sc1\ns_add_u32 s49, s49, s51")
            self.bar()
            self.sstamp(f'hb{st}')
            if st == opt('hw1', 8):
                a(f"""v_lshlrev_b32 v15, 7, v1
                s_cmp_eq_u32 s{sHW}, 0
                s_cselect_b32 s56, s{SRD_WG}, s{SRD_WO}
                s_cselect_b32 s57, s{SRD_WG+1}, s{SRD_WO+1}
                s_cselect_b32 s58, s{SRD_WG+2}, s{SRD_WO+2}
                s_cselect_b32 s53, 48, -156
                s_mov_b32 s59, 0x20000
                s_add_u32 s53, s2, s53
                s_and_b32 s53, s53, 511
                s_lshl_b32 s53, s53, 13
                s_cmp_ge_u32 s{sHW}, 2
                s_cselect_b32 s53, {OOB//2}, s53""")
                self.touch("s[56:59]", 15, "s53", 3)
                self.vm.add('touch')
            if st == 1:
                self.vmem(f"buffer_load_dword v13, v12, {srd(SRD_DBG)}, 0 offen sc1", 'rdy')
            if st == max(3, opt('sw', 3)):
                L = a.newlabel('Ls0')
                self.wait_vm('rdy')
                a(f"v_cmp_ne_u32 vcc, 1, v13\ns_cbranch_vccz {L}r")
                keep = list(self.vm.ops)
                self.poll(0, 1, 10, 11, SRD_DBG)
                self.vm.ops = keep
                a(f"{L}r:")
                a(f"""s_lshr_b32 s53, s55, 4
                s_mul_i32 s53, s53, 15
                s_lshl_b32 s54, s{sHW}, 2
                s_add_u32 s53, s53, s54
                v_add_u32 v10, s53, v1
                s_cmp_eq_u32 s{sHW}, 3
                s_cselect_b64 vcc, 7, 15""")
                self.signal(10, M_S0, 11)
                self.vm.add('sig')
            if st == 6:
                self.vmem(f"buffer_load_dword v14, v12, {WS}, s52 offen sc1", 'mb')
            if LA == 3 and st == opt('la1s', 1): dma(st + 2)
            if LA == 3 and st < opt('la1s', 1): dma(st + 2)
            elif st + LA < 10: dma(st + LA)
        c = (20 ** -0.5) * LOG2E
        a(f"""s_cmp_lt_u32 s41, 5
        s_cselect_b32 s49, {f32hex(c)}, 1.0
        s_lshl_b32 s50, s48, 9
        s_add_u32 s50, s50, {T}
        v_lshl_add_u32 v11, v1, 3, s50
        s_lshl_b32 s50, s48, 8
        s_add_u32 s50, s50, {T+1536}
        v_add_u32 v10, s50, v10
        s_waitcnt vmcnt({self.vm.count_after('t')})
        s_cmp_ge_u32 s{sHW}, 2
        s_cbranch_scc1 L_p1_tcs
        v_mul_f32 v17, s49, v17
        ds_write_b64 v11, v[16:17]
        s_branch L_p1_tdone
        L_p1_tcs:
        v_add_f32 v16, v16, v17
        v_add_f32 v18, v18, v19
        v_add_f32 v16, v16, v18
        ds_write_b32 v10, v16
        L_p1_tdone:
        s_waitcnt lgkmcnt(0)""")
        self.bar()
        self.sdump(5)
        if opt('iw', 0):
            a(f"""s_mov_b64 exec, 0
            s_cmp_eq_u32 s{sHW}, 0
            s_cbranch_scc1 L_iw_0
            s_cmp_eq_u32 s{sHW}, 1
            s_cbranch_scc1 L_iw_1
            s_cmp_eq_u32 s{sHW}, 2
            s_cbranch_scc1 L_iw_2
            s_branch L_iw_3
            L_iw_end:
            s_mov_b64 exec, -1""")
        if opt('vpoll', 0): a("s_cmp_ge_u32 s41, 10\ns_cselect_b32 s0, 2, 0")
        a("s_mov_b64 s[62:63], 0\ns_branch L_p1_join")
        nb_h = self.nbar
        self.vm = VM(); self.nbar = 0
        a('L_p1_c:')
        if opt('searly', 1):
            for i in range(4): self.vm.add('stat')
            if opt('wt0', 0) == 1: self.vm.add('wt')
        else: self.row_stats(2)
        self.more_srds()
        XA, WA = 64, 68
        FR = 80
        ACC = 144
        a(f"""s_and_b32 s48, s{sWAVE}, 1
        s_lshr_b32 s49, s{sWAVE}, 1
        v_and_b32 v2, 15, v1
        v_lshrrev_b32 v3, 4, v1
        v_lshlrev_b32 v4, 7, v2
        v_bfe_u32 v5, v1, 1, 3
        v_xor_b32 v5, v5, v3
        v_lshl_add_u32 v4, v5, 4, v4
        s_lshl_b32 s50, s48, 13
        v_add_u32 v{XA}, s50, v4
        v_xor_b32 v{XA+1}, 64, v{XA}
        s_lshl_b32 s50, s49, 1
        s_add_u32 s50, s50, s48
        s_lshl_b32 s50, s50, 1""")
        waddr(WA, 50, 5)
        for nu in range(1, 4): a(f"v_xor_b32 v{WA+nu}, {32*nu}, v{WA}")
        a(f"""s_lshl_b32 s50, s48, 9
        s_add_u32 s50, s50, {T}
        v_lshl_add_u32 v76, v2, 3, s50
        s_lshl_b32 s50, s{sWAVE}, 7
        s_add_u32 s50, s50, {T+1024}
        v_lshl_add_u32 v77, v3, 4, s50
        v_xor_b32 v79, 128, v77
        v_lshrrev_b32 v78, 5, v1
        v_lshlrev_b32 v78, 15, v78
        v_and_b32 v7, 31, v1
        v_lshl_add_u32 v78, v7, 4, v78""")
        a(f"""s_cmp_ge_u32 s41, 10
        s_cselect_b32 s50, 10, 5
        s_cmp_ge_u32 s41, 5
        s_cselect_b32 s50, s50, 0
        s_sub_u32 s51, s41, s50
        s_lshl_b32 s51, s51, 4
        v_mul_u32_u24 v4, 5, v2
        v_add_u32 v4, 4, v4
        v_subrev_u32 v4, s51, v4
        s_sub_u32 s52, 16, s40
        s_min_u32 s52, s52, 3
        s_cmp_eq_u32 s50, 0
        s_cselect_b32 s52, 1, s52
        v_cmp_gt_u32 vcc, 20, v4
        v_cmp_gt_u32 s[50:51], s52, v3
        s_and_b64 vcc, vcc, s[50:51]
        s_lshl_b32 s52, s40, 4
        v_add_u32 v247, s52, v1""")
        self.sigprep(0)
        if opt('vdef', 1):
            a(f"""s_cmp_ge_u32 s41, 10
            s_cselect_b32 s50, {4*(M_S1V-M_S1)}, 0
            v_add_u32 v247, s50, v247
            s_cselect_b32 s50, {OOB//2}, 0
            v_add_u32 v66, s50, v78""")
        else: a("v_mov_b32 v66, v78")
        a(f"""s_lshl_b32 s50, s41, 1
        s_add_u32 s50, s50, s49
        s_lshl_b32 s50, s50, 18
        s_lshl_b32 s51, s40, 1
        s_add_u32 s51, s51, s48
        s_lshl_b32 s51, s51, 10
        s_add_u32 s50, s50, s51
        s_lshl_b32 s51, s48, 17
        s_add_u32 s50, s50, s51
        s_add_u32 s50, s50, {QKV}
        s_lshl_b32 s52, s48, 18
        s_sub_u32 s52, 65536, s52
        s_cmp_ge_u32 s41, {10 if opt('vdef', 1) else 99}
        s_cselect_b32 s98, s50, 0
        s_cselect_b32 s0, 0, {opt('qkfirst', 1)}
        s_mov_b32 s99, s52""")
        CSR = 208; ONES = 72
        for i in range(72): a(f"v_mov_b32 v{ACC+i}, 0")
        for i in range(4): a(f"v_mov_b32 v{ONES+i}, 0x3f803f80")
        self.row_stats_finish(2)
        lg = LG(a)
        def reads(g):
            j = g & 1
            off = ((g >> 1) & 1) * 32768
            fb = FR + 32 * (g & 1)
            W = lambda i: [(f"ds_read_b64_tr_b16 {vr(fb+16+4*i, 2)}, v{WA+i} offset:{off+32*j*256}", None),
                           (f"ds_read_b64_tr_b16 {vr(fb+18+4*i, 2)}, v{WA+i} offset:{off+(32*j+4)*256}", ('W', g & 3, i))]
            X = lambda i: [(f"ds_read_b128 {vr(fb+4*i)}, v{XA+j} offset:{off+2048*i}", ('X', g & 3, i))]
            return W(0) + X(0) + W(1) + W(2) + W(3) + X(1) + X(2) + X(3)
        self.stamp('preb0')
        self.bar()
        self.stamp('b0')
        for r in reads(0): lg.op(*r)
        MR = 80
        csm = lambda fb, e: a(f"v_mfma_f32_16x16x32_bf16 {vr(CSR+4*e)}, {vr(fb+16+4*e)}, {vr(ONES)}, {vr(CSR+4*e)}")
        CT = opt('cstail', 0)
        for sec, (cnt, cs_on) in enumerate([(4, False), (1, False)] if CT == 2 else [(2, True), (2, False), (1, False)] if CT else [(4, True), (1, True)]):
            last = cnt == 1
            if not last: a(f"s_mov_b32 s51, {cnt}\n.p2align 3\nL_p1_loop{sec}:")
            lg.done = lg.n - 12
            for g in range(4):
                fb = FR + 32 * (g & 1)
                fin = last and g == 3
                nxt = [] if g & 1 else reads(g + 1)
                k = 0
                for n in range(16):
                    mu, nu = (n & 3, n >> 2) if fin else (n >> 2, n & 3)
                    if (g & 1) and n == (2 if LA == 2 else 4) and not fin:
                        if LA == 3: lg.drain()
                        SW = opt('sw', 3)
                        if SW == 2 and g == 3: a("s_waitcnt vmcnt(0)")
                        if SW > 2 and sec == 0 and g == (1 if SW == 3 else 3):
                            a(f"s_cmp_eq_u32 s51, {cnt}\ns_cbranch_scc1 L_p1_nw\ns_waitcnt vmcnt(0)\nL_p1_nw:\ns_nop 0")
                        a("s_barrier")
                        nxt = reads(g + 1)
                    if fin and n == 0:
                        lg.drain()
                        if cs_on: csm(fb, 0); csm(fb, 1)
                    if fin and n == (1 if CT else 4):
                        a("s_mov_b32 exec_lo, 0x00010001\ns_mov_b32 exec_hi, 0x00010001")
                        for e in range(2): lg.op(f"ds_write_b128 v77, {vr(CSR+4*e)} offset:{64*e}")
                        a("s_mov_b64 exec, -1")
                    if fin and n == (6 if CT else 8):
                        lg.drain(); a("s_barrier")
                        nxt = [(f"ds_read_b64 {vr(MR+2*q, 2)}, v76 offset:{128*q}", None) for q in range(4)]
                        nxt += [(f"ds_read_b128 {vr(CSR+8+4*e)}, v79 offset:{64*e}", None) for e in range(2)]
                        if CT: nxt += [(f"ds_read_b128 {vr(88+4*e)}, v{79 if e >> 1 else 77} offset:{512+64*(e&1)}", None) for e in range(4)]
                    ac = ACC + 16 * mu + 4 * nu
                    if n == 0: lg.need(('W', g, 3))
                    if n == 4: lg.need(('X', g, 3))
                    a(f"v_mfma_f32_16x16x32_bf16 {vr(ac)}, {vr(fb+16+4*nu)}, {vr(fb+4*mu)}, {vr(ac)}")
                    if k < len(nxt): lg.op(*nxt[k]); k += 1
                    elif g == 2 and n >= 12 and not last:
                        for r in ([XA, XA+1], [WA, WA+1], [WA+2], [WA+3])[n - 12]: a(f"v_xor_b32 v{r}, 65536, v{r}")
                    if n in (13, 15) and not fin and cs_on: csm(fb, (n - 13) >> 1)
                    if g == 3 and n == 14 and not last: a("s_sub_u32 s51, s51, 1\ns_cmp_lg_u32 s51, 0")
                assert k == len(nxt)
            if not last: a(f"s_cbranch_scc1 L_p1_loop{sec}")
        self.nbar += 10
        lg.drain()
        self.stamp('p1loop')
        a(".p2align 3")
        if CT:
            for h in range(8): a(f"v_pk_add_f32 {vr(CSR+2*h,2)}, {vr(CSR+2*h,2)}, {vr(88+2*h,2)}")
        PK = 104
        n = 0
        for nu in range(4):
            for p in range(2):
                pk = PK + 4 * (n % 8); n += 1
                tiles = [(ACC + 16 * (2 * p + e) + 4 * nu, 2 * p + e) for e in range(2)]
                for ac, mu in tiles:
                    for h in range(2):
                        a(f"v_pk_fma_f32 {vr(ac+2*h,2)}, {vr(CSR+4*nu+2*h,2)}, {vr(MR+2*mu,2)}, {vr(ac+2*h,2)} op_sel_hi:[1,0,1] neg_lo:[0,1,0] neg_hi:[0,1,0]")
                for ac, mu in tiles:
                    for h in range(2):
                        a(f"v_pk_mul_f32 {vr(ac+2*h,2)}, {vr(ac+2*h,2)}, {vr(MR+2*mu,2)} op_sel:[0,1] op_sel_hi:[1,1]")
                for h in range(2):
                    for e, (ac, mu) in enumerate(tiles):
                        a(f"v_cvt_pk_bf16_f32 v{pk+2*e+h}, v{ac+2*h}, v{ac+2*h+1}")
                a(f"v_permlane16_swap_b32 v{pk}, v{pk+2}\ns_nop 0\nv_permlane16_swap_b32 v{pk+1}, v{pk+3}\ns_nop 0")
                a(f"buffer_store_dwordx4 {vr(pk)}, v66, {WS}, s50 offen offset:{512*p} sc1")
            if nu < 3: a("s_add_u32 s50, s50, s52\ns_nop 0" if nu == 1 else "s_add_u32 s50, s50, 65536")
        self.stamp('p1epi')
        assert self.nbar == nb_h, (self.nbar, nb_h)
        a("L_p1_join:")
        a.settle(3)

    def p1_vstores(self):
        a = self.a
        a("s_cmp_eq_u32 s98, 0\ns_cbranch_scc1 L_p1_nov")
        for nu in range(4):
            for p in range(2):
                a(f"buffer_store_dwordx4 {vr(104+8*nu+4*p)}, v78, {WS}, s98 offen offset:{512*p} sc1")
            if nu < 3: a("s_add_u32 s98, s98, s99" if nu == 1 else "s_add_u32 s98, s98, 65536")
        a("L_p1_nov:")

    def build(self):
        a = self.a
        a.raw(f"; @launch grid=(256,1,1) block=(512,1,1) lds={LDS_BYTES}")
        a.raw("""; One workgroup per CU runs five phases; waves 0-3 compute and waves 4-7 feed LDS (all eight compute in P2).
;      (must lie in [2^-64, 2^64]) sends the wave to L_p2_slow, which subtracts the row's true max.
; Nothing depends on XCD placement except speed; every spin is bounded.""")
        a.raw(f'.amdgcn_target "amdgcn-amd-amdhsa--gfx950"\n.text\n.globl {NAME}_kernel\n.p2align {KALIGN}\n.type {NAME}_kernel,@function\n{NAME}_kernel:')
        self.p0()
        self.p1()
        if self.upto >= 2: self.p2()
        else: self.p1_vstores(); self.finish(M_S1, 'p1st')
        if self.upto >= 3: self.tail345()
        a("L_end:\ns_endpgm")
        self.spare_code()
        i = 0
        while i < len(self.tail):
            self.tail[i](); i += 1
        a("L_code_end:")
        a.raw(f""".section .rodata,"a"
.p2align 6
.amdhsa_kernel {NAME}_kernel
  .amdhsa_next_free_vgpr 256
  .amdhsa_next_free_sgpr 102
  .amdhsa_accum_offset 256
  .amdhsa_group_segment_fixed_size 0
  .amdhsa_kernarg_size 80
  .amdhsa_user_sgpr_count 2
  .amdhsa_user_sgpr_kernarg_segment_ptr 1
  .amdhsa_system_sgpr_workgroup_id_x 1
.end_amdhsa_kernel""")
        return a.text()

def add_islands(text):
    import subprocess, re, tempfile, os
    lines = text.split('\n')
    tmp = re.sub(r'L_iw_\d+', 'L_iw_end', text)
    d = tempfile.mkdtemp()
    open(d + '/a.s', 'w').write(tmp)
    subprocess.run(['clang', '-x', 'assembler', '-target', 'amdgcn-amd-amdhsa', '-mcpu=gfx950', '-c', d + '/a.s', '-o', d + '/a.o'], check=True)
    dis = subprocess.run(['llvm-objdump', '-d', '--mcpu=gfx950', d + '/a.o'], capture_output=True, text=True).stdout
    ins = [(int(m.group(2), 16), m.group(1)) for m in re.finditer(r'^\t(\S+).*// ([0-9A-F]{12}):', dis, re.M)]
    out = []; k = 0; shift = 0; page = opt('iw0', 2); n = 0; stop = False
    for ln in lines:
        t = ln.strip()
        isins = ln.startswith('    ') and t and not t.startswith(('.', ';'))
        if t == 'L_end:': stop = True
        if isins:
            mn = re.sub(r'_(e32|e64)$', '', t.split()[0])
            while re.sub(r'_(e32|e64)$', '', ins[k][1]) != mn:
                assert ins[k][1] == 's_nop', (ins[k], t)
                k += 1
            addr = ins[k][0] + shift; k += 1
            if addr >= page * 4096 and not stop:
                assert addr < page * 4096 + 32
                out += [f'L_iw_{n}:', f'    s_cbranch_execz L_iw_{n+4}', '    s_nop 0']
                n += 1; shift += 8; page += 1
        out.append(ln)
    res = '\n'.join(out)
    for j in range(n, n + 4): res = res.replace(f's_cbranch_execz L_iw_{j}\n', 's_cbranch_execz L_iw_end\n')
    return res

from phases import install
install(Gen, globals())
if opt('p1n', 0):
    import p1new
    p1new.install(Gen, globals())

if __name__ == '__main__':
    upto = int(sys.argv[1]) if len(sys.argv) > 1 else 5
    out = sys.argv[2] if len(sys.argv) > 2 else 'k.s'
    g = Gen(upto=upto, stamps=('stamps' in sys.argv))
    txt = g.build()
    if opt('iw', 0): txt = add_islands(txt)
    open(out, 'w').write(txt)
    open(out + '.stamps', 'w').write('\n'.join(g.stamp_names))
    print("wrote", out, "pads", g.a.pad_count)
```
